```python
import torch

def _softmax(x, axis=-1):
    return torch.softmax(x, dim=axis)
def _gelu(x):
    return torch.nn.functional.gelu(x, approximate="tanh")
def _silu(x):
    return torch.nn.functional.silu(x)
def _sigmoid(x):
    return torch.sigmoid(x)
def _layernorm(x, axis=-1, eps=1e-5):
    m = x.mean(dim=axis, keepdim=True)
    v = x.var(dim=axis, keepdim=True, unbiased=False)
    return (x - m) / torch.sqrt(v + eps)
def _scatter_add(tgt, idx, src, axis=0):
    return tgt.clone().index_add_(axis, idx, src)
def _segment_sum(src, seg, n):
    out = torch.zeros((n,) + src.shape[1:], dtype=src.dtype)
    return out.index_add_(0, seg, src)
def _pad(x, pw):
    flat = tuple(v for pair in reversed(pw) for v in pair)
    return torch.nn.functional.pad(x, flat)

kernel_name = 'recurrent_scan__mha_block_cached__glu_gated_swiglu__decode'

def setup_inputs():

    _w = (lambda a: (lambda t: t.to(torch.bfloat16) if t.is_floating_point() else t)(torch.as_tensor(a)))
    def _A_setup():
        B, Sq, D = 4, 1, 512
        H, Sk, Dh = 32, 8192, 128
        return {
            "x": _w((lambda *s: torch.randn(*s, dtype=torch.bfloat16) * 0.2)(B, Sq, D)),
            "k_cache": _w((lambda *s: torch.randn(*s, dtype=torch.bfloat16) * 1.6)(B, H, Sk, Dh)),
            "v_cache": _w((lambda *s: torch.randn(*s, dtype=torch.bfloat16) * 1.6)(B, H, Sk, Dh)),
            "wq": _w((lambda *s: torch.randn(*s, dtype=torch.bfloat16) * 1.6)(D, H * Dh) * (D ** -0.5)),
            "wo": _w((lambda *s: torch.randn(*s, dtype=torch.bfloat16) * 1.6)(H * Dh, D) * ((H * Dh) ** -0.5)),
        }
    _A_in = _A_setup()

    def _B_setup():
        B, S, D, F = 4, 1, 512, 1792
        return {
            "x": _w((lambda *s: torch.randn(*s, dtype=torch.bfloat16) * 0.2)(B, S, D)),
            "w1": _w((lambda *s: torch.randn(*s, dtype=torch.bfloat16) * 0.8)(D, F) * (2.0 / D) ** 0.5),
            "w3": _w((lambda *s: torch.randn(*s, dtype=torch.bfloat16) * 0.8)(D, F) * (2.0 / D) ** 0.5),
            "w2": _w((lambda *s: torch.randn(*s, dtype=torch.bfloat16) * 0.8)(F, D) * (2.0 / F) ** 0.5),
        }
    _B_in = _B_setup()

    return {
        "A_x": _A_in["x"],
        "A_k_cache": _A_in["k_cache"],
        "A_v_cache": _A_in["v_cache"],
        "A_wq": _A_in["wq"],
        "A_wo": _A_in["wo"],
        "B_x": _B_in["x"],
        "B_w1": _B_in["w1"],
        "B_w3": _B_in["w3"],
        "B_w2": _B_in["w2"],
    }

def reference(A_x, A_k_cache, A_v_cache, A_wq, A_wo, B_x, B_w1, B_w3, B_w2):
    def _A_ref(x, k_cache, v_cache, wq, wo):
        B, Sq, D = x.shape
        H, Dh = 32, 128
        q = (lambda x, *d: x.permute(*d))((x @ wq).reshape(B, Sq, H, Dh), 0, 2, 1, 3)
        scores = torch.einsum("bhqd,bhkd->bhqk", q, k_cache) * (Dh ** -0.5)
        p = _softmax(scores, axis=-1)
        o = torch.einsum("bhqk,bhkd->bhqd", p, v_cache)
        return (lambda x, *d: x.permute(*d))(o, 0, 2, 1, 3).reshape(B, Sq, H * Dh) @ wo

    def _B_ref(x, w1, w3, w2):
        gate = torch.einsum("bsd,df->bsf", x, w1)
        up = torch.einsum("bsd,df->bsf", x, w3)
        h = _silu(gate) * up
        out = torch.einsum("bsf,fd->bsd", h, w2)
        return out

    x = A_x
    xn = _layernorm(x, axis=-1)
    s = _A_ref(xn, A_k_cache, A_v_cache, A_wq, A_wo)
    g = _silu(_B_ref(xn, B_w1, B_w3, B_w2))
    return x + s * g
```

```python
import sys

NAME = "recurrent_scan__mha_block_cached__glu_gated_swiglu__decode_kernel"

class G:
    def __init__(s):
        s.L = []
        s.n = 0
    def __call__(s, t):
        s.L.append("    " + t)
    def lab(s, t):
        s.L.append(t + ":")
    def c(s, t):
        s.L.append("    ; " + t)
    def uid(s, p):
        s.n += 1
        return f"L_{p}{s.n}"

def gen(d=5, dpro=8, da=3, sb=15, stamps=False, round_scores=True, polk="nt", R=32):
    A = G()
    sX, sK, sV, sWQ, sWO, sW1, sW3, sW2, sOUT, sDBG, sWS = 4, 6, 8, 10, 12, 16, 18, 20, 22, 24, 26
    sWAVE, sB, sH, sSP, sIDX, sJ = 28, 29, 30, 31, 32, 33
    SA, SN, SC, SD_, SE = 36, 40, 44, 48, 52
    sCUR, sNXT, sT, sIT, sT2, sT3 = 56, 57, 58, 59, 60, 61
    sM0, sM1 = 62, 64
    sBASE = 66
    sSPIN = 67
    sST = 70
    vLANE, vOA, vON, vOV, vG, vR = 1, 2, 3, 4, 5, 6
    vT7 = 7
    vMK = 8
    vBQ = 12
    vD0, vD1 = 28, 32
    vS, vM = 36, 37
    vT = 38
    vA0, vA1 = 48, 52
    vP0, vP1 = 56, 57
    vL0, vL1, vL2 = 58, 59, 60
    vST = 62
    SL = 64
    NV = SL + 4 * R
    slot = lambda i: f"v[{SL+4*i}:{SL+4*i+3}]"
    q4 = lambda r: f"v[{r}:{r+3}]"
    L_QP = 0
    L_OP = 2048
    L_FP = 4096
    L_ML = 6144
    L_FW = 6176
    L_CM = 6208
    L_CF = 6212
    L_SC = 8192
    LDS = L_SC + 4 * 16 * 64 * 4
    W_Y, W_Z, W_ML, W_SZ = 0, 0x80000, 0xC0000, 0x100000
    W_ST = 0x200000
    NFFN = 28
    LOG2E = 0x3FB8AA3B
    SCALE = 0x3DB504F3
    SPINMAX = 400000

    def srd(base, ptr, nbytes):
        A(f"s_mov_b32 s{base}, s{ptr}")
        A(f"s_mov_b32 s{base+1}, s{ptr+1}")
        A(f"s_mov_b32 s{base+2}, {hex(nbytes)}")
        A(f"s_mov_b32 s{base+3}, 0x00020000")
    S4 = lambda b: f"s[{b}:{b+3}]"

    def stamp(i):
        if not stamps: return
        A(f"s_memrealtime s[{sST}:{sST+1}]")
        A("s_waitcnt lgkmcnt(0)")
        A(f"v_writelane_b32 v{vST}, s{sST}, {i}")
    def stamp_flush():
        if not stamps: return
        srd(SE, sWS, 0x400000)
        A(f"s_lshl_b32 s{sT}, s2, 3")
        A(f"s_add_u32 s{sT}, s{sT}, s{sWAVE}")
        A(f"s_lshl_b32 s{sT}, s{sT}, 8")
        A(f"s_add_u32 s{sT}, s{sT}, {hex(W_ST)}")
        A(f"v_lshlrev_b32 v{vT7}, 2, v{vLANE}")
        A(f"buffer_store_dword v{vST}, v{vT7}, {S4(SE)}, s{sT} offen")

    def allreduce(op, reg, tmp):
        for n in (8, 4, 2, 1):
            A("s_nop 1")
            A(f"{op}_dpp v{reg}, v{reg}, v{reg} row_ror:{n} row_mask:0xf bank_mask:0xf")
        for sw in ("v_permlane16_swap_b32", "v_permlane32_swap_b32"):
            A("s_nop 1")
            A(f"v_mov_b32 v{tmp}, v{reg}")
            A("s_nop 1")
            A(f"{sw} v{reg}, v{tmp}")
            A("s_nop 1")
            A(f"{op} v{reg}, v{reg}, v{tmp}")

    def rne(reg, tmp):
        A(f"v_cvt_pk_bf16_f32 v{tmp}, v{reg}, v{reg}")
        A(f"v_and_b32 v{reg}, 0xffff0000, v{tmp}")

    def diag(dst, pp, j):
        for m in range(4):
            A(f"v_and_b32_dpp v{dst+m}, v{pp}, v{vMK+m} row_newbcast:{j} row_mask:0xf bank_mask:0xf")

    def silu(reg, t):
        A(f"v_mul_f32 v{t}, {hex(LOG2E | 0x80000000)}, v{reg}")
        A(f"v_exp_f32 v{t}, v{t}")
        A("s_nop 0")
        A(f"v_add_f32 v{t}, 1.0, v{t}")
        A(f"v_rcp_f32 v{t}, v{t}")
        A("s_nop 0")
        A(f"v_mul_f32 v{reg}, v{reg}, v{t}")

    if sb == 15:
        koff = lambda k: ((k & 7) << 12) | ((k >> 3) << 16)
        wsh = 10
    elif sb == 10:
        koff = lambda k: k << 13
        wsh = 11
    elif sb == 20:
        koff = lambda k: k << 12
        wsh = 10
    GSTR = (1 << 17) if sb != 20 else (1 << 16)

    A("s_cmp_ge_u32 s2, 256")
    A("s_cbranch_scc1 L_end")
    A("s_load_dwordx16 s[4:19], s[0:1], 0")
    A("s_load_dwordx8 s[20:27], s[0:1], 64")
    A(f"v_lshrrev_b32 v{vT7}, 6, v0")
    A(f"v_and_b32 v{vLANE}, 63, v0")
    A(f"v_readfirstlane_b32 s{sWAVE}, v{vT7}")
    A(f"v_lshrrev_b32 v{vG}, 4, v{vLANE}")
    A(f"v_and_b32 v{vR}, 15, v{vLANE}")
    A(f"s_lshr_b32 s{sB}, s2, 6")
    A(f"s_and_b32 s{sIDX}, s2, 63")
    A(f"s_bfe_u32 s{sSP}, s2, {(1<<16)|3}")
    A(f"s_bfe_u32 s{sT}, s2, {(2<<16)|4}")
    A(f"s_lshl_b32 s{sT}, s{sT}, 3")
    A(f"s_and_b32 s{sH}, s2, 7")
    A(f"s_or_b32 s{sH}, s{sH}, s{sT}")
    if stamps:
        A(f"v_mov_b32 v{vST}, 0")
    A(f"s_cmp_ge_u32 s{sWAVE}, 4")
    A("s_cbranch_scc1 L_aux")

    def build_masks():
        A(f"v_and_b32 v{vT}, 1, v{vR}")
        A(f"v_lshlrev_b32 v{vT}, 4, v{vT}")
        A(f"v_mov_b32 v{vT+1}, 0xffff")
        A(f"v_lshlrev_b32 v{vT}, v{vT}, v{vT+1}")
        A(f"v_lshrrev_b32 v{vT+1}, 1, v{vR}")
        for m in range(4):
            A(f"v_cmp_eq_u32 vcc, {m}, v{vT+1}")
            A("s_nop 1")
            A(f"v_cndmask_b32 v{vMK+m}, 0, v{vT}, vcc")

    A.c("---- stream waves ----")
    A(f"v_lshrrev_b32 v{vT}, 2, v{vR}")
    A(f"v_lshlrev_b32 v{vT}, 8, v{vT}")
    A(f"v_and_b32 v{vT+1}, 3, v{vR}")
    A(f"v_lshlrev_b32 v{vT+1}, 4, v{vT+1}")
    A(f"v_lshlrev_b32 v{vT+2}, 6, v{vG}")
    A(f"v_add3_u32 v{vOA}, v{vT}, v{vT+1}, v{vT+2}")
    A(f"v_lshlrev_b32 v{vOV}, 4, v{vLANE}")
    A(f"v_mov_b32 v{vON}, v{vOA}")
    A(f"s_lshl_b32 s{sBASE}, s{sB}, 26")
    A(f"s_lshl_b32 s{sT}, s{sH}, 21")
    A(f"s_or_b32 s{sBASE}, s{sBASE}, s{sT}")
    A(f"s_lshl_b32 s{sT}, s{sSP}, {sb}")
    A(f"s_or_b32 s{sBASE}, s{sBASE}, s{sT}")
    A(f"s_lshl_b32 s{sT}, s{sWAVE}, {wsh}")
    A(f"s_or_b32 s{sBASE}, s{sBASE}, s{sT}")
    A("s_waitcnt lgkmcnt(0)")
    srd(SA, sK, 0x10000000)
    def sload(sl, srdb, voff, sbase, off):
        A(f"s_add_u32 s{sT}, s{sbase}, {hex(off)}")
        A(f"buffer_load_dwordx4 {slot(sl)}, v{voff}, {S4(srdb)}, s{sT} offen {polk}")
    gk = lambda i: (i >> 4) * GSTR + koff(i & 15)
    for i in range(R):
        if i >= dpro:
            A(f"s_waitcnt vmcnt({dpro-1})")
        sload(i, SA, vOA, sBASE, gk(i))
        if i == dpro - 1:
            stamp(0)
            srd(SN, sK, 0x10000000)
            build_masks()
            A(f"v_lshlrev_b32 v{vL0}, 2, v{vLANE}")
            A(f"s_lshl_b32 s{sT2}, s{sWAVE}, 12")
            A(f"s_add_u32 s{sT2}, s{sT2}, {L_SC}")
            A(f"v_add_u32 v{vL0}, s{sT2}, v{vL0}")
            A(f"v_mov_b32 v{vL1}, v{vL0}")
            A(f"v_lshrrev_b32 v{vT}, 2, v{vR}")
            A(f"v_lshlrev_b32 v{vT}, 5, v{vT}")
            A(f"v_lshlrev_b32 v{vL2}, 7, v{vG}")
            A(f"v_add_u32 v{vL2}, v{vL2}, v{vT}")
            A(f"v_mov_b32 v{vM}, 0xff800000")
    stamp(1)
    A("s_barrier")
    stamp(2)
    P = [vBQ, vBQ + 8, vA0, vT + 2]
    for w in range(4):
        A(f"ds_read_b128 {q4(P[w])}, v{vL2} offset:{L_QP + w*512}")
        A(f"ds_read_b128 {q4(P[w]+4)}, v{vL2} offset:{L_QP + w*512 + 16}")
    A("s_waitcnt lgkmcnt(0)")
    for e in range(8):
        A(f"v_add_f32 v{P[0]+e}, v{P[0]+e}, v{P[1]+e}")
        A(f"v_add_f32 v{P[2]+e}, v{P[2]+e}, v{P[3]+e}")
    for e in range(8):
        A(f"v_add_f32 v{P[2]+e}, v{P[0]+e}, v{P[2]+e}")
    for m in range(4):
        A(f"v_cvt_pk_bf16_f32 v{vT+2+m}, v{P[2]+2*m}, v{P[2]+2*m+1}")
    A(f"v_and_b32 v{vT}, 3, v{vR}")
    for t in range(4):
        A(f"v_cmp_eq_u32 vcc, {t}, v{vT}")
        A("s_nop 1")
        for m in range(4):
            A(f"v_cndmask_b32 v{vBQ+4*t+m}, 0, v{vT+2+m}, vcc")
    A("s_nop 1")

    def dpp_gather(u, i):
        D = vD0 if (u & 1) == 0 else vD1
        n = (4 * (u - i)) % 16
        ctrl = "quad_perm:[0,1,2,3]" if n == 0 else f"row_ror:{n}"
        if i == 0:
            A(f"v_mov_b32_dpp v{vS}, v{D} {ctrl} row_mask:0xf bank_mask:{hex(1<<u)}")
        else:
            A(f"v_add_f32_dpp v{vS}, v{D+i}, v{vS} {ctrl} row_mask:0xf bank_mask:{hex(1<<u)}")
    def kgroup(slot0, waitf, issuef):
        for k in range(16):
            u, t = k >> 2, k & 3
            D = vD0 if (u & 1) == 0 else vD1
            waitf(k)
            A(f"v_mfma_f32_16x16x32_bf16 {q4(D)}, {slot(slot0+k)}, {q4(vBQ+4*t)}, {'0' if t==0 else q4(D)}")
            issuef(k)
            if u > 0:
                A("s_nop 6" if t == 0 else "s_nop 0")
                dpp_gather(u - 1, t)
        A("s_nop 7")
        for i in range(4):
            dpp_gather(3, i)
            A("s_nop 1")
        if round_scores:
            rne(vS, vT)
            A(f"v_mul_f32 v{vT+1}, {hex(SCALE)}, v{vS}")
            rne(vT + 1, vT)
        else:
            A(f"v_mul_f32 v{vT+1}, {hex(SCALE)}, v{vS}")
        A(f"v_max_f32 v{vM}, v{vM}, v{vT+1}")
        A(f"ds_write_b32 v{vL1}, v{vT+1}")
        A(f"v_add_u32 v{vL1}, 256, v{vL1}")

    for G0 in range(R // 16):
        def waitf(k, G0=G0):
            i = G0 * 16 + k
            A(f"s_waitcnt vmcnt({min(63, R-1-i + min(i, d))})")
        def issuef(k, G0=G0):
            i = G0 * 16 + k
            if i < d:
                sload(i, SA, vOA, sBASE, gk(R + i))
        kgroup(G0 * 16, waitf, issuef)
    stamp(3)
    A(f"s_add_u32 s{sCUR}, s{sBASE}, {hex((R//16)*GSTR)}")
    A(f"s_mov_b32 s{sIT}, {R//16}")
    def steady_wait(k):
        A(f"s_waitcnt vmcnt({d-1})")
    def steady_issue(k):
        kk = k + d
        if kk < 16:
            sload(kk, SA, vOA, sCUR, koff(kk))
        else:
            sload(kk - 16, SN, vON, sNXT, koff(kk - 16))
    A.lab("L_kloop")
    A(f"s_add_u32 s{sNXT}, s{sCUR}, {hex(GSTR)}")
    A(f"s_cmp_eq_u32 s{sIT}, 15")
    A("s_cbranch_scc0 L_knl")
    A(f"s_mov_b32 s{sNXT}, s{sBASE}")
    A(f"s_mov_b32 s{SN}, s{sV}")
    A(f"s_mov_b32 s{SN+1}, s{sV+1}")
    A(f"v_mov_b32 v{vON}, v{vOV}")
    A.lab("L_knl")
    kgroup(0, steady_wait, steady_issue)
    A(f"s_mov_b32 s{sCUR}, s{sNXT}")
    A(f"s_add_u32 s{sIT}, s{sIT}, 1")
    A(f"s_cmp_lt_u32 s{sIT}, 16")
    A("s_cbranch_scc1 L_kloop")
    stamp(4)
    A(f"s_mov_b32 s{SA}, s{sV}")
    A(f"s_mov_b32 s{SA+1}, s{sV+1}")
    A(f"v_mov_b32 v{vOA}, v{vOV}")
    X = SL + 64
    A("s_waitcnt lgkmcnt(0)")
    for i in range(8):
        A(f"ds_read2st64_b32 v[{X+2*i}:{X+2*i+1}], v{vL0} offset0:{2*i} offset1:{2*i+1}")
    allreduce("v_max_f32", vM, vT)
    A(f"v_mul_f32 v{vT}, {hex(LOG2E)}, v{vM}")
    A(f"s_mov_b32 s{sT2}, {hex(LOG2E)}")
    A("s_waitcnt lgkmcnt(0)")
    for i in range(16):
        A(f"v_sub_f32 v{X+i}, v{X+i}, v{vM}")
    for i in range(16):
        A(f"v_mul_f32 v{X+i}, s{sT2}, v{X+i}")
    for i in range(16):
        A(f"v_exp_f32 v{X+i}, v{X+i}")
    A("s_nop 0")
    for i in range(16):
        A(f"v_cvt_pk_bf16_f32 v{X+16+i}, v{X+i}, v{X+i}")
    for i in range(8):
        A(f"ds_write2st64_b32 v{vL0}, v{X+16+2*i}, v{X+16+2*i+1} offset0:{2*i} offset1:{2*i+1}")
    A(f"v_mov_b32 v{vP1}, v{X+16}")
    for st in (8, 4, 2, 1):
        for i in range(st):
            A(f"v_add_f32 v{X+i}, v{X+i}, v{X+i+st}")
    allreduce("v_add_f32", X, vT)
    A(f"v_mov_b32 v{vT}, v{vM}")
    A(f"v_mov_b32 v{vT+1}, v{X}")
    A(f"s_lshl_b32 s{sT2}, s{sWAVE}, 3")
    A(f"s_add_u32 s{sT2}, s{sT2}, {L_ML}")
    A(f"v_mov_b32 v{vT+2}, s{sT2}")
    A(f"v_mov_b32 v{vT+3}, {L_CM}")
    A(f"v_mov_b32 v{vT+4}, 1")
    A("s_mov_b64 exec, 1")
    A(f"ds_write_b64 v{vT+2}, v[{vT}:{vT+1}]")
    A("s_waitcnt lgkmcnt(0)")
    A(f"ds_add_u32 v{vT+3}, v{vT+4}")
    A("s_mov_b64 exec, -1")
    for i in range(4):
        A(f"v_mov_b32 v{vD0+i}, 0")
    A(f"v_add_u32 v{vL1}, 256, v{vL0}")
    A(f"s_mov_b32 s{sIT}, 0")
    stamp(5)
    A.lab("L_vloop")
    A(f"s_add_u32 s{sNXT}, s{sCUR}, {hex(GSTR)}")
    A(f"s_cmp_eq_u32 s{sIT}, 15")
    A(f"s_cselect_b32 s{sNXT}, 0x40000000, s{sNXT}")
    A("s_waitcnt lgkmcnt(0)")
    A(f"v_mov_b32 v{vP0}, v{vP1}")
    A(f"ds_read_b32 v{vP1}, v{vL1}")
    A(f"v_add_u32 v{vL1}, 256, v{vL1}")
    diag(vA0, vP0, 0)
    for k in range(16):
        Acur = vA0 if (k & 1) == 0 else vA1
        Anxt = vA1 if (k & 1) == 0 else vA0
        if k < 15:
            diag(Anxt, vP0, k + 1)
        A(f"s_waitcnt vmcnt({d-1})")
        A(f"v_mfma_f32_16x16x32_bf16 {q4(vD0)}, {q4(Acur)}, {slot(k)}, {q4(vD0)}")
        steady_issue(k)
    A(f"s_mov_b32 s{sCUR}, s{sNXT}")
    A(f"s_add_u32 s{sIT}, s{sIT}, 1")
    A(f"s_cmp_lt_u32 s{sIT}, 16")
    A("s_cbranch_scc1 L_vloop")
    A(f"v_lshlrev_b32 v{vT}, 5, v{vR}")
    A(f"v_lshlrev_b32 v{vT+1}, 4, v{vG}")
    A(f"s_lshl_b32 s{sT2}, s{sWAVE}, 9")
    A(f"v_add3_u32 v{vT}, v{vT}, v{vT+1}, s{sT2}")
    A("s_mov_b32 exec_hi, 0")
    A("s_nop 1")
    A(f"ds_write_b128 v{vT}, {q4(vD0)} offset:{L_OP}")
    A("s_mov_b64 exec, -1")
    A("s_waitcnt lgkmcnt(0)")
    A("s_barrier")
    stamp(6)
    stamp_flush()
    A("s_endpgm")

    A.lab("L_aux")
    A(f"s_sub_u32 s{sJ}, s{sWAVE}, 4")
    A(f"v_lshlrev_b32 v{vOV}, 4, v{vLANE}")
    A(f"v_lshlrev_b32 v{vT}, 3, v{vR}")
    A(f"v_lshlrev_b32 v{vT+1}, 1, v{vG}")
    A(f"s_lshl_b32 s{sT2}, s{sJ}, 8")
    A(f"v_add3_u32 v{vON}, v{vT}, v{vT+1}, s{sT2}")
    A(f"v_lshlrev_b32 v{vT}, 13, v{vG}")
    A(f"v_lshlrev_b32 v{vT+1}, 4, v{vR}")
    A(f"v_add_u32 v{vOA}, v{vT}, v{vT+1}")
    A(f"s_lshl_b32 s{sT2}, s{sB}, 10")
    A(f"s_lshl_b32 s{sBASE}, s{sJ}, 20")
    A(f"s_lshl_b32 s{sT}, s{sH}, 8")
    A(f"s_add_u32 s{sBASE}, s{sBASE}, s{sT}")
    A("s_waitcnt lgkmcnt(0)")
    srd(SA, sX, 4096)
    srd(SN, sWQ, 0x400000)
    A(f"buffer_load_dwordx4 {q4(vBQ)}, v{vOV}, {S4(SA)}, s{sT2} offen")
    A(f"buffer_load_ushort v{vP0}, v{vON}, {S4(SA)}, s{sT2} offen")
    A(f"buffer_load_ushort v{vP1}, v{vON}, {S4(SA)}, s{sT2} offen offset:128")
    for k in range(32):
        A(f"s_add_u32 s{sT}, s{sBASE}, {hex(k*4*8192)}")
        A(f"buffer_load_dwordx4 {slot(k)}, v{vOA}, {S4(SN)}, s{sT} offen")
    stamp(0)
    build_masks()
    srd(SC, sWS, W_SZ)
    A(f"v_mov_b32 v{vT}, {L_CM}")
    A(f"v_mov_b32 v{vT+2}, 0")
    A(f"v_mov_b32 v{vT+3}, 0")
    A(f"ds_write_b64 v{vT}, v[{vT+2}:{vT+3}]")
    A("s_waitcnt vmcnt(32)")
    F = vBQ + 4
    for m in range(4):
        A(f"v_lshlrev_b32 v{F+2*m}, 16, v{vBQ+m}")
        A(f"v_and_b32 v{F+2*m+1}, 0xffff0000, v{vBQ+m}")
    A(f"v_lshlrev_b32 v{vP0}, 16, v{vP0}")
    A(f"v_lshlrev_b32 v{vP1}, 16, v{vP1}")
    A(f"v_add_f32 v{vT}, v{F}, v{F+1}")
    A(f"v_add_f32 v{vT+1}, v{F+2}, v{F+3}")
    A(f"v_add_f32 v{vT+2}, v{F+4}, v{F+5}")
    A(f"v_add_f32 v{vT+3}, v{F+6}, v{F+7}")
    A(f"v_add_f32 v{vT}, v{vT}, v{vT+1}")
    A(f"v_add_f32 v{vT+2}, v{vT+2}, v{vT+3}")
    A(f"v_add_f32 v{vT}, v{vT}, v{vT+2}")
    allreduce("v_add_f32", vT, vT + 1)
    A(f"v_mul_f32 v{vT}, 0x3b000000, v{vT}")
    for e in range(8):
        A(f"v_sub_f32 v{F+e}, v{F+e}, v{vT}")
    A(f"v_mul_f32 v{vT+2}, v{F}, v{F}")
    for e in range(1, 8):
        A(f"v_fmac_f32 v{vT+2}, v{F+e}, v{F+e}")
    allreduce("v_add_f32", vT + 2, vT + 1)
    A(f"v_mul_f32 v{vT+2}, 0x3b000000, v{vT+2}")
    rne(vT, vT + 1)
    rne(vT + 2, vT + 1)
    A(f"v_add_f32 v{vT+2}, 0x3727c5ac, v{vT+2}")
    rne(vT + 2, vT + 1)
    A(f"v_sqrt_f32 v{vT+2}, v{vT+2}")
    A("s_nop 0")
    rne(vT + 2, vT + 1)
    A(f"v_rcp_f32 v{vT+3}, v{vT+2}")
    for p in (vP0, vP1):
        A(f"v_sub_f32 v{p}, v{p}, v{vT}")
        rne(p, vT + 1)
        A(f"v_mul_f32 v{vT+4}, v{p}, v{vT+3}")
        A(f"v_fma_f32 v{vT+5}, -v{vT+4}, v{vT+2}, v{p}")
        A(f"v_fmac_f32 v{vT+4}, v{vT+5}, v{vT+3}")
        A(f"v_cvt_pk_bf16_f32 v{p}, v{vT+4}, v{vT+4}")
    A(f"v_lshlrev_b32 v{vT}, 5, v{vR}")
    A(f"v_lshlrev_b32 v{vT+1}, 4, v{vG}")
    A(f"s_lshl_b32 s{sT2}, s{sJ}, 9")
    A(f"v_add3_u32 v{vL0}, v{vT}, v{vT+1}, s{sT2}")
    stamp(1)

    def gemv(n, pps, waitf, issuef=None, slotf=lambda k: k):
        diag(vA0, pps[0], 0)
        for k in range(n):
            Acur = vA0 if (k & 1) == 0 else vA1
            Anxt = vA1 if (k & 1) == 0 else vA0
            if k + 1 < n:
                diag(Anxt, pps[(k + 1) >> 4], (k + 1) & 15)
            else:
                A("s_nop 1")
            waitf(k)
            A(f"v_mfma_f32_16x16x32_bf16 {q4(vD0)}, {q4(Acur)}, {slot(slotf(k))}, {'0' if k==0 else q4(vD0)}")
            if issuef: issuef(k)
        A("s_nop 7")

    gemv(32, (vP0, vP1), lambda k: A(f"s_waitcnt vmcnt({31-k})"))
    A("s_mov_b32 exec_hi, 0")
    A(f"ds_write_b128 v{vL0}, {q4(vD0)} offset:{L_QP}")
    A("s_mov_b64 exec, -1")
    A("s_waitcnt lgkmcnt(0)")
    stamp(2)
    A("s_barrier")
    stamp(3)
    A(f"s_cmp_eq_u32 s{sJ}, 3")
    A("s_cbranch_scc0 L_noclr")
    for i in range(4):
        A(f"v_mov_b32 v{vBQ+i}, -1")
    A(f"s_lshl_b32 s{sT}, s2, 11")
    A(f"buffer_store_dwordx4 {q4(vBQ)}, v{vOV}, {S4(SC)}, s{sT} offen sc1")
    A(f"buffer_store_dwordx4 {q4(vBQ)}, v{vOV}, {S4(SC)}, s{sT} offen offset:1024 sc1")
    A(f"s_cmp_lt_u32 s{sIDX}, {NFFN}")
    A("s_cbranch_scc0 L_noclrz")
    A(f"s_lshl_b32 s{sT}, s{sB}, 5")
    A(f"s_add_u32 s{sT}, s{sT}, s{sIDX}")
    A(f"s_lshl_b32 s{sT}, s{sT}, 11")
    A(f"s_add_u32 s{sT}, s{sT}, {hex(W_Z)}")
    A(f"buffer_store_dwordx4 {q4(vBQ)}, v{vOV}, {S4(SC)}, s{sT} offen sc1")
    A(f"buffer_store_dwordx4 {q4(vBQ)}, v{vOV}, {S4(SC)}, s{sT} offen offset:1024 sc1")
    A.lab("L_noclrz")
    A(f"s_lshl_b32 s{sT}, s2, 6")
    A(f"s_add_u32 s{sT}, s{sT}, {hex(W_ML)}")
    A("s_mov_b64 exec, 1")
    A(f"buffer_store_dwordx2 v[{vBQ}:{vBQ+1}], v{vOV}, {S4(SC)}, s{sT} offen sc1")
    A("s_waitcnt vmcnt(0)")
    srd(SD_, sDBG, 256)
    A(f"v_mov_b32 v{vT}, 1")
    A(f"buffer_atomic_add v{vT}, v{vOV}, {S4(SD_)}, 0 offen sc1")
    A("s_mov_b64 exec, -1")
    A.lab("L_noclr")

    def lds_wait(addr, val, tag):
        lab = A.uid("lw")
        A(f"v_mov_b32 v{vT}, {addr}")
        A(f"s_mov_b32 s{sSPIN}, 0")
        A.lab(lab)
        A(f"ds_read_b32 v{vT+1}, v{vT}")
        A("s_waitcnt lgkmcnt(0)")
        A(f"v_readfirstlane_b32 s{sT}, v{vT+1}")
        A(f"s_add_u32 s{sSPIN}, s{sSPIN}, 1")
        A(f"s_cmp_ge_u32 s{sT}, {val}")
        A(f"s_cbranch_scc1 {lab}_ok")
        A("s_sleep 4")
        A(f"s_cmp_lt_u32 s{sSPIN}, {SPINMAX}")
        A(f"s_cbranch_scc1 {lab}")
        A.lab(lab + "_ok")

    def rows512_off():
        A(f"v_lshlrev_b32 v{vT}, 10, v{vG}")
        A(f"v_lshlrev_b32 v{vT+1}, 4, v{vR}")
        A(f"v_add_u32 v{vOA}, v{vT}, v{vT+1}")

    A(f"s_cmp_lt_u32 s{sIDX}, {NFFN}")
    A("s_cbranch_scc0 L_noffn")
    srd(SA, sW1, 512 * 1792 * 2)
    srd(SN, sW3, 512 * 1792 * 2)
    A(f"v_mul_u32_u24 v{vT}, 3584, v{vG}")
    A(f"v_and_b32 v{vT+1}, 7, v{vR}")
    A(f"v_lshlrev_b32 v{vT+1}, 4, v{vT+1}")
    A(f"v_add_u32 v{vOA}, v{vT}, v{vT+1}")
    A(f"s_mul_i32 s{sBASE}, s{sJ}, {128*3584}")
    A(f"s_lshl_b32 s{sT}, s{sIDX}, 7")
    A(f"s_add_u32 s{sBASE}, s{sBASE}, s{sT}")
    A(f"s_mov_b32 s{sM0}, 0x00ff00ff")
    A(f"s_mov_b32 s{sM0+1}, 0x00ff00ff")
    A(f"s_mov_b32 s{sM1}, 0xff00ff00")
    A(f"s_mov_b32 s{sM1+1}, 0xff00ff00")
    A("s_waitcnt vmcnt(0)")
    def f1load(k):
        A(f"s_add_u32 s{sT}, s{sBASE}, {hex(k*4*3584)}")
        A(f"s_mov_b64 exec, s[{sM0}:{sM0+1}]")
        A(f"buffer_load_dwordx4 {slot(k)}, v{vOA}, {S4(SA)}, s{sT} offen")
        A(f"s_mov_b64 exec, s[{sM1}:{sM1+1}]")
        A(f"buffer_load_dwordx4 {slot(k)}, v{vOA}, {S4(SN)}, s{sT} offen")
        A("s_mov_b64 exec, -1")
    for k in range(da): f1load(k)
    gemv(32, (vP0, vP1),
         lambda k: A(f"s_waitcnt vmcnt({2*min(da-1, 31-k)})"),
         lambda k: f1load(k + da) if k + da < 32 else None)
    A("s_mov_b32 exec_hi, 0")
    A(f"ds_write_b128 v{vL0}, {q4(vD0)} offset:{L_FP}")
    A("s_mov_b64 exec, 1")
    A(f"v_mov_b32 v{vT}, {L_CF}")
    A(f"v_mov_b32 v{vT+1}, 1")
    A("s_waitcnt lgkmcnt(0)")
    A(f"ds_add_u32 v{vT}, v{vT+1}")
    A("s_mov_b64 exec, -1")
    srd(SA, sW2, 1792 * 512 * 2)
    rows512_off()
    A(f"s_lshl_b32 s{sBASE}, s{sIDX}, 16")
    A(f"s_lshl_b32 s{sT}, s{sJ}, 8")
    A(f"s_add_u32 s{sBASE}, s{sBASE}, s{sT}")
    def r512load(k, srdb):
        A(f"s_add_u32 s{sT}, s{sBASE}, {hex(k*4096)}")
        A(f"buffer_load_dwordx4 {slot(k)}, v{vOA}, {S4(srdb)}, s{sT} offen")
    for k in range(da): r512load(k, SA)
    lds_wait(L_CF, 4, "cf")
    A(f"v_lshlrev_b32 v{vT}, 4, v{vR}")
    A(f"v_lshlrev_b32 v{vT+1}, 2, v{vG}")
    A(f"v_add_u32 v{vT}, v{vT}, v{vT+1}")
    for w in range(4):
        A(f"ds_read_b32 v{vBQ+w}, v{vT} offset:{L_FP + w*512}")
        A(f"ds_read_b32 v{vBQ+4+w}, v{vT} offset:{L_FP + w*512 + 256}")
    A("s_waitcnt lgkmcnt(0)")
    for b0 in (vBQ, vBQ + 4):
        A(f"v_add_f32 v{b0}, v{b0}, v{b0+1}")
        A(f"v_add_f32 v{b0+2}, v{b0+2}, v{b0+3}")
        A(f"v_add_f32 v{b0}, v{b0}, v{b0+2}")
        rne(b0, vT + 1)
    silu(vBQ, vT + 1)
    rne(vBQ, vT + 1)
    A(f"v_mul_f32 v{vBQ}, v{vBQ}, v{vBQ+4}")
    A(f"v_cvt_pk_bf16_f32 v{vBQ+8}, v{vBQ}, v{vBQ}")
    A("s_nop 1")
    gemv(16, (vBQ + 8,),
         lambda k: A(f"s_waitcnt vmcnt({min(da-1, 15-k)})"),
         lambda k: r512load(k + da, SA) if k + da < 16 else None)
    for i in range(4):
        A(f"v_min_u32 v{vD0+i}, -2, v{vD0+i}")
    A(f"s_lshl_b32 s{sT}, s{sB}, 5")
    A(f"s_add_u32 s{sT}, s{sT}, s{sIDX}")
    A(f"s_lshl_b32 s{sT}, s{sT}, 11")
    A(f"s_add_u32 s{sT}, s{sT}, {hex(W_Z)}")
    A("s_mov_b32 exec_hi, 0")
    A(f"buffer_store_dwordx4 {q4(vD0)}, v{vL0}, {S4(SC)}, s{sT} offen sc1")
    A("s_mov_b64 exec, -1")
    A.lab("L_noffn")
    stamp(4)
    srd(SN, sWO, 0x400000)
    rows512_off()
    A(f"s_lshl_b32 s{sBASE}, s{sH}, 17")
    A(f"s_lshl_b32 s{sT}, s{sJ}, 8")
    A(f"s_add_u32 s{sBASE}, s{sBASE}, s{sT}")
    for k in range(32):
        if k >= da: A(f"s_waitcnt vmcnt({da-1})")
        r512load(k, SN)
    A("s_waitcnt vmcnt(0)")
    stamp(5)
    vPO = NV
    vGt = NV + 8
    vXr = NV + 12
    NV2 = NV + 16
    A(f"v_lshrrev_b32 v{vT}, 3, v{vLANE}")
    A(f"v_lshlrev_b32 v{vT}, 11, v{vT}")
    A(f"v_and_b32 v{vT+1}, 7, v{vLANE}")
    A(f"v_lshlrev_b32 v{vT+2}, 4, v{vT+1}")
    A(f"v_add_u32 v{vPO}, v{vT}, v{vT+2}")
    for n in range(1, 8):
        A(f"v_add_u32 v{vPO+n}, {hex(n*16384)}, v{vPO}")
    A(f"v_lshlrev_b32 v{vL1}, 3, v{vT+1}")
    A(f"s_cmp_eq_u32 s{sJ}, 3")
    A("s_cbranch_scc0 L_bar2")
    srd(SD_, sDBG, 256)
    A(f"v_mov_b32 v{vT}, 0")
    A(f"s_mov_b32 s{sSPIN}, 0")
    A.lab("L_c0")
    A(f"buffer_load_dword v{vT+1}, v{vT}, {S4(SD_)}, 0 offen sc1")
    A("s_waitcnt vmcnt(0)")
    A(f"v_readfirstlane_b32 s{sT}, v{vT+1}")
    A(f"s_add_u32 s{sSPIN}, s{sSPIN}, 1")
    A(f"s_cmp_ge_u32 s{sT}, 256")
    A("s_cbranch_scc1 L_c0_ok")
    A("s_sleep 8")
    A(f"s_cmp_lt_u32 s{sSPIN}, {SPINMAX}")
    A("s_cbranch_scc1 L_c0")
    A.lab("L_c0_ok")

    def poll(nload, regs, voffs, soff, tag, sleep):
        lab = A.uid("pl")
        A(f"s_mov_b32 s{sSPIN}, 0")
        A.lab(lab)
        for n in range(nload):
            A(f"buffer_load_dwordx4 {q4(regs+4*n)}, v{voffs[n]}, {S4(SC)}, s{soff} offen sc1")
        A(f"s_add_u32 s{sSPIN}, s{sSPIN}, 1")
        for n in range(nload):
            A(f"s_waitcnt vmcnt({nload-1-n})")
            r = regs + 4 * n
            if n == 0:
                A(f"v_max3_u32 v{vT}, v{r}, v{r+1}, v{r+2}")
                A(f"v_max_u32 v{vT}, v{vT}, v{r+3}")
            else:
                A(f"v_max3_u32 v{vT}, v{vT}, v{r}, v{r+1}")
                A(f"v_max3_u32 v{vT}, v{vT}, v{r+2}, v{r+3}")
        A(f"v_cmp_eq_u32 vcc, -1, v{vT}")
        A("s_nop 1")
        A("s_cmp_eq_u64 vcc, 0")
        A(f"s_cbranch_scc1 {lab}_ok")
        if sleep: A(f"s_sleep {sleep}")
        A(f"s_cmp_lt_u32 s{sSPIN}, {SPINMAX}")
        A(f"s_cbranch_scc1 {lab}")
        A.lab(lab + "_ok")

    def reduce_rows(regs, nload):
        n = nload
        while n > 1:
            h = n // 2
            for a in range(h):
                for i in range(4):
                    A(f"v_add_f32 v{regs+4*a+i}, v{regs+4*a+i}, v{regs+4*(a+h)+i}")
            n = h
        A("s_nop 1")
        for i in range(4):
            A(f"v_add_f32_dpp v{regs+i}, v{regs+i}, v{regs+i} row_ror:8 row_mask:0xf bank_mask:0xf")
        for sw in ("v_permlane16_swap_b32", "v_permlane32_swap_b32"):
            for i in range(4):
                A(f"v_mov_b32 v{regs+4+i}, v{regs+i}")
            A("s_nop 1")
            for i in range(4):
                A(f"{sw} v{regs+i}, v{regs+4+i}")
            A("s_nop 1")
            for i in range(4):
                A(f"v_add_f32 v{regs+i}, v{regs+i}, v{regs+4+i}")

    A(f"s_cmp_ge_u32 s{sIDX}, 48")
    A("s_cbranch_scc0 L_nocons1")
    srd(SA, sX, 4096)
    A(f"s_sub_u32 s{sT2}, s{sIDX}, 48")
    A(f"s_lshl_b32 s{sT3}, s{sT2}, 6")
    A(f"s_lshl_b32 s{sT}, s{sB}, 10")
    A(f"s_add_u32 s{sT3}, s{sT3}, s{sT}")
    A(f"buffer_load_dwordx2 v[{vXr}:{vXr+1}], v{vL1}, {S4(SA)}, s{sT3} offen")
    A(f"v_cmp_gt_u32 vcc, {(NFFN-24)*8}, v{vLANE}")
    A(f"v_mov_b32 v{vT+3}, 0x40000000")
    A("s_nop 0")
    A(f"v_cndmask_b32 v{vL2}, v{vT+3}, v{vPO+3}, vcc")
    A(f"s_lshl_b32 s{sCUR}, s{sB}, 16")
    A(f"s_lshl_b32 s{sT}, s{sT2}, 7")
    A(f"s_add_u32 s{sCUR}, s{sCUR}, s{sT}")
    A(f"s_add_u32 s{sCUR}, s{sCUR}, {hex(W_Z)}")
    poll(4, vBQ, [vPO, vPO + 1, vPO + 2, vL2], sCUR, "z", 8)
    reduce_rows(vBQ, 4)
    for i in range(4):
        rne(vBQ + i, vT + 1)
        silu(vBQ + i, vT + 1)
        rne(vBQ + i, vT + 1)
        A(f"v_mov_b32 v{vGt+i}, v{vBQ+i}")
    A(f"v_and_b32 v{vXr+3}, 0xffff0000, v{vXr+1}")
    A(f"v_lshlrev_b32 v{vXr+2}, 16, v{vXr+1}")
    A(f"v_and_b32 v{vXr+1}, 0xffff0000, v{vXr}")
    A(f"v_lshlrev_b32 v{vXr}, 16, v{vXr}")
    A(f"s_lshl_b32 s{sCUR}, s{sB}, 17")
    A(f"s_lshl_b32 s{sT}, s{sT2}, 7")
    A(f"s_add_u32 s{sCUR}, s{sCUR}, s{sT}")
    A.lab("L_nocons1")
    stamp(6)
    lds_wait(L_CM, 4, "cm")
    A(f"v_mov_b32 v{vT}, {L_ML}")
    A(f"ds_read_b128 {q4(vBQ)}, v{vT}")
    A(f"ds_read_b128 {q4(vBQ+4)}, v{vT} offset:16")
    A("s_waitcnt lgkmcnt(0)")
    A(f"v_max_f32 v{vBQ+8}, v{vBQ}, v{vBQ+2}")
    A(f"v_max3_f32 v{vBQ+8}, v{vBQ+8}, v{vBQ+4}, v{vBQ+6}")
    A(f"v_mov_b32 v{vBQ+9}, 0")
    A(f"s_mov_b32 s{sT2}, {hex(LOG2E)}")
    for w in range(4):
        A(f"v_sub_f32 v{vT}, v{vBQ+2*w}, v{vBQ+8}")
        A(f"v_mul_f32 v{vT}, s{sT2}, v{vT}")
        A(f"v_exp_f32 v{vT}, v{vT}")
        A("s_nop 0")
        A(f"v_fmac_f32 v{vBQ+9}, v{vT}, v{vBQ+2*w+1}")
    A(f"v_min_u32 v{vBQ+10}, -2, v{vBQ+8}")
    A(f"v_min_u32 v{vBQ+11}, -2, v{vBQ+9}")
    A(f"v_mov_b32 v{vT+2}, 0")
    A(f"s_lshl_b32 s{sT}, s2, 6")
    A(f"s_add_u32 s{sT}, s{sT}, {hex(W_ML)}")
    A("s_mov_b64 exec, 1")
    A(f"buffer_store_dwordx2 v[{vBQ+10}:{vBQ+11}], v{vT+2}, {S4(SC)}, s{sT} offen sc1")
    A("s_mov_b64 exec, -1")
    A(f"s_xor_b32 s{sNXT}, s{sT}, {8<<6}")
    A(f"s_mov_b32 s{sSPIN}, 0")
    A.lab("L_ml")
    A(f"buffer_load_dwordx2 v[{vBQ+12}:{vBQ+13}], v{vT+2}, {S4(SC)}, s{sNXT} offen sc1")
    A(f"s_add_u32 s{sSPIN}, s{sSPIN}, 1")
    A("s_waitcnt vmcnt(0)")
    A(f"v_max_u32 v{vT}, v{vBQ+12}, v{vBQ+13}")
    A("s_nop 0")
    A(f"v_readfirstlane_b32 s{sT}, v{vT}")
    A(f"s_cmp_lg_u32 s{sT}, -1")
    A("s_cbranch_scc1 L_ml_ok")
    A("s_sleep 8")
    A(f"s_cmp_lt_u32 s{sSPIN}, {SPINMAX}")
    A("s_cbranch_scc1 L_ml")
    A.lab("L_ml_ok")
    A(f"v_max_f32 v{vBQ+14}, v{vBQ+8}, v{vBQ+12}")
    A(f"v_sub_f32 v{vT}, v{vBQ+8}, v{vBQ+14}")
    A(f"v_sub_f32 v{vT+1}, v{vBQ+12}, v{vBQ+14}")
    A(f"v_mul_f32 v{vT}, s{sT2}, v{vT}")
    A(f"v_mul_f32 v{vT+1}, s{sT2}, v{vT+1}")
    A(f"v_exp_f32 v{vT}, v{vT}")
    A(f"v_exp_f32 v{vT+1}, v{vT+1}")
    A("s_nop 0")
    A(f"v_mul_f32 v{vT}, v{vT}, v{vBQ+9}")
    A(f"v_fmac_f32 v{vT}, v{vT+1}, v{vBQ+13}")
    A(f"v_rcp_f32 v{vT+1}, v{vT}")
    for w in range(4):
        A(f"v_sub_f32 v{vT+2+w}, v{vBQ+2*w}, v{vBQ+14}")
        A(f"v_mul_f32 v{vT+2+w}, s{sT2}, v{vT+2+w}")
        A(f"v_exp_f32 v{vT+2+w}, v{vT+2+w}")
        A("s_nop 0")
        A(f"v_mul_f32 v{vT+2+w}, v{vT+2+w}, v{vT+1}")
    A(f"v_mov_b32 v{vT}, {L_FW}")
    A("s_mov_b64 exec, 1")
    A(f"ds_write_b128 v{vT}, v[{vT+2}:{vT+5}]")
    A("s_mov_b64 exec, -1")
    A("s_waitcnt lgkmcnt(0)")
    A.lab("L_bar2")
    A(f"v_lshlrev_b32 v{vT}, 4, v{vR}")
    A(f"v_lshlrev_b32 v{vT+1}, 2, v{vG}")
    A(f"v_add_u32 v{vT}, v{vT}, v{vT+1}")
    A(f"v_mov_b32 v{vT+1}, {L_FW}")
    A(f"s_lshl_b32 s{sNXT}, s2, 11")
    stamp(7)
    A("s_barrier")
    A(f"ds_read_b128 {q4(vBQ+8)}, v{vT+1}")
    for w in range(4):
        A(f"ds_read_b32 v{vBQ+w}, v{vT} offset:{L_OP + w*512}")
        A(f"ds_read_b32 v{vBQ+4+w}, v{vT} offset:{L_OP + w*512 + 256}")
    A("s_waitcnt lgkmcnt(0)")
    for u, p in ((0, vP0), (1, vP1)):
        A(f"v_mul_f32 v{p}, v{vBQ+4*u}, v{vBQ+8}")
    for w in range(1, 4):
        for u, p in ((0, vP0), (1, vP1)):
            A(f"v_fmac_f32 v{p}, v{vBQ+4*u+w}, v{vBQ+8+w}")
    A(f"v_cvt_pk_bf16_f32 v{vP0}, v{vP0}, v{vP0}")
    A(f"v_cvt_pk_bf16_f32 v{vP1}, v{vP1}, v{vP1}")
    A("s_nop 1")
    gemv(32, (vP0, vP1), lambda k: None)
    for i in range(4):
        A(f"v_min_u32 v{vD0+i}, -2, v{vD0+i}")
    A("s_mov_b32 exec_hi, 0")
    A(f"buffer_store_dwordx4 {q4(vD0)}, v{vL0}, {S4(SC)}, s{sNXT} offen sc1")
    A("s_mov_b64 exec, -1")
    stamp(8)
    A(f"s_cmp_eq_u32 s{sJ}, 3")
    A("s_cbranch_scc0 L_auxend")
    A(f"s_cmp_ge_u32 s{sIDX}, 48")
    A("s_cbranch_scc0 L_auxend")
    srd(SA, sOUT, 4096)
    poll(8, SL, [vPO + n for n in range(8)], sCUR, "y", 1)
    reduce_rows(SL, 8)
    for i in range(4):
        rne(SL + i, vT + i)
    for i in range(4):
        A(f"v_mul_f32 v{SL+i}, v{SL+i}, v{vGt+i}")
    for i in range(4):
        rne(SL + i, vT + i)
    for i in range(4):
        A(f"v_add_f32 v{SL+i}, v{SL+i}, v{vXr+i}")
    A(f"v_cvt_pk_bf16_f32 v{SL+4}, v{SL}, v{SL+1}")
    A(f"v_cvt_pk_bf16_f32 v{SL+5}, v{SL+2}, v{SL+3}")
    A("s_mov_b64 exec, 0xff")
    A(f"buffer_store_dwordx2 v[{SL+4}:{SL+5}], v{vL1}, {S4(SA)}, s{sT3} offen")
    A("s_mov_b64 exec, -1")
    stamp(9)
    A.lab("L_auxend")
    stamp_flush()
    A.lab("L_end")
    A("s_endpgm")

    ref = open("recurrent_scan__mha_block_cached__glu_gated_swiglu__decode.s.ref").read()
    head = ref.split("; @launch")[0]
    nv = (NV2 + 7) // 8 * 8
    out = head
    out += f"; @launch grid=(256,1,1) block=(512,1,1) lds={LDS + 256}\n"
    out += '.amdgcn_target "amdgcn-amd-amdhsa--gfx950"\n.text\n'
    out += f".globl {NAME}\n.p2align 8\n.type {NAME},@function\n{NAME}:\n"
    out += "\n".join(A.L) + "\n"
    out += '.section .rodata,"a"\n.p2align 6\n'
    out += f".amdhsa_kernel {NAME}\n"
    out += f"  .amdhsa_next_free_vgpr {nv}\n  .amdhsa_next_free_sgpr 80\n  .amdhsa_accum_offset {nv}\n"
    out += "  .amdhsa_group_segment_fixed_size 0\n  .amdhsa_kernarg_size 96\n  .amdhsa_user_sgpr_count 2\n"
    out += "  .amdhsa_user_sgpr_kernarg_segment_ptr 1\n  .amdhsa_system_sgpr_workgroup_id_x 1\n.end_amdhsa_kernel\n"
    return out

if __name__ == "__main__":
    fn = sys.argv[1]
    kw = eval("dict(%s)" % (sys.argv[2] if len(sys.argv) > 2 else ""))
    open(fn, "w").write(gen(**kw))
```

```python
import sys

NAME = "recurrent_scan__mha_block_cached__glu_gated_swiglu__decode_kernel"

class G:
    def __init__(s):
        s.L = []
        s.n = 0
    def __call__(s, t):
        s.L.append("    " + t)
    def lab(s, t):
        s.L.append(t + ":")
    def c(s, t):
        s.L.append("    ; " + t)
    def uid(s, p):
        s.n += 1
        return f"L_{p}{s.n}"

def gen(d=5, dpro=8, da=3, sb=15, stamps=False, round_scores=True, polk="nt", R=32, nul_aux=False, nul_wq=False, pola="nt", polq="nt", kcontig=False):
    A = G()
    sX, sK, sV, sWQ, sWO, sW1, sW3, sW2, sOUT, sDBG, sWS = 4, 6, 8, 10, 12, 16, 18, 20, 22, 24, 26
    sWAVE, sB, sH, sSP, sIDX, sJ = 28, 29, 30, 31, 32, 33
    SA, SN, SC, SD_, SE = 36, 40, 44, 48, 52
    sCUR, sNXT, sT, sIT, sT2, sT3 = 56, 57, 58, 59, 60, 61
    sM0, sM1 = 62, 64
    sBASE = 66
    sSPIN = 67
    sST = 70
    vLANE, vOA, vON, vOV, vG, vR = 1, 2, 3, 4, 5, 6
    vT7 = 7
    vMK = 8
    vBQ = 12
    vD0, vD1 = 28, 32
    vS, vM = 36, 37
    vT = 38
    vA0, vA1 = 48, 52
    vP0, vP1 = 56, 57
    vL0, vL1, vL2 = 58, 59, 60
    vST = 62
    SL = 64
    NV = SL + 4 * R
    slot = lambda i: f"v[{SL+4*i}:{SL+4*i+3}]"
    q4 = lambda r: f"v[{r}:{r+3}]"
    L_QP = 0
    L_OP = 2048
    L_FP = 4096
    L_ML = 6144
    L_FW = 6176
    L_CM = 6208
    L_CF = 6212
    L_SC = 8192
    LDS = L_SC + 4 * 16 * 64 * 4
    W_Y, W_Z, W_ML, W_SZ = 0, 0x80000, 0xC0000, 0x100000
    W_ST = 0x200000
    NFFN = 28
    LOG2E = 0x3FB8AA3B
    SCALE = 0x3DB504F3
    SPINMAX = 400000

    def srd(base, ptr, nbytes):
        A(f"s_mov_b32 s{base}, s{ptr}")
        A(f"s_mov_b32 s{base+1}, s{ptr+1}")
        A(f"s_mov_b32 s{base+2}, {hex(nbytes)}")
        A(f"s_mov_b32 s{base+3}, 0x00020000")
    S4 = lambda b: f"s[{b}:{b+3}]"

    def stamp(i):
        if not stamps: return
        A(f"s_memrealtime s[{sST}:{sST+1}]")
        A("s_waitcnt lgkmcnt(0)")
        A(f"v_writelane_b32 v{vST}, s{sST}, {i}")
    def stamp_it(base):
        if not stamps: return
        A(f"s_memrealtime s[{sST}:{sST+1}]")
        A(f"s_add_u32 m0, s{sIT}, {base}")
        A("s_waitcnt lgkmcnt(0)")
        A(f"v_writelane_b32 v{vST}, s{sST}, m0")
    def stamp_flush():
        if not stamps: return
        srd(SE, sWS, 0x400000)
        A(f"s_lshl_b32 s{sT}, s2, 3")
        A(f"s_add_u32 s{sT}, s{sT}, s{sWAVE}")
        A(f"s_lshl_b32 s{sT}, s{sT}, 8")
        A(f"s_add_u32 s{sT}, s{sT}, {hex(W_ST)}")
        A(f"v_lshlrev_b32 v{vT7}, 2, v{vLANE}")
        A(f"buffer_store_dword v{vST}, v{vT7}, {S4(SE)}, s{sT} offen")

    def allreduce(op, reg, tmp):
        for n in (8, 4, 2, 1):
            A("s_nop 1")
            A(f"{op}_dpp v{reg}, v{reg}, v{reg} row_ror:{n} row_mask:0xf bank_mask:0xf")
        for sw in ("v_permlane16_swap_b32", "v_permlane32_swap_b32"):
            A("s_nop 1")
            A(f"v_mov_b32 v{tmp}, v{reg}")
            A("s_nop 1")
            A(f"{sw} v{reg}, v{tmp}")
            A("s_nop 1")
            A(f"{op} v{reg}, v{reg}, v{tmp}")

    def rne(reg, tmp):
        A(f"v_cvt_pk_bf16_f32 v{tmp}, v{reg}, v{reg}")
        A(f"v_and_b32 v{reg}, 0xffff0000, v{tmp}")

    def diag(dst, pp, j):
        for m in range(4):
            A(f"v_and_b32_dpp v{dst+m}, v{pp}, v{vMK+m} row_newbcast:{j} row_mask:0xf bank_mask:0xf")

    def silu(reg, t):
        A(f"v_mul_f32 v{t}, {hex(LOG2E | 0x80000000)}, v{reg}")
        A(f"v_exp_f32 v{t}, v{t}")
        A("s_nop 0")
        A(f"v_add_f32 v{t}, 1.0, v{t}")
        A(f"v_rcp_f32 v{t}, v{t}")
        A("s_nop 0")
        A(f"v_mul_f32 v{reg}, v{reg}, v{t}")

    if sb == 15:
        koff = lambda k: ((k & 7) << 12) | ((k >> 3) << 16)
        wsh = 10
    elif sb == 10:
        koff = lambda k: k << 13
        wsh = 11
    elif sb == 20:
        koff = lambda k: k << 12
        wsh = 10
    GSTR = (1 << 17) if sb != 20 else (1 << 16)

    A("s_cmp_ge_u32 s2, 256")
    A("s_cbranch_scc1 L_end")
    A("s_load_dwordx16 s[4:19], s[0:1], 0")
    A("s_load_dwordx8 s[20:27], s[0:1], 64")
    A(f"v_lshrrev_b32 v{vT7}, 6, v0")
    A(f"v_and_b32 v{vLANE}, 63, v0")
    A(f"v_readfirstlane_b32 s{sWAVE}, v{vT7}")
    A(f"v_lshrrev_b32 v{vG}, 4, v{vLANE}")
    A(f"v_and_b32 v{vR}, 15, v{vLANE}")
    A(f"s_lshr_b32 s{sB}, s2, 6")
    A(f"s_and_b32 s{sIDX}, s2, 63")
    A(f"s_bfe_u32 s{sSP}, s2, {(1<<16)|3}")
    A(f"s_bfe_u32 s{sT}, s2, {(2<<16)|4}")
    A(f"s_lshl_b32 s{sT}, s{sT}, 3")
    A(f"s_and_b32 s{sH}, s2, 7")
    A(f"s_or_b32 s{sH}, s{sH}, s{sT}")
    if stamps:
        A(f"v_mov_b32 v{vST}, 0")
    A(f"s_cmp_ge_u32 s{sWAVE}, 4")
    A("s_cbranch_scc1 L_aux")

    def build_masks():
        A(f"v_and_b32 v{vT}, 1, v{vR}")
        A(f"v_lshlrev_b32 v{vT}, 4, v{vT}")
        A(f"v_mov_b32 v{vT+1}, 0xffff")
        A(f"v_lshlrev_b32 v{vT}, v{vT}, v{vT+1}")
        A(f"v_lshrrev_b32 v{vT+1}, 1, v{vR}")
        for m in range(4):
            A(f"v_cmp_eq_u32 vcc, {m}, v{vT+1}")
            A("s_nop 1")
            A(f"v_cndmask_b32 v{vMK+m}, 0, v{vT}, vcc")

    A.c("---- stream waves ----")
    A(f"v_lshrrev_b32 v{vT}, 2, v{vR}")
    A(f"v_lshlrev_b32 v{vT}, 8, v{vT}")
    A(f"v_and_b32 v{vT+1}, 3, v{vR}")
    A(f"v_lshlrev_b32 v{vT+1}, 4, v{vT+1}")
    A(f"v_lshlrev_b32 v{vT+2}, 6, v{vG}")
    A(f"v_add3_u32 v{vOA}, v{vT}, v{vT+1}, v{vT+2}")
    A(f"v_lshlrev_b32 v{vOV}, 4, v{vLANE}")
    if kcontig: A(f"v_mov_b32 v{vOA}, v{vOV}")
    A(f"v_mov_b32 v{vON}, v{vOA}")
    A(f"s_lshl_b32 s{sBASE}, s{sB}, 26")
    A(f"s_lshl_b32 s{sT}, s{sH}, 21")
    A(f"s_or_b32 s{sBASE}, s{sBASE}, s{sT}")
    A(f"s_lshl_b32 s{sT}, s{sSP}, {sb}")
    A(f"s_or_b32 s{sBASE}, s{sBASE}, s{sT}")
    A(f"s_lshl_b32 s{sT}, s{sWAVE}, {wsh}")
    A(f"s_or_b32 s{sBASE}, s{sBASE}, s{sT}")
    A("s_waitcnt lgkmcnt(0)")
    srd(SA, sK, 0x10000000)
    def sload(sl, srdb, voff, sbase, off):
        A(f"s_add_u32 s{sT}, s{sbase}, {hex(off)}")
        A(f"buffer_load_dwordx4 {slot(sl)}, v{voff}, {S4(srdb)}, s{sT} offen {polk}")
    gk = lambda i: (i >> 4) * GSTR + koff(i & 15)
    for i in range(R):
        if i >= dpro:
            A(f"s_waitcnt vmcnt({dpro-1})")
        sload(i, SA, vOA, sBASE, gk(i))
        if i == dpro - 1:
            stamp(0)
            srd(SN, sK, 0x10000000)
            build_masks()
            A(f"v_lshlrev_b32 v{vL0}, 2, v{vLANE}")
            A(f"s_lshl_b32 s{sT2}, s{sWAVE}, 12")
            A(f"s_add_u32 s{sT2}, s{sT2}, {L_SC}")
            A(f"v_add_u32 v{vL0}, s{sT2}, v{vL0}")
            A(f"v_mov_b32 v{vL1}, v{vL0}")
            A(f"v_lshrrev_b32 v{vT}, 2, v{vR}")
            A(f"v_lshlrev_b32 v{vT}, 5, v{vT}")
            A(f"v_lshlrev_b32 v{vL2}, 7, v{vG}")
            A(f"v_add_u32 v{vL2}, v{vL2}, v{vT}")
            A(f"v_mov_b32 v{vM}, 0xff800000")
    stamp(1)
    A("s_barrier")
    stamp(2)
    P = [vBQ, vBQ + 8, vA0, vT + 2]
    for w in range(4):
        A(f"ds_read_b128 {q4(P[w])}, v{vL2} offset:{L_QP + w*512}")
        A(f"ds_read_b128 {q4(P[w]+4)}, v{vL2} offset:{L_QP + w*512 + 16}")
    A("s_waitcnt lgkmcnt(0)")
    for e in range(8):
        A(f"v_add_f32 v{P[0]+e}, v{P[0]+e}, v{P[1]+e}")
        A(f"v_add_f32 v{P[2]+e}, v{P[2]+e}, v{P[3]+e}")
    for e in range(8):
        A(f"v_add_f32 v{P[2]+e}, v{P[0]+e}, v{P[2]+e}")
    for m in range(4):
        A(f"v_cvt_pk_bf16_f32 v{vT+2+m}, v{P[2]+2*m}, v{P[2]+2*m+1}")
    A(f"v_and_b32 v{vT}, 3, v{vR}")
    for t in range(4):
        A(f"v_cmp_eq_u32 vcc, {t}, v{vT}")
        A("s_nop 1")
        for m in range(4):
            A(f"v_cndmask_b32 v{vBQ+4*t+m}, 0, v{vT+2+m}, vcc")
    A("s_nop 1")

    def dpp_gather(u, i):
        D = vD0 if (u & 1) == 0 else vD1
        n = (4 * (u - i)) % 16
        ctrl = "quad_perm:[0,1,2,3]" if n == 0 else f"row_ror:{n}"
        if i == 0:
            A(f"v_mov_b32_dpp v{vS}, v{D} {ctrl} row_mask:0xf bank_mask:{hex(1<<u)}")
        else:
            A(f"v_add_f32_dpp v{vS}, v{D+i}, v{vS} {ctrl} row_mask:0xf bank_mask:{hex(1<<u)}")
    def kgroup(slot0, waitf, issuef):
        for k in range(16):
            u, t = k >> 2, k & 3
            D = vD0 if (u & 1) == 0 else vD1
            waitf(k)
            A(f"v_mfma_f32_16x16x32_bf16 {q4(D)}, {slot(slot0+k)}, {q4(vBQ+4*t)}, {'0' if t==0 else q4(D)}")
            issuef(k)
            if u > 0:
                A("s_nop 6" if t == 0 else "s_nop 0")
                dpp_gather(u - 1, t)
        A("s_nop 7")
        for i in range(4):
            dpp_gather(3, i)
            A("s_nop 1")
        if round_scores:
            rne(vS, vT)
            A(f"v_mul_f32 v{vT+1}, {hex(SCALE)}, v{vS}")
            rne(vT + 1, vT)
        else:
            A(f"v_mul_f32 v{vT+1}, {hex(SCALE)}, v{vS}")
        A(f"v_max_f32 v{vM}, v{vM}, v{vT+1}")
        A(f"ds_write_b32 v{vL1}, v{vT+1}")
        A(f"v_add_u32 v{vL1}, 256, v{vL1}")

    for G0 in range(R // 16):
        def waitf(k, G0=G0):
            i = G0 * 16 + k
            A(f"s_waitcnt vmcnt({min(63, R-1-i + min(i, d))})")
        def issuef(k, G0=G0):
            i = G0 * 16 + k
            if i < d:
                sload(i, SA, vOA, sBASE, gk(R + i))
        kgroup(G0 * 16, waitf, issuef)
    stamp(3)
    A(f"s_add_u32 s{sCUR}, s{sBASE}, {hex((R//16)*GSTR)}")
    A(f"s_mov_b32 s{sIT}, {R//16}")
    def steady_wait(k):
        A(f"s_waitcnt vmcnt({d-1})")
    def steady_issue(k):
        kk = k + d
        if kk < 16:
            sload(kk, SA, vOA, sCUR, koff(kk))
        else:
            sload(kk - 16, SN, vON, sNXT, koff(kk - 16))
    A.lab("L_kloop")
    A(f"s_add_u32 s{sNXT}, s{sCUR}, {hex(GSTR)}")
    A(f"s_cmp_eq_u32 s{sIT}, 15")
    A("s_cbranch_scc0 L_knl")
    A(f"s_mov_b32 s{sNXT}, s{sBASE}")
    A(f"s_mov_b32 s{SN}, s{sV}")
    A(f"s_mov_b32 s{SN+1}, s{sV+1}")
    A(f"v_mov_b32 v{vON}, v{vOV}")
    A.lab("L_knl")
    kgroup(0, steady_wait, steady_issue)
    stamp_it(16)
    A(f"s_mov_b32 s{sCUR}, s{sNXT}")
    A(f"s_add_u32 s{sIT}, s{sIT}, 1")
    A(f"s_cmp_lt_u32 s{sIT}, 16")
    A("s_cbranch_scc1 L_kloop")
    stamp(4)
    A(f"s_mov_b32 s{SA}, s{sV}")
    A(f"s_mov_b32 s{SA+1}, s{sV+1}")
    A(f"v_mov_b32 v{vOA}, v{vOV}")
    X = SL + 64
    A("s_waitcnt lgkmcnt(0)")
    for i in range(8):
        A(f"ds_read2st64_b32 v[{X+2*i}:{X+2*i+1}], v{vL0} offset0:{2*i} offset1:{2*i+1}")
    allreduce("v_max_f32", vM, vT)
    A(f"v_mul_f32 v{vT}, {hex(LOG2E)}, v{vM}")
    A(f"s_mov_b32 s{sT2}, {hex(LOG2E)}")
    A("s_waitcnt lgkmcnt(0)")
    for i in range(16):
        A(f"v_sub_f32 v{X+i}, v{X+i}, v{vM}")
    for i in range(16):
        A(f"v_mul_f32 v{X+i}, s{sT2}, v{X+i}")
    for i in range(16):
        A(f"v_exp_f32 v{X+i}, v{X+i}")
    A("s_nop 0")
    for i in range(16):
        A(f"v_cvt_pk_bf16_f32 v{X+16+i}, v{X+i}, v{X+i}")
    for i in range(8):
        A(f"ds_write2st64_b32 v{vL0}, v{X+16+2*i}, v{X+16+2*i+1} offset0:{2*i} offset1:{2*i+1}")
    A(f"v_mov_b32 v{vP1}, v{X+16}")
    for st in (8, 4, 2, 1):
        for i in range(st):
            A(f"v_add_f32 v{X+i}, v{X+i}, v{X+i+st}")
    allreduce("v_add_f32", X, vT)
    A(f"v_mov_b32 v{vT}, v{vM}")
    A(f"v_mov_b32 v{vT+1}, v{X}")
    A(f"s_lshl_b32 s{sT2}, s{sWAVE}, 3")
    A(f"s_add_u32 s{sT2}, s{sT2}, {L_ML}")
    A(f"v_mov_b32 v{vT+2}, s{sT2}")
    A(f"v_mov_b32 v{vT+3}, {L_CM}")
    A(f"v_mov_b32 v{vT+4}, 1")
    A("s_mov_b64 exec, 1")
    A(f"ds_write_b64 v{vT+2}, v[{vT}:{vT+1}]")
    A("s_waitcnt lgkmcnt(0)")
    A(f"ds_add_u32 v{vT+3}, v{vT+4}")
    A("s_mov_b64 exec, -1")
    for i in range(4):
        A(f"v_mov_b32 v{vD0+i}, 0")
    A(f"v_add_u32 v{vL1}, 256, v{vL0}")
    A(f"s_mov_b32 s{sIT}, 0")
    stamp(5)
    A.lab("L_vloop")
    A(f"s_add_u32 s{sNXT}, s{sCUR}, {hex(GSTR)}")
    A(f"s_cmp_eq_u32 s{sIT}, 15")
    A(f"s_cselect_b32 s{sNXT}, 0x40000000, s{sNXT}")
    A("s_waitcnt lgkmcnt(0)")
    A(f"v_mov_b32 v{vP0}, v{vP1}")
    A(f"ds_read_b32 v{vP1}, v{vL1}")
    A(f"v_add_u32 v{vL1}, 256, v{vL1}")
    diag(vA0, vP0, 0)
    for k in range(16):
        Acur = vA0 if (k & 1) == 0 else vA1
        Anxt = vA1 if (k & 1) == 0 else vA0
        if k < 15:
            diag(Anxt, vP0, k + 1)
        A(f"s_waitcnt vmcnt({d-1})")
        A(f"v_mfma_f32_16x16x32_bf16 {q4(vD0)}, {q4(Acur)}, {slot(k)}, {q4(vD0)}")
        steady_issue(k)
    stamp_it(32)
    A(f"s_mov_b32 s{sCUR}, s{sNXT}")
    A(f"s_add_u32 s{sIT}, s{sIT}, 1")
    A(f"s_cmp_lt_u32 s{sIT}, 16")
    A("s_cbranch_scc1 L_vloop")
    A(f"v_lshlrev_b32 v{vT}, 5, v{vR}")
    A(f"v_lshlrev_b32 v{vT+1}, 4, v{vG}")
    A(f"s_lshl_b32 s{sT2}, s{sWAVE}, 9")
    A(f"v_add3_u32 v{vT}, v{vT}, v{vT+1}, s{sT2}")
    A("s_mov_b32 exec_hi, 0")
    A("s_nop 1")
    A(f"ds_write_b128 v{vT}, {q4(vD0)} offset:{L_OP}")
    A("s_mov_b64 exec, -1")
    A("s_waitcnt lgkmcnt(0)")
    A("s_barrier")
    stamp(6)
    stamp_flush()
    A("s_endpgm")

    A.lab("L_aux")
    A(f"s_sub_u32 s{sJ}, s{sWAVE}, 4")
    A(f"v_lshlrev_b32 v{vOV}, 4, v{vLANE}")
    A(f"v_lshlrev_b32 v{vT}, 3, v{vR}")
    A(f"v_lshlrev_b32 v{vT+1}, 1, v{vG}")
    A(f"s_lshl_b32 s{sT2}, s{sJ}, 8")
    A(f"v_add3_u32 v{vON}, v{vT}, v{vT+1}, s{sT2}")
    A(f"v_lshlrev_b32 v{vT}, 13, v{vG}")
    A(f"v_lshlrev_b32 v{vT+1}, 4, v{vR}")
    A(f"v_add_u32 v{vOA}, v{vT}, v{vT+1}")
    A(f"s_lshl_b32 s{sT2}, s{sB}, 10")
    A(f"s_lshl_b32 s{sBASE}, s{sJ}, 20")
    A(f"s_lshl_b32 s{sT}, s{sH}, 8")
    A(f"s_add_u32 s{sBASE}, s{sBASE}, s{sT}")
    A("s_waitcnt lgkmcnt(0)")
    srd(SA, sX, 4096)
    srd(SN, sWQ, 0 if nul_wq else 0x400000)
    A(f"buffer_load_dwordx4 {q4(vBQ)}, v{vOV}, {S4(SA)}, s{sT2} offen")
    A(f"buffer_load_ushort v{vP0}, v{vON}, {S4(SA)}, s{sT2} offen")
    A(f"buffer_load_ushort v{vP1}, v{vON}, {S4(SA)}, s{sT2} offen offset:128")
    for k in range(32):
        A(f"s_add_u32 s{sT}, s{sBASE}, {hex(k*4*8192)}")
        A(f"buffer_load_dwordx4 {slot(k)}, v{vOA}, {S4(SN)}, s{sT} offen {polq}")
    stamp(0)
    build_masks()
    srd(SC, sWS, W_SZ)
    A(f"v_mov_b32 v{vT}, {L_CM}")
    A(f"v_mov_b32 v{vT+2}, 0")
    A(f"v_mov_b32 v{vT+3}, 0")
    A(f"ds_write_b64 v{vT}, v[{vT+2}:{vT+3}]")
    A("s_waitcnt vmcnt(32)")
    F = vBQ + 4
    for m in range(4):
        A(f"v_lshlrev_b32 v{F+2*m}, 16, v{vBQ+m}")
        A(f"v_and_b32 v{F+2*m+1}, 0xffff0000, v{vBQ+m}")
    A(f"v_lshlrev_b32 v{vP0}, 16, v{vP0}")
    A(f"v_lshlrev_b32 v{vP1}, 16, v{vP1}")
    A(f"v_add_f32 v{vT}, v{F}, v{F+1}")
    A(f"v_add_f32 v{vT+1}, v{F+2}, v{F+3}")
    A(f"v_add_f32 v{vT+2}, v{F+4}, v{F+5}")
    A(f"v_add_f32 v{vT+3}, v{F+6}, v{F+7}")
    A(f"v_add_f32 v{vT}, v{vT}, v{vT+1}")
    A(f"v_add_f32 v{vT+2}, v{vT+2}, v{vT+3}")
    A(f"v_add_f32 v{vT}, v{vT}, v{vT+2}")
    allreduce("v_add_f32", vT, vT + 1)
    A(f"v_mul_f32 v{vT}, 0x3b000000, v{vT}")
    for e in range(8):
        A(f"v_sub_f32 v{F+e}, v{F+e}, v{vT}")
    A(f"v_mul_f32 v{vT+2}, v{F}, v{F}")
    for e in range(1, 8):
        A(f"v_fmac_f32 v{vT+2}, v{F+e}, v{F+e}")
    allreduce("v_add_f32", vT + 2, vT + 1)
    A(f"v_mul_f32 v{vT+2}, 0x3b000000, v{vT+2}")
    rne(vT, vT + 1)
    rne(vT + 2, vT + 1)
    A(f"v_add_f32 v{vT+2}, 0x3727c5ac, v{vT+2}")
    rne(vT + 2, vT + 1)
    A(f"v_sqrt_f32 v{vT+2}, v{vT+2}")
    A("s_nop 0")
    rne(vT + 2, vT + 1)
    A(f"v_rcp_f32 v{vT+3}, v{vT+2}")
    for p in (vP0, vP1):
        A(f"v_sub_f32 v{p}, v{p}, v{vT}")
        rne(p, vT + 1)
        A(f"v_mul_f32 v{vT+4}, v{p}, v{vT+3}")
        A(f"v_fma_f32 v{vT+5}, -v{vT+4}, v{vT+2}, v{p}")
        A(f"v_fmac_f32 v{vT+4}, v{vT+5}, v{vT+3}")
        A(f"v_cvt_pk_bf16_f32 v{p}, v{vT+4}, v{vT+4}")
    A(f"v_lshlrev_b32 v{vT}, 5, v{vR}")
    A(f"v_lshlrev_b32 v{vT+1}, 4, v{vG}")
    A(f"s_lshl_b32 s{sT2}, s{sJ}, 9")
    A(f"v_add3_u32 v{vL0}, v{vT}, v{vT+1}, s{sT2}")
    stamp(1)

    def gemv(n, pps, waitf, issuef=None, slotf=lambda k: k):
        diag(vA0, pps[0], 0)
        for k in range(n):
            Acur = vA0 if (k & 1) == 0 else vA1
            Anxt = vA1 if (k & 1) == 0 else vA0
            if k + 1 < n:
                diag(Anxt, pps[(k + 1) >> 4], (k + 1) & 15)
            else:
                A("s_nop 1")
            waitf(k)
            A(f"v_mfma_f32_16x16x32_bf16 {q4(vD0)}, {q4(Acur)}, {slot(slotf(k))}, {'0' if k==0 else q4(vD0)}")
            if issuef: issuef(k)
        A("s_nop 7")

    gemv(32, (vP0, vP1), lambda k: A(f"s_waitcnt vmcnt({31-k})"))
    A("s_mov_b32 exec_hi, 0")
    A(f"ds_write_b128 v{vL0}, {q4(vD0)} offset:{L_QP}")
    A("s_mov_b64 exec, -1")
    A("s_waitcnt lgkmcnt(0)")
    stamp(2)
    A("s_barrier")
    stamp(3)
    A(f"s_cmp_eq_u32 s{sJ}, 3")
    A("s_cbranch_scc0 L_noclr")
    for i in range(4):
        A(f"v_mov_b32 v{vBQ+i}, -1")
    A(f"s_lshl_b32 s{sT}, s2, 11")
    A(f"buffer_store_dwordx4 {q4(vBQ)}, v{vOV}, {S4(SC)}, s{sT} offen sc1")
    A(f"buffer_store_dwordx4 {q4(vBQ)}, v{vOV}, {S4(SC)}, s{sT} offen offset:1024 sc1")
    A(f"s_cmp_lt_u32 s{sIDX}, {NFFN}")
    A("s_cbranch_scc0 L_noclrz")
    A(f"s_lshl_b32 s{sT}, s{sB}, 5")
    A(f"s_add_u32 s{sT}, s{sT}, s{sIDX}")
    A(f"s_lshl_b32 s{sT}, s{sT}, 11")
    A(f"s_add_u32 s{sT}, s{sT}, {hex(W_Z)}")
    A(f"buffer_store_dwordx4 {q4(vBQ)}, v{vOV}, {S4(SC)}, s{sT} offen sc1")
    A(f"buffer_store_dwordx4 {q4(vBQ)}, v{vOV}, {S4(SC)}, s{sT} offen offset:1024 sc1")
    A.lab("L_noclrz")
    A(f"s_lshl_b32 s{sT}, s2, 6")
    A(f"s_add_u32 s{sT}, s{sT}, {hex(W_ML)}")
    A("s_mov_b64 exec, 1")
    A(f"buffer_store_dwordx2 v[{vBQ}:{vBQ+1}], v{vOV}, {S4(SC)}, s{sT} offen sc1")
    A("s_waitcnt vmcnt(0)")
    srd(SD_, sDBG, 256)
    A(f"v_mov_b32 v{vT}, 1")
    A(f"buffer_atomic_add v{vT}, v{vOV}, {S4(SD_)}, 0 offen sc1")
    A("s_mov_b64 exec, -1")
    A.lab("L_noclr")

    def lds_wait(addr, val, tag):
        lab = A.uid("lw")
        A(f"v_mov_b32 v{vT}, {addr}")
        A(f"s_mov_b32 s{sSPIN}, 0")
        A.lab(lab)
        A(f"ds_read_b32 v{vT+1}, v{vT}")
        A("s_waitcnt lgkmcnt(0)")
        A(f"v_readfirstlane_b32 s{sT}, v{vT+1}")
        A(f"s_add_u32 s{sSPIN}, s{sSPIN}, 1")
        A(f"s_cmp_ge_u32 s{sT}, {val}")
        A(f"s_cbranch_scc1 {lab}_ok")
        A("s_sleep 4")
        A(f"s_cmp_lt_u32 s{sSPIN}, {SPINMAX}")
        A(f"s_cbranch_scc1 {lab}")
        A.lab(lab + "_ok")

    def rows512_off():
        A(f"v_lshlrev_b32 v{vT}, 10, v{vG}")
        A(f"v_lshlrev_b32 v{vT+1}, 4, v{vR}")
        A(f"v_add_u32 v{vOA}, v{vT}, v{vT+1}")

    A(f"s_cmp_lt_u32 s{sIDX}, {NFFN}")
    A("s_cbranch_scc0 L_noffn")
    srd(SA, sW1, 0 if nul_aux else 512 * 1792 * 2)
    srd(SN, sW3, 0 if nul_aux else 512 * 1792 * 2)
    A(f"v_mul_u32_u24 v{vT}, 3584, v{vG}")
    A(f"v_and_b32 v{vT+1}, 7, v{vR}")
    A(f"v_lshlrev_b32 v{vT+1}, 4, v{vT+1}")
    A(f"v_add_u32 v{vOA}, v{vT}, v{vT+1}")
    A(f"s_mul_i32 s{sBASE}, s{sJ}, {128*3584}")
    A(f"s_lshl_b32 s{sT}, s{sIDX}, 7")
    A(f"s_add_u32 s{sBASE}, s{sBASE}, s{sT}")
    A(f"s_mov_b32 s{sM0}, 0x00ff00ff")
    A(f"s_mov_b32 s{sM0+1}, 0x00ff00ff")
    A(f"s_mov_b32 s{sM1}, 0xff00ff00")
    A(f"s_mov_b32 s{sM1+1}, 0xff00ff00")
    A("s_waitcnt vmcnt(0)")
    def f1load(k):
        A(f"s_add_u32 s{sT}, s{sBASE}, {hex(k*4*3584)}")
        A(f"s_mov_b64 exec, s[{sM0}:{sM0+1}]")
        A(f"buffer_load_dwordx4 {slot(k)}, v{vOA}, {S4(SA)}, s{sT} offen {pola}")
        A(f"s_mov_b64 exec, s[{sM1}:{sM1+1}]")
        A(f"buffer_load_dwordx4 {slot(k)}, v{vOA}, {S4(SN)}, s{sT} offen {pola}")
        A("s_mov_b64 exec, -1")
    for k in range(da): f1load(k)
    gemv(32, (vP0, vP1),
         lambda k: A(f"s_waitcnt vmcnt({2*min(da-1, 31-k)})"),
         lambda k: f1load(k + da) if k + da < 32 else None)
    A("s_mov_b32 exec_hi, 0")
    A(f"ds_write_b128 v{vL0}, {q4(vD0)} offset:{L_FP}")
    A("s_mov_b64 exec, 1")
    A(f"v_mov_b32 v{vT}, {L_CF}")
    A(f"v_mov_b32 v{vT+1}, 1")
    A("s_waitcnt lgkmcnt(0)")
    A(f"ds_add_u32 v{vT}, v{vT+1}")
    A("s_mov_b64 exec, -1")
    srd(SA, sW2, 0 if nul_aux else 1792 * 512 * 2)
    rows512_off()
    A(f"s_lshl_b32 s{sBASE}, s{sIDX}, 16")
    A(f"s_lshl_b32 s{sT}, s{sJ}, 8")
    A(f"s_add_u32 s{sBASE}, s{sBASE}, s{sT}")
    def r512load(k, srdb):
        A(f"s_add_u32 s{sT}, s{sBASE}, {hex(k*4096)}")
        A(f"buffer_load_dwordx4 {slot(k)}, v{vOA}, {S4(srdb)}, s{sT} offen {pola}")
    for k in range(da): r512load(k, SA)
    lds_wait(L_CF, 4, "cf")
    A(f"v_lshlrev_b32 v{vT}, 4, v{vR}")
    A(f"v_lshlrev_b32 v{vT+1}, 2, v{vG}")
    A(f"v_add_u32 v{vT}, v{vT}, v{vT+1}")
    for w in range(4):
        A(f"ds_read_b32 v{vBQ+w}, v{vT} offset:{L_FP + w*512}")
        A(f"ds_read_b32 v{vBQ+4+w}, v{vT} offset:{L_FP + w*512 + 256}")
    A("s_waitcnt lgkmcnt(0)")
    for b0 in (vBQ, vBQ + 4):
        A(f"v_add_f32 v{b0}, v{b0}, v{b0+1}")
        A(f"v_add_f32 v{b0+2}, v{b0+2}, v{b0+3}")
        A(f"v_add_f32 v{b0}, v{b0}, v{b0+2}")
        rne(b0, vT + 1)
    silu(vBQ, vT + 1)
    rne(vBQ, vT + 1)
    A(f"v_mul_f32 v{vBQ}, v{vBQ}, v{vBQ+4}")
    A(f"v_cvt_pk_bf16_f32 v{vBQ+8}, v{vBQ}, v{vBQ}")
    A("s_nop 1")
    gemv(16, (vBQ + 8,),
         lambda k: A(f"s_waitcnt vmcnt({min(da-1, 15-k)})"),
         lambda k: r512load(k + da, SA) if k + da < 16 else None)
    for i in range(4):
        A(f"v_min_u32 v{vD0+i}, -2, v{vD0+i}")
    A(f"s_lshl_b32 s{sT}, s{sB}, 5")
    A(f"s_add_u32 s{sT}, s{sT}, s{sIDX}")
    A(f"s_lshl_b32 s{sT}, s{sT}, 11")
    A(f"s_add_u32 s{sT}, s{sT}, {hex(W_Z)}")
    A("s_mov_b32 exec_hi, 0")
    A(f"buffer_store_dwordx4 {q4(vD0)}, v{vL0}, {S4(SC)}, s{sT} offen sc1")
    A("s_mov_b64 exec, -1")
    A.lab("L_noffn")
    stamp(4)
    srd(SN, sWO, 0 if nul_aux else 0x400000)
    rows512_off()
    A(f"s_lshl_b32 s{sBASE}, s{sH}, 17")
    A(f"s_lshl_b32 s{sT}, s{sJ}, 8")
    A(f"s_add_u32 s{sBASE}, s{sBASE}, s{sT}")
    for k in range(32):
        if k >= da: A(f"s_waitcnt vmcnt({da-1})")
        r512load(k, SN)
    A("s_waitcnt vmcnt(0)")
    stamp(5)
    vPO = SL + 128
    vGt = vPO + 8
    vXr = vPO + 12
    NV2 = max(NV, vPO + 16)
    A(f"v_lshrrev_b32 v{vT}, 3, v{vLANE}")
    A(f"v_lshlrev_b32 v{vT}, 11, v{vT}")
    A(f"v_and_b32 v{vT+1}, 7, v{vLANE}")
    A(f"v_lshlrev_b32 v{vT+2}, 4, v{vT+1}")
    A(f"v_add_u32 v{vPO}, v{vT}, v{vT+2}")
    for n in range(1, 8):
        A(f"v_add_u32 v{vPO+n}, {hex(n*16384)}, v{vPO}")
    A(f"v_lshlrev_b32 v{vL1}, 3, v{vT+1}")
    A(f"s_cmp_eq_u32 s{sJ}, 3")
    A("s_cbranch_scc0 L_bar2")
    srd(SD_, sDBG, 256)
    A(f"v_mov_b32 v{vT}, 0")
    A(f"s_mov_b32 s{sSPIN}, 0")
    A.lab("L_c0")
    A(f"buffer_load_dword v{vT+1}, v{vT}, {S4(SD_)}, 0 offen sc1")
    A("s_waitcnt vmcnt(0)")
    A(f"v_readfirstlane_b32 s{sT}, v{vT+1}")
    A(f"s_add_u32 s{sSPIN}, s{sSPIN}, 1")
    A(f"s_cmp_ge_u32 s{sT}, 256")
    A("s_cbranch_scc1 L_c0_ok")
    A("s_sleep 8")
    A(f"s_cmp_lt_u32 s{sSPIN}, {SPINMAX}")
    A("s_cbranch_scc1 L_c0")
    A.lab("L_c0_ok")

    def poll(nload, regs, voffs, soff, tag, sleep):
        lab = A.uid("pl")
        A(f"s_mov_b32 s{sSPIN}, 0")
        A.lab(lab)
        for n in range(nload):
            A(f"buffer_load_dwordx4 {q4(regs+4*n)}, v{voffs[n]}, {S4(SC)}, s{soff} offen sc1")
        A(f"s_add_u32 s{sSPIN}, s{sSPIN}, 1")
        for n in range(nload):
            A(f"s_waitcnt vmcnt({nload-1-n})")
            r = regs + 4 * n
            if n == 0:
                A(f"v_max3_u32 v{vT}, v{r}, v{r+1}, v{r+2}")
                A(f"v_max_u32 v{vT}, v{vT}, v{r+3}")
            else:
                A(f"v_max3_u32 v{vT}, v{vT}, v{r}, v{r+1}")
                A(f"v_max3_u32 v{vT}, v{vT}, v{r+2}, v{r+3}")
        A(f"v_cmp_eq_u32 vcc, -1, v{vT}")
        A("s_nop 1")
        A("s_cmp_eq_u64 vcc, 0")
        A(f"s_cbranch_scc1 {lab}_ok")
        if sleep: A(f"s_sleep {sleep}")
        A(f"s_cmp_lt_u32 s{sSPIN}, {SPINMAX}")
        A(f"s_cbranch_scc1 {lab}")
        A.lab(lab + "_ok")

    def reduce_rows(regs, nload):
        n = nload
        while n > 1:
            h = n // 2
            for a in range(h):
                for i in range(4):
                    A(f"v_add_f32 v{regs+4*a+i}, v{regs+4*a+i}, v{regs+4*(a+h)+i}")
            n = h
        A("s_nop 1")
        for i in range(4):
            A(f"v_add_f32_dpp v{regs+i}, v{regs+i}, v{regs+i} row_ror:8 row_mask:0xf bank_mask:0xf")
        for sw in ("v_permlane16_swap_b32", "v_permlane32_swap_b32"):
            for i in range(4):
                A(f"v_mov_b32 v{regs+4+i}, v{regs+i}")
            A("s_nop 1")
            for i in range(4):
                A(f"{sw} v{regs+i}, v{regs+4+i}")
            A("s_nop 1")
            for i in range(4):
                A(f"v_add_f32 v{regs+i}, v{regs+i}, v{regs+4+i}")

    A(f"s_cmp_ge_u32 s{sIDX}, 48")
    A("s_cbranch_scc0 L_nocons1")
    srd(SA, sX, 4096)
    A(f"s_sub_u32 s{sT2}, s{sIDX}, 48")
    A(f"s_lshl_b32 s{sT3}, s{sT2}, 6")
    A(f"s_lshl_b32 s{sT}, s{sB}, 10")
    A(f"s_add_u32 s{sT3}, s{sT3}, s{sT}")
    A(f"buffer_load_dwordx2 v[{vXr}:{vXr+1}], v{vL1}, {S4(SA)}, s{sT3} offen")
    A(f"v_cmp_gt_u32 vcc, {(NFFN-24)*8}, v{vLANE}")
    A(f"v_mov_b32 v{vT+3}, 0x40000000")
    A("s_nop 0")
    A(f"v_cndmask_b32 v{vL2}, v{vT+3}, v{vPO+3}, vcc")
    A(f"s_lshl_b32 s{sCUR}, s{sB}, 16")
    A(f"s_lshl_b32 s{sT}, s{sT2}, 7")
    A(f"s_add_u32 s{sCUR}, s{sCUR}, s{sT}")
    A(f"s_add_u32 s{sCUR}, s{sCUR}, {hex(W_Z)}")
    poll(4, vBQ, [vPO, vPO + 1, vPO + 2, vL2], sCUR, "z", 8)
    reduce_rows(vBQ, 4)
    for i in range(4):
        rne(vBQ + i, vT + 1)
        silu(vBQ + i, vT + 1)
        rne(vBQ + i, vT + 1)
        A(f"v_mov_b32 v{vGt+i}, v{vBQ+i}")
    A(f"v_and_b32 v{vXr+3}, 0xffff0000, v{vXr+1}")
    A(f"v_lshlrev_b32 v{vXr+2}, 16, v{vXr+1}")
    A(f"v_and_b32 v{vXr+1}, 0xffff0000, v{vXr}")
    A(f"v_lshlrev_b32 v{vXr}, 16, v{vXr}")
    A(f"s_lshl_b32 s{sCUR}, s{sB}, 17")
    A(f"s_lshl_b32 s{sT}, s{sT2}, 7")
    A(f"s_add_u32 s{sCUR}, s{sCUR}, s{sT}")
    A.lab("L_nocons1")
    stamp(6)
    lds_wait(L_CM, 4, "cm")
    A(f"v_mov_b32 v{vT}, {L_ML}")
    A(f"ds_read_b128 {q4(vBQ)}, v{vT}")
    A(f"ds_read_b128 {q4(vBQ+4)}, v{vT} offset:16")
    A("s_waitcnt lgkmcnt(0)")
    A(f"v_max_f32 v{vBQ+8}, v{vBQ}, v{vBQ+2}")
    A(f"v_max3_f32 v{vBQ+8}, v{vBQ+8}, v{vBQ+4}, v{vBQ+6}")
    A(f"v_mov_b32 v{vBQ+9}, 0")
    A(f"s_mov_b32 s{sT2}, {hex(LOG2E)}")
    for w in range(4):
        A(f"v_sub_f32 v{vT}, v{vBQ+2*w}, v{vBQ+8}")
        A(f"v_mul_f32 v{vT}, s{sT2}, v{vT}")
        A(f"v_exp_f32 v{vT}, v{vT}")
        A("s_nop 0")
        A(f"v_fmac_f32 v{vBQ+9}, v{vT}, v{vBQ+2*w+1}")
    A(f"v_min_u32 v{vBQ+10}, -2, v{vBQ+8}")
    A(f"v_min_u32 v{vBQ+11}, -2, v{vBQ+9}")
    A(f"v_mov_b32 v{vT+2}, 0")
    A(f"s_lshl_b32 s{sT}, s2, 6")
    A(f"s_add_u32 s{sT}, s{sT}, {hex(W_ML)}")
    A("s_mov_b64 exec, 1")
    A(f"buffer_store_dwordx2 v[{vBQ+10}:{vBQ+11}], v{vT+2}, {S4(SC)}, s{sT} offen sc1")
    A("s_mov_b64 exec, -1")
    A(f"s_xor_b32 s{sNXT}, s{sT}, {8<<6}")
    A(f"s_mov_b32 s{sSPIN}, 0")
    A.lab("L_ml")
    A(f"buffer_load_dwordx2 v[{vBQ+12}:{vBQ+13}], v{vT+2}, {S4(SC)}, s{sNXT} offen sc1")
    A(f"s_add_u32 s{sSPIN}, s{sSPIN}, 1")
    A("s_waitcnt vmcnt(0)")
    A(f"v_max_u32 v{vT}, v{vBQ+12}, v{vBQ+13}")
    A("s_nop 0")
    A(f"v_readfirstlane_b32 s{sT}, v{vT}")
    A(f"s_cmp_lg_u32 s{sT}, -1")
    A("s_cbranch_scc1 L_ml_ok")
    A("s_sleep 8")
    A(f"s_cmp_lt_u32 s{sSPIN}, {SPINMAX}")
    A("s_cbranch_scc1 L_ml")
    A.lab("L_ml_ok")
    A(f"v_max_f32 v{vBQ+14}, v{vBQ+8}, v{vBQ+12}")
    A(f"v_sub_f32 v{vT}, v{vBQ+8}, v{vBQ+14}")
    A(f"v_sub_f32 v{vT+1}, v{vBQ+12}, v{vBQ+14}")
    A(f"v_mul_f32 v{vT}, s{sT2}, v{vT}")
    A(f"v_mul_f32 v{vT+1}, s{sT2}, v{vT+1}")
    A(f"v_exp_f32 v{vT}, v{vT}")
    A(f"v_exp_f32 v{vT+1}, v{vT+1}")
    A("s_nop 0")
    A(f"v_mul_f32 v{vT}, v{vT}, v{vBQ+9}")
    A(f"v_fmac_f32 v{vT}, v{vT+1}, v{vBQ+13}")
    A(f"v_rcp_f32 v{vT+1}, v{vT}")
    for w in range(4):
        A(f"v_sub_f32 v{vT+2+w}, v{vBQ+2*w}, v{vBQ+14}")
        A(f"v_mul_f32 v{vT+2+w}, s{sT2}, v{vT+2+w}")
        A(f"v_exp_f32 v{vT+2+w}, v{vT+2+w}")
        A("s_nop 0")
        A(f"v_mul_f32 v{vT+2+w}, v{vT+2+w}, v{vT+1}")
    A(f"v_mov_b32 v{vT}, {L_FW}")
    A("s_mov_b64 exec, 1")
    A(f"ds_write_b128 v{vT}, v[{vT+2}:{vT+5}]")
    A("s_mov_b64 exec, -1")
    A("s_waitcnt lgkmcnt(0)")
    A.lab("L_bar2")
    A(f"v_lshlrev_b32 v{vT}, 4, v{vR}")
    A(f"v_lshlrev_b32 v{vT+1}, 2, v{vG}")
    A(f"v_add_u32 v{vT}, v{vT}, v{vT+1}")
    A(f"v_mov_b32 v{vT+1}, {L_FW}")
    A(f"s_lshl_b32 s{sNXT}, s2, 11")
    stamp(7)
    A("s_barrier")
    A(f"ds_read_b128 {q4(vBQ+8)}, v{vT+1}")
    for w in range(4):
        A(f"ds_read_b32 v{vBQ+w}, v{vT} offset:{L_OP + w*512}")
        A(f"ds_read_b32 v{vBQ+4+w}, v{vT} offset:{L_OP + w*512 + 256}")
    A("s_waitcnt lgkmcnt(0)")
    for u, p in ((0, vP0), (1, vP1)):
        A(f"v_mul_f32 v{p}, v{vBQ+4*u}, v{vBQ+8}")
    for w in range(1, 4):
        for u, p in ((0, vP0), (1, vP1)):
            A(f"v_fmac_f32 v{p}, v{vBQ+4*u+w}, v{vBQ+8+w}")
    A(f"v_cvt_pk_bf16_f32 v{vP0}, v{vP0}, v{vP0}")
    A(f"v_cvt_pk_bf16_f32 v{vP1}, v{vP1}, v{vP1}")
    A("s_nop 1")
    gemv(32, (vP0, vP1), lambda k: None)
    for i in range(4):
        A(f"v_min_u32 v{vD0+i}, -2, v{vD0+i}")
    A("s_mov_b32 exec_hi, 0")
    A(f"buffer_store_dwordx4 {q4(vD0)}, v{vL0}, {S4(SC)}, s{sNXT} offen sc1")
    A("s_mov_b64 exec, -1")
    stamp(8)
    A(f"s_cmp_eq_u32 s{sJ}, 3")
    A("s_cbranch_scc0 L_auxend")
    A(f"s_cmp_ge_u32 s{sIDX}, 48")
    A("s_cbranch_scc0 L_auxend")
    srd(SA, sOUT, 4096)
    poll(8, SL, [vPO + n for n in range(8)], sCUR, "y", 1)
    reduce_rows(SL, 8)
    for i in range(4):
        rne(SL + i, vT + i)
    for i in range(4):
        A(f"v_mul_f32 v{SL+i}, v{SL+i}, v{vGt+i}")
    for i in range(4):
        rne(SL + i, vT + i)
    for i in range(4):
        A(f"v_add_f32 v{SL+i}, v{SL+i}, v{vXr+i}")
    A(f"v_cvt_pk_bf16_f32 v{SL+4}, v{SL}, v{SL+1}")
    A(f"v_cvt_pk_bf16_f32 v{SL+5}, v{SL+2}, v{SL+3}")
    A("s_mov_b64 exec, 0xff")
    A(f"buffer_store_dwordx2 v[{SL+4}:{SL+5}], v{vL1}, {S4(SA)}, s{sT3} offen")
    A("s_mov_b64 exec, -1")
    stamp(9)
    A.lab("L_auxend")
    stamp_flush()
    A.lab("L_end")
    A("s_endpgm")

    ref = open("recurrent_scan__mha_block_cached__glu_gated_swiglu__decode.s.ref").read()
    head = ref.split("; @launch")[0]
    nv = (NV2 + 7) // 8 * 8
    out = head
    out += f"; @launch grid=(256,1,1) block=(512,1,1) lds={LDS + 256}\n"
    out += '.amdgcn_target "amdgcn-amd-amdhsa--gfx950"\n.text\n'
    out += f".globl {NAME}\n.p2align 8\n.type {NAME},@function\n{NAME}:\n"
    out += "\n".join(A.L) + "\n"
    out += '.section .rodata,"a"\n.p2align 6\n'
    out += f".amdhsa_kernel {NAME}\n"
    out += f"  .amdhsa_next_free_vgpr {nv}\n  .amdhsa_next_free_sgpr 80\n  .amdhsa_accum_offset {nv}\n"
    out += "  .amdhsa_group_segment_fixed_size 0\n  .amdhsa_kernarg_size 96\n  .amdhsa_user_sgpr_count 2\n"
    out += "  .amdhsa_user_sgpr_kernarg_segment_ptr 1\n  .amdhsa_system_sgpr_workgroup_id_x 1\n.end_amdhsa_kernel\n"
    return out

if __name__ == "__main__":
    fn = sys.argv[1]
    kw = eval("dict(%s)" % (sys.argv[2] if len(sys.argv) > 2 else ""))
    open(fn, "w").write(gen(**kw))
```

```python
import sys

NAME = "recurrent_scan__mha_block_cached__glu_gated_swiglu__decode_kernel"

class G:
    def __init__(s):
        s.L = []
        s.n = 0
    def __call__(s, t):
        s.L.append("    " + t)
    def lab(s, t):
        s.L.append(t + ":")
    def c(s, t):
        s.L.append("    ; " + t)
    def uid(s, p):
        s.n += 1
        return f"L_{p}{s.n}"

def gen(d=5, dpro=6, da=2, sb=15, stamps=False, round_scores=True, polk="nt", R=48, nul_aux=False, nul_wq=False, pola="nt", polq="nt", kcontig=False,
        LAG=8, qsleep=0, qpre=0, qlite=False, NA=8, polA='', polAl='sc1', levels=None, klevels=None, wofirst=True, shardby='b', pf=1, polp='', pfd=0, daw=None, polw=None, thr=None, every=1, nshard=4, qprio=3):
    A = G()
    fc = levels is not None
    if not fc: levels = [d]
    assert max(levels) <= LAG
    NSH = 256 // nshard
    thr0 = 0.5
    sX, sK, sV, sWQ, sWO, sW1, sW3, sW2, sOUT, sDBG, sWS = 4, 6, 8, 10, 12, 16, 18, 20, 22, 24, 26
    sWAVE, sB, sH, sSP, sIDX, sJ = 28, 29, 30, 31, 32, 33
    SA, SN, SC, SD_, SE = 36, 40, 44, 48, 52
    sCUR, sNXT, sT, sIT, sT2, sT3 = 56, 57, 58, 59, 60, 61
    sM0, sM1 = 62, 64
    sBASE = 66
    sSPIN = 67
    sLV, sAT, sAP = 68, 69, 72
    sREP = 74
    sST = 70
    vLANE, vOA, vON, vOV, vG, vR = 1, 2, 3, 4, 5, 6
    vT7 = 7
    vMK = 8
    vBQ = 12
    vD0, vD1 = 28, 32
    vS, vM = 36, 37
    vT = 38
    vA0, vA1 = 48, 52
    vP0, vP1 = 56, 57
    vL0, vL1, vL2 = 58, 59, 60
    vST = 62
    SL = 64
    NV = SL + 4 * R
    slot = lambda i: f"v[{SL+4*i}:{SL+4*i+3}]"
    q4 = lambda r: f"v[{r}:{r+3}]"
    L_QP = 0
    L_OP = 2048
    L_FP = 4096
    L_ML = 6144
    L_FW = 6176
    L_CM = 6208
    L_CF = 6212
    L_LV = 6216
    L_SC = 8192
    LDS = L_SC + 4 * 16 * 64 * 4
    W_Y, W_Z, W_ML, W_EP, W_QP, W_SZ = 0, 0x80000, 0xC0000, 0xC8000, 0x100000, 0x300000
    W_ST = 0x300000
    W_FC = 0xD0000
    NFFN = 28
    LOG2E = 0x3FB8AA3B
    SCALE = 0x3DB504F3
    SPINMAX = 400000

    def srd(base, ptr, nbytes):
        A(f"s_mov_b32 s{base}, s{ptr}")
        A(f"s_mov_b32 s{base+1}, s{ptr+1}")
        A(f"s_mov_b32 s{base+2}, {hex(nbytes)}")
        A(f"s_mov_b32 s{base+3}, 0x00020000")
    S4 = lambda b: f"s[{b}:{b+3}]"

    def stamp(i):
        if not stamps: return
        A(f"s_memrealtime s[{sST}:{sST+1}]")
        A("s_waitcnt lgkmcnt(0)")
        A(f"v_writelane_b32 v{vST}, s{sST}, {i}")
    def stamp_it(base):
        if not stamps: return
        A(f"s_memrealtime s[{sST}:{sST+1}]")
        A(f"s_add_u32 m0, s{sIT}, {base}")
        A("s_waitcnt lgkmcnt(0)")
        A(f"v_writelane_b32 v{vST}, s{sST}, m0")
    def stamp_flush():
        if not stamps: return
        A(f"v_writelane_b32 v{vST}, s76, 10")
        A(f"v_writelane_b32 v{vST}, s75, 61")
        srd(SE, sWS, 0x400000)
        A(f"s_lshl_b32 s{sT}, s2, 3")
        A(f"s_add_u32 s{sT}, s{sT}, s{sWAVE}")
        A(f"s_lshl_b32 s{sT}, s{sT}, 8")
        A(f"s_add_u32 s{sT}, s{sT}, {hex(W_ST)}")
        A(f"v_lshlrev_b32 v{vT7}, 2, v{vLANE}")
        A(f"buffer_store_dword v{vST}, v{vT7}, {S4(SE)}, s{sT} offen")

    def allreduce(op, reg, tmp):
        for n in (8, 4, 2, 1):
            A("s_nop 1")
            A(f"{op}_dpp v{reg}, v{reg}, v{reg} row_ror:{n} row_mask:0xf bank_mask:0xf")
        for sw in ("v_permlane16_swap_b32", "v_permlane32_swap_b32"):
            A("s_nop 1")
            A(f"v_mov_b32 v{tmp}, v{reg}")
            A("s_nop 1")
            A(f"{sw} v{reg}, v{tmp}")
            A("s_nop 1")
            A(f"{op} v{reg}, v{reg}, v{tmp}")

    def rne(reg, tmp):
        A(f"v_cvt_pk_bf16_f32 v{tmp}, v{reg}, v{reg}")
        A(f"v_and_b32 v{reg}, 0xffff0000, v{tmp}")

    def diag(dst, pp, j):
        for m in range(4):
            A(f"v_and_b32_dpp v{dst+m}, v{pp}, v{vMK+m} row_newbcast:{j} row_mask:0xf bank_mask:0xf")

    def silu(reg, t):
        A(f"v_mul_f32 v{t}, {hex(LOG2E | 0x80000000)}, v{reg}")
        A(f"v_exp_f32 v{t}, v{t}")
        A("s_nop 0")
        A(f"v_add_f32 v{t}, 1.0, v{t}")
        A(f"v_rcp_f32 v{t}, v{t}")
        A("s_nop 0")
        A(f"v_mul_f32 v{reg}, v{reg}, v{t}")

    if sb == 15:
        koff = lambda k: ((k & 7) << 12) | ((k >> 3) << 16)
        wsh = 10
    elif sb == 10:
        koff = lambda k: k << 13
        wsh = 11
    elif sb == 20:
        koff = lambda k: k << 12
        wsh = 10
    GSTR = (1 << 17) if sb != 20 else (1 << 16)

    A("s_cmp_ge_u32 s2, 256")
    A("s_cbranch_scc1 L_end")
    if stamps: A("s_memrealtime s[76:77]")
    A("s_load_dwordx16 s[4:19], s[0:1], 0")
    A("s_load_dwordx8 s[20:27], s[0:1], 64")
    A(f"v_lshrrev_b32 v{vT7}, 6, v0")
    A(f"v_and_b32 v{vLANE}, 63, v0")
    A(f"v_readfirstlane_b32 s{sWAVE}, v{vT7}")
    A(f"v_lshrrev_b32 v{vG}, 4, v{vLANE}")
    A(f"v_and_b32 v{vR}, 15, v{vLANE}")
    A(f"s_lshr_b32 s{sB}, s2, 6")
    A(f"s_and_b32 s{sIDX}, s2, 63")
    A(f"s_bfe_u32 s{sSP}, s2, {(1<<16)|3}")
    A(f"s_bfe_u32 s{sT}, s2, {(2<<16)|4}")
    A(f"s_lshl_b32 s{sT}, s{sT}, 3")
    A(f"s_and_b32 s{sH}, s2, 7")
    A(f"s_or_b32 s{sH}, s{sH}, s{sT}")
    if stamps:
        A(f"v_mov_b32 v{vST}, 0")
        A("s_mov_b32 s75, 0")
    A(f"s_cmp_ge_u32 s{sWAVE}, 4")
    A("s_cbranch_scc1 L_aux")

    def build_masks():
        A(f"v_and_b32 v{vT}, 1, v{vR}")
        A(f"v_lshlrev_b32 v{vT}, 4, v{vT}")
        A(f"v_mov_b32 v{vT+1}, 0xffff")
        A(f"v_lshlrev_b32 v{vT}, v{vT}, v{vT+1}")
        A(f"v_bfe_u32 v{vT+1}, v{vR}, 1, 2")
        for m in range(4):
            A(f"v_cmp_eq_u32 vcc, {m}, v{vT+1}")
            A("s_nop 1")
            A(f"v_cndmask_b32 v{vMK+m}, 0, v{vT}, vcc")

    A.c("---- stream waves ----")
    A(f"v_lshrrev_b32 v{vT}, 2, v{vR}")
    A(f"v_lshlrev_b32 v{vT}, 8, v{vT}")
    A(f"v_and_b32 v{vT+1}, 3, v{vR}")
    A(f"v_lshlrev_b32 v{vT+1}, 4, v{vT+1}")
    A(f"v_lshlrev_b32 v{vT+2}, 6, v{vG}")
    A(f"v_add3_u32 v{vOA}, v{vT}, v{vT+1}, v{vT+2}")
    A(f"v_lshlrev_b32 v{vOV}, 4, v{vLANE}")
    if kcontig: A(f"v_mov_b32 v{vOA}, v{vOV}")
    A(f"v_mov_b32 v{vON}, v{vOA}")
    A(f"s_lshl_b32 s{sBASE}, s{sB}, 26")
    A(f"s_lshl_b32 s{sT}, s{sH}, 21")
    A(f"s_or_b32 s{sBASE}, s{sBASE}, s{sT}")
    A(f"s_lshl_b32 s{sT}, s{sSP}, {sb}")
    A(f"s_or_b32 s{sBASE}, s{sBASE}, s{sT}")
    A(f"s_lshl_b32 s{sT}, s{sWAVE}, {wsh}")
    A(f"s_or_b32 s{sBASE}, s{sBASE}, s{sT}")
    A("s_waitcnt lgkmcnt(0)")
    srd(SA, sK, 0x10000000)
    def sload(sl, srdb, voff, sbase, off):
        A(f"s_add_u32 s{sT}, s{sbase}, {hex(off)}")
        A(f"buffer_load_dwordx4 {slot(sl)}, v{voff}, {S4(srdb)}, s{sT} offen {polk}")
    gk = lambda i: (i >> 4) * GSTR + koff(i & 15)
    for i in range(R):
        if i >= dpro:
            A(f"s_waitcnt vmcnt({dpro-1})")
        sload(i, SA, vOA, sBASE, gk(i))
        if i in (15, 31): stamp(7 + (i >> 4))
        if i == dpro - 1:
            stamp(0)
            srd(SN, sK, 0x10000000)
            if fc:
                A(f"s_lshr_b32 s{sT2}, s2, 6")
                if nshard == 16:
                    A(f"s_bfe_u32 s{sT3}, s2, {(2<<16)|3}")
                    A(f"s_lshl_b32 s{sT2}, s{sT2}, 2")
                    A(f"s_or_b32 s{sT2}, s{sT2}, s{sT3}")
                elif nshard == 1:
                    A(f"s_mov_b32 s{sT2}, 0")
                elif nshard == 2:
                    A(f"s_bfe_u32 s{sT2}, s2, {(1<<16)|3}")
                elif shardby == 'row':
                    A(f"s_bfe_u32 s{sT2}, s2, {(2<<16)|3}")
                A(f"s_lshl_b32 s{sT2}, s{sT2}, 2")
                A(f"s_or_b32 s{sT2}, s{sT2}, s{sWAVE}")
                A(f"s_lshl_b32 s{sT2}, s{sT2}, 8")
                A(f"s_add_u32 s{sT2}, s{sT2}, {hex(W_FC)}")
                A(f"s_add_u32 s{sAP}, s{sWS}, s{sT2}")
                A(f"s_addc_u32 s{sAP+1}, s{sWS+1}, 0")
                A(f"s_mov_b32 s{sREP}, 0")
                A(f"s_atomic_add s{sREP}, s[{sAP}:{sAP+1}], 0x0 glc")
            build_masks()
            A(f"v_lshlrev_b32 v{vL0}, 2, v{vLANE}")
            A(f"s_lshl_b32 s{sT2}, s{sWAVE}, 12")
            A(f"s_add_u32 s{sT2}, s{sT2}, {L_SC}")
            A(f"v_add_u32 v{vL0}, s{sT2}, v{vL0}")
            A(f"v_mov_b32 v{vL1}, v{vL0}")
            A(f"v_lshrrev_b32 v{vT}, 2, v{vR}")
            A(f"v_lshlrev_b32 v{vT}, 4, v{vT}")
            A(f"v_lshlrev_b32 v{vL2}, 6, v{vG}")
            A(f"v_add_u32 v{vL2}, v{vL2}, v{vT}")
            A(f"v_mov_b32 v{vM}, 0xff800000")
    stamp(1)
    A("s_barrier")
    stamp(2)
    A(f"ds_read_b128 {q4(vT+2)}, v{vL2} offset:{L_QP}")
    A("s_waitcnt lgkmcnt(0)")
    A(f"v_and_b32 v{vT}, 3, v{vR}")
    for t in range(4):
        A(f"v_cmp_eq_u32 vcc, {t}, v{vT}")
        A("s_nop 1")
        for m in range(4):
            A(f"v_cndmask_b32 v{vBQ+4*t+m}, 0, v{vT+2+m}, vcc")
    A("s_nop 1")

    def dpp_gather(u, i):
        D = vD0 if (u & 1) == 0 else vD1
        n = (4 * (u - i)) % 16
        ctrl = "quad_perm:[0,1,2,3]" if n == 0 else f"row_ror:{n}"
        if i == 0:
            A(f"v_mov_b32_dpp v{vS}, v{D} {ctrl} row_mask:0xf bank_mask:{hex(1<<u)}")
        else:
            A(f"v_add_f32_dpp v{vS}, v{D+i}, v{vS} {ctrl} row_mask:0xf bank_mask:{hex(1<<u)}")
    def kgroup(slot0, waitf, issuef):
        for k in range(16):
            u, t = k >> 2, k & 3
            D = vD0 if (u & 1) == 0 else vD1
            waitf(k)
            A(f"v_mfma_f32_16x16x32_bf16 {q4(D)}, {slot(slot0+k)}, {q4(vBQ+4*t)}, {'0' if t==0 else q4(D)}")
            issuef(k)
            if u > 0:
                A("s_nop 6" if t == 0 else "s_nop 0")
                dpp_gather(u - 1, t)
        A("s_nop 7")
        for i in range(4):
            dpp_gather(3, i)
            A("s_nop 1")
        if round_scores:
            rne(vS, vT)
            A(f"v_mul_f32 v{vT+1}, {hex(SCALE)}, v{vS}")
            rne(vT + 1, vT)
        else:
            A(f"v_mul_f32 v{vT+1}, {hex(SCALE)}, v{vS}")
        A(f"v_max_f32 v{vM}, v{vM}, v{vT+1}")
        A(f"ds_write_b32 v{vL1}, v{vT+1}")
        A(f"v_add_u32 v{vL1}, 256, v{vL1}")

    d0 = d
    issued = [0]
    for G0 in range(R // 16):
        def waitf(k, G0=G0):
            i = G0 * 16 + k
            A(f"s_waitcnt vmcnt({min(63, R-1-i + issued[0])})")
        def issuef(k, G0=G0):
            i = G0 * 16 + k
            if i < d0:
                sload(i, SA, vOA, sBASE, gk(R + i)); issued[0] += 1
        kgroup(G0 * 16, waitf, issuef)
    for i in range(d0, LAG):
        A(f"s_waitcnt vmcnt({d0-1})")
        sload(i, SA, vOA, sBASE, gk(R + i))
    stamp(3)
    A(f"s_add_u32 s{sCUR}, s{sBASE}, {hex((R//16)*GSTR)}")
    A(f"s_mov_b32 s{sIT}, {R//16}")
    if fc:
        A("s_waitcnt lgkmcnt(0)")
        A(f"s_add_u32 s{sAT}, s{sREP}, {int(thr0*NSH)}")
        A(f"s_add_u32 s{sAT}, s{sAT}, {-NSH & 0xffffffff}")
        A(f"s_add_u32 s{sREP}, s{sREP}, {-NSH & 0xffffffff}")
    def steady_issue(k):
        kk = k + LAG
        if kk < 16:
            sload(kk, SA, vOA, sCUR, koff(kk))
        else:
            sload(kk - 16, SN, vON, sNXT, koff(kk - 16))
    def fc_top(tag):
        if not fc: return
        A("s_waitcnt lgkmcnt(0)")
        A(f"s_sub_i32 s{sAT}, s{sAT}, s{sREP}")
        A(f"s_add_u32 s{sREP}, s{sREP}, {NSH}")
        A(f"s_mov_b32 s{sLV}, 0")
        for th in thr:
            A(f"s_cmp_ge_i32 s{sAT}, {int(th*NSH)}")
            A(f"s_addc_u32 s{sLV}, s{sLV}, 0")
        if stamps: A(f"s_add_u32 s75, s75, s{sLV}")
        A(f"s_mov_b32 s{sAT}, 1")
        A(f"s_atomic_add s{sAT}, s[{sAP}:{sAP+1}], 0x0 glc")
    def fc_dispatch(tag):
        if not fc: return
        for li in range(1, len(levels)):
            A(f"s_cmp_eq_u32 s{sLV}, {li}")
            A(f"s_cbranch_scc1 L_{tag}_b{li}")
    def fc_mid(tag):
        return
    A.lab("L_kloop")
    A(f"s_add_u32 s{sNXT}, s{sCUR}, {hex(GSTR)}")
    A(f"s_cmp_eq_u32 s{sIT}, 15")
    A("s_cbranch_scc0 L_knl")
    A(f"s_mov_b32 s{sNXT}, s{sBASE}")
    A(f"s_mov_b32 s{SN}, s{sV}")
    A(f"s_mov_b32 s{SN+1}, s{sV+1}")
    A(f"v_mov_b32 v{vON}, v{vOV}")
    A.lab("L_knl")
    fc_top("k")
    fc_dispatch("k")
    for li, dd in enumerate(klevels or levels):
        A.lab(f"L_k_b{li}")
        def iss(k, li=li):
            steady_issue(k)
            if k == 8: fc_mid(f"k{li}")
        kgroup(0, lambda k: A(f"s_waitcnt vmcnt({dd-1})"), iss)
        if li + 1 < len(levels): A("s_branch L_k_e")
    A.lab("L_k_e")
    stamp_it(16)
    A(f"s_mov_b32 s{sCUR}, s{sNXT}")
    A(f"s_add_u32 s{sIT}, s{sIT}, 1")
    A(f"s_cmp_lt_u32 s{sIT}, 16")
    A("s_cbranch_scc1 L_kloop")
    stamp(4)
    A(f"s_mov_b32 s{SA}, s{sV}")
    A(f"s_mov_b32 s{SA+1}, s{sV+1}")
    A(f"v_mov_b32 v{vOA}, v{vOV}")
    X = SL + 64
    A("s_waitcnt lgkmcnt(0)")
    for i in range(8):
        A(f"ds_read2st64_b32 v[{X+2*i}:{X+2*i+1}], v{vL0} offset0:{2*i} offset1:{2*i+1}")
    allreduce("v_max_f32", vM, vT)
    A(f"v_mul_f32 v{vT}, {hex(LOG2E)}, v{vM}")
    A(f"s_mov_b32 s{sT2}, {hex(LOG2E)}")
    A("s_waitcnt lgkmcnt(0)")
    for i in range(16):
        A(f"v_sub_f32 v{X+i}, v{X+i}, v{vM}")
    for i in range(16):
        A(f"v_mul_f32 v{X+i}, s{sT2}, v{X+i}")
    for i in range(16):
        A(f"v_exp_f32 v{X+i}, v{X+i}")
    A("s_nop 0")
    for i in range(16):
        A(f"v_cvt_pk_bf16_f32 v{X+16+i}, v{X+i}, v{X+i}")
    for i in range(8):
        A(f"ds_write2st64_b32 v{vL0}, v{X+16+2*i}, v{X+16+2*i+1} offset0:{2*i} offset1:{2*i+1}")
    A(f"v_mov_b32 v{vP1}, v{X+16}")
    for st in (8, 4, 2, 1):
        for i in range(st):
            A(f"v_add_f32 v{X+i}, v{X+i}, v{X+i+st}")
    allreduce("v_add_f32", X, vT)
    A(f"v_mov_b32 v{vT}, v{vM}")
    A(f"v_mov_b32 v{vT+1}, v{X}")
    A(f"s_lshl_b32 s{sT2}, s{sWAVE}, 3")
    A(f"s_add_u32 s{sT2}, s{sT2}, {L_ML}")
    A(f"v_mov_b32 v{vT+2}, s{sT2}")
    A(f"v_mov_b32 v{vT+3}, {L_CM}")
    A(f"v_mov_b32 v{vT+4}, 1")
    A("s_mov_b64 exec, 1")
    A(f"ds_write_b64 v{vT+2}, v[{vT}:{vT+1}]")
    A("s_waitcnt lgkmcnt(0)")
    A(f"ds_add_u32 v{vT+3}, v{vT+4}")
    A("s_mov_b64 exec, -1")
    for i in range(4):
        A(f"v_mov_b32 v{vD0+i}, 0")
    A(f"v_add_u32 v{vL1}, 256, v{vL0}")
    A(f"s_mov_b32 s{sIT}, 0")
    stamp(5)
    A.lab("L_vloop")
    A(f"s_add_u32 s{sNXT}, s{sCUR}, {hex(GSTR)}")
    A(f"s_cmp_eq_u32 s{sIT}, 15")
    A(f"s_cselect_b32 s{sNXT}, 0x40000000, s{sNXT}")
    if fc: fc_top("v")
    else: A("s_waitcnt lgkmcnt(0)")
    A(f"v_mov_b32 v{vP0}, v{vP1}")
    A(f"ds_read_b32 v{vP1}, v{vL1}")
    A(f"v_add_u32 v{vL1}, 256, v{vL1}")
    diag(vA0, vP0, 0)
    fc_dispatch("v")
    for li, dd in enumerate(levels):
        A.lab(f"L_v_b{li}")
        for k in range(16):
            Acur = vA0 if (k & 1) == 0 else vA1
            Anxt = vA1 if (k & 1) == 0 else vA0
            if k < 15:
                diag(Anxt, vP0, k + 1)
            A(f"s_waitcnt vmcnt({dd-1})")
            A(f"v_mfma_f32_16x16x32_bf16 {q4(vD0)}, {q4(Acur)}, {slot(k)}, {q4(vD0)}")
            steady_issue(k)
            if k == 8: fc_mid(f"v{li}")
        if li + 1 < len(levels): A("s_branch L_v_e")
    A.lab("L_v_e")
    stamp_it(32)
    A(f"s_mov_b32 s{sCUR}, s{sNXT}")
    A(f"s_add_u32 s{sIT}, s{sIT}, 1")
    A(f"s_cmp_lt_u32 s{sIT}, 16")
    A("s_cbranch_scc1 L_vloop")
    A(f"v_lshlrev_b32 v{vT}, 5, v{vR}")
    A(f"v_lshlrev_b32 v{vT+1}, 4, v{vG}")
    A(f"s_lshl_b32 s{sT2}, s{sWAVE}, 9")
    A(f"v_add3_u32 v{vT}, v{vT}, v{vT+1}, s{sT2}")
    A("s_mov_b32 exec_hi, 0")
    A("s_nop 1")
    A(f"ds_write_b128 v{vT}, {q4(vD0)} offset:{L_OP}")
    A("s_mov_b64 exec, -1")
    A("s_waitcnt lgkmcnt(0)")
    A("s_barrier")
    stamp(6)
    stamp_flush()
    A("s_endpgm")

    A.lab("L_aux")
    A(f"s_sub_u32 s{sJ}, s{sWAVE}, 4")
    A(f"v_lshlrev_b32 v{vOV}, 4, v{vLANE}")
    A(f"s_cmp_eq_u32 s{sJ}, 0")
    A("s_cbranch_scc1 L_qw")
    A("s_waitcnt lgkmcnt(0)")
    srd(SC, sWS, W_SZ)
    def prefetch():
        A(f"s_cmp_eq_u32 s{sJ}, 1")
        A(f"s_cselect_b32 s{SA}, s{sW1}, s{sW3}")
        A(f"s_cselect_b32 s{SA+1}, s{sW1+1}, s{sW3+1}")
        A(f"s_cmp_eq_u32 s{sJ}, 3")
        A(f"s_cselect_b32 s{SA}, s{sW2}, s{SA}")
        A(f"s_cselect_b32 s{SA+1}, s{sW2+1}, s{SA+1}")
        A(f"s_mov_b32 s{SA+2}, {512*1792*2}")
        A(f"s_mov_b32 s{SA+3}, 0x00020000")
        srd(SN, sWO, 0x400000)
        A(f"s_mul_i32 s{sT2}, s2, 7168")
        A(f"s_lshl_b32 s{sBASE}, s{sH}, 17")
        A(f"s_lshl_b32 s{sT}, s{sB}, 15")
        A(f"s_add_u32 s{sBASE}, s{sBASE}, s{sT}")
        A(f"s_lshl_b32 s{sT}, s{sSP}, 14")
        A(f"s_add_u32 s{sBASE}, s{sBASE}, s{sT}")
        A(f"s_sub_u32 s{sT}, s{sJ}, 1")
        A(f"s_mul_i32 s{sT}, s{sT}, 5120")
        A(f"s_add_u32 s{sBASE}, s{sBASE}, s{sT}")
        n = 0
        for k in range(6):
            if pfd and n >= pfd: A(f"s_waitcnt vmcnt({pfd-1})")
            A(f"s_add_u32 s{sT}, s{sBASE}, {k*1024}")
            A(f"buffer_load_dwordx4 {slot(k)}, v{vOV}, {S4(SN)}, s{sT} offen {polp}"); n += 1
        for k in range(7):
            if pfd and n >= pfd: A(f"s_waitcnt vmcnt({pfd-1})")
            A(f"s_add_u32 s{sT}, s{sT2}, {k*1024}")
            A(f"buffer_load_dwordx4 {slot(6+k)}, v{vOV}, {S4(SA)}, s{sT} offen {polp}"); n += 1
    if pf == 1: prefetch()
    A(f"v_mov_b32 v{vT}, {L_CM}")
    A(f"v_mov_b32 v{vT+2}, 0")
    A(f"v_mov_b32 v{vT+3}, 0")
    A(f"v_mov_b32 v{vT+4}, {len(levels)//2}")
    A(f"ds_write_b64 v{vT}, v[{vT+2}:{vT+3}]")
    A(f"ds_write_b32 v{vT}, v{vT+4} offset:8")
    A("s_waitcnt lgkmcnt(0)")
    A("s_branch L_bar1")
    A.lab("L_qw")
    if qprio: A(f"s_setprio {qprio}")
    sMU = sIT
    A(f"s_lshl_b32 s{sMU}, s{sB}, 1")
    A(f"s_or_b32 s{sMU}, s{sMU}, s{sSP}")
    A(f"v_lshrrev_b32 v{vT}, 2, v{vR}")
    A(f"v_lshlrev_b32 v{vT}, 10, v{vT}")
    A(f"v_and_b32 v{vT+1}, 3, v{vR}")
    A(f"v_lshlrev_b32 v{vT+1}, 6, v{vT+1}")
    A(f"v_lshlrev_b32 v{vT+2}, 8, v{vG}")
    A(f"v_add3_u32 v{vON}, v{vT}, v{vT+1}, v{vT+2}")
    A(f"v_lshl_add_u32 v{vL1}, v{vG}, 4, v{vT}")
    A(f"v_lshlrev_b32 v{vT}, 16, v{vG}")
    A(f"v_lshl_add_u32 v{vOA}, v{vR}, 4, v{vT}")
    A(f"v_mov_b32 v{vL2}, 0")
    A(f"s_lshl_b32 s{sT2}, s{sMU}, 7")
    A(f"s_lshl_b32 s{sBASE}, s{sMU}, 19")
    A(f"s_lshl_b32 s{sT}, s{sH}, 8")
    A(f"s_add_u32 s{sBASE}, s{sBASE}, s{sT}")
    A(f"s_lshl_b32 s{sT3}, s{sH}, 6")
    A(f"s_add_u32 s{sT3}, s{sT3}, {hex(W_EP)}")
    A("s_waitcnt lgkmcnt(0)")
    srd(SA, sX, 4096)
    srd(SN, sWQ, 0 if nul_wq else 0x400000)
    srd(SC, sWS, W_SZ)
    XR = SL + 64
    XF = SL + 80
    XE = vBQ
    XD = SL + 128
    vTG = vBQ + 8
    for i in range(4):
        A(f"buffer_load_dwordx4 {q4(XR+4*i)}, v{vON}, {S4(SA)}, 0 offen offset:{16*i}")
    for s_ in range(2):
        A(f"buffer_load_dwordx4 {q4(XE+4*s_)}, v{vL1}, {S4(SA)}, s{sT2} offen offset:{64*s_}")
    for k in range(16):
        A(f"s_add_u32 s{sT}, s{sBASE}, {hex(((k>>3)*32 + (k&7))*8192)}")
        A(f"buffer_load_dwordx4 {slot(k)}, v{vOA}, {S4(SN)}, s{sT} offen {polq}")
    A(f"buffer_load_dwordx2 v[{vTG}:{vTG+1}], v{vL2}, {S4(SC)}, s{sT3} offen sc1")
    stamp(0)
    def red16(reg, tmp):
        for qp in ("[1,0,3,2]", "[2,3,0,1]"):
            A("s_nop 1")
            A(f"v_add_f32_dpp v{reg}, v{reg}, v{reg} quad_perm:{qp} row_mask:0xf bank_mask:0xf")
        for sw in ("v_permlane16_swap_b32", "v_permlane32_swap_b32"):
            A("s_nop 0")
            A(f"v_mov_b32 v{tmp}, v{reg}")
            A("s_nop 1")
            A(f"{sw} v{reg}, v{tmp}")
            A("s_nop 0")
            A(f"v_add_f32 v{reg}, v{reg}, v{tmp}")
    def ln_finish(mean, var, t):
        rne(mean, t)
        rne(var, t)
        A(f"v_add_f32 v{var}, 0x3727c5ac, v{var}")
        rne(var, t)
        A(f"v_sqrt_f32 v{var}, v{var}")
        A("s_nop 0")
        rne(var, t)
        A(f"v_rcp_f32 v{var}, v{var}")
        A("s_nop 0")
    A("s_waitcnt vmcnt(19)")
    for i in range(16):
        A(f"v_lshlrev_b32 v{XF+2*i}, 16, v{XR+i}")
        A(f"v_and_b32 v{XF+2*i+1}, 0xffff0000, v{XR+i}")
    p2 = lambda r: f"v[{r}:{r+1}]"
    for i in range(8):
        A(f"v_pk_add_f32 {p2(XR+2*i)}, {p2(XF+4*i)}, {p2(XF+4*i+2)}")
    for st in (4, 2, 1):
        for i in range(st):
            A(f"v_pk_add_f32 {p2(XR+2*i)}, {p2(XR+2*i)}, {p2(XR+2*(i+st))}")
    A(f"v_add_f32 v{vT}, v{XR}, v{XR+1}")
    red16(vT, vT + 1)
    A(f"v_mul_f32 v{vT}, 0x3b000000, v{vT}")
    A(f"v_mov_b32 v{vT+1}, v{vT}")
    for i in range(16):
        A(f"v_pk_add_f32 {p2(XF+2*i)}, {p2(XF+2*i)}, {p2(vT)} neg_lo:[0,1] neg_hi:[0,1]")
    for c_ in range(2):
        A(f"v_pk_mul_f32 {p2(XR+2*c_)}, {p2(XF+2*c_)}, {p2(XF+2*c_)}")
    for i in range(2, 16):
        c_ = i & 1
        A(f"v_pk_fma_f32 {p2(XR+2*c_)}, {p2(XF+2*i)}, {p2(XF+2*i)}, {p2(XR+2*c_)}")
    A(f"v_pk_add_f32 {p2(XR)}, {p2(XR)}, {p2(XR+2)}")
    A(f"v_add_f32 v{vT+2}, v{XR}, v{XR+1}")
    red16(vT + 2, vT + 1)
    A(f"v_mul_f32 v{vT+2}, 0x3b000000, v{vT+2}")
    ln_finish(vT, vT + 2, vT + 1)
    A("s_waitcnt vmcnt(17)")
    for i in range(8):
        A(f"v_lshlrev_b32 v{XF+2*i}, 16, v{XE+i}")
        A(f"v_and_b32 v{XF+2*i+1}, 0xffff0000, v{XE+i}")
    for i in range(16):
        A(f"v_sub_f32 v{XF+i}, v{XF+i}, v{vT}")
    for i in range(8):
        A(f"v_cvt_pk_bf16_f32 v{XE+i}, v{XF+2*i}, v{XF+2*i+1}")
    for i in range(8):
        A(f"v_lshlrev_b32 v{XF+2*i}, 16, v{XE+i}")
        A(f"v_and_b32 v{XF+2*i+1}, 0xffff0000, v{XE+i}")
    for i in range(16):
        A(f"v_mul_f32 v{XF+i}, v{XF+i}, v{vT+2}")
    for i in range(8):
        A(f"v_cvt_pk_bf16_f32 v{XE+i}, v{XF+2*i}, v{XF+2*i+1}")
    stamp(1)
    A(f"s_mov_b32 s{sM0}, 0x05040100")
    A(f"s_mov_b32 s{sM0+1}, 0x07060302")
    def bperm(dst, s_, jj):
        for m in range(4):
            lo = SL + 4 * (8 * s_ + 2 * m) + (jj >> 1)
            hi = SL + 4 * (8 * s_ + 2 * m + 1) + (jj >> 1)
            A(f"v_perm_b32 v{dst+m}, v{hi}, v{lo}, s{sM0 + (jj & 1)}")
    A("s_waitcnt vmcnt(9)")
    bperm(vA0, 0, 0)
    for n in range(16):
        s_, jj = n >> 3, n & 7
        cur = vA0 if (n & 1) == 0 else vA1
        nxt = vA1 if (n & 1) == 0 else vA0
        if n == 7: A("s_waitcnt vmcnt(1)")
        if n + 1 < 16: bperm(nxt, (n + 1) >> 3, (n + 1) & 7)
        else: A("s_nop 1")
        A(f"v_mfma_f32_16x16x32_bf16 {q4(XD+4*jj)}, {q4(XE+4*s_)}, {q4(cur)}, {'0' if s_==0 else q4(XD+4*jj)}")
    A("s_waitcnt vmcnt(0)")
    A(f"v_mov_b32 v{vT}, 0x9e3779b9")
    A(f"v_add_co_u32 v{vTG}, vcc, 0x7f4a7c15, v{vTG}")
    A("s_nop 1")
    A(f"v_addc_co_u32 v{vTG+1}, vcc, v{vT}, v{vTG+1}, vcc")
    A(f"v_lshlrev_b32 v{vT}, 13, v{vG}")
    A(f"v_lshl_add_u32 v{vT}, v{vR}, 4, v{vT}")
    A(f"s_lshl_b32 s{sCUR}, s{sH}, 15")
    A(f"s_add_u32 s{sCUR}, s{sCUR}, {hex(W_QP)}")
    A(f"s_lshl_b32 s{sT}, s{sMU}, 10")
    A(f"s_add_u32 s{sT}, s{sT}, s{sCUR}")
    A("s_nop 3")
    A(f"v_mov_b32 v{vON}, v{vT}")
    A(f"s_add_u32 s{sBASE}, s{sT}, 0x100000")
    for n in range(4):
        A(f"v_mov_b32 v{XD+8*n+1}, v{XD+8*n+4}")
        A(f"v_mov_b32 v{XD+8*n+2}, v{vTG}")
        A(f"v_mov_b32 v{XD+8*n+3}, v{vTG+1}")
        A(f"buffer_store_dwordx4 {q4(XD+8*n)}, v{vON}, {S4(SC)}, s{sT} offen offset:{256*n} {polA}")
    def storeB():
        for n in range(4):
            A(f"buffer_store_dwordx4 {q4(XD+8*n)}, v{vON}, {S4(SC)}, s{sBASE} offen offset:{256*n} sc1")
    stamp(2)
    A(f"s_lshl_b32 s{sT}, s{sB}, 13")
    A(f"s_add_u32 s{sCUR}, s{sCUR}, s{sT}")
    A(f"s_add_u32 s{sNXT}, s{sCUR}, 4096")
    A(f"s_mov_b32 s{sSPIN}, 0")
    if qpre: A(f"s_sleep {qpre}")
    A.lab("L_qp")
    for n in range(8):
        A(f"buffer_load_dwordx4 {slot(n)}, v{vOV}, {S4(SC)}, s{sCUR if n<4 else sNXT} offen offset:{1024*(n&3)} sc1")
    A(f"s_add_u32 s{sSPIN}, s{sSPIN}, 1")
    A(f"v_mov_b32 v{vT}, 0")
    for n in range(8):
        A(f"s_waitcnt vmcnt({7-n})")
        A(f"v_xor_b32 v{vT+1}, v{SL+4*n+2}, v{vTG}")
        A(f"v_xor_b32 v{vT+2}, v{SL+4*n+3}, v{vTG+1}")
        A(f"v_or3_b32 v{vT}, v{vT}, v{vT+1}, v{vT+2}")
    A(f"v_cmp_ne_u32 vcc, 0, v{vT}")
    A("s_nop 1")
    A("s_cmp_eq_u64 vcc, 0")
    A("s_cbranch_scc1 L_qp_ok")
    if qsleep: A(f"s_sleep {qsleep}")
    A(f"s_cmp_eq_u32 s{sSPIN}, {NA}")
    A("s_cbranch_scc0 L_qp_c")
    storeB()
    A(f"s_add_u32 s{sCUR}, s{sCUR}, 0x100000")
    A(f"s_add_u32 s{sNXT}, s{sNXT}, 0x100000")
    A.lab("L_qp_c")
    A(f"s_cmp_lt_u32 s{sSPIN}, {SPINMAX}")
    A("s_cbranch_scc1 L_qp")
    A.lab("L_qp_ok")
    stamp(6)
    if stamps: A(f"v_writelane_b32 v{vST}, s{sSPIN}, 60")
    for st in (4, 2, 1):
        for n in range(st):
            A(f"v_pk_add_f32 {p2(SL+4*n)}, {p2(SL+4*n)}, {p2(SL+4*(n+st))}")
    A(f"v_cvt_pk_bf16_f32 v{vT}, v{SL}, v{SL+1}")
    A(f"v_lshlrev_b32 v{vT+1}, 2, v{vG}")
    A(f"v_lshl_add_u32 v{vT+1}, v{vR}, 4, v{vT+1}")
    A(f"ds_write_b32 v{vT+1}, v{vT} offset:{L_QP}")
    storeB()
    A(f"s_cmp_eq_u32 s{sMU}, 0")
    A("s_cbranch_scc0 L_qnl")
    A("s_mov_b64 exec, 1")
    A(f"buffer_store_dwordx2 v[{vTG}:{vTG+1}], v{vL2}, {S4(SC)}, s{sT3} offen sc1")
    A("s_mov_b64 exec, -1")
    A.lab("L_qnl")
    A("s_waitcnt lgkmcnt(0)")
    if qprio: A("s_setprio 0")
    A.lab("L_bar1")
    A("s_barrier")
    stamp(3)
    if pf == 2:
        A(f"s_cmp_eq_u32 s{sJ}, 0")
        A("s_cbranch_scc1 L_nopf")
        prefetch()
        A.lab("L_nopf")
    A("s_waitcnt vmcnt(0)")
    build_masks()
    A(f"v_lshlrev_b32 v{vT}, 5, v{vR}")
    A(f"v_lshlrev_b32 v{vT+1}, 4, v{vG}")
    A(f"s_lshl_b32 s{sT2}, s{sJ}, 9")
    A(f"v_add3_u32 v{vL0}, v{vT}, v{vT+1}, s{sT2}")

    def gemv(n, pps, waitf, issuef=None, slotf=lambda k: k):
        diag(vA0, pps[0], 0)
        for k in range(n):
            Acur = vA0 if (k & 1) == 0 else vA1
            Anxt = vA1 if (k & 1) == 0 else vA0
            if k + 1 < n:
                diag(Anxt, pps[(k + 1) >> 4], (k + 1) & 15)
            else:
                A("s_nop 1")
            waitf(k)
            A(f"v_mfma_f32_16x16x32_bf16 {q4(vD0)}, {q4(Acur)}, {slot(slotf(k))}, {'0' if k==0 else q4(vD0)}")
            if issuef: issuef(k)
        A("s_nop 7")

    A(f"s_cmp_eq_u32 s{sJ}, 3")
    A("s_cbranch_scc0 L_noclr")
    for i in range(4):
        A(f"v_mov_b32 v{vBQ+i}, -1")
    A(f"s_lshl_b32 s{sT}, s2, 11")
    A(f"buffer_store_dwordx4 {q4(vBQ)}, v{vOV}, {S4(SC)}, s{sT} offen sc1")
    A(f"buffer_store_dwordx4 {q4(vBQ)}, v{vOV}, {S4(SC)}, s{sT} offen offset:1024 sc1")
    A(f"s_cmp_lt_u32 s{sIDX}, {NFFN}")
    A("s_cbranch_scc0 L_noclrz")
    A(f"s_lshl_b32 s{sT}, s{sB}, 5")
    A(f"s_add_u32 s{sT}, s{sT}, s{sIDX}")
    A(f"s_lshl_b32 s{sT}, s{sT}, 11")
    A(f"s_add_u32 s{sT}, s{sT}, {hex(W_Z)}")
    A(f"buffer_store_dwordx4 {q4(vBQ)}, v{vOV}, {S4(SC)}, s{sT} offen sc1")
    A(f"buffer_store_dwordx4 {q4(vBQ)}, v{vOV}, {S4(SC)}, s{sT} offen offset:1024 sc1")
    A.lab("L_noclrz")
    A(f"s_lshl_b32 s{sT}, s2, 6")
    A(f"s_add_u32 s{sT}, s{sT}, {hex(W_ML)}")
    A("s_mov_b64 exec, 1")
    A(f"buffer_store_dwordx2 v[{vBQ}:{vBQ+1}], v{vOV}, {S4(SC)}, s{sT} offen sc1")
    A("s_waitcnt vmcnt(0)")
    srd(SD_, sDBG, 256)
    A(f"v_mov_b32 v{vT}, 1")
    A(f"buffer_atomic_add v{vT}, v{vOV}, {S4(SD_)}, 0 offen sc1")
    A("s_mov_b64 exec, -1")
    A.lab("L_noclr")

    def lds_wait(addr, val, tag):
        lab = A.uid("lw")
        A(f"v_mov_b32 v{vT}, {addr}")
        A(f"s_mov_b32 s{sSPIN}, 0")
        A.lab(lab)
        A(f"ds_read_b32 v{vT+1}, v{vT}")
        A("s_waitcnt lgkmcnt(0)")
        A(f"v_readfirstlane_b32 s{sT}, v{vT+1}")
        A(f"s_add_u32 s{sSPIN}, s{sSPIN}, 1")
        A(f"s_cmp_ge_u32 s{sT}, {val}")
        A(f"s_cbranch_scc1 {lab}_ok")
        A("s_sleep 4")
        A(f"s_cmp_lt_u32 s{sSPIN}, {SPINMAX}")
        A(f"s_cbranch_scc1 {lab}")
        A.lab(lab + "_ok")

    def rows512_off():
        A(f"v_lshlrev_b32 v{vT}, 10, v{vG}")
        A(f"v_lshlrev_b32 v{vT+1}, 4, v{vR}")
        A(f"v_add_u32 v{vOA}, v{vT}, v{vT+1}")

    def r512load(k, srdb, sl=None, pol=None):
        A(f"s_add_u32 s{sT}, s{sBASE}, {hex(k*4096)}")
        A(f"buffer_load_dwordx4 {slot(k if sl is None else sl)}, v{vOA}, {S4(srdb)}, s{sT} offen {pola if pol is None else pol}")
    def wo_block():
        dw = daw or da
        srd(SN, sWO, 0 if nul_aux in (True,'wo') else 0x400000)
        rows512_off()
        A(f"s_lshl_b32 s{sBASE}, s{sH}, 17")
        A(f"s_lshl_b32 s{sT}, s{sJ}, 8")
        A(f"s_add_u32 s{sBASE}, s{sBASE}, s{sT}")
        for k in range(32):
            if k >= dw: A(f"s_waitcnt vmcnt({dw-1})")
            r512load(k, SN, pol=polw)
        A("s_waitcnt vmcnt(0)")
        stamp(5)
    fsl = lambda k: 40 + (k & 7)
    if wofirst: wo_block()
    A(f"s_cmp_lt_u32 s{sIDX}, {NFFN}")
    A("s_cbranch_scc0 L_noffn")
    srd(SA, sX, 4096)
    A(f"v_lshlrev_b32 v{vT}, 3, v{vR}")
    A(f"v_lshlrev_b32 v{vT+1}, 1, v{vG}")
    A(f"s_lshl_b32 s{sT2}, s{sJ}, 8")
    A(f"v_add3_u32 v{vON}, v{vT}, v{vT+1}, s{sT2}")
    A(f"s_lshl_b32 s{sT2}, s{sB}, 10")
    A(f"buffer_load_dwordx4 {q4(vBQ)}, v{vOV}, {S4(SA)}, s{sT2} offen")
    A(f"buffer_load_ushort v{vP0}, v{vON}, {S4(SA)}, s{sT2} offen")
    A(f"buffer_load_ushort v{vP1}, v{vON}, {S4(SA)}, s{sT2} offen offset:128")
    A("s_waitcnt vmcnt(0)")
    F = vBQ + 4
    for m in range(4):
        A(f"v_lshlrev_b32 v{F+2*m}, 16, v{vBQ+m}")
        A(f"v_and_b32 v{F+2*m+1}, 0xffff0000, v{vBQ+m}")
    A(f"v_lshlrev_b32 v{vP0}, 16, v{vP0}")
    A(f"v_lshlrev_b32 v{vP1}, 16, v{vP1}")
    A(f"v_add_f32 v{vT}, v{F}, v{F+1}")
    A(f"v_add_f32 v{vT+1}, v{F+2}, v{F+3}")
    A(f"v_add_f32 v{vT+2}, v{F+4}, v{F+5}")
    A(f"v_add_f32 v{vT+3}, v{F+6}, v{F+7}")
    A(f"v_add_f32 v{vT}, v{vT}, v{vT+1}")
    A(f"v_add_f32 v{vT+2}, v{vT+2}, v{vT+3}")
    A(f"v_add_f32 v{vT}, v{vT}, v{vT+2}")
    allreduce("v_add_f32", vT, vT + 1)
    A(f"v_mul_f32 v{vT}, 0x3b000000, v{vT}")
    for e in range(8):
        A(f"v_sub_f32 v{F+e}, v{F+e}, v{vT}")
    A(f"v_mul_f32 v{vT+2}, v{F}, v{F}")
    for e in range(1, 8):
        A(f"v_fmac_f32 v{vT+2}, v{F+e}, v{F+e}")
    allreduce("v_add_f32", vT + 2, vT + 1)
    A(f"v_mul_f32 v{vT+2}, 0x3b000000, v{vT+2}")
    ln_finish(vT, vT + 2, vT + 1)
    for p in (vP0, vP1):
        A(f"v_sub_f32 v{p}, v{p}, v{vT}")
        rne(p, vT + 1)
        A(f"v_mul_f32 v{p}, v{p}, v{vT+2}")
        A(f"v_cvt_pk_bf16_f32 v{p}, v{p}, v{p}")
    srd(SA, sW1, 0 if nul_aux in (True,'ffn') else 512 * 1792 * 2)
    srd(SN, sW3, 0 if nul_aux in (True,'ffn') else 512 * 1792 * 2)
    A(f"v_mul_u32_u24 v{vT}, 3584, v{vG}")
    A(f"v_and_b32 v{vT+1}, 7, v{vR}")
    A(f"v_lshlrev_b32 v{vT+1}, 4, v{vT+1}")
    A(f"v_add_u32 v{vOA}, v{vT}, v{vT+1}")
    A(f"s_mul_i32 s{sBASE}, s{sJ}, {128*3584}")
    A(f"s_lshl_b32 s{sT}, s{sIDX}, 7")
    A(f"s_add_u32 s{sBASE}, s{sBASE}, s{sT}")
    A(f"s_mov_b32 s{sM0}, 0x00ff00ff")
    A(f"s_mov_b32 s{sM0+1}, 0x00ff00ff")
    A(f"s_mov_b32 s{sM1}, 0xff00ff00")
    A(f"s_mov_b32 s{sM1+1}, 0xff00ff00")
    A("s_waitcnt vmcnt(0)")
    def f1load(k):
        A(f"s_add_u32 s{sT}, s{sBASE}, {hex(k*4*3584)}")
        A(f"s_mov_b64 exec, s[{sM0}:{sM0+1}]")
        A(f"buffer_load_dwordx4 {slot(fsl(k))}, v{vOA}, {S4(SA)}, s{sT} offen {pola}")
        A(f"s_mov_b64 exec, s[{sM1}:{sM1+1}]")
        A(f"buffer_load_dwordx4 {slot(fsl(k))}, v{vOA}, {S4(SN)}, s{sT} offen {pola}")
        A("s_mov_b64 exec, -1")
    for k in range(da): f1load(k)
    gemv(32, (vP0, vP1),
         lambda k: A(f"s_waitcnt vmcnt({2*min(da-1, 31-k)})"),
         lambda k: f1load(k + da) if k + da < 32 else None, fsl)
    A("s_mov_b32 exec_hi, 0")
    A(f"ds_write_b128 v{vL0}, {q4(vD0)} offset:{L_FP}")
    A("s_mov_b64 exec, 1")
    A(f"v_mov_b32 v{vT}, {L_CF}")
    A(f"v_mov_b32 v{vT+1}, 1")
    A("s_waitcnt lgkmcnt(0)")
    A(f"ds_add_u32 v{vT}, v{vT+1}")
    A("s_mov_b64 exec, -1")
    srd(SA, sW2, 0 if nul_aux in (True,'ffn') else 1792 * 512 * 2)
    rows512_off()
    A(f"s_lshl_b32 s{sBASE}, s{sIDX}, 16")
    A(f"s_lshl_b32 s{sT}, s{sJ}, 8")
    A(f"s_add_u32 s{sBASE}, s{sBASE}, s{sT}")
    for k in range(da): r512load(k, SA, fsl(k))
    lds_wait(L_CF, 4, "cf")
    A(f"v_lshlrev_b32 v{vT}, 4, v{vR}")
    A(f"v_lshlrev_b32 v{vT+1}, 2, v{vG}")
    A(f"v_add_u32 v{vT}, v{vT}, v{vT+1}")
    for w in range(4):
        A(f"ds_read_b32 v{vBQ+w}, v{vT} offset:{L_FP + w*512}")
        A(f"ds_read_b32 v{vBQ+4+w}, v{vT} offset:{L_FP + w*512 + 256}")
    A("s_waitcnt lgkmcnt(0)")
    for b0 in (vBQ, vBQ + 4):
        A(f"v_add_f32 v{b0}, v{b0}, v{b0+1}")
        A(f"v_add_f32 v{b0+2}, v{b0+2}, v{b0+3}")
        A(f"v_add_f32 v{b0}, v{b0}, v{b0+2}")
        rne(b0, vT + 1)
    silu(vBQ, vT + 1)
    rne(vBQ, vT + 1)
    A(f"v_mul_f32 v{vBQ}, v{vBQ}, v{vBQ+4}")
    A(f"v_cvt_pk_bf16_f32 v{vBQ+8}, v{vBQ}, v{vBQ}")
    A("s_nop 1")
    gemv(16, (vBQ + 8,),
         lambda k: A(f"s_waitcnt vmcnt({min(da-1, 15-k)})"),
         lambda k: r512load(k + da, SA, fsl(k + da)) if k + da < 16 else None, fsl)
    for i in range(4):
        A(f"v_min_u32 v{vD0+i}, -2, v{vD0+i}")
    A(f"s_lshl_b32 s{sT}, s{sB}, 5")
    A(f"s_add_u32 s{sT}, s{sT}, s{sIDX}")
    A(f"s_lshl_b32 s{sT}, s{sT}, 11")
    A(f"s_add_u32 s{sT}, s{sT}, {hex(W_Z)}")
    A("s_mov_b32 exec_hi, 0")
    A(f"buffer_store_dwordx4 {q4(vD0)}, v{vL0}, {S4(SC)}, s{sT} offen sc1")
    A("s_mov_b64 exec, -1")
    A.lab("L_noffn")
    stamp(4)
    if not wofirst: wo_block()
    vPO = SL + 128
    vGt = vPO + 8
    vXr = vPO + 12
    NV2 = max(NV, vPO + 32)
    A(f"v_lshrrev_b32 v{vT}, 3, v{vLANE}")
    A(f"v_lshlrev_b32 v{vT}, 11, v{vT}")
    A(f"v_and_b32 v{vT+1}, 7, v{vLANE}")
    A(f"v_lshlrev_b32 v{vT+2}, 4, v{vT+1}")
    A(f"v_add_u32 v{vPO}, v{vT}, v{vT+2}")
    for n in range(1, 8):
        A(f"v_add_u32 v{vPO+n}, {hex(n*16384)}, v{vPO}")
    A(f"v_lshlrev_b32 v{vL1}, 3, v{vT+1}")
    A(f"s_cmp_eq_u32 s{sJ}, 3")
    A("s_cbranch_scc0 L_bar2")
    srd(SD_, sDBG, 256)
    A(f"v_mov_b32 v{vT}, 0")
    A(f"s_mov_b32 s{sSPIN}, 0")
    A.lab("L_c0")
    A(f"buffer_load_dword v{vT+1}, v{vT}, {S4(SD_)}, 0 offen sc1")
    A("s_waitcnt vmcnt(0)")
    A(f"v_readfirstlane_b32 s{sT}, v{vT+1}")
    A(f"s_add_u32 s{sSPIN}, s{sSPIN}, 1")
    A(f"s_cmp_ge_u32 s{sT}, 256")
    A("s_cbranch_scc1 L_c0_ok")
    A("s_sleep 8")
    A(f"s_cmp_lt_u32 s{sSPIN}, {SPINMAX}")
    A("s_cbranch_scc1 L_c0")
    A.lab("L_c0_ok")

    def poll(nload, regs, voffs, soff, tag, sleep):
        lab = A.uid("pl")
        A(f"s_mov_b32 s{sSPIN}, 0")
        A.lab(lab)
        for n in range(nload):
            A(f"buffer_load_dwordx4 {q4(regs+4*n)}, v{voffs[n]}, {S4(SC)}, s{soff} offen sc1")
        A(f"s_add_u32 s{sSPIN}, s{sSPIN}, 1")
        for n in range(nload):
            A(f"s_waitcnt vmcnt({nload-1-n})")
            r = regs + 4 * n
            if n == 0:
                A(f"v_max3_u32 v{vT}, v{r}, v{r+1}, v{r+2}")
                A(f"v_max_u32 v{vT}, v{vT}, v{r+3}")
            else:
                A(f"v_max3_u32 v{vT}, v{vT}, v{r}, v{r+1}")
                A(f"v_max3_u32 v{vT}, v{vT}, v{r+2}, v{r+3}")
        A(f"v_cmp_eq_u32 vcc, -1, v{vT}")
        A("s_nop 1")
        A("s_cmp_eq_u64 vcc, 0")
        A(f"s_cbranch_scc1 {lab}_ok")
        if sleep: A(f"s_sleep {sleep}")
        A(f"s_cmp_lt_u32 s{sSPIN}, {SPINMAX}")
        A(f"s_cbranch_scc1 {lab}")
        A.lab(lab + "_ok")

    def reduce_rows(regs, nload):
        n = nload
        while n > 1:
            h = n // 2
            for a in range(h):
                for i in range(4):
                    A(f"v_add_f32 v{regs+4*a+i}, v{regs+4*a+i}, v{regs+4*(a+h)+i}")
            n = h
        A("s_nop 1")
        for i in range(4):
            A(f"v_add_f32_dpp v{regs+i}, v{regs+i}, v{regs+i} row_ror:8 row_mask:0xf bank_mask:0xf")
        for sw in ("v_permlane16_swap_b32", "v_permlane32_swap_b32"):
            for i in range(4):
                A(f"v_mov_b32 v{regs+4+i}, v{regs+i}")
            A("s_nop 1")
            for i in range(4):
                A(f"{sw} v{regs+i}, v{regs+4+i}")
            A("s_nop 1")
            for i in range(4):
                A(f"v_add_f32 v{regs+i}, v{regs+i}, v{regs+4+i}")

    A(f"s_cmp_ge_u32 s{sIDX}, 48")
    A("s_cbranch_scc0 L_nocons1")
    srd(SA, sX, 4096)
    A(f"s_sub_u32 s{sT2}, s{sIDX}, 48")
    A(f"s_lshl_b32 s{sT3}, s{sT2}, 6")
    A(f"s_lshl_b32 s{sT}, s{sB}, 10")
    A(f"s_add_u32 s{sT3}, s{sT3}, s{sT}")
    A(f"buffer_load_dwordx2 v[{vXr}:{vXr+1}], v{vL1}, {S4(SA)}, s{sT3} offen")
    A(f"v_cmp_gt_u32 vcc, {(NFFN-24)*8}, v{vLANE}")
    A(f"v_mov_b32 v{vT+3}, 0x40000000")
    A("s_nop 0")
    A(f"v_cndmask_b32 v{vL2}, v{vT+3}, v{vPO+3}, vcc")
    A(f"s_lshl_b32 s{sCUR}, s{sB}, 16")
    A(f"s_lshl_b32 s{sT}, s{sT2}, 7")
    A(f"s_add_u32 s{sCUR}, s{sCUR}, s{sT}")
    A(f"s_add_u32 s{sCUR}, s{sCUR}, {hex(W_Z)}")
    poll(4, vBQ, [vPO, vPO + 1, vPO + 2, vL2], sCUR, "z", 8)
    reduce_rows(vBQ, 4)
    for i in range(4):
        rne(vBQ + i, vT + 1)
        silu(vBQ + i, vT + 1)
        rne(vBQ + i, vT + 1)
        A(f"v_mov_b32 v{vGt+i}, v{vBQ+i}")
    A(f"v_and_b32 v{vXr+3}, 0xffff0000, v{vXr+1}")
    A(f"v_lshlrev_b32 v{vXr+2}, 16, v{vXr+1}")
    A(f"v_and_b32 v{vXr+1}, 0xffff0000, v{vXr}")
    A(f"v_lshlrev_b32 v{vXr}, 16, v{vXr}")
    A(f"s_lshl_b32 s{sCUR}, s{sB}, 17")
    A(f"s_lshl_b32 s{sT}, s{sT2}, 7")
    A(f"s_add_u32 s{sCUR}, s{sCUR}, s{sT}")
    A.lab("L_nocons1")
    stamp(6)
    lds_wait(L_CM, 4, "cm")
    A(f"v_mov_b32 v{vT}, {L_ML}")
    A(f"ds_read_b128 {q4(vBQ)}, v{vT}")
    A(f"ds_read_b128 {q4(vBQ+4)}, v{vT} offset:16")
    A("s_waitcnt lgkmcnt(0)")
    A(f"v_max_f32 v{vBQ+8}, v{vBQ}, v{vBQ+2}")
    A(f"v_max3_f32 v{vBQ+8}, v{vBQ+8}, v{vBQ+4}, v{vBQ+6}")
    A(f"v_mov_b32 v{vBQ+9}, 0")
    A(f"s_mov_b32 s{sT2}, {hex(LOG2E)}")
    for w in range(4):
        A(f"v_sub_f32 v{vT}, v{vBQ+2*w}, v{vBQ+8}")
        A(f"v_mul_f32 v{vT}, s{sT2}, v{vT}")
        A(f"v_exp_f32 v{vT}, v{vT}")
        A("s_nop 0")
        A(f"v_fmac_f32 v{vBQ+9}, v{vT}, v{vBQ+2*w+1}")
    A(f"v_min_u32 v{vBQ+10}, -2, v{vBQ+8}")
    A(f"v_min_u32 v{vBQ+11}, -2, v{vBQ+9}")
    A(f"v_mov_b32 v{vT+2}, 0")
    A(f"s_lshl_b32 s{sT}, s2, 6")
    A(f"s_add_u32 s{sT}, s{sT}, {hex(W_ML)}")
    A("s_mov_b64 exec, 1")
    A(f"buffer_store_dwordx2 v[{vBQ+10}:{vBQ+11}], v{vT+2}, {S4(SC)}, s{sT} offen sc1")
    A("s_mov_b64 exec, -1")
    A(f"s_xor_b32 s{sNXT}, s{sT}, {8<<6}")
    A(f"s_mov_b32 s{sSPIN}, 0")
    A.lab("L_ml")
    A(f"buffer_load_dwordx2 v[{vBQ+12}:{vBQ+13}], v{vT+2}, {S4(SC)}, s{sNXT} offen sc1")
    A(f"s_add_u32 s{sSPIN}, s{sSPIN}, 1")
    A("s_waitcnt vmcnt(0)")
    A(f"v_max_u32 v{vT}, v{vBQ+12}, v{vBQ+13}")
    A("s_nop 0")
    A(f"v_readfirstlane_b32 s{sT}, v{vT}")
    A(f"s_cmp_lg_u32 s{sT}, -1")
    A("s_cbranch_scc1 L_ml_ok")
    A("s_sleep 8")
    A(f"s_cmp_lt_u32 s{sSPIN}, {SPINMAX}")
    A("s_cbranch_scc1 L_ml")
    A.lab("L_ml_ok")
    A(f"v_max_f32 v{vBQ+14}, v{vBQ+8}, v{vBQ+12}")
    A(f"v_sub_f32 v{vT}, v{vBQ+8}, v{vBQ+14}")
    A(f"v_sub_f32 v{vT+1}, v{vBQ+12}, v{vBQ+14}")
    A(f"v_mul_f32 v{vT}, s{sT2}, v{vT}")
    A(f"v_mul_f32 v{vT+1}, s{sT2}, v{vT+1}")
    A(f"v_exp_f32 v{vT}, v{vT}")
    A(f"v_exp_f32 v{vT+1}, v{vT+1}")
    A("s_nop 0")
    A(f"v_mul_f32 v{vT}, v{vT}, v{vBQ+9}")
    A(f"v_fmac_f32 v{vT}, v{vT+1}, v{vBQ+13}")
    A(f"v_rcp_f32 v{vT+1}, v{vT}")
    for w in range(4):
        A(f"v_sub_f32 v{vT+2+w}, v{vBQ+2*w}, v{vBQ+14}")
        A(f"v_mul_f32 v{vT+2+w}, s{sT2}, v{vT+2+w}")
        A(f"v_exp_f32 v{vT+2+w}, v{vT+2+w}")
        A("s_nop 0")
        A(f"v_mul_f32 v{vT+2+w}, v{vT+2+w}, v{vT+1}")
    A(f"v_mov_b32 v{vT}, {L_FW}")
    A("s_mov_b64 exec, 1")
    A(f"ds_write_b128 v{vT}, v[{vT+2}:{vT+5}]")
    A("s_mov_b64 exec, -1")
    A("s_waitcnt lgkmcnt(0)")
    A.lab("L_bar2")
    A(f"v_lshlrev_b32 v{vT}, 4, v{vR}")
    A(f"v_lshlrev_b32 v{vT+1}, 2, v{vG}")
    A(f"v_add_u32 v{vT}, v{vT}, v{vT+1}")
    A(f"v_mov_b32 v{vT+1}, {L_FW}")
    A(f"s_lshl_b32 s{sNXT}, s2, 11")
    stamp(7)
    A("s_barrier")
    A(f"ds_read_b128 {q4(vBQ+8)}, v{vT+1}")
    for w in range(4):
        A(f"ds_read_b32 v{vBQ+w}, v{vT} offset:{L_OP + w*512}")
        A(f"ds_read_b32 v{vBQ+4+w}, v{vT} offset:{L_OP + w*512 + 256}")
    A("s_waitcnt lgkmcnt(0)")
    for u, p in ((0, vP0), (1, vP1)):
        A(f"v_mul_f32 v{p}, v{vBQ+4*u}, v{vBQ+8}")
    for w in range(1, 4):
        for u, p in ((0, vP0), (1, vP1)):
            A(f"v_fmac_f32 v{p}, v{vBQ+4*u+w}, v{vBQ+8+w}")
    A(f"v_cvt_pk_bf16_f32 v{vP0}, v{vP0}, v{vP0}")
    A(f"v_cvt_pk_bf16_f32 v{vP1}, v{vP1}, v{vP1}")
    A("s_nop 1")
    gemv(32, (vP0, vP1), lambda k: None)
    for i in range(4):
        A(f"v_min_u32 v{vD0+i}, -2, v{vD0+i}")
    A("s_mov_b32 exec_hi, 0")
    A(f"buffer_store_dwordx4 {q4(vD0)}, v{vL0}, {S4(SC)}, s{sNXT} offen sc1")
    A("s_mov_b64 exec, -1")
    stamp(8)
    A(f"s_cmp_eq_u32 s{sJ}, 3")
    A("s_cbranch_scc0 L_auxend")
    A(f"s_cmp_ge_u32 s{sIDX}, 48")
    A("s_cbranch_scc0 L_auxend")
    srd(SA, sOUT, 4096)
    poll(8, SL, [vPO + n for n in range(8)], sCUR, "y", 1)
    reduce_rows(SL, 8)
    for i in range(4):
        rne(SL + i, vT + i)
    for i in range(4):
        A(f"v_mul_f32 v{SL+i}, v{SL+i}, v{vGt+i}")
    for i in range(4):
        rne(SL + i, vT + i)
    for i in range(4):
        A(f"v_add_f32 v{SL+i}, v{SL+i}, v{vXr+i}")
    A(f"v_cvt_pk_bf16_f32 v{SL+4}, v{SL}, v{SL+1}")
    A(f"v_cvt_pk_bf16_f32 v{SL+5}, v{SL+2}, v{SL+3}")
    A("s_mov_b64 exec, 0xff")
    A(f"buffer_store_dwordx2 v[{SL+4}:{SL+5}], v{vL1}, {S4(SA)}, s{sT3} offen")
    A("s_mov_b64 exec, -1")
    stamp(9)
    A.lab("L_auxend")
    stamp_flush()
    A.lab("L_end")
    A("s_endpgm")

    ref = open("recurrent_scan__mha_block_cached__glu_gated_swiglu__decode.s.ref").read()
    head = ref.split("; @launch")[0]
    nv = (NV2 + 7) // 8 * 8
    out = head
    out += f"; @launch grid=(256,1,1) block=(512,1,1) lds={LDS + 256}\n"
    out += '.amdgcn_target "amdgcn-amd-amdhsa--gfx950"\n.text\n'
    out += f".globl {NAME}\n.p2align 8\n.type {NAME},@function\n{NAME}:\n"
    out += "\n".join(A.L) + "\n"
    out += '.section .rodata,"a"\n.p2align 6\n'
    out += f".amdhsa_kernel {NAME}\n"
    out += f"  .amdhsa_next_free_vgpr {nv}\n  .amdhsa_next_free_sgpr 80\n  .amdhsa_accum_offset {nv}\n"
    out += "  .amdhsa_group_segment_fixed_size 0\n  .amdhsa_kernarg_size 96\n  .amdhsa_user_sgpr_count 2\n"
    out += "  .amdhsa_user_sgpr_kernarg_segment_ptr 1\n  .amdhsa_system_sgpr_workgroup_id_x 1\n.end_amdhsa_kernel\n"
    return out

if __name__ == "__main__":
    fn = sys.argv[1]
    kw = eval("dict(%s)" % (sys.argv[2] if len(sys.argv) > 2 else ""))
    open(fn, "w").write(gen(**kw))
```

```python
import sys

NAME = "recurrent_scan__mha_block_cached__glu_gated_swiglu__decode_kernel"

class G:
    def __init__(s):
        s.L = []
        s.n = 0
    def __call__(s, t):
        s.L.append("    " + t)
    def lab(s, t):
        s.L.append(t + ":")
    def c(s, t):
        s.L.append("    ; " + t)
    def uid(s, p):
        s.n += 1
        return f"L_{p}{s.n}"

def gen(d=5, dpro=6, da=2, sb=15, stamps=False, round_scores=True, polk="nt", R=48, nul_aux=False, nul_wq=False, pola="nt", polq="nt", kcontig=False,
        LAG=8, qsleep=0, qpre=0, qlite=False, NA=8, polA='', polAl='sc1', levels=None, klevels=None, wofirst=True, ticket=True, pfq=True, shardby='b', pf=1, polp='', pfd=0, daw=None, polw=None, thr=None, every=1, nshard=4, qprio=3):
    A = G()
    fc = levels is not None
    if not fc: levels = [d]
    assert max(levels) <= LAG
    NSH = 256 // nshard
    thr0 = 0.5
    sX, sK, sV, sWQ, sWO, sW1, sW3, sW2, sOUT, sDBG, sWS = 4, 6, 8, 10, 12, 16, 18, 20, 22, 24, 26
    sWAVE, sB, sH, sSP, sIDX, sJ = 28, 29, 30, 31, 32, 33
    SA, SN, SC, SD_, SE = 36, 40, 44, 48, 52
    sCUR, sNXT, sT, sIT, sT2, sT3 = 56, 57, 58, 59, 60, 61
    sM0, sM1 = 62, 64
    sBASE = 66
    sSPIN = 67
    sLV, sAT, sAP = 68, 69, 72
    sREP = 74
    sST = 70
    vLANE, vOA, vON, vOV, vG, vR = 1, 2, 3, 4, 5, 6
    vT7 = 7
    vMK = 8
    vBQ = 12
    vD0, vD1 = 28, 32
    vS, vM = 36, 37
    vT = 38
    vA0, vA1 = 48, 52
    vP0, vP1 = 56, 57
    vL0, vL1, vL2 = 58, 59, 60
    vST = 62
    SL = 64
    NV = SL + 4 * R
    slot = lambda i: f"v[{SL+4*i}:{SL+4*i+3}]"
    q4 = lambda r: f"v[{r}:{r+3}]"
    L_QP = 0
    L_OP = 2048
    L_FP = 4096
    L_ML = 6144
    L_FW = 6176
    L_CM = 6208
    L_CF = 6212
    L_ID = 6220
    L_LV = 6216
    L_SC = 8192
    LDS = L_SC + 4 * 16 * 64 * 4
    W_Y, W_Z, W_ML, W_EP, W_QP, W_SZ = 0, 0x80000, 0xC0000, 0xC8000, 0x100000, 0x300000
    W_ST = 0x300000
    W_FC = 0xD0000
    NFFN = 28
    LOG2E = 0x3FB8AA3B
    SCALE = 0x3DB504F3
    SPINMAX = 400000

    def srd(base, ptr, nbytes):
        A(f"s_mov_b32 s{base}, s{ptr}")
        A(f"s_mov_b32 s{base+1}, s{ptr+1}")
        A(f"s_mov_b32 s{base+2}, {hex(nbytes)}")
        A(f"s_mov_b32 s{base+3}, 0x00020000")
    S4 = lambda b: f"s[{b}:{b+3}]"

    def stamp(i):
        if not stamps: return
        A(f"s_memrealtime s[{sST}:{sST+1}]")
        A("s_waitcnt lgkmcnt(0)")
        A(f"v_writelane_b32 v{vST}, s{sST}, {i}")
    def stamp_it(base):
        if not stamps: return
        A(f"s_memrealtime s[{sST}:{sST+1}]")
        A(f"s_add_u32 m0, s{sIT}, {base}")
        A("s_waitcnt lgkmcnt(0)")
        A(f"v_writelane_b32 v{vST}, s{sST}, m0")
    def stamp_flush():
        if not stamps: return
        A(f"v_writelane_b32 v{vST}, s76, 10")
        A(f"v_writelane_b32 v{vST}, s75, 61")
        srd(SE, sWS, 0x400000)
        A(f"s_lshl_b32 s{sT}, s2, 3")
        A(f"s_add_u32 s{sT}, s{sT}, s{sWAVE}")
        A(f"s_lshl_b32 s{sT}, s{sT}, 8")
        A(f"s_add_u32 s{sT}, s{sT}, {hex(W_ST)}")
        A(f"v_lshlrev_b32 v{vT7}, 2, v{vLANE}")
        A(f"buffer_store_dword v{vST}, v{vT7}, {S4(SE)}, s{sT} offen")

    def allreduce(op, reg, tmp):
        for n in (8, 4, 2, 1):
            A("s_nop 1")
            A(f"{op}_dpp v{reg}, v{reg}, v{reg} row_ror:{n} row_mask:0xf bank_mask:0xf")
        for sw in ("v_permlane16_swap_b32", "v_permlane32_swap_b32"):
            A("s_nop 1")
            A(f"v_mov_b32 v{tmp}, v{reg}")
            A("s_nop 1")
            A(f"{sw} v{reg}, v{tmp}")
            A("s_nop 1")
            A(f"{op} v{reg}, v{reg}, v{tmp}")

    def rne(reg, tmp):
        A(f"v_cvt_pk_bf16_f32 v{tmp}, v{reg}, v{reg}")
        A(f"v_and_b32 v{reg}, 0xffff0000, v{tmp}")

    def diag(dst, pp, j):
        for m in range(4):
            A(f"v_and_b32_dpp v{dst+m}, v{pp}, v{vMK+m} row_newbcast:{j} row_mask:0xf bank_mask:0xf")

    def silu(reg, t):
        A(f"v_mul_f32 v{t}, {hex(LOG2E | 0x80000000)}, v{reg}")
        A(f"v_exp_f32 v{t}, v{t}")
        A("s_nop 0")
        A(f"v_add_f32 v{t}, 1.0, v{t}")
        A(f"v_rcp_f32 v{t}, v{t}")
        A("s_nop 0")
        A(f"v_mul_f32 v{reg}, v{reg}, v{t}")

    if sb == 15:
        koff = lambda k: ((k & 7) << 12) | ((k >> 3) << 16)
        wsh = 10
    elif sb == 10:
        koff = lambda k: k << 13
        wsh = 11
    elif sb == 20:
        koff = lambda k: k << 12
        wsh = 10
    GSTR = (1 << 17) if sb != 20 else (1 << 16)

    A("s_cmp_ge_u32 s2, 256")
    A("s_cbranch_scc1 L_end")
    if stamps: A("s_memrealtime s[76:77]")
    A("s_load_dwordx16 s[4:19], s[0:1], 0")
    A("s_load_dwordx8 s[20:27], s[0:1], 64")
    A(f"v_lshrrev_b32 v{vT7}, 6, v0")
    A(f"v_and_b32 v{vLANE}, 63, v0")
    A(f"v_readfirstlane_b32 s{sWAVE}, v{vT7}")
    A(f"v_lshrrev_b32 v{vG}, 4, v{vLANE}")
    A(f"v_and_b32 v{vR}, 15, v{vLANE}")
    if stamps:
        A(f"v_mov_b32 v{vST}, 0")
        A("s_mov_b32 s75, 0")
    if ticket:
        A(f"v_lshlrev_b32 v{vOV}, 4, v{vLANE}")
        A(f"v_mov_b32 v{vT}, {L_ID}")
        A(f"s_getreg_b32 s{sT2}, hwreg(HW_REG_XCC_ID)")
        A(f"s_cmp_eq_u32 s{sWAVE}, 4")
        A("s_waitcnt lgkmcnt(0)")
        A("s_cbranch_scc0 L_pf")
        A(f"s_mov_b32 s{sSPIN}, 0")
        A.lab("L_tk")
        A(f"s_and_b32 s{sT2}, s{sT2}, 7")
        A(f"s_lshl_b32 s{sT3}, s{sT2}, 5")
        A(f"s_add_u32 s{sT3}, s{sT3}, 4")
        A(f"s_mov_b32 s{sT}, 1")
        A(f"s_atomic_add s{sT}, s[{sDBG}:{sDBG+1}], s{sT3} glc")
        A("s_waitcnt lgkmcnt(0)")
        A(f"s_cmp_lt_u32 s{sT}, 32")
        A("s_cbranch_scc1 L_tk_ok")
        A(f"s_add_u32 s{sT2}, s{sT2}, 1")
        A(f"s_add_u32 s{sSPIN}, s{sSPIN}, 1")
        A(f"s_cmp_lt_u32 s{sSPIN}, 8")
        A("s_cbranch_scc1 L_tk")
        A.lab("L_tk_ok")
        A(f"s_lshl_b32 s{sT}, s{sT}, 3")
        A(f"s_and_b32 s{sT2}, s{sT2}, 7")
        A(f"s_or_b32 s{sT}, s{sT}, s{sT2}")
        A(f"s_and_b32 s{sT}, s{sT}, 255")
        A(f"v_mov_b32 v{vT+1}, s{sT}")
        A(f"ds_write_b32 v{vT}, v{vT+1}")
        A("s_waitcnt lgkmcnt(0)")
        A("s_branch L_bar0")
        A.lab("L_pf")
        if pf == 3:
            def sel(wv, ptr):
                A(f"s_cmp_eq_u32 s{sWAVE}, {wv}")
                A(f"s_cselect_b32 s{SA}, s{ptr}, s{SA}")
                A(f"s_cselect_b32 s{SA+1}, s{ptr+1}, s{SA+1}")
            A(f"s_mov_b32 s{SA}, s{sWO}")
            A(f"s_mov_b32 s{SA+1}, s{sWO+1}")
            sel(0, sW1); sel(1, sW3); sel(2, sW2); sel(6, sWQ); sel(7, sWQ)
            A(f"s_mov_b32 s{SA+2}, 0x400000")
            A(f"s_mov_b32 s{sT2}, 16384")
            A(f"s_cmp_lt_u32 s{sWAVE}, 3")
            A(f"s_cselect_b32 s{SA+2}, {512*1792*2}, s{SA+2}")
            A(f"s_cselect_b32 s{sT2}, 7168, s{sT2}")
            A(f"s_mov_b32 s{SA+3}, 0x00020000")
            A(f"s_mul_i32 s{sT2}, s{sT2}, s2")
            A(f"s_and_b32 s{sT}, s{sWAVE}, 5")
            A(f"s_cmp_eq_u32 s{sT}, 5")
            A(f"s_cselect_b32 s{sT}, 8192, 0")
            A(f"s_add_u32 s{sT2}, s{sT2}, s{sT}")
            A(f"s_add_u32 s{sT3}, s{sT2}, 4096")
            if not pfq:
                A(f"s_cmp_ge_u32 s{sWAVE}, 6")
                A("s_cbranch_scc1 L_bar0")
            for k in range(8):
                A(f"buffer_load_dwordx4 {slot(40+k)}, v{vOV}, {S4(SA)}, s{sT2 if k<4 else sT3} offen offset:{(k&3)*1024} {polp}")
        A.lab("L_bar0")
        A("s_barrier")
        A(f"ds_read_b32 v{vT+1}, v{vT}")
        A("s_waitcnt lgkmcnt(0)")
        A(f"v_readfirstlane_b32 s2, v{vT+1}")
        A("s_nop 1")
        stamp(9 if False else 11)
    A(f"s_lshr_b32 s{sB}, s2, 6")
    A(f"s_and_b32 s{sIDX}, s2, 63")
    A(f"s_bfe_u32 s{sSP}, s2, {(1<<16)|3}")
    A(f"s_bfe_u32 s{sT}, s2, {(2<<16)|4}")
    A(f"s_lshl_b32 s{sT}, s{sT}, 3")
    A(f"s_and_b32 s{sH}, s2, 7")
    A(f"s_or_b32 s{sH}, s{sH}, s{sT}")
    A(f"s_cmp_ge_u32 s{sWAVE}, 4")
    A("s_cbranch_scc1 L_aux")

    def build_masks():
        A(f"v_and_b32 v{vT}, 1, v{vR}")
        A(f"v_lshlrev_b32 v{vT}, 4, v{vT}")
        A(f"v_mov_b32 v{vT+1}, 0xffff")
        A(f"v_lshlrev_b32 v{vT}, v{vT}, v{vT+1}")
        A(f"v_bfe_u32 v{vT+1}, v{vR}, 1, 2")
        for m in range(4):
            A(f"v_cmp_eq_u32 vcc, {m}, v{vT+1}")
            A("s_nop 1")
            A(f"v_cndmask_b32 v{vMK+m}, 0, v{vT}, vcc")

    A.c("---- stream waves ----")
    A(f"v_lshrrev_b32 v{vT}, 2, v{vR}")
    A(f"v_lshlrev_b32 v{vT}, 8, v{vT}")
    A(f"v_and_b32 v{vT+1}, 3, v{vR}")
    A(f"v_lshlrev_b32 v{vT+1}, 4, v{vT+1}")
    A(f"v_lshlrev_b32 v{vT+2}, 6, v{vG}")
    A(f"v_add3_u32 v{vOA}, v{vT}, v{vT+1}, v{vT+2}")
    A(f"v_lshlrev_b32 v{vOV}, 4, v{vLANE}")
    if kcontig: A(f"v_mov_b32 v{vOA}, v{vOV}")
    A(f"v_mov_b32 v{vON}, v{vOA}")
    A(f"s_lshl_b32 s{sBASE}, s{sB}, 26")
    A(f"s_lshl_b32 s{sT}, s{sH}, 21")
    A(f"s_or_b32 s{sBASE}, s{sBASE}, s{sT}")
    A(f"s_lshl_b32 s{sT}, s{sSP}, {sb}")
    A(f"s_or_b32 s{sBASE}, s{sBASE}, s{sT}")
    A(f"s_lshl_b32 s{sT}, s{sWAVE}, {wsh}")
    A(f"s_or_b32 s{sBASE}, s{sBASE}, s{sT}")
    A("s_waitcnt lgkmcnt(0)")
    srd(SA, sK, 0x10000000)
    def sload(sl, srdb, voff, sbase, off):
        A(f"s_add_u32 s{sT}, s{sbase}, {hex(off)}")
        A(f"buffer_load_dwordx4 {slot(sl)}, v{voff}, {S4(srdb)}, s{sT} offen {polk}")
    gk = lambda i: (i >> 4) * GSTR + koff(i & 15)
    for i in range(R):
        if i >= dpro:
            A(f"s_waitcnt vmcnt({dpro-1})")
        sload(i, SA, vOA, sBASE, gk(i))
        if i in (15, 31): stamp(7 + (i >> 4))
        if i == dpro - 1:
            stamp(0)
            srd(SN, sK, 0x10000000)
            if fc:
                A(f"s_lshr_b32 s{sT2}, s2, 6")
                if nshard == 16:
                    A(f"s_bfe_u32 s{sT3}, s2, {(2<<16)|3}")
                    A(f"s_lshl_b32 s{sT2}, s{sT2}, 2")
                    A(f"s_or_b32 s{sT2}, s{sT2}, s{sT3}")
                elif nshard == 1:
                    A(f"s_mov_b32 s{sT2}, 0")
                elif nshard == 2:
                    A(f"s_bfe_u32 s{sT2}, s2, {(1<<16)|3}")
                elif shardby == 'row':
                    A(f"s_bfe_u32 s{sT2}, s2, {(2<<16)|3}")
                A(f"s_lshl_b32 s{sT2}, s{sT2}, 2")
                A(f"s_or_b32 s{sT2}, s{sT2}, s{sWAVE}")
                A(f"s_lshl_b32 s{sT2}, s{sT2}, 8")
                A(f"s_add_u32 s{sT2}, s{sT2}, {hex(W_FC)}")
                A(f"s_add_u32 s{sAP}, s{sWS}, s{sT2}")
                A(f"s_addc_u32 s{sAP+1}, s{sWS+1}, 0")
                A(f"s_mov_b32 s{sREP}, 0")
                A(f"s_atomic_add s{sREP}, s[{sAP}:{sAP+1}], 0x0 glc")
            build_masks()
            A(f"v_lshlrev_b32 v{vL0}, 2, v{vLANE}")
            A(f"s_lshl_b32 s{sT2}, s{sWAVE}, 12")
            A(f"s_add_u32 s{sT2}, s{sT2}, {L_SC}")
            A(f"v_add_u32 v{vL0}, s{sT2}, v{vL0}")
            A(f"v_mov_b32 v{vL1}, v{vL0}")
            A(f"v_lshrrev_b32 v{vT}, 2, v{vR}")
            A(f"v_lshlrev_b32 v{vT}, 4, v{vT}")
            A(f"v_lshlrev_b32 v{vL2}, 6, v{vG}")
            A(f"v_add_u32 v{vL2}, v{vL2}, v{vT}")
            A(f"v_mov_b32 v{vM}, 0xff800000")
    stamp(1)
    A("s_barrier")
    stamp(2)
    A(f"ds_read_b128 {q4(vT+2)}, v{vL2} offset:{L_QP}")
    A("s_waitcnt lgkmcnt(0)")
    A(f"v_and_b32 v{vT}, 3, v{vR}")
    for t in range(4):
        A(f"v_cmp_eq_u32 vcc, {t}, v{vT}")
        A("s_nop 1")
        for m in range(4):
            A(f"v_cndmask_b32 v{vBQ+4*t+m}, 0, v{vT+2+m}, vcc")
    A("s_nop 1")

    def dpp_gather(u, i):
        D = vD0 if (u & 1) == 0 else vD1
        n = (4 * (u - i)) % 16
        ctrl = "quad_perm:[0,1,2,3]" if n == 0 else f"row_ror:{n}"
        if i == 0:
            A(f"v_mov_b32_dpp v{vS}, v{D} {ctrl} row_mask:0xf bank_mask:{hex(1<<u)}")
        else:
            A(f"v_add_f32_dpp v{vS}, v{D+i}, v{vS} {ctrl} row_mask:0xf bank_mask:{hex(1<<u)}")
    def kgroup(slot0, waitf, issuef):
        for k in range(16):
            u, t = k >> 2, k & 3
            D = vD0 if (u & 1) == 0 else vD1
            waitf(k)
            A(f"v_mfma_f32_16x16x32_bf16 {q4(D)}, {slot(slot0+k)}, {q4(vBQ+4*t)}, {'0' if t==0 else q4(D)}")
            issuef(k)
            if u > 0:
                A("s_nop 6" if t == 0 else "s_nop 0")
                dpp_gather(u - 1, t)
        A("s_nop 7")
        for i in range(4):
            dpp_gather(3, i)
            A("s_nop 1")
        if round_scores:
            rne(vS, vT)
            A(f"v_mul_f32 v{vT+1}, {hex(SCALE)}, v{vS}")
            rne(vT + 1, vT)
        else:
            A(f"v_mul_f32 v{vT+1}, {hex(SCALE)}, v{vS}")
        A(f"v_max_f32 v{vM}, v{vM}, v{vT+1}")
        A(f"ds_write_b32 v{vL1}, v{vT+1}")
        A(f"v_add_u32 v{vL1}, 256, v{vL1}")

    d0 = d
    issued = [0]
    for G0 in range(R // 16):
        def waitf(k, G0=G0):
            i = G0 * 16 + k
            A(f"s_waitcnt vmcnt({min(63, R-1-i + issued[0])})")
        def issuef(k, G0=G0):
            i = G0 * 16 + k
            if i < d0:
                sload(i, SA, vOA, sBASE, gk(R + i)); issued[0] += 1
        kgroup(G0 * 16, waitf, issuef)
    for i in range(d0, LAG):
        A(f"s_waitcnt vmcnt({d0-1})")
        sload(i, SA, vOA, sBASE, gk(R + i))
    stamp(3)
    A(f"s_add_u32 s{sCUR}, s{sBASE}, {hex((R//16)*GSTR)}")
    A(f"s_mov_b32 s{sIT}, {R//16}")
    if fc:
        A("s_waitcnt lgkmcnt(0)")
        A(f"s_add_u32 s{sAT}, s{sREP}, {int(thr0*NSH)}")
        A(f"s_add_u32 s{sAT}, s{sAT}, {-NSH & 0xffffffff}")
        A(f"s_add_u32 s{sREP}, s{sREP}, {-NSH & 0xffffffff}")
    def steady_issue(k):
        kk = k + LAG
        if kk < 16:
            sload(kk, SA, vOA, sCUR, koff(kk))
        else:
            sload(kk - 16, SN, vON, sNXT, koff(kk - 16))
    def fc_top(tag):
        if not fc: return
        A("s_waitcnt lgkmcnt(0)")
        A(f"s_sub_i32 s{sAT}, s{sAT}, s{sREP}")
        A(f"s_add_u32 s{sREP}, s{sREP}, {NSH}")
        A(f"s_mov_b32 s{sLV}, 0")
        for th in thr:
            A(f"s_cmp_ge_i32 s{sAT}, {int(th*NSH)}")
            A(f"s_addc_u32 s{sLV}, s{sLV}, 0")
        if stamps: A(f"s_add_u32 s75, s75, s{sLV}")
        A(f"s_mov_b32 s{sAT}, 1")
        A(f"s_atomic_add s{sAT}, s[{sAP}:{sAP+1}], 0x0 glc")
    def fc_dispatch(tag):
        if not fc: return
        for li in range(1, len(levels)):
            A(f"s_cmp_eq_u32 s{sLV}, {li}")
            A(f"s_cbranch_scc1 L_{tag}_b{li}")
    def fc_mid(tag):
        return
    A.lab("L_kloop")
    A(f"s_add_u32 s{sNXT}, s{sCUR}, {hex(GSTR)}")
    A(f"s_cmp_eq_u32 s{sIT}, 15")
    A("s_cbranch_scc0 L_knl")
    A(f"s_mov_b32 s{sNXT}, s{sBASE}")
    A(f"s_mov_b32 s{SN}, s{sV}")
    A(f"s_mov_b32 s{SN+1}, s{sV+1}")
    A(f"v_mov_b32 v{vON}, v{vOV}")
    A.lab("L_knl")
    fc_top("k")
    fc_dispatch("k")
    for li, dd in enumerate(klevels or levels):
        A.lab(f"L_k_b{li}")
        def iss(k, li=li):
            steady_issue(k)
            if k == 8: fc_mid(f"k{li}")
        kgroup(0, lambda k: A(f"s_waitcnt vmcnt({dd-1})"), iss)
        if li + 1 < len(levels): A("s_branch L_k_e")
    A.lab("L_k_e")
    stamp_it(16)
    A(f"s_mov_b32 s{sCUR}, s{sNXT}")
    A(f"s_add_u32 s{sIT}, s{sIT}, 1")
    A(f"s_cmp_lt_u32 s{sIT}, 16")
    A("s_cbranch_scc1 L_kloop")
    stamp(4)
    A(f"s_mov_b32 s{SA}, s{sV}")
    A(f"s_mov_b32 s{SA+1}, s{sV+1}")
    A(f"v_mov_b32 v{vOA}, v{vOV}")
    X = SL + 64
    A("s_waitcnt lgkmcnt(0)")
    for i in range(8):
        A(f"ds_read2st64_b32 v[{X+2*i}:{X+2*i+1}], v{vL0} offset0:{2*i} offset1:{2*i+1}")
    allreduce("v_max_f32", vM, vT)
    A(f"v_mul_f32 v{vT}, {hex(LOG2E)}, v{vM}")
    A(f"s_mov_b32 s{sT2}, {hex(LOG2E)}")
    A("s_waitcnt lgkmcnt(0)")
    for i in range(16):
        A(f"v_sub_f32 v{X+i}, v{X+i}, v{vM}")
    for i in range(16):
        A(f"v_mul_f32 v{X+i}, s{sT2}, v{X+i}")
    for i in range(16):
        A(f"v_exp_f32 v{X+i}, v{X+i}")
    A("s_nop 0")
    for i in range(16):
        A(f"v_cvt_pk_bf16_f32 v{X+16+i}, v{X+i}, v{X+i}")
    for i in range(8):
        A(f"ds_write2st64_b32 v{vL0}, v{X+16+2*i}, v{X+16+2*i+1} offset0:{2*i} offset1:{2*i+1}")
    A(f"v_mov_b32 v{vP1}, v{X+16}")
    for st in (8, 4, 2, 1):
        for i in range(st):
            A(f"v_add_f32 v{X+i}, v{X+i}, v{X+i+st}")
    allreduce("v_add_f32", X, vT)
    A(f"v_mov_b32 v{vT}, v{vM}")
    A(f"v_mov_b32 v{vT+1}, v{X}")
    A(f"s_lshl_b32 s{sT2}, s{sWAVE}, 3")
    A(f"s_add_u32 s{sT2}, s{sT2}, {L_ML}")
    A(f"v_mov_b32 v{vT+2}, s{sT2}")
    A(f"v_mov_b32 v{vT+3}, {L_CM}")
    A(f"v_mov_b32 v{vT+4}, 1")
    A("s_mov_b64 exec, 1")
    A(f"ds_write_b64 v{vT+2}, v[{vT}:{vT+1}]")
    A("s_waitcnt lgkmcnt(0)")
    A(f"ds_add_u32 v{vT+3}, v{vT+4}")
    A("s_mov_b64 exec, -1")
    for i in range(4):
        A(f"v_mov_b32 v{vD0+i}, 0")
    A(f"v_add_u32 v{vL1}, 256, v{vL0}")
    A(f"s_mov_b32 s{sIT}, 0")
    stamp(5)
    A.lab("L_vloop")
    A(f"s_add_u32 s{sNXT}, s{sCUR}, {hex(GSTR)}")
    A(f"s_cmp_eq_u32 s{sIT}, 15")
    A(f"s_cselect_b32 s{sNXT}, 0x40000000, s{sNXT}")
    if fc: fc_top("v")
    else: A("s_waitcnt lgkmcnt(0)")
    A(f"v_mov_b32 v{vP0}, v{vP1}")
    A(f"ds_read_b32 v{vP1}, v{vL1}")
    A(f"v_add_u32 v{vL1}, 256, v{vL1}")
    diag(vA0, vP0, 0)
    fc_dispatch("v")
    for li, dd in enumerate(levels):
        A.lab(f"L_v_b{li}")
        for k in range(16):
            Acur = vA0 if (k & 1) == 0 else vA1
            Anxt = vA1 if (k & 1) == 0 else vA0
            if k < 15:
                diag(Anxt, vP0, k + 1)
            A(f"s_waitcnt vmcnt({dd-1})")
            A(f"v_mfma_f32_16x16x32_bf16 {q4(vD0)}, {q4(Acur)}, {slot(k)}, {q4(vD0)}")
            steady_issue(k)
            if k == 8: fc_mid(f"v{li}")
        if li + 1 < len(levels): A("s_branch L_v_e")
    A.lab("L_v_e")
    stamp_it(32)
    A(f"s_mov_b32 s{sCUR}, s{sNXT}")
    A(f"s_add_u32 s{sIT}, s{sIT}, 1")
    A(f"s_cmp_lt_u32 s{sIT}, 16")
    A("s_cbranch_scc1 L_vloop")
    A(f"v_lshlrev_b32 v{vT}, 5, v{vR}")
    A(f"v_lshlrev_b32 v{vT+1}, 4, v{vG}")
    A(f"s_lshl_b32 s{sT2}, s{sWAVE}, 9")
    A(f"v_add3_u32 v{vT}, v{vT}, v{vT+1}, s{sT2}")
    A("s_mov_b32 exec_hi, 0")
    A("s_nop 1")
    A(f"ds_write_b128 v{vT}, {q4(vD0)} offset:{L_OP}")
    A("s_mov_b64 exec, -1")
    A("s_waitcnt lgkmcnt(0)")
    A("s_barrier")
    stamp(6)
    stamp_flush()
    A("s_endpgm")

    A.lab("L_aux")
    A(f"s_sub_u32 s{sJ}, s{sWAVE}, 4")
    A(f"v_lshlrev_b32 v{vOV}, 4, v{vLANE}")
    A(f"s_cmp_eq_u32 s{sJ}, 0")
    A("s_cbranch_scc1 L_qw")
    A("s_waitcnt lgkmcnt(0)")
    srd(SC, sWS, W_SZ)
    def prefetch():
        A(f"s_cmp_eq_u32 s{sJ}, 1")
        A(f"s_cselect_b32 s{SA}, s{sW1}, s{sW3}")
        A(f"s_cselect_b32 s{SA+1}, s{sW1+1}, s{sW3+1}")
        A(f"s_cmp_eq_u32 s{sJ}, 3")
        A(f"s_cselect_b32 s{SA}, s{sW2}, s{SA}")
        A(f"s_cselect_b32 s{SA+1}, s{sW2+1}, s{SA+1}")
        A(f"s_mov_b32 s{SA+2}, {512*1792*2}")
        A(f"s_mov_b32 s{SA+3}, 0x00020000")
        srd(SN, sWO, 0x400000)
        A(f"s_mul_i32 s{sT2}, s2, 7168")
        A(f"s_lshl_b32 s{sBASE}, s{sH}, 17")
        A(f"s_lshl_b32 s{sT}, s{sB}, 15")
        A(f"s_add_u32 s{sBASE}, s{sBASE}, s{sT}")
        A(f"s_lshl_b32 s{sT}, s{sSP}, 14")
        A(f"s_add_u32 s{sBASE}, s{sBASE}, s{sT}")
        A(f"s_sub_u32 s{sT}, s{sJ}, 1")
        A(f"s_mul_i32 s{sT}, s{sT}, 5120")
        A(f"s_add_u32 s{sBASE}, s{sBASE}, s{sT}")
        n = 0
        for k in range(6):
            if pfd and n >= pfd: A(f"s_waitcnt vmcnt({pfd-1})")
            A(f"s_add_u32 s{sT}, s{sBASE}, {k*1024}")
            A(f"buffer_load_dwordx4 {slot(k)}, v{vOV}, {S4(SN)}, s{sT} offen {polp}"); n += 1
        for k in range(7):
            if pfd and n >= pfd: A(f"s_waitcnt vmcnt({pfd-1})")
            A(f"s_add_u32 s{sT}, s{sT2}, {k*1024}")
            A(f"buffer_load_dwordx4 {slot(6+k)}, v{vOV}, {S4(SA)}, s{sT} offen {polp}"); n += 1
    if pf == 1: prefetch()
    A(f"v_mov_b32 v{vT}, {L_CM}")
    A(f"v_mov_b32 v{vT+2}, 0")
    A(f"v_mov_b32 v{vT+3}, 0")
    A(f"v_mov_b32 v{vT+4}, {len(levels)//2}")
    A(f"ds_write_b64 v{vT}, v[{vT+2}:{vT+3}]")
    A(f"ds_write_b32 v{vT}, v{vT+4} offset:8")
    A("s_waitcnt lgkmcnt(0)")
    A("s_branch L_bar1")
    A.lab("L_qw")
    if qprio: A(f"s_setprio {qprio}")
    sMU = sIT
    A(f"s_lshl_b32 s{sMU}, s{sB}, 1")
    A(f"s_or_b32 s{sMU}, s{sMU}, s{sSP}")
    A(f"v_lshrrev_b32 v{vT}, 2, v{vR}")
    A(f"v_lshlrev_b32 v{vT}, 10, v{vT}")
    A(f"v_and_b32 v{vT+1}, 3, v{vR}")
    A(f"v_lshlrev_b32 v{vT+1}, 6, v{vT+1}")
    A(f"v_lshlrev_b32 v{vT+2}, 8, v{vG}")
    A(f"v_add3_u32 v{vON}, v{vT}, v{vT+1}, v{vT+2}")
    A(f"v_lshl_add_u32 v{vL1}, v{vG}, 4, v{vT}")
    A(f"v_lshlrev_b32 v{vT}, 16, v{vG}")
    A(f"v_lshl_add_u32 v{vOA}, v{vR}, 4, v{vT}")
    A(f"v_mov_b32 v{vL2}, 0")
    A(f"s_lshl_b32 s{sT2}, s{sMU}, 7")
    A(f"s_lshl_b32 s{sBASE}, s{sMU}, 19")
    A(f"s_lshl_b32 s{sT}, s{sH}, 8")
    A(f"s_add_u32 s{sBASE}, s{sBASE}, s{sT}")
    A(f"s_lshl_b32 s{sT3}, s{sH}, 6")
    A(f"s_add_u32 s{sT3}, s{sT3}, {hex(W_EP)}")
    A("s_waitcnt lgkmcnt(0)")
    srd(SA, sX, 4096)
    srd(SN, sWQ, 0 if nul_wq else 0x400000)
    srd(SC, sWS, W_SZ)
    XR = SL + 64
    XF = SL + 80
    XE = vBQ
    XD = SL + 128
    vTG = vBQ + 8
    for i in range(4):
        A(f"buffer_load_dwordx4 {q4(XR+4*i)}, v{vON}, {S4(SA)}, 0 offen offset:{16*i}")
    for s_ in range(2):
        A(f"buffer_load_dwordx4 {q4(XE+4*s_)}, v{vL1}, {S4(SA)}, s{sT2} offen offset:{64*s_}")
    for k in range(16):
        A(f"s_add_u32 s{sT}, s{sBASE}, {hex(((k>>3)*32 + (k&7))*8192)}")
        A(f"buffer_load_dwordx4 {slot(k)}, v{vOA}, {S4(SN)}, s{sT} offen {polq}")
    A(f"buffer_load_dwordx2 v[{vTG}:{vTG+1}], v{vL2}, {S4(SC)}, s{sT3} offen sc1")
    stamp(0)
    def red16(reg, tmp):
        for qp in ("[1,0,3,2]", "[2,3,0,1]"):
            A("s_nop 1")
            A(f"v_add_f32_dpp v{reg}, v{reg}, v{reg} quad_perm:{qp} row_mask:0xf bank_mask:0xf")
        for sw in ("v_permlane16_swap_b32", "v_permlane32_swap_b32"):
            A("s_nop 0")
            A(f"v_mov_b32 v{tmp}, v{reg}")
            A("s_nop 1")
            A(f"{sw} v{reg}, v{tmp}")
            A("s_nop 0")
            A(f"v_add_f32 v{reg}, v{reg}, v{tmp}")
    def ln_finish(mean, var, t):
        rne(mean, t)
        rne(var, t)
        A(f"v_add_f32 v{var}, 0x3727c5ac, v{var}")
        rne(var, t)
        A(f"v_sqrt_f32 v{var}, v{var}")
        A("s_nop 0")
        rne(var, t)
        A(f"v_rcp_f32 v{var}, v{var}")
        A("s_nop 0")
    A("s_waitcnt vmcnt(19)")
    for i in range(16):
        A(f"v_lshlrev_b32 v{XF+2*i}, 16, v{XR+i}")
        A(f"v_and_b32 v{XF+2*i+1}, 0xffff0000, v{XR+i}")
    p2 = lambda r: f"v[{r}:{r+1}]"
    for i in range(8):
        A(f"v_pk_add_f32 {p2(XR+2*i)}, {p2(XF+4*i)}, {p2(XF+4*i+2)}")
    for st in (4, 2, 1):
        for i in range(st):
            A(f"v_pk_add_f32 {p2(XR+2*i)}, {p2(XR+2*i)}, {p2(XR+2*(i+st))}")
    A(f"v_add_f32 v{vT}, v{XR}, v{XR+1}")
    red16(vT, vT + 1)
    A(f"v_mul_f32 v{vT}, 0x3b000000, v{vT}")
    A(f"v_mov_b32 v{vT+1}, v{vT}")
    for i in range(16):
        A(f"v_pk_add_f32 {p2(XF+2*i)}, {p2(XF+2*i)}, {p2(vT)} neg_lo:[0,1] neg_hi:[0,1]")
    for c_ in range(2):
        A(f"v_pk_mul_f32 {p2(XR+2*c_)}, {p2(XF+2*c_)}, {p2(XF+2*c_)}")
    for i in range(2, 16):
        c_ = i & 1
        A(f"v_pk_fma_f32 {p2(XR+2*c_)}, {p2(XF+2*i)}, {p2(XF+2*i)}, {p2(XR+2*c_)}")
    A(f"v_pk_add_f32 {p2(XR)}, {p2(XR)}, {p2(XR+2)}")
    A(f"v_add_f32 v{vT+2}, v{XR}, v{XR+1}")
    red16(vT + 2, vT + 1)
    A(f"v_mul_f32 v{vT+2}, 0x3b000000, v{vT+2}")
    ln_finish(vT, vT + 2, vT + 1)
    A("s_waitcnt vmcnt(17)")
    for i in range(8):
        A(f"v_lshlrev_b32 v{XF+2*i}, 16, v{XE+i}")
        A(f"v_and_b32 v{XF+2*i+1}, 0xffff0000, v{XE+i}")
    for i in range(16):
        A(f"v_sub_f32 v{XF+i}, v{XF+i}, v{vT}")
    for i in range(8):
        A(f"v_cvt_pk_bf16_f32 v{XE+i}, v{XF+2*i}, v{XF+2*i+1}")
    for i in range(8):
        A(f"v_lshlrev_b32 v{XF+2*i}, 16, v{XE+i}")
        A(f"v_and_b32 v{XF+2*i+1}, 0xffff0000, v{XE+i}")
    for i in range(16):
        A(f"v_mul_f32 v{XF+i}, v{XF+i}, v{vT+2}")
    for i in range(8):
        A(f"v_cvt_pk_bf16_f32 v{XE+i}, v{XF+2*i}, v{XF+2*i+1}")
    stamp(1)
    A(f"s_mov_b32 s{sM0}, 0x05040100")
    A(f"s_mov_b32 s{sM0+1}, 0x07060302")
    def bperm(dst, s_, jj):
        for m in range(4):
            lo = SL + 4 * (8 * s_ + 2 * m) + (jj >> 1)
            hi = SL + 4 * (8 * s_ + 2 * m + 1) + (jj >> 1)
            A(f"v_perm_b32 v{dst+m}, v{hi}, v{lo}, s{sM0 + (jj & 1)}")
    A("s_waitcnt vmcnt(9)")
    bperm(vA0, 0, 0)
    for n in range(16):
        s_, jj = n >> 3, n & 7
        cur = vA0 if (n & 1) == 0 else vA1
        nxt = vA1 if (n & 1) == 0 else vA0
        if n == 7: A("s_waitcnt vmcnt(1)")
        if n + 1 < 16: bperm(nxt, (n + 1) >> 3, (n + 1) & 7)
        else: A("s_nop 1")
        A(f"v_mfma_f32_16x16x32_bf16 {q4(XD+4*jj)}, {q4(XE+4*s_)}, {q4(cur)}, {'0' if s_==0 else q4(XD+4*jj)}")
    A("s_waitcnt vmcnt(0)")
    A(f"v_mov_b32 v{vT}, 0x9e3779b9")
    A(f"v_add_co_u32 v{vTG}, vcc, 0x7f4a7c15, v{vTG}")
    A("s_nop 1")
    A(f"v_addc_co_u32 v{vTG+1}, vcc, v{vT}, v{vTG+1}, vcc")
    A(f"v_lshlrev_b32 v{vT}, 13, v{vG}")
    A(f"v_lshl_add_u32 v{vT}, v{vR}, 4, v{vT}")
    A(f"s_lshl_b32 s{sCUR}, s{sH}, 15")
    A(f"s_add_u32 s{sCUR}, s{sCUR}, {hex(W_QP)}")
    A(f"s_lshl_b32 s{sT}, s{sMU}, 10")
    A(f"s_add_u32 s{sT}, s{sT}, s{sCUR}")
    A("s_nop 3")
    A(f"v_mov_b32 v{vON}, v{vT}")
    A(f"s_add_u32 s{sBASE}, s{sT}, 0x100000")
    for n in range(4):
        A(f"v_mov_b32 v{XD+8*n+1}, v{XD+8*n+4}")
        A(f"v_mov_b32 v{XD+8*n+2}, v{vTG}")
        A(f"v_mov_b32 v{XD+8*n+3}, v{vTG+1}")
        A(f"buffer_store_dwordx4 {q4(XD+8*n)}, v{vON}, {S4(SC)}, s{sT} offen offset:{256*n} {polA}")
    def storeB():
        for n in range(4):
            A(f"buffer_store_dwordx4 {q4(XD+8*n)}, v{vON}, {S4(SC)}, s{sBASE} offen offset:{256*n} sc1")
    stamp(2)
    A(f"s_lshl_b32 s{sT}, s{sB}, 13")
    A(f"s_add_u32 s{sCUR}, s{sCUR}, s{sT}")
    A(f"s_add_u32 s{sNXT}, s{sCUR}, 4096")
    A(f"s_mov_b32 s{sSPIN}, 0")
    if qpre: A(f"s_sleep {qpre}")
    A.lab("L_qp")
    for n in range(8):
        A(f"buffer_load_dwordx4 {slot(n)}, v{vOV}, {S4(SC)}, s{sCUR if n<4 else sNXT} offen offset:{1024*(n&3)} sc1")
    A(f"s_add_u32 s{sSPIN}, s{sSPIN}, 1")
    A(f"v_mov_b32 v{vT}, 0")
    for n in range(8):
        A(f"s_waitcnt vmcnt({7-n})")
        A(f"v_xor_b32 v{vT+1}, v{SL+4*n+2}, v{vTG}")
        A(f"v_xor_b32 v{vT+2}, v{SL+4*n+3}, v{vTG+1}")
        A(f"v_or3_b32 v{vT}, v{vT}, v{vT+1}, v{vT+2}")
    A(f"v_cmp_ne_u32 vcc, 0, v{vT}")
    A("s_nop 1")
    A("s_cmp_eq_u64 vcc, 0")
    A("s_cbranch_scc1 L_qp_ok")
    if qsleep: A(f"s_sleep {qsleep}")
    A(f"s_cmp_eq_u32 s{sSPIN}, {NA}")
    A("s_cbranch_scc0 L_qp_c")
    storeB()
    A(f"s_add_u32 s{sCUR}, s{sCUR}, 0x100000")
    A(f"s_add_u32 s{sNXT}, s{sNXT}, 0x100000")
    A.lab("L_qp_c")
    A(f"s_cmp_lt_u32 s{sSPIN}, {SPINMAX}")
    A("s_cbranch_scc1 L_qp")
    A.lab("L_qp_ok")
    stamp(6)
    if stamps: A(f"v_writelane_b32 v{vST}, s{sSPIN}, 60")
    for st in (4, 2, 1):
        for n in range(st):
            A(f"v_pk_add_f32 {p2(SL+4*n)}, {p2(SL+4*n)}, {p2(SL+4*(n+st))}")
    A(f"v_cvt_pk_bf16_f32 v{vT}, v{SL}, v{SL+1}")
    A(f"v_lshlrev_b32 v{vT+1}, 2, v{vG}")
    A(f"v_lshl_add_u32 v{vT+1}, v{vR}, 4, v{vT+1}")
    A(f"ds_write_b32 v{vT+1}, v{vT} offset:{L_QP}")
    storeB()
    A(f"s_cmp_eq_u32 s{sMU}, 0")
    A("s_cbranch_scc0 L_qnl")
    A("s_mov_b64 exec, 1")
    A(f"buffer_store_dwordx2 v[{vTG}:{vTG+1}], v{vL2}, {S4(SC)}, s{sT3} offen sc1")
    A("s_mov_b64 exec, -1")
    A.lab("L_qnl")
    A("s_waitcnt lgkmcnt(0)")
    if qprio: A("s_setprio 0")
    A.lab("L_bar1")
    A("s_barrier")
    stamp(3)
    if pf == 2:
        A(f"s_cmp_eq_u32 s{sJ}, 0")
        A("s_cbranch_scc1 L_nopf")
        prefetch()
        A.lab("L_nopf")
    A("s_waitcnt vmcnt(0)")
    build_masks()
    A(f"v_lshlrev_b32 v{vT}, 5, v{vR}")
    A(f"v_lshlrev_b32 v{vT+1}, 4, v{vG}")
    A(f"s_lshl_b32 s{sT2}, s{sJ}, 9")
    A(f"v_add3_u32 v{vL0}, v{vT}, v{vT+1}, s{sT2}")

    def gemv(n, pps, waitf, issuef=None, slotf=lambda k: k):
        diag(vA0, pps[0], 0)
        for k in range(n):
            Acur = vA0 if (k & 1) == 0 else vA1
            Anxt = vA1 if (k & 1) == 0 else vA0
            if k + 1 < n:
                diag(Anxt, pps[(k + 1) >> 4], (k + 1) & 15)
            else:
                A("s_nop 1")
            waitf(k)
            A(f"v_mfma_f32_16x16x32_bf16 {q4(vD0)}, {q4(Acur)}, {slot(slotf(k))}, {'0' if k==0 else q4(vD0)}")
            if issuef: issuef(k)
        A("s_nop 7")

    A(f"s_cmp_eq_u32 s{sJ}, 3")
    A("s_cbranch_scc0 L_noclr")
    for i in range(4):
        A(f"v_mov_b32 v{vBQ+i}, -1")
    A(f"s_lshl_b32 s{sT}, s2, 11")
    A(f"buffer_store_dwordx4 {q4(vBQ)}, v{vOV}, {S4(SC)}, s{sT} offen sc1")
    A(f"buffer_store_dwordx4 {q4(vBQ)}, v{vOV}, {S4(SC)}, s{sT} offen offset:1024 sc1")
    A(f"s_cmp_lt_u32 s{sIDX}, {NFFN}")
    A("s_cbranch_scc0 L_noclrz")
    A(f"s_lshl_b32 s{sT}, s{sB}, 5")
    A(f"s_add_u32 s{sT}, s{sT}, s{sIDX}")
    A(f"s_lshl_b32 s{sT}, s{sT}, 11")
    A(f"s_add_u32 s{sT}, s{sT}, {hex(W_Z)}")
    A(f"buffer_store_dwordx4 {q4(vBQ)}, v{vOV}, {S4(SC)}, s{sT} offen sc1")
    A(f"buffer_store_dwordx4 {q4(vBQ)}, v{vOV}, {S4(SC)}, s{sT} offen offset:1024 sc1")
    A.lab("L_noclrz")
    A(f"s_lshl_b32 s{sT}, s2, 6")
    A(f"s_add_u32 s{sT}, s{sT}, {hex(W_ML)}")
    A("s_mov_b64 exec, 1")
    A(f"buffer_store_dwordx2 v[{vBQ}:{vBQ+1}], v{vOV}, {S4(SC)}, s{sT} offen sc1")
    A("s_waitcnt vmcnt(0)")
    srd(SD_, sDBG, 256)
    A(f"v_mov_b32 v{vT}, 1")
    A(f"buffer_atomic_add v{vT}, v{vOV}, {S4(SD_)}, 0 offen sc1")
    A("s_mov_b64 exec, -1")
    A.lab("L_noclr")

    def lds_wait(addr, val, tag):
        lab = A.uid("lw")
        A(f"v_mov_b32 v{vT}, {addr}")
        A(f"s_mov_b32 s{sSPIN}, 0")
        A.lab(lab)
        A(f"ds_read_b32 v{vT+1}, v{vT}")
        A("s_waitcnt lgkmcnt(0)")
        A(f"v_readfirstlane_b32 s{sT}, v{vT+1}")
        A(f"s_add_u32 s{sSPIN}, s{sSPIN}, 1")
        A(f"s_cmp_ge_u32 s{sT}, {val}")
        A(f"s_cbranch_scc1 {lab}_ok")
        A("s_sleep 4")
        A(f"s_cmp_lt_u32 s{sSPIN}, {SPINMAX}")
        A(f"s_cbranch_scc1 {lab}")
        A.lab(lab + "_ok")

    def rows512_off():
        A(f"v_lshlrev_b32 v{vT}, 10, v{vG}")
        A(f"v_lshlrev_b32 v{vT+1}, 4, v{vR}")
        A(f"v_add_u32 v{vOA}, v{vT}, v{vT+1}")

    def r512load(k, srdb, sl=None, pol=None):
        A(f"s_add_u32 s{sT}, s{sBASE}, {hex(k*4096)}")
        A(f"buffer_load_dwordx4 {slot(k if sl is None else sl)}, v{vOA}, {S4(srdb)}, s{sT} offen {pola if pol is None else pol}")
    def wo_block():
        dw = daw or da
        srd(SN, sWO, 0 if nul_aux in (True,'wo') else 0x400000)
        rows512_off()
        A(f"s_lshl_b32 s{sBASE}, s{sH}, 17")
        A(f"s_lshl_b32 s{sT}, s{sJ}, 8")
        A(f"s_add_u32 s{sBASE}, s{sBASE}, s{sT}")
        for k in range(32):
            if k >= dw: A(f"s_waitcnt vmcnt({dw-1})")
            r512load(k, SN, pol=polw)
        A("s_waitcnt vmcnt(0)")
        stamp(5)
    fsl = lambda k: 40 + (k & 7)
    if wofirst: wo_block()
    A(f"s_cmp_lt_u32 s{sIDX}, {NFFN}")
    A("s_cbranch_scc0 L_noffn")
    srd(SA, sX, 4096)
    A(f"v_lshlrev_b32 v{vT}, 3, v{vR}")
    A(f"v_lshlrev_b32 v{vT+1}, 1, v{vG}")
    A(f"s_lshl_b32 s{sT2}, s{sJ}, 8")
    A(f"v_add3_u32 v{vON}, v{vT}, v{vT+1}, s{sT2}")
    A(f"s_lshl_b32 s{sT2}, s{sB}, 10")
    A(f"buffer_load_dwordx4 {q4(vBQ)}, v{vOV}, {S4(SA)}, s{sT2} offen")
    A(f"buffer_load_ushort v{vP0}, v{vON}, {S4(SA)}, s{sT2} offen")
    A(f"buffer_load_ushort v{vP1}, v{vON}, {S4(SA)}, s{sT2} offen offset:128")
    A("s_waitcnt vmcnt(0)")
    F = vBQ + 4
    for m in range(4):
        A(f"v_lshlrev_b32 v{F+2*m}, 16, v{vBQ+m}")
        A(f"v_and_b32 v{F+2*m+1}, 0xffff0000, v{vBQ+m}")
    A(f"v_lshlrev_b32 v{vP0}, 16, v{vP0}")
    A(f"v_lshlrev_b32 v{vP1}, 16, v{vP1}")
    A(f"v_add_f32 v{vT}, v{F}, v{F+1}")
    A(f"v_add_f32 v{vT+1}, v{F+2}, v{F+3}")
    A(f"v_add_f32 v{vT+2}, v{F+4}, v{F+5}")
    A(f"v_add_f32 v{vT+3}, v{F+6}, v{F+7}")
    A(f"v_add_f32 v{vT}, v{vT}, v{vT+1}")
    A(f"v_add_f32 v{vT+2}, v{vT+2}, v{vT+3}")
    A(f"v_add_f32 v{vT}, v{vT}, v{vT+2}")
    allreduce("v_add_f32", vT, vT + 1)
    A(f"v_mul_f32 v{vT}, 0x3b000000, v{vT}")
    for e in range(8):
        A(f"v_sub_f32 v{F+e}, v{F+e}, v{vT}")
    A(f"v_mul_f32 v{vT+2}, v{F}, v{F}")
    for e in range(1, 8):
        A(f"v_fmac_f32 v{vT+2}, v{F+e}, v{F+e}")
    allreduce("v_add_f32", vT + 2, vT + 1)
    A(f"v_mul_f32 v{vT+2}, 0x3b000000, v{vT+2}")
    ln_finish(vT, vT + 2, vT + 1)
    for p in (vP0, vP1):
        A(f"v_sub_f32 v{p}, v{p}, v{vT}")
        rne(p, vT + 1)
        A(f"v_mul_f32 v{p}, v{p}, v{vT+2}")
        A(f"v_cvt_pk_bf16_f32 v{p}, v{p}, v{p}")
    srd(SA, sW1, 0 if nul_aux in (True,'ffn') else 512 * 1792 * 2)
    srd(SN, sW3, 0 if nul_aux in (True,'ffn') else 512 * 1792 * 2)
    A(f"v_mul_u32_u24 v{vT}, 3584, v{vG}")
    A(f"v_and_b32 v{vT+1}, 7, v{vR}")
    A(f"v_lshlrev_b32 v{vT+1}, 4, v{vT+1}")
    A(f"v_add_u32 v{vOA}, v{vT}, v{vT+1}")
    A(f"s_mul_i32 s{sBASE}, s{sJ}, {128*3584}")
    A(f"s_lshl_b32 s{sT}, s{sIDX}, 7")
    A(f"s_add_u32 s{sBASE}, s{sBASE}, s{sT}")
    A(f"s_mov_b32 s{sM0}, 0x00ff00ff")
    A(f"s_mov_b32 s{sM0+1}, 0x00ff00ff")
    A(f"s_mov_b32 s{sM1}, 0xff00ff00")
    A(f"s_mov_b32 s{sM1+1}, 0xff00ff00")
    A("s_waitcnt vmcnt(0)")
    def f1load(k):
        A(f"s_add_u32 s{sT}, s{sBASE}, {hex(k*4*3584)}")
        A(f"s_mov_b64 exec, s[{sM0}:{sM0+1}]")
        A(f"buffer_load_dwordx4 {slot(fsl(k))}, v{vOA}, {S4(SA)}, s{sT} offen {pola}")
        A(f"s_mov_b64 exec, s[{sM1}:{sM1+1}]")
        A(f"buffer_load_dwordx4 {slot(fsl(k))}, v{vOA}, {S4(SN)}, s{sT} offen {pola}")
        A("s_mov_b64 exec, -1")
    for k in range(da): f1load(k)
    gemv(32, (vP0, vP1),
         lambda k: A(f"s_waitcnt vmcnt({2*min(da-1, 31-k)})"),
         lambda k: f1load(k + da) if k + da < 32 else None, fsl)
    A("s_mov_b32 exec_hi, 0")
    A(f"ds_write_b128 v{vL0}, {q4(vD0)} offset:{L_FP}")
    A("s_mov_b64 exec, 1")
    A(f"v_mov_b32 v{vT}, {L_CF}")
    A(f"v_mov_b32 v{vT+1}, 1")
    A("s_waitcnt lgkmcnt(0)")
    A(f"ds_add_u32 v{vT}, v{vT+1}")
    A("s_mov_b64 exec, -1")
    srd(SA, sW2, 0 if nul_aux in (True,'ffn') else 1792 * 512 * 2)
    rows512_off()
    A(f"s_lshl_b32 s{sBASE}, s{sIDX}, 16")
    A(f"s_lshl_b32 s{sT}, s{sJ}, 8")
    A(f"s_add_u32 s{sBASE}, s{sBASE}, s{sT}")
    for k in range(da): r512load(k, SA, fsl(k))
    lds_wait(L_CF, 4, "cf")
    A(f"v_lshlrev_b32 v{vT}, 4, v{vR}")
    A(f"v_lshlrev_b32 v{vT+1}, 2, v{vG}")
    A(f"v_add_u32 v{vT}, v{vT}, v{vT+1}")
    for w in range(4):
        A(f"ds_read_b32 v{vBQ+w}, v{vT} offset:{L_FP + w*512}")
        A(f"ds_read_b32 v{vBQ+4+w}, v{vT} offset:{L_FP + w*512 + 256}")
    A("s_waitcnt lgkmcnt(0)")
    for b0 in (vBQ, vBQ + 4):
        A(f"v_add_f32 v{b0}, v{b0}, v{b0+1}")
        A(f"v_add_f32 v{b0+2}, v{b0+2}, v{b0+3}")
        A(f"v_add_f32 v{b0}, v{b0}, v{b0+2}")
        rne(b0, vT + 1)
    silu(vBQ, vT + 1)
    rne(vBQ, vT + 1)
    A(f"v_mul_f32 v{vBQ}, v{vBQ}, v{vBQ+4}")
    A(f"v_cvt_pk_bf16_f32 v{vBQ+8}, v{vBQ}, v{vBQ}")
    A("s_nop 1")
    gemv(16, (vBQ + 8,),
         lambda k: A(f"s_waitcnt vmcnt({min(da-1, 15-k)})"),
         lambda k: r512load(k + da, SA, fsl(k + da)) if k + da < 16 else None, fsl)
    for i in range(4):
        A(f"v_min_u32 v{vD0+i}, -2, v{vD0+i}")
    A(f"s_lshl_b32 s{sT}, s{sB}, 5")
    A(f"s_add_u32 s{sT}, s{sT}, s{sIDX}")
    A(f"s_lshl_b32 s{sT}, s{sT}, 11")
    A(f"s_add_u32 s{sT}, s{sT}, {hex(W_Z)}")
    A("s_mov_b32 exec_hi, 0")
    A(f"buffer_store_dwordx4 {q4(vD0)}, v{vL0}, {S4(SC)}, s{sT} offen sc1")
    A("s_mov_b64 exec, -1")
    A.lab("L_noffn")
    stamp(4)
    if not wofirst: wo_block()
    vPO = SL + 128
    vGt = vPO + 8
    vXr = vPO + 12
    NV2 = max(NV, vPO + 32)
    A(f"v_lshrrev_b32 v{vT}, 3, v{vLANE}")
    A(f"v_lshlrev_b32 v{vT}, 11, v{vT}")
    A(f"v_and_b32 v{vT+1}, 7, v{vLANE}")
    A(f"v_lshlrev_b32 v{vT+2}, 4, v{vT+1}")
    A(f"v_add_u32 v{vPO}, v{vT}, v{vT+2}")
    for n in range(1, 8):
        A(f"v_add_u32 v{vPO+n}, {hex(n*16384)}, v{vPO}")
    A(f"v_lshlrev_b32 v{vL1}, 3, v{vT+1}")
    A(f"s_cmp_eq_u32 s{sJ}, 3")
    A("s_cbranch_scc0 L_bar2")
    srd(SD_, sDBG, 256)
    A(f"v_mov_b32 v{vT}, 0")
    A(f"s_mov_b32 s{sSPIN}, 0")
    A.lab("L_c0")
    A(f"buffer_load_dword v{vT+1}, v{vT}, {S4(SD_)}, 0 offen sc1")
    A("s_waitcnt vmcnt(0)")
    A(f"v_readfirstlane_b32 s{sT}, v{vT+1}")
    A(f"s_add_u32 s{sSPIN}, s{sSPIN}, 1")
    A(f"s_cmp_ge_u32 s{sT}, 256")
    A("s_cbranch_scc1 L_c0_ok")
    A("s_sleep 8")
    A(f"s_cmp_lt_u32 s{sSPIN}, {SPINMAX}")
    A("s_cbranch_scc1 L_c0")
    A.lab("L_c0_ok")

    def poll(nload, regs, voffs, soff, tag, sleep):
        lab = A.uid("pl")
        A(f"s_mov_b32 s{sSPIN}, 0")
        A.lab(lab)
        for n in range(nload):
            A(f"buffer_load_dwordx4 {q4(regs+4*n)}, v{voffs[n]}, {S4(SC)}, s{soff} offen sc1")
        A(f"s_add_u32 s{sSPIN}, s{sSPIN}, 1")
        for n in range(nload):
            A(f"s_waitcnt vmcnt({nload-1-n})")
            r = regs + 4 * n
            if n == 0:
                A(f"v_max3_u32 v{vT}, v{r}, v{r+1}, v{r+2}")
                A(f"v_max_u32 v{vT}, v{vT}, v{r+3}")
            else:
                A(f"v_max3_u32 v{vT}, v{vT}, v{r}, v{r+1}")
                A(f"v_max3_u32 v{vT}, v{vT}, v{r+2}, v{r+3}")
        A(f"v_cmp_eq_u32 vcc, -1, v{vT}")
        A("s_nop 1")
        A("s_cmp_eq_u64 vcc, 0")
        A(f"s_cbranch_scc1 {lab}_ok")
        if sleep: A(f"s_sleep {sleep}")
        A(f"s_cmp_lt_u32 s{sSPIN}, {SPINMAX}")
        A(f"s_cbranch_scc1 {lab}")
        A.lab(lab + "_ok")

    def reduce_rows(regs, nload):
        n = nload
        while n > 1:
            h = n // 2
            for a in range(h):
                for i in range(4):
                    A(f"v_add_f32 v{regs+4*a+i}, v{regs+4*a+i}, v{regs+4*(a+h)+i}")
            n = h
        A("s_nop 1")
        for i in range(4):
            A(f"v_add_f32_dpp v{regs+i}, v{regs+i}, v{regs+i} row_ror:8 row_mask:0xf bank_mask:0xf")
        for sw in ("v_permlane16_swap_b32", "v_permlane32_swap_b32"):
            for i in range(4):
                A(f"v_mov_b32 v{regs+4+i}, v{regs+i}")
            A("s_nop 1")
            for i in range(4):
                A(f"{sw} v{regs+i}, v{regs+4+i}")
            A("s_nop 1")
            for i in range(4):
                A(f"v_add_f32 v{regs+i}, v{regs+i}, v{regs+4+i}")

    A(f"s_cmp_ge_u32 s{sIDX}, 48")
    A("s_cbranch_scc0 L_nocons1")
    srd(SA, sX, 4096)
    A(f"s_sub_u32 s{sT2}, s{sIDX}, 48")
    A(f"s_lshl_b32 s{sT3}, s{sT2}, 6")
    A(f"s_lshl_b32 s{sT}, s{sB}, 10")
    A(f"s_add_u32 s{sT3}, s{sT3}, s{sT}")
    A(f"buffer_load_dwordx2 v[{vXr}:{vXr+1}], v{vL1}, {S4(SA)}, s{sT3} offen")
    A(f"v_cmp_gt_u32 vcc, {(NFFN-24)*8}, v{vLANE}")
    A(f"v_mov_b32 v{vT+3}, 0x40000000")
    A("s_nop 0")
    A(f"v_cndmask_b32 v{vL2}, v{vT+3}, v{vPO+3}, vcc")
    A(f"s_lshl_b32 s{sCUR}, s{sB}, 16")
    A(f"s_lshl_b32 s{sT}, s{sT2}, 7")
    A(f"s_add_u32 s{sCUR}, s{sCUR}, s{sT}")
    A(f"s_add_u32 s{sCUR}, s{sCUR}, {hex(W_Z)}")
    poll(4, vBQ, [vPO, vPO + 1, vPO + 2, vL2], sCUR, "z", 8)
    reduce_rows(vBQ, 4)
    for i in range(4):
        rne(vBQ + i, vT + 1)
        silu(vBQ + i, vT + 1)
        rne(vBQ + i, vT + 1)
        A(f"v_mov_b32 v{vGt+i}, v{vBQ+i}")
    A(f"v_and_b32 v{vXr+3}, 0xffff0000, v{vXr+1}")
    A(f"v_lshlrev_b32 v{vXr+2}, 16, v{vXr+1}")
    A(f"v_and_b32 v{vXr+1}, 0xffff0000, v{vXr}")
    A(f"v_lshlrev_b32 v{vXr}, 16, v{vXr}")
    A(f"s_lshl_b32 s{sCUR}, s{sB}, 17")
    A(f"s_lshl_b32 s{sT}, s{sT2}, 7")
    A(f"s_add_u32 s{sCUR}, s{sCUR}, s{sT}")
    A.lab("L_nocons1")
    stamp(6)
    lds_wait(L_CM, 4, "cm")
    A(f"v_mov_b32 v{vT}, {L_ML}")
    A(f"ds_read_b128 {q4(vBQ)}, v{vT}")
    A(f"ds_read_b128 {q4(vBQ+4)}, v{vT} offset:16")
    A("s_waitcnt lgkmcnt(0)")
    A(f"v_max_f32 v{vBQ+8}, v{vBQ}, v{vBQ+2}")
    A(f"v_max3_f32 v{vBQ+8}, v{vBQ+8}, v{vBQ+4}, v{vBQ+6}")
    A(f"v_mov_b32 v{vBQ+9}, 0")
    A(f"s_mov_b32 s{sT2}, {hex(LOG2E)}")
    for w in range(4):
        A(f"v_sub_f32 v{vT}, v{vBQ+2*w}, v{vBQ+8}")
        A(f"v_mul_f32 v{vT}, s{sT2}, v{vT}")
        A(f"v_exp_f32 v{vT}, v{vT}")
        A("s_nop 0")
        A(f"v_fmac_f32 v{vBQ+9}, v{vT}, v{vBQ+2*w+1}")
    A(f"v_min_u32 v{vBQ+10}, -2, v{vBQ+8}")
    A(f"v_min_u32 v{vBQ+11}, -2, v{vBQ+9}")
    A(f"v_mov_b32 v{vT+2}, 0")
    A(f"s_lshl_b32 s{sT}, s2, 6")
    A(f"s_add_u32 s{sT}, s{sT}, {hex(W_ML)}")
    A("s_mov_b64 exec, 1")
    A(f"buffer_store_dwordx2 v[{vBQ+10}:{vBQ+11}], v{vT+2}, {S4(SC)}, s{sT} offen sc1")
    A("s_mov_b64 exec, -1")
    A(f"s_xor_b32 s{sNXT}, s{sT}, {8<<6}")
    A(f"s_mov_b32 s{sSPIN}, 0")
    A.lab("L_ml")
    A(f"buffer_load_dwordx2 v[{vBQ+12}:{vBQ+13}], v{vT+2}, {S4(SC)}, s{sNXT} offen sc1")
    A(f"s_add_u32 s{sSPIN}, s{sSPIN}, 1")
    A("s_waitcnt vmcnt(0)")
    A(f"v_max_u32 v{vT}, v{vBQ+12}, v{vBQ+13}")
    A("s_nop 0")
    A(f"v_readfirstlane_b32 s{sT}, v{vT}")
    A(f"s_cmp_lg_u32 s{sT}, -1")
    A("s_cbranch_scc1 L_ml_ok")
    A("s_sleep 8")
    A(f"s_cmp_lt_u32 s{sSPIN}, {SPINMAX}")
    A("s_cbranch_scc1 L_ml")
    A.lab("L_ml_ok")
    A(f"v_max_f32 v{vBQ+14}, v{vBQ+8}, v{vBQ+12}")
    A(f"v_sub_f32 v{vT}, v{vBQ+8}, v{vBQ+14}")
    A(f"v_sub_f32 v{vT+1}, v{vBQ+12}, v{vBQ+14}")
    A(f"v_mul_f32 v{vT}, s{sT2}, v{vT}")
    A(f"v_mul_f32 v{vT+1}, s{sT2}, v{vT+1}")
    A(f"v_exp_f32 v{vT}, v{vT}")
    A(f"v_exp_f32 v{vT+1}, v{vT+1}")
    A("s_nop 0")
    A(f"v_mul_f32 v{vT}, v{vT}, v{vBQ+9}")
    A(f"v_fmac_f32 v{vT}, v{vT+1}, v{vBQ+13}")
    A(f"v_rcp_f32 v{vT+1}, v{vT}")
    for w in range(4):
        A(f"v_sub_f32 v{vT+2+w}, v{vBQ+2*w}, v{vBQ+14}")
        A(f"v_mul_f32 v{vT+2+w}, s{sT2}, v{vT+2+w}")
        A(f"v_exp_f32 v{vT+2+w}, v{vT+2+w}")
        A("s_nop 0")
        A(f"v_mul_f32 v{vT+2+w}, v{vT+2+w}, v{vT+1}")
    A(f"v_mov_b32 v{vT}, {L_FW}")
    A("s_mov_b64 exec, 1")
    A(f"ds_write_b128 v{vT}, v[{vT+2}:{vT+5}]")
    A("s_mov_b64 exec, -1")
    A("s_waitcnt lgkmcnt(0)")
    A.lab("L_bar2")
    A(f"v_lshlrev_b32 v{vT}, 4, v{vR}")
    A(f"v_lshlrev_b32 v{vT+1}, 2, v{vG}")
    A(f"v_add_u32 v{vT}, v{vT}, v{vT+1}")
    A(f"v_mov_b32 v{vT+1}, {L_FW}")
    A(f"s_lshl_b32 s{sNXT}, s2, 11")
    stamp(7)
    A("s_barrier")
    A(f"ds_read_b128 {q4(vBQ+8)}, v{vT+1}")
    for w in range(4):
        A(f"ds_read_b32 v{vBQ+w}, v{vT} offset:{L_OP + w*512}")
        A(f"ds_read_b32 v{vBQ+4+w}, v{vT} offset:{L_OP + w*512 + 256}")
    A("s_waitcnt lgkmcnt(0)")
    for u, p in ((0, vP0), (1, vP1)):
        A(f"v_mul_f32 v{p}, v{vBQ+4*u}, v{vBQ+8}")
    for w in range(1, 4):
        for u, p in ((0, vP0), (1, vP1)):
            A(f"v_fmac_f32 v{p}, v{vBQ+4*u+w}, v{vBQ+8+w}")
    A(f"v_cvt_pk_bf16_f32 v{vP0}, v{vP0}, v{vP0}")
    A(f"v_cvt_pk_bf16_f32 v{vP1}, v{vP1}, v{vP1}")
    A("s_nop 1")
    gemv(32, (vP0, vP1), lambda k: None)
    for i in range(4):
        A(f"v_min_u32 v{vD0+i}, -2, v{vD0+i}")
    A("s_mov_b32 exec_hi, 0")
    A(f"buffer_store_dwordx4 {q4(vD0)}, v{vL0}, {S4(SC)}, s{sNXT} offen sc1")
    A("s_mov_b64 exec, -1")
    stamp(8)
    A(f"s_cmp_eq_u32 s{sJ}, 3")
    A("s_cbranch_scc0 L_auxend")
    A(f"s_cmp_ge_u32 s{sIDX}, 48")
    A("s_cbranch_scc0 L_auxend")
    srd(SA, sOUT, 4096)
    poll(8, SL, [vPO + n for n in range(8)], sCUR, "y", 1)
    reduce_rows(SL, 8)
    for i in range(4):
        rne(SL + i, vT + i)
    for i in range(4):
        A(f"v_mul_f32 v{SL+i}, v{SL+i}, v{vGt+i}")
    for i in range(4):
        rne(SL + i, vT + i)
    for i in range(4):
        A(f"v_add_f32 v{SL+i}, v{SL+i}, v{vXr+i}")
    A(f"v_cvt_pk_bf16_f32 v{SL+4}, v{SL}, v{SL+1}")
    A(f"v_cvt_pk_bf16_f32 v{SL+5}, v{SL+2}, v{SL+3}")
    A("s_mov_b64 exec, 0xff")
    A(f"buffer_store_dwordx2 v[{SL+4}:{SL+5}], v{vL1}, {S4(SA)}, s{sT3} offen")
    A("s_mov_b64 exec, -1")
    stamp(9)
    A.lab("L_auxend")
    stamp_flush()
    A.lab("L_end")
    A("s_endpgm")

    ref = open("recurrent_scan__mha_block_cached__glu_gated_swiglu__decode.s.ref").read()
    head = ref.split("; @launch")[0]
    nv = (NV2 + 7) // 8 * 8
    out = head
    out += f"; @launch grid=(256,1,1) block=(512,1,1) lds={LDS + 256}\n"
    out += '.amdgcn_target "amdgcn-amd-amdhsa--gfx950"\n.text\n'
    out += f".globl {NAME}\n.p2align 8\n.type {NAME},@function\n{NAME}:\n"
    out += "\n".join(A.L) + "\n"
    out += '.section .rodata,"a"\n.p2align 6\n'
    out += f".amdhsa_kernel {NAME}\n"
    out += f"  .amdhsa_next_free_vgpr {nv}\n  .amdhsa_next_free_sgpr 80\n  .amdhsa_accum_offset {nv}\n"
    out += "  .amdhsa_group_segment_fixed_size 0\n  .amdhsa_kernarg_size 96\n  .amdhsa_user_sgpr_count 2\n"
    out += "  .amdhsa_user_sgpr_kernarg_segment_ptr 1\n  .amdhsa_system_sgpr_workgroup_id_x 1\n.end_amdhsa_kernel\n"
    return out

if __name__ == "__main__":
    fn = sys.argv[1]
    kw = eval("dict(%s)" % (sys.argv[2] if len(sys.argv) > 2 else ""))
    open(fn, "w").write(gen(**kw))
```

```python
import sys

NAME = "recurrent_scan__mha_block_cached__glu_gated_swiglu__decode_kernel"

class G:
    def __init__(s):
        s.L = []
        s.n = 0
    def __call__(s, t):
        s.L.append("    " + t)
    def lab(s, t):
        s.L.append(t + ":")
    def c(s, t):
        s.L.append("    ; " + t)
    def uid(s, p):
        s.n += 1
        return f"L_{p}{s.n}"

def gen(d=5, dpro=6, da=2, sb=15, stamps=False, round_scores=True, polk="nt", R=48, nul_aux=False, nul_wq=False, pola="nt", polq="nt", kcontig=False,
        LAG=8, qsleep=0, qpre=0, qlite=False, NA=8, polA='', polAl='sc1', levels=None, klevels=None, wofirst=True, diag_end=None, ticket=False, pfq=True, shardby='b', pf=1, polp='', pfd=0, daw=None, polw=None, thr=None, every=1, nshard=4, qprio=3):
    A = G()
    fc = levels is not None
    if not fc: levels = [d]
    assert max(levels) <= LAG
    NSH = 256 // nshard
    thr0 = 0.5
    sX, sK, sV, sWQ, sWO, sW1, sW3, sW2, sOUT, sDBG, sWS = 4, 6, 8, 10, 12, 16, 18, 20, 22, 24, 26
    sWAVE, sB, sH, sSP, sIDX, sJ = 28, 29, 30, 31, 32, 33
    SA, SN, SC, SD_, SE = 36, 40, 44, 48, 52
    sCUR, sNXT, sT, sIT, sT2, sT3 = 56, 57, 58, 59, 60, 61
    sM0, sM1 = 62, 64
    sBASE = 66
    sSPIN = 67
    sLV, sAT, sAP = 68, 69, 72
    sREP = 74
    sST = 70
    vLANE, vOA, vON, vOV, vG, vR = 1, 2, 3, 4, 5, 6
    vT7 = 7
    vMK = 8
    vBQ = 12
    vD0, vD1 = 28, 32
    vS, vM = 36, 37
    vT = 38
    vA0, vA1 = 48, 52
    vP0, vP1 = 56, 57
    vL0, vL1, vL2 = 58, 59, 60
    vST = 62
    SL = 64
    NV = SL + 4 * R
    slot = lambda i: f"v[{SL+4*i}:{SL+4*i+3}]"
    q4 = lambda r: f"v[{r}:{r+3}]"
    L_QP = 0
    L_OP = 2048
    L_FP = 4096
    L_ML = 6144
    L_FW = 6176
    L_CM = 6208
    L_CF = 6212
    L_ID = 6220
    L_LV = 6216
    L_SC = 8192
    LDS = L_SC + 4 * 16 * 64 * 4
    W_Y, W_Z, W_ML, W_EP, W_QP, W_SZ = 0, 0x80000, 0xC0000, 0xC8000, 0x100000, 0x300000
    W_ST = 0x300000
    W_FC = 0xD0000
    NFFN = 28
    LOG2E = 0x3FB8AA3B
    SCALE = 0x3DB504F3
    SPINMAX = 400000

    def srd(base, ptr, nbytes):
        A(f"s_mov_b32 s{base}, s{ptr}")
        A(f"s_mov_b32 s{base+1}, s{ptr+1}")
        A(f"s_mov_b32 s{base+2}, {hex(nbytes)}")
        A(f"s_mov_b32 s{base+3}, 0x00020000")
    auxmode = [False]
    S4 = lambda b: f"s[{b}:{b+3}]"

    def stamp(i):
        if diag_end is not None and diag_end == i and auxmode[0]:
            A("s_memrealtime s[78:79]")
            A("s_waitcnt lgkmcnt(0)")
        if not stamps: return
        A(f"s_memrealtime s[{sST}:{sST+1}]")
        A("s_waitcnt lgkmcnt(0)")
        A(f"v_writelane_b32 v{vST}, s{sST}, {i}")
    def stamp_it(base):
        if not stamps: return
        A(f"s_memrealtime s[{sST}:{sST+1}]")
        A(f"s_add_u32 m0, s{sIT}, {base}")
        A("s_waitcnt lgkmcnt(0)")
        A(f"v_writelane_b32 v{vST}, s{sST}, m0")
    def stamp_flush():
        if not stamps: return
        A(f"v_writelane_b32 v{vST}, s76, 10")
        A(f"v_writelane_b32 v{vST}, s75, 61")
        srd(SE, sWS, 0x400000)
        A(f"s_lshl_b32 s{sT}, s2, 3")
        A(f"s_add_u32 s{sT}, s{sT}, s{sWAVE}")
        A(f"s_lshl_b32 s{sT}, s{sT}, 8")
        A(f"s_add_u32 s{sT}, s{sT}, {hex(W_ST)}")
        A(f"v_lshlrev_b32 v{vT7}, 2, v{vLANE}")
        A(f"buffer_store_dword v{vST}, v{vT7}, {S4(SE)}, s{sT} offen")

    def allreduce(op, reg, tmp):
        for n in (8, 4, 2, 1):
            A("s_nop 1")
            A(f"{op}_dpp v{reg}, v{reg}, v{reg} row_ror:{n} row_mask:0xf bank_mask:0xf")
        for sw in ("v_permlane16_swap_b32", "v_permlane32_swap_b32"):
            A("s_nop 1")
            A(f"v_mov_b32 v{tmp}, v{reg}")
            A("s_nop 1")
            A(f"{sw} v{reg}, v{tmp}")
            A("s_nop 1")
            A(f"{op} v{reg}, v{reg}, v{tmp}")

    def rne(reg, tmp):
        A(f"v_cvt_pk_bf16_f32 v{tmp}, v{reg}, v{reg}")
        A(f"v_and_b32 v{reg}, 0xffff0000, v{tmp}")

    def diag(dst, pp, j):
        for m in range(4):
            A(f"v_and_b32_dpp v{dst+m}, v{pp}, v{vMK+m} row_newbcast:{j} row_mask:0xf bank_mask:0xf")

    def silu(reg, t):
        A(f"v_mul_f32 v{t}, {hex(LOG2E | 0x80000000)}, v{reg}")
        A(f"v_exp_f32 v{t}, v{t}")
        A("s_nop 0")
        A(f"v_add_f32 v{t}, 1.0, v{t}")
        A(f"v_rcp_f32 v{t}, v{t}")
        A("s_nop 0")
        A(f"v_mul_f32 v{reg}, v{reg}, v{t}")

    if sb == 15:
        koff = lambda k: ((k & 7) << 12) | ((k >> 3) << 16)
        wsh = 10
    elif sb == 10:
        koff = lambda k: k << 13
        wsh = 11
    elif sb == 20:
        koff = lambda k: k << 12
        wsh = 10
    GSTR = (1 << 17) if sb != 20 else (1 << 16)

    A("s_cmp_ge_u32 s2, 256")
    A("s_cbranch_scc1 L_end")
    if stamps or diag_end is not None: A("s_memrealtime s[76:77]")
    A("s_load_dwordx16 s[4:19], s[0:1], 0")
    A("s_load_dwordx8 s[20:27], s[0:1], 64")
    A(f"v_lshrrev_b32 v{vT7}, 6, v0")
    A(f"v_and_b32 v{vLANE}, 63, v0")
    A(f"v_readfirstlane_b32 s{sWAVE}, v{vT7}")
    A(f"v_lshrrev_b32 v{vG}, 4, v{vLANE}")
    A(f"v_and_b32 v{vR}, 15, v{vLANE}")
    if stamps:
        A(f"v_mov_b32 v{vST}, 0")
        A("s_mov_b32 s75, 0")
    if ticket:
        A(f"v_lshlrev_b32 v{vOV}, 4, v{vLANE}")
        A(f"v_mov_b32 v{vT}, {L_ID}")
        A(f"s_getreg_b32 s{sT2}, hwreg(HW_REG_XCC_ID)")
        A(f"s_cmp_eq_u32 s{sWAVE}, 4")
        A("s_waitcnt lgkmcnt(0)")
        A("s_cbranch_scc0 L_pf")
        A(f"s_mov_b32 s{sSPIN}, 0")
        A.lab("L_tk")
        A(f"s_and_b32 s{sT2}, s{sT2}, 7")
        A(f"s_lshl_b32 s{sT3}, s{sT2}, 5")
        A(f"s_add_u32 s{sT3}, s{sT3}, 4")
        A(f"s_mov_b32 s{sT}, 1")
        A(f"s_atomic_add s{sT}, s[{sDBG}:{sDBG+1}], s{sT3} glc")
        A("s_waitcnt lgkmcnt(0)")
        A(f"s_cmp_lt_u32 s{sT}, 32")
        A("s_cbranch_scc1 L_tk_ok")
        A(f"s_add_u32 s{sT2}, s{sT2}, 1")
        A(f"s_add_u32 s{sSPIN}, s{sSPIN}, 1")
        A(f"s_cmp_lt_u32 s{sSPIN}, 8")
        A("s_cbranch_scc1 L_tk")
        A.lab("L_tk_ok")
        A(f"s_lshl_b32 s{sT}, s{sT}, 3")
        A(f"s_and_b32 s{sT2}, s{sT2}, 7")
        A(f"s_or_b32 s{sT}, s{sT}, s{sT2}")
        A(f"s_and_b32 s{sT}, s{sT}, 255")
        A(f"v_mov_b32 v{vT+1}, s{sT}")
        A(f"ds_write_b32 v{vT}, v{vT+1}")
        A("s_waitcnt lgkmcnt(0)")
        A("s_branch L_bar0")
        A.lab("L_pf")
        if pf == 3:
            def sel(wv, ptr):
                A(f"s_cmp_eq_u32 s{sWAVE}, {wv}")
                A(f"s_cselect_b32 s{SA}, s{ptr}, s{SA}")
                A(f"s_cselect_b32 s{SA+1}, s{ptr+1}, s{SA+1}")
            A(f"s_mov_b32 s{SA}, s{sWO}")
            A(f"s_mov_b32 s{SA+1}, s{sWO+1}")
            sel(0, sW1); sel(1, sW3); sel(2, sW2); sel(6, sWQ); sel(7, sWQ)
            A(f"s_mov_b32 s{SA+2}, 0x400000")
            A(f"s_mov_b32 s{sT2}, 16384")
            A(f"s_cmp_lt_u32 s{sWAVE}, 3")
            A(f"s_cselect_b32 s{SA+2}, {512*1792*2}, s{SA+2}")
            A(f"s_cselect_b32 s{sT2}, 7168, s{sT2}")
            A(f"s_mov_b32 s{SA+3}, 0x00020000")
            A(f"s_mul_i32 s{sT2}, s{sT2}, s2")
            A(f"s_and_b32 s{sT}, s{sWAVE}, 5")
            A(f"s_cmp_eq_u32 s{sT}, 5")
            A(f"s_cselect_b32 s{sT}, 8192, 0")
            A(f"s_add_u32 s{sT2}, s{sT2}, s{sT}")
            A(f"s_add_u32 s{sT3}, s{sT2}, 4096")
            if not pfq:
                A(f"s_cmp_ge_u32 s{sWAVE}, 6")
                A("s_cbranch_scc1 L_bar0")
            for k in range(8):
                A(f"buffer_load_dwordx4 {slot(40+k)}, v{vOV}, {S4(SA)}, s{sT2 if k<4 else sT3} offen offset:{(k&3)*1024} {polp}")
        A.lab("L_bar0")
        A("s_barrier")
        A(f"ds_read_b32 v{vT+1}, v{vT}")
        A("s_waitcnt lgkmcnt(0)")
        A(f"v_readfirstlane_b32 s2, v{vT+1}")
        A("s_nop 1")
        stamp(9 if False else 11)
    A(f"s_lshr_b32 s{sB}, s2, 6")
    A(f"s_and_b32 s{sIDX}, s2, 63")
    A(f"s_bfe_u32 s{sSP}, s2, {(1<<16)|3}")
    A(f"s_bfe_u32 s{sT}, s2, {(2<<16)|4}")
    A(f"s_lshl_b32 s{sT}, s{sT}, 3")
    A(f"s_and_b32 s{sH}, s2, 7")
    A(f"s_or_b32 s{sH}, s{sH}, s{sT}")
    A(f"s_cmp_ge_u32 s{sWAVE}, 4")
    A("s_cbranch_scc1 L_aux")

    def build_masks():
        A(f"v_and_b32 v{vT}, 1, v{vR}")
        A(f"v_lshlrev_b32 v{vT}, 4, v{vT}")
        A(f"v_mov_b32 v{vT+1}, 0xffff")
        A(f"v_lshlrev_b32 v{vT}, v{vT}, v{vT+1}")
        A(f"v_bfe_u32 v{vT+1}, v{vR}, 1, 2")
        for m in range(4):
            A(f"v_cmp_eq_u32 vcc, {m}, v{vT+1}")
            A("s_nop 1")
            A(f"v_cndmask_b32 v{vMK+m}, 0, v{vT}, vcc")

    A.c("---- stream waves ----")
    A(f"v_lshrrev_b32 v{vT}, 2, v{vR}")
    A(f"v_lshlrev_b32 v{vT}, 8, v{vT}")
    A(f"v_and_b32 v{vT+1}, 3, v{vR}")
    A(f"v_lshlrev_b32 v{vT+1}, 4, v{vT+1}")
    A(f"v_lshlrev_b32 v{vT+2}, 6, v{vG}")
    A(f"v_add3_u32 v{vOA}, v{vT}, v{vT+1}, v{vT+2}")
    A(f"v_lshlrev_b32 v{vOV}, 4, v{vLANE}")
    if kcontig: A(f"v_mov_b32 v{vOA}, v{vOV}")
    A(f"v_mov_b32 v{vON}, v{vOA}")
    A(f"s_lshl_b32 s{sBASE}, s{sB}, 26")
    A(f"s_lshl_b32 s{sT}, s{sH}, 21")
    A(f"s_or_b32 s{sBASE}, s{sBASE}, s{sT}")
    A(f"s_lshl_b32 s{sT}, s{sSP}, {sb}")
    A(f"s_or_b32 s{sBASE}, s{sBASE}, s{sT}")
    A(f"s_lshl_b32 s{sT}, s{sWAVE}, {wsh}")
    A(f"s_or_b32 s{sBASE}, s{sBASE}, s{sT}")
    A("s_waitcnt lgkmcnt(0)")
    srd(SA, sK, 0x10000000)
    def sload(sl, srdb, voff, sbase, off):
        A(f"s_add_u32 s{sT}, s{sbase}, {hex(off)}")
        A(f"buffer_load_dwordx4 {slot(sl)}, v{voff}, {S4(srdb)}, s{sT} offen {polk}")
    gk = lambda i: (i >> 4) * GSTR + koff(i & 15)
    for i in range(R):
        if i >= dpro:
            A(f"s_waitcnt vmcnt({dpro-1})")
        sload(i, SA, vOA, sBASE, gk(i))
        if i in (15, 31): stamp(7 + (i >> 4))
        if i == dpro - 1:
            stamp(0)
            srd(SN, sK, 0x10000000)
            if fc:
                A(f"s_lshr_b32 s{sT2}, s2, 6")
                if nshard == 16:
                    A(f"s_bfe_u32 s{sT3}, s2, {(2<<16)|3}")
                    A(f"s_lshl_b32 s{sT2}, s{sT2}, 2")
                    A(f"s_or_b32 s{sT2}, s{sT2}, s{sT3}")
                elif nshard == 1:
                    A(f"s_mov_b32 s{sT2}, 0")
                elif nshard == 2:
                    A(f"s_bfe_u32 s{sT2}, s2, {(1<<16)|3}")
                elif shardby == 'row':
                    A(f"s_bfe_u32 s{sT2}, s2, {(2<<16)|3}")
                A(f"s_lshl_b32 s{sT2}, s{sT2}, 2")
                A(f"s_or_b32 s{sT2}, s{sT2}, s{sWAVE}")
                A(f"s_lshl_b32 s{sT2}, s{sT2}, 8")
                A(f"s_add_u32 s{sT2}, s{sT2}, {hex(W_FC)}")
                A(f"s_add_u32 s{sAP}, s{sWS}, s{sT2}")
                A(f"s_addc_u32 s{sAP+1}, s{sWS+1}, 0")
                A(f"s_mov_b32 s{sREP}, 0")
                A(f"s_atomic_add s{sREP}, s[{sAP}:{sAP+1}], 0x0 glc")
            build_masks()
            A(f"v_lshlrev_b32 v{vL0}, 2, v{vLANE}")
            A(f"s_lshl_b32 s{sT2}, s{sWAVE}, 12")
            A(f"s_add_u32 s{sT2}, s{sT2}, {L_SC}")
            A(f"v_add_u32 v{vL0}, s{sT2}, v{vL0}")
            A(f"v_mov_b32 v{vL1}, v{vL0}")
            A(f"v_lshrrev_b32 v{vT}, 2, v{vR}")
            A(f"v_lshlrev_b32 v{vT}, 4, v{vT}")
            A(f"v_lshlrev_b32 v{vL2}, 6, v{vG}")
            A(f"v_add_u32 v{vL2}, v{vL2}, v{vT}")
            A(f"v_mov_b32 v{vM}, 0xff800000")
    stamp(1)
    A("s_barrier")
    stamp(2)
    A(f"ds_read_b128 {q4(vT+2)}, v{vL2} offset:{L_QP}")
    A("s_waitcnt lgkmcnt(0)")
    A(f"v_and_b32 v{vT}, 3, v{vR}")
    for t in range(4):
        A(f"v_cmp_eq_u32 vcc, {t}, v{vT}")
        A("s_nop 1")
        for m in range(4):
            A(f"v_cndmask_b32 v{vBQ+4*t+m}, 0, v{vT+2+m}, vcc")
    A("s_nop 1")

    def dpp_gather(u, i):
        D = vD0 if (u & 1) == 0 else vD1
        n = (4 * (u - i)) % 16
        ctrl = "quad_perm:[0,1,2,3]" if n == 0 else f"row_ror:{n}"
        if i == 0:
            A(f"v_mov_b32_dpp v{vS}, v{D} {ctrl} row_mask:0xf bank_mask:{hex(1<<u)}")
        else:
            A(f"v_add_f32_dpp v{vS}, v{D+i}, v{vS} {ctrl} row_mask:0xf bank_mask:{hex(1<<u)}")
    def kgroup(slot0, waitf, issuef):
        for k in range(16):
            u, t = k >> 2, k & 3
            D = vD0 if (u & 1) == 0 else vD1
            waitf(k)
            A(f"v_mfma_f32_16x16x32_bf16 {q4(D)}, {slot(slot0+k)}, {q4(vBQ+4*t)}, {'0' if t==0 else q4(D)}")
            issuef(k)
            if u > 0:
                A("s_nop 6" if t == 0 else "s_nop 0")
                dpp_gather(u - 1, t)
        A("s_nop 7")
        for i in range(4):
            dpp_gather(3, i)
            A("s_nop 1")
        if round_scores:
            rne(vS, vT)
            A(f"v_mul_f32 v{vT+1}, {hex(SCALE)}, v{vS}")
            rne(vT + 1, vT)
        else:
            A(f"v_mul_f32 v{vT+1}, {hex(SCALE)}, v{vS}")
        A(f"v_max_f32 v{vM}, v{vM}, v{vT+1}")
        A(f"ds_write_b32 v{vL1}, v{vT+1}")
        A(f"v_add_u32 v{vL1}, 256, v{vL1}")

    d0 = d
    issued = [0]
    for G0 in range(R // 16):
        def waitf(k, G0=G0):
            i = G0 * 16 + k
            A(f"s_waitcnt vmcnt({min(63, R-1-i + issued[0])})")
        def issuef(k, G0=G0):
            i = G0 * 16 + k
            if i < d0:
                sload(i, SA, vOA, sBASE, gk(R + i)); issued[0] += 1
        kgroup(G0 * 16, waitf, issuef)
    for i in range(d0, LAG):
        A(f"s_waitcnt vmcnt({d0-1})")
        sload(i, SA, vOA, sBASE, gk(R + i))
    stamp(3)
    A(f"s_add_u32 s{sCUR}, s{sBASE}, {hex((R//16)*GSTR)}")
    A(f"s_mov_b32 s{sIT}, {R//16}")
    if fc:
        A("s_waitcnt lgkmcnt(0)")
        A(f"s_add_u32 s{sAT}, s{sREP}, {int(thr0*NSH)}")
        A(f"s_add_u32 s{sAT}, s{sAT}, {-NSH & 0xffffffff}")
        A(f"s_add_u32 s{sREP}, s{sREP}, {-NSH & 0xffffffff}")
    def steady_issue(k):
        kk = k + LAG
        if kk < 16:
            sload(kk, SA, vOA, sCUR, koff(kk))
        else:
            sload(kk - 16, SN, vON, sNXT, koff(kk - 16))
    def fc_top(tag):
        if not fc: return
        A("s_waitcnt lgkmcnt(0)")
        A(f"s_sub_i32 s{sAT}, s{sAT}, s{sREP}")
        A(f"s_add_u32 s{sREP}, s{sREP}, {NSH}")
        A(f"s_mov_b32 s{sLV}, 0")
        for th in thr:
            A(f"s_cmp_ge_i32 s{sAT}, {int(th*NSH)}")
            A(f"s_addc_u32 s{sLV}, s{sLV}, 0")
        if stamps: A(f"s_add_u32 s75, s75, s{sLV}")
        A(f"s_mov_b32 s{sAT}, 1")
        A(f"s_atomic_add s{sAT}, s[{sAP}:{sAP+1}], 0x0 glc")
    def fc_dispatch(tag):
        if not fc: return
        for li in range(1, len(levels)):
            A(f"s_cmp_eq_u32 s{sLV}, {li}")
            A(f"s_cbranch_scc1 L_{tag}_b{li}")
    def fc_mid(tag):
        return
    A.lab("L_kloop")
    A(f"s_add_u32 s{sNXT}, s{sCUR}, {hex(GSTR)}")
    A(f"s_cmp_eq_u32 s{sIT}, 15")
    A("s_cbranch_scc0 L_knl")
    A(f"s_mov_b32 s{sNXT}, s{sBASE}")
    A(f"s_mov_b32 s{SN}, s{sV}")
    A(f"s_mov_b32 s{SN+1}, s{sV+1}")
    A(f"v_mov_b32 v{vON}, v{vOV}")
    A.lab("L_knl")
    fc_top("k")
    fc_dispatch("k")
    for li, dd in enumerate(klevels or levels):
        A.lab(f"L_k_b{li}")
        def iss(k, li=li):
            steady_issue(k)
            if k == 8: fc_mid(f"k{li}")
        kgroup(0, lambda k: A(f"s_waitcnt vmcnt({dd-1})"), iss)
        if li + 1 < len(levels): A("s_branch L_k_e")
    A.lab("L_k_e")
    stamp_it(16)
    A(f"s_mov_b32 s{sCUR}, s{sNXT}")
    A(f"s_add_u32 s{sIT}, s{sIT}, 1")
    A(f"s_cmp_lt_u32 s{sIT}, 16")
    A("s_cbranch_scc1 L_kloop")
    stamp(4)
    A(f"s_mov_b32 s{SA}, s{sV}")
    A(f"s_mov_b32 s{SA+1}, s{sV+1}")
    A(f"v_mov_b32 v{vOA}, v{vOV}")
    X = SL + 64
    A("s_waitcnt lgkmcnt(0)")
    for i in range(8):
        A(f"ds_read2st64_b32 v[{X+2*i}:{X+2*i+1}], v{vL0} offset0:{2*i} offset1:{2*i+1}")
    allreduce("v_max_f32", vM, vT)
    A(f"v_mul_f32 v{vT}, {hex(LOG2E)}, v{vM}")
    A(f"s_mov_b32 s{sT2}, {hex(LOG2E)}")
    A("s_waitcnt lgkmcnt(0)")
    for i in range(16):
        A(f"v_sub_f32 v{X+i}, v{X+i}, v{vM}")
    for i in range(16):
        A(f"v_mul_f32 v{X+i}, s{sT2}, v{X+i}")
    for i in range(16):
        A(f"v_exp_f32 v{X+i}, v{X+i}")
    A("s_nop 0")
    for i in range(16):
        A(f"v_cvt_pk_bf16_f32 v{X+16+i}, v{X+i}, v{X+i}")
    for i in range(8):
        A(f"ds_write2st64_b32 v{vL0}, v{X+16+2*i}, v{X+16+2*i+1} offset0:{2*i} offset1:{2*i+1}")
    A(f"v_mov_b32 v{vP1}, v{X+16}")
    for st in (8, 4, 2, 1):
        for i in range(st):
            A(f"v_add_f32 v{X+i}, v{X+i}, v{X+i+st}")
    allreduce("v_add_f32", X, vT)
    A(f"v_mov_b32 v{vT}, v{vM}")
    A(f"v_mov_b32 v{vT+1}, v{X}")
    A(f"s_lshl_b32 s{sT2}, s{sWAVE}, 3")
    A(f"s_add_u32 s{sT2}, s{sT2}, {L_ML}")
    A(f"v_mov_b32 v{vT+2}, s{sT2}")
    A(f"v_mov_b32 v{vT+3}, {L_CM}")
    A(f"v_mov_b32 v{vT+4}, 1")
    A("s_mov_b64 exec, 1")
    A(f"ds_write_b64 v{vT+2}, v[{vT}:{vT+1}]")
    A("s_waitcnt lgkmcnt(0)")
    A(f"ds_add_u32 v{vT+3}, v{vT+4}")
    A("s_mov_b64 exec, -1")
    for i in range(4):
        A(f"v_mov_b32 v{vD0+i}, 0")
    A(f"v_add_u32 v{vL1}, 256, v{vL0}")
    A(f"s_mov_b32 s{sIT}, 0")
    stamp(5)
    A.lab("L_vloop")
    A(f"s_add_u32 s{sNXT}, s{sCUR}, {hex(GSTR)}")
    A(f"s_cmp_eq_u32 s{sIT}, 15")
    A(f"s_cselect_b32 s{sNXT}, 0x40000000, s{sNXT}")
    if fc: fc_top("v")
    else: A("s_waitcnt lgkmcnt(0)")
    A(f"v_mov_b32 v{vP0}, v{vP1}")
    A(f"ds_read_b32 v{vP1}, v{vL1}")
    A(f"v_add_u32 v{vL1}, 256, v{vL1}")
    diag(vA0, vP0, 0)
    fc_dispatch("v")
    for li, dd in enumerate(levels):
        A.lab(f"L_v_b{li}")
        for k in range(16):
            Acur = vA0 if (k & 1) == 0 else vA1
            Anxt = vA1 if (k & 1) == 0 else vA0
            if k < 15:
                diag(Anxt, vP0, k + 1)
            A(f"s_waitcnt vmcnt({dd-1})")
            A(f"v_mfma_f32_16x16x32_bf16 {q4(vD0)}, {q4(Acur)}, {slot(k)}, {q4(vD0)}")
            steady_issue(k)
            if k == 8: fc_mid(f"v{li}")
        if li + 1 < len(levels): A("s_branch L_v_e")
    A.lab("L_v_e")
    stamp_it(32)
    A(f"s_mov_b32 s{sCUR}, s{sNXT}")
    A(f"s_add_u32 s{sIT}, s{sIT}, 1")
    A(f"s_cmp_lt_u32 s{sIT}, 16")
    A("s_cbranch_scc1 L_vloop")
    A(f"v_lshlrev_b32 v{vT}, 5, v{vR}")
    A(f"v_lshlrev_b32 v{vT+1}, 4, v{vG}")
    A(f"s_lshl_b32 s{sT2}, s{sWAVE}, 9")
    A(f"v_add3_u32 v{vT}, v{vT}, v{vT+1}, s{sT2}")
    A("s_mov_b32 exec_hi, 0")
    A("s_nop 1")
    A(f"ds_write_b128 v{vT}, {q4(vD0)} offset:{L_OP}")
    A("s_mov_b64 exec, -1")
    A("s_waitcnt lgkmcnt(0)")
    A("s_barrier")
    stamp(6)
    stamp_flush()
    A("s_endpgm")

    A.lab("L_aux")
    auxmode[0] = True
    if diag_end is not None:
        A("s_waitcnt lgkmcnt(0)")
        A("s_mov_b32 s78, s76")
    A(f"s_sub_u32 s{sJ}, s{sWAVE}, 4")
    A(f"v_lshlrev_b32 v{vOV}, 4, v{vLANE}")
    A(f"s_cmp_eq_u32 s{sJ}, 0")
    A("s_cbranch_scc1 L_qw")
    A("s_waitcnt lgkmcnt(0)")
    srd(SC, sWS, W_SZ)
    def prefetch():
        A(f"s_cmp_eq_u32 s{sJ}, 1")
        A(f"s_cselect_b32 s{SA}, s{sW1}, s{sW3}")
        A(f"s_cselect_b32 s{SA+1}, s{sW1+1}, s{sW3+1}")
        A(f"s_cmp_eq_u32 s{sJ}, 3")
        A(f"s_cselect_b32 s{SA}, s{sW2}, s{SA}")
        A(f"s_cselect_b32 s{SA+1}, s{sW2+1}, s{SA+1}")
        A(f"s_mov_b32 s{SA+2}, {512*1792*2}")
        A(f"s_mov_b32 s{SA+3}, 0x00020000")
        srd(SN, sWO, 0x400000)
        A(f"s_mul_i32 s{sT2}, s2, 7168")
        A(f"s_lshl_b32 s{sBASE}, s{sH}, 17")
        A(f"s_lshl_b32 s{sT}, s{sB}, 15")
        A(f"s_add_u32 s{sBASE}, s{sBASE}, s{sT}")
        A(f"s_lshl_b32 s{sT}, s{sSP}, 14")
        A(f"s_add_u32 s{sBASE}, s{sBASE}, s{sT}")
        A(f"s_sub_u32 s{sT}, s{sJ}, 1")
        A(f"s_mul_i32 s{sT}, s{sT}, 5120")
        A(f"s_add_u32 s{sBASE}, s{sBASE}, s{sT}")
        n = 0
        for k in range(6):
            if pfd and n >= pfd: A(f"s_waitcnt vmcnt({pfd-1})")
            A(f"s_add_u32 s{sT}, s{sBASE}, {k*1024}")
            A(f"buffer_load_dwordx4 {slot(k)}, v{vOV}, {S4(SN)}, s{sT} offen {polp}"); n += 1
        for k in range(7):
            if pfd and n >= pfd: A(f"s_waitcnt vmcnt({pfd-1})")
            A(f"s_add_u32 s{sT}, s{sT2}, {k*1024}")
            A(f"buffer_load_dwordx4 {slot(6+k)}, v{vOV}, {S4(SA)}, s{sT} offen {polp}"); n += 1
    if pf == 1: prefetch()
    A(f"v_mov_b32 v{vT}, {L_CM}")
    A(f"v_mov_b32 v{vT+2}, 0")
    A(f"v_mov_b32 v{vT+3}, 0")
    A(f"v_mov_b32 v{vT+4}, {len(levels)//2}")
    A(f"ds_write_b64 v{vT}, v[{vT+2}:{vT+3}]")
    A(f"ds_write_b32 v{vT}, v{vT+4} offset:8")
    A("s_waitcnt lgkmcnt(0)")
    A("s_branch L_bar1")
    A.lab("L_qw")
    if qprio: A(f"s_setprio {qprio}")
    sMU = sIT
    A(f"s_lshl_b32 s{sMU}, s{sB}, 1")
    A(f"s_or_b32 s{sMU}, s{sMU}, s{sSP}")
    A(f"v_lshrrev_b32 v{vT}, 2, v{vR}")
    A(f"v_lshlrev_b32 v{vT}, 10, v{vT}")
    A(f"v_and_b32 v{vT+1}, 3, v{vR}")
    A(f"v_lshlrev_b32 v{vT+1}, 6, v{vT+1}")
    A(f"v_lshlrev_b32 v{vT+2}, 8, v{vG}")
    A(f"v_add3_u32 v{vON}, v{vT}, v{vT+1}, v{vT+2}")
    A(f"v_lshl_add_u32 v{vL1}, v{vG}, 4, v{vT}")
    A(f"v_lshlrev_b32 v{vT}, 16, v{vG}")
    A(f"v_lshl_add_u32 v{vOA}, v{vR}, 4, v{vT}")
    A(f"v_mov_b32 v{vL2}, 0")
    A(f"s_lshl_b32 s{sT2}, s{sMU}, 7")
    A(f"s_lshl_b32 s{sBASE}, s{sMU}, 19")
    A(f"s_lshl_b32 s{sT}, s{sH}, 8")
    A(f"s_add_u32 s{sBASE}, s{sBASE}, s{sT}")
    A(f"s_lshl_b32 s{sT3}, s{sH}, 6")
    A(f"s_add_u32 s{sT3}, s{sT3}, {hex(W_EP)}")
    A("s_waitcnt lgkmcnt(0)")
    srd(SA, sX, 4096)
    srd(SN, sWQ, 0 if nul_wq else 0x400000)
    srd(SC, sWS, W_SZ)
    XR = SL + 64
    XF = SL + 80
    XE = vBQ
    XD = SL + 128
    vTG = vBQ + 8
    for i in range(4):
        A(f"buffer_load_dwordx4 {q4(XR+4*i)}, v{vON}, {S4(SA)}, 0 offen offset:{16*i}")
    for s_ in range(2):
        A(f"buffer_load_dwordx4 {q4(XE+4*s_)}, v{vL1}, {S4(SA)}, s{sT2} offen offset:{64*s_}")
    for k in range(16):
        A(f"s_add_u32 s{sT}, s{sBASE}, {hex(((k>>3)*32 + (k&7))*8192)}")
        A(f"buffer_load_dwordx4 {slot(k)}, v{vOA}, {S4(SN)}, s{sT} offen {polq}")
    A(f"buffer_load_dwordx2 v[{vTG}:{vTG+1}], v{vL2}, {S4(SC)}, s{sT3} offen sc1")
    stamp(0)
    def red16(reg, tmp):
        for qp in ("[1,0,3,2]", "[2,3,0,1]"):
            A("s_nop 1")
            A(f"v_add_f32_dpp v{reg}, v{reg}, v{reg} quad_perm:{qp} row_mask:0xf bank_mask:0xf")
        for sw in ("v_permlane16_swap_b32", "v_permlane32_swap_b32"):
            A("s_nop 0")
            A(f"v_mov_b32 v{tmp}, v{reg}")
            A("s_nop 1")
            A(f"{sw} v{reg}, v{tmp}")
            A("s_nop 0")
            A(f"v_add_f32 v{reg}, v{reg}, v{tmp}")
    def ln_finish(mean, var, t):
        rne(mean, t)
        rne(var, t)
        A(f"v_add_f32 v{var}, 0x3727c5ac, v{var}")
        rne(var, t)
        A(f"v_sqrt_f32 v{var}, v{var}")
        A("s_nop 0")
        rne(var, t)
        A(f"v_rcp_f32 v{var}, v{var}")
        A("s_nop 0")
    A("s_waitcnt vmcnt(19)")
    for i in range(16):
        A(f"v_lshlrev_b32 v{XF+2*i}, 16, v{XR+i}")
        A(f"v_and_b32 v{XF+2*i+1}, 0xffff0000, v{XR+i}")
    p2 = lambda r: f"v[{r}:{r+1}]"
    for i in range(8):
        A(f"v_pk_add_f32 {p2(XR+2*i)}, {p2(XF+4*i)}, {p2(XF+4*i+2)}")
    for st in (4, 2, 1):
        for i in range(st):
            A(f"v_pk_add_f32 {p2(XR+2*i)}, {p2(XR+2*i)}, {p2(XR+2*(i+st))}")
    A(f"v_add_f32 v{vT}, v{XR}, v{XR+1}")
    red16(vT, vT + 1)
    A(f"v_mul_f32 v{vT}, 0x3b000000, v{vT}")
    A(f"v_mov_b32 v{vT+1}, v{vT}")
    for i in range(16):
        A(f"v_pk_add_f32 {p2(XF+2*i)}, {p2(XF+2*i)}, {p2(vT)} neg_lo:[0,1] neg_hi:[0,1]")
    for c_ in range(2):
        A(f"v_pk_mul_f32 {p2(XR+2*c_)}, {p2(XF+2*c_)}, {p2(XF+2*c_)}")
    for i in range(2, 16):
        c_ = i & 1
        A(f"v_pk_fma_f32 {p2(XR+2*c_)}, {p2(XF+2*i)}, {p2(XF+2*i)}, {p2(XR+2*c_)}")
    A(f"v_pk_add_f32 {p2(XR)}, {p2(XR)}, {p2(XR+2)}")
    A(f"v_add_f32 v{vT+2}, v{XR}, v{XR+1}")
    red16(vT + 2, vT + 1)
    A(f"v_mul_f32 v{vT+2}, 0x3b000000, v{vT+2}")
    ln_finish(vT, vT + 2, vT + 1)
    A("s_waitcnt vmcnt(17)")
    for i in range(8):
        A(f"v_lshlrev_b32 v{XF+2*i}, 16, v{XE+i}")
        A(f"v_and_b32 v{XF+2*i+1}, 0xffff0000, v{XE+i}")
    for i in range(16):
        A(f"v_sub_f32 v{XF+i}, v{XF+i}, v{vT}")
    for i in range(8):
        A(f"v_cvt_pk_bf16_f32 v{XE+i}, v{XF+2*i}, v{XF+2*i+1}")
    for i in range(8):
        A(f"v_lshlrev_b32 v{XF+2*i}, 16, v{XE+i}")
        A(f"v_and_b32 v{XF+2*i+1}, 0xffff0000, v{XE+i}")
    for i in range(16):
        A(f"v_mul_f32 v{XF+i}, v{XF+i}, v{vT+2}")
    for i in range(8):
        A(f"v_cvt_pk_bf16_f32 v{XE+i}, v{XF+2*i}, v{XF+2*i+1}")
    stamp(1)
    A(f"s_mov_b32 s{sM0}, 0x05040100")
    A(f"s_mov_b32 s{sM0+1}, 0x07060302")
    def bperm(dst, s_, jj):
        for m in range(4):
            lo = SL + 4 * (8 * s_ + 2 * m) + (jj >> 1)
            hi = SL + 4 * (8 * s_ + 2 * m + 1) + (jj >> 1)
            A(f"v_perm_b32 v{dst+m}, v{hi}, v{lo}, s{sM0 + (jj & 1)}")
    A("s_waitcnt vmcnt(9)")
    bperm(vA0, 0, 0)
    for n in range(16):
        s_, jj = n >> 3, n & 7
        cur = vA0 if (n & 1) == 0 else vA1
        nxt = vA1 if (n & 1) == 0 else vA0
        if n == 7: A("s_waitcnt vmcnt(1)")
        if n + 1 < 16: bperm(nxt, (n + 1) >> 3, (n + 1) & 7)
        else: A("s_nop 1")
        A(f"v_mfma_f32_16x16x32_bf16 {q4(XD+4*jj)}, {q4(XE+4*s_)}, {q4(cur)}, {'0' if s_==0 else q4(XD+4*jj)}")
    A("s_waitcnt vmcnt(0)")
    A(f"v_mov_b32 v{vT}, 0x9e3779b9")
    A(f"v_add_co_u32 v{vTG}, vcc, 0x7f4a7c15, v{vTG}")
    A("s_nop 1")
    A(f"v_addc_co_u32 v{vTG+1}, vcc, v{vT}, v{vTG+1}, vcc")
    A(f"v_lshlrev_b32 v{vT}, 13, v{vG}")
    A(f"v_lshl_add_u32 v{vT}, v{vR}, 4, v{vT}")
    A(f"s_lshl_b32 s{sCUR}, s{sH}, 15")
    A(f"s_add_u32 s{sCUR}, s{sCUR}, {hex(W_QP)}")
    A(f"s_lshl_b32 s{sT}, s{sMU}, 10")
    A(f"s_add_u32 s{sT}, s{sT}, s{sCUR}")
    A("s_nop 3")
    A(f"v_mov_b32 v{vON}, v{vT}")
    A(f"s_add_u32 s{sBASE}, s{sT}, 0x100000")
    for n in range(4):
        A(f"v_mov_b32 v{XD+8*n+1}, v{XD+8*n+4}")
        A(f"v_mov_b32 v{XD+8*n+2}, v{vTG}")
        A(f"v_mov_b32 v{XD+8*n+3}, v{vTG+1}")
        A(f"buffer_store_dwordx4 {q4(XD+8*n)}, v{vON}, {S4(SC)}, s{sT} offen offset:{256*n} {polA}")
    def storeB():
        for n in range(4):
            A(f"buffer_store_dwordx4 {q4(XD+8*n)}, v{vON}, {S4(SC)}, s{sBASE} offen offset:{256*n} sc1")
    stamp(2)
    A(f"s_lshl_b32 s{sT}, s{sB}, 13")
    A(f"s_add_u32 s{sCUR}, s{sCUR}, s{sT}")
    A(f"s_add_u32 s{sNXT}, s{sCUR}, 4096")
    A(f"s_mov_b32 s{sSPIN}, 0")
    if qpre: A(f"s_sleep {qpre}")
    A.lab("L_qp")
    for n in range(8):
        A(f"buffer_load_dwordx4 {slot(n)}, v{vOV}, {S4(SC)}, s{sCUR if n<4 else sNXT} offen offset:{1024*(n&3)} sc1")
    A(f"s_add_u32 s{sSPIN}, s{sSPIN}, 1")
    A(f"v_mov_b32 v{vT}, 0")
    for n in range(8):
        A(f"s_waitcnt vmcnt({7-n})")
        A(f"v_xor_b32 v{vT+1}, v{SL+4*n+2}, v{vTG}")
        A(f"v_xor_b32 v{vT+2}, v{SL+4*n+3}, v{vTG+1}")
        A(f"v_or3_b32 v{vT}, v{vT}, v{vT+1}, v{vT+2}")
    A(f"v_cmp_ne_u32 vcc, 0, v{vT}")
    A("s_nop 1")
    A("s_cmp_eq_u64 vcc, 0")
    A("s_cbranch_scc1 L_qp_ok")
    if qsleep: A(f"s_sleep {qsleep}")
    A(f"s_cmp_eq_u32 s{sSPIN}, {NA}")
    A("s_cbranch_scc0 L_qp_c")
    storeB()
    A(f"s_add_u32 s{sCUR}, s{sCUR}, 0x100000")
    A(f"s_add_u32 s{sNXT}, s{sNXT}, 0x100000")
    A.lab("L_qp_c")
    A(f"s_cmp_lt_u32 s{sSPIN}, {SPINMAX}")
    A("s_cbranch_scc1 L_qp")
    A.lab("L_qp_ok")
    stamp(6)
    if stamps: A(f"v_writelane_b32 v{vST}, s{sSPIN}, 60")
    for st in (4, 2, 1):
        for n in range(st):
            A(f"v_pk_add_f32 {p2(SL+4*n)}, {p2(SL+4*n)}, {p2(SL+4*(n+st))}")
    A(f"v_cvt_pk_bf16_f32 v{vT}, v{SL}, v{SL+1}")
    A(f"v_lshlrev_b32 v{vT+1}, 2, v{vG}")
    A(f"v_lshl_add_u32 v{vT+1}, v{vR}, 4, v{vT+1}")
    A(f"ds_write_b32 v{vT+1}, v{vT} offset:{L_QP}")
    storeB()
    A(f"s_cmp_eq_u32 s{sMU}, 0")
    A("s_cbranch_scc0 L_qnl")
    A("s_mov_b64 exec, 1")
    A(f"buffer_store_dwordx2 v[{vTG}:{vTG+1}], v{vL2}, {S4(SC)}, s{sT3} offen sc1")
    A("s_mov_b64 exec, -1")
    A.lab("L_qnl")
    A("s_waitcnt lgkmcnt(0)")
    if qprio: A("s_setprio 0")
    A.lab("L_bar1")
    A("s_barrier")
    stamp(3)
    if pf == 2:
        A(f"s_cmp_eq_u32 s{sJ}, 0")
        A("s_cbranch_scc1 L_nopf")
        prefetch()
        A.lab("L_nopf")
    A("s_waitcnt vmcnt(0)")
    build_masks()
    A(f"v_lshlrev_b32 v{vT}, 5, v{vR}")
    A(f"v_lshlrev_b32 v{vT+1}, 4, v{vG}")
    A(f"s_lshl_b32 s{sT2}, s{sJ}, 9")
    A(f"v_add3_u32 v{vL0}, v{vT}, v{vT+1}, s{sT2}")

    def gemv(n, pps, waitf, issuef=None, slotf=lambda k: k):
        diag(vA0, pps[0], 0)
        for k in range(n):
            Acur = vA0 if (k & 1) == 0 else vA1
            Anxt = vA1 if (k & 1) == 0 else vA0
            if k + 1 < n:
                diag(Anxt, pps[(k + 1) >> 4], (k + 1) & 15)
            else:
                A("s_nop 1")
            waitf(k)
            A(f"v_mfma_f32_16x16x32_bf16 {q4(vD0)}, {q4(Acur)}, {slot(slotf(k))}, {'0' if k==0 else q4(vD0)}")
            if issuef: issuef(k)
        A("s_nop 7")

    A(f"s_cmp_eq_u32 s{sJ}, 3")
    A("s_cbranch_scc0 L_noclr")
    for i in range(4):
        A(f"v_mov_b32 v{vBQ+i}, -1")
    A(f"s_lshl_b32 s{sT}, s2, 11")
    A(f"buffer_store_dwordx4 {q4(vBQ)}, v{vOV}, {S4(SC)}, s{sT} offen sc1")
    A(f"buffer_store_dwordx4 {q4(vBQ)}, v{vOV}, {S4(SC)}, s{sT} offen offset:1024 sc1")
    A(f"s_cmp_lt_u32 s{sIDX}, {NFFN}")
    A("s_cbranch_scc0 L_noclrz")
    A(f"s_lshl_b32 s{sT}, s{sB}, 5")
    A(f"s_add_u32 s{sT}, s{sT}, s{sIDX}")
    A(f"s_lshl_b32 s{sT}, s{sT}, 11")
    A(f"s_add_u32 s{sT}, s{sT}, {hex(W_Z)}")
    A(f"buffer_store_dwordx4 {q4(vBQ)}, v{vOV}, {S4(SC)}, s{sT} offen sc1")
    A(f"buffer_store_dwordx4 {q4(vBQ)}, v{vOV}, {S4(SC)}, s{sT} offen offset:1024 sc1")
    A.lab("L_noclrz")
    A(f"s_lshl_b32 s{sT}, s2, 6")
    A(f"s_add_u32 s{sT}, s{sT}, {hex(W_ML)}")
    A("s_mov_b64 exec, 1")
    A(f"buffer_store_dwordx2 v[{vBQ}:{vBQ+1}], v{vOV}, {S4(SC)}, s{sT} offen sc1")
    A("s_waitcnt vmcnt(0)")
    srd(SD_, sDBG, 256)
    A(f"v_mov_b32 v{vT}, 1")
    A(f"buffer_atomic_add v{vT}, v{vOV}, {S4(SD_)}, 0 offen sc1")
    A("s_mov_b64 exec, -1")
    A.lab("L_noclr")

    def lds_wait(addr, val, tag):
        lab = A.uid("lw")
        A(f"v_mov_b32 v{vT}, {addr}")
        A(f"s_mov_b32 s{sSPIN}, 0")
        A.lab(lab)
        A(f"ds_read_b32 v{vT+1}, v{vT}")
        A("s_waitcnt lgkmcnt(0)")
        A(f"v_readfirstlane_b32 s{sT}, v{vT+1}")
        A(f"s_add_u32 s{sSPIN}, s{sSPIN}, 1")
        A(f"s_cmp_ge_u32 s{sT}, {val}")
        A(f"s_cbranch_scc1 {lab}_ok")
        A("s_sleep 4")
        A(f"s_cmp_lt_u32 s{sSPIN}, {SPINMAX}")
        A(f"s_cbranch_scc1 {lab}")
        A.lab(lab + "_ok")

    def rows512_off():
        A(f"v_lshlrev_b32 v{vT}, 10, v{vG}")
        A(f"v_lshlrev_b32 v{vT+1}, 4, v{vR}")
        A(f"v_add_u32 v{vOA}, v{vT}, v{vT+1}")

    def r512load(k, srdb, sl=None, pol=None):
        A(f"s_add_u32 s{sT}, s{sBASE}, {hex(k*4096)}")
        A(f"buffer_load_dwordx4 {slot(k if sl is None else sl)}, v{vOA}, {S4(srdb)}, s{sT} offen {pola if pol is None else pol}")
    def wo_block():
        dw = daw or da
        srd(SN, sWO, 0 if nul_aux in (True,'wo') else 0x400000)
        rows512_off()
        A(f"s_lshl_b32 s{sBASE}, s{sH}, 17")
        A(f"s_lshl_b32 s{sT}, s{sJ}, 8")
        A(f"s_add_u32 s{sBASE}, s{sBASE}, s{sT}")
        for k in range(32):
            if k >= dw: A(f"s_waitcnt vmcnt({dw-1})")
            r512load(k, SN, pol=polw)
        A("s_waitcnt vmcnt(0)")
        stamp(5)
    fsl = lambda k: 40 + (k & 7)
    if wofirst: wo_block()
    A(f"s_cmp_lt_u32 s{sIDX}, {NFFN}")
    A("s_cbranch_scc0 L_noffn")
    srd(SA, sX, 4096)
    A(f"v_lshlrev_b32 v{vT}, 3, v{vR}")
    A(f"v_lshlrev_b32 v{vT+1}, 1, v{vG}")
    A(f"s_lshl_b32 s{sT2}, s{sJ}, 8")
    A(f"v_add3_u32 v{vON}, v{vT}, v{vT+1}, s{sT2}")
    A(f"s_lshl_b32 s{sT2}, s{sB}, 10")
    A(f"buffer_load_dwordx4 {q4(vBQ)}, v{vOV}, {S4(SA)}, s{sT2} offen")
    A(f"buffer_load_ushort v{vP0}, v{vON}, {S4(SA)}, s{sT2} offen")
    A(f"buffer_load_ushort v{vP1}, v{vON}, {S4(SA)}, s{sT2} offen offset:128")
    A("s_waitcnt vmcnt(0)")
    F = vBQ + 4
    for m in range(4):
        A(f"v_lshlrev_b32 v{F+2*m}, 16, v{vBQ+m}")
        A(f"v_and_b32 v{F+2*m+1}, 0xffff0000, v{vBQ+m}")
    A(f"v_lshlrev_b32 v{vP0}, 16, v{vP0}")
    A(f"v_lshlrev_b32 v{vP1}, 16, v{vP1}")
    A(f"v_add_f32 v{vT}, v{F}, v{F+1}")
    A(f"v_add_f32 v{vT+1}, v{F+2}, v{F+3}")
    A(f"v_add_f32 v{vT+2}, v{F+4}, v{F+5}")
    A(f"v_add_f32 v{vT+3}, v{F+6}, v{F+7}")
    A(f"v_add_f32 v{vT}, v{vT}, v{vT+1}")
    A(f"v_add_f32 v{vT+2}, v{vT+2}, v{vT+3}")
    A(f"v_add_f32 v{vT}, v{vT}, v{vT+2}")
    allreduce("v_add_f32", vT, vT + 1)
    A(f"v_mul_f32 v{vT}, 0x3b000000, v{vT}")
    for e in range(8):
        A(f"v_sub_f32 v{F+e}, v{F+e}, v{vT}")
    A(f"v_mul_f32 v{vT+2}, v{F}, v{F}")
    for e in range(1, 8):
        A(f"v_fmac_f32 v{vT+2}, v{F+e}, v{F+e}")
    allreduce("v_add_f32", vT + 2, vT + 1)
    A(f"v_mul_f32 v{vT+2}, 0x3b000000, v{vT+2}")
    ln_finish(vT, vT + 2, vT + 1)
    for p in (vP0, vP1):
        A(f"v_sub_f32 v{p}, v{p}, v{vT}")
        rne(p, vT + 1)
        A(f"v_mul_f32 v{p}, v{p}, v{vT+2}")
        A(f"v_cvt_pk_bf16_f32 v{p}, v{p}, v{p}")
    srd(SA, sW1, 0 if nul_aux in (True,'ffn') else 512 * 1792 * 2)
    srd(SN, sW3, 0 if nul_aux in (True,'ffn') else 512 * 1792 * 2)
    A(f"v_mul_u32_u24 v{vT}, 3584, v{vG}")
    A(f"v_and_b32 v{vT+1}, 7, v{vR}")
    A(f"v_lshlrev_b32 v{vT+1}, 4, v{vT+1}")
    A(f"v_add_u32 v{vOA}, v{vT}, v{vT+1}")
    A(f"s_mul_i32 s{sBASE}, s{sJ}, {128*3584}")
    A(f"s_lshl_b32 s{sT}, s{sIDX}, 7")
    A(f"s_add_u32 s{sBASE}, s{sBASE}, s{sT}")
    A(f"s_mov_b32 s{sM0}, 0x00ff00ff")
    A(f"s_mov_b32 s{sM0+1}, 0x00ff00ff")
    A(f"s_mov_b32 s{sM1}, 0xff00ff00")
    A(f"s_mov_b32 s{sM1+1}, 0xff00ff00")
    A("s_waitcnt vmcnt(0)")
    def f1load(k):
        A(f"s_add_u32 s{sT}, s{sBASE}, {hex(k*4*3584)}")
        A(f"s_mov_b64 exec, s[{sM0}:{sM0+1}]")
        A(f"buffer_load_dwordx4 {slot(fsl(k))}, v{vOA}, {S4(SA)}, s{sT} offen {pola}")
        A(f"s_mov_b64 exec, s[{sM1}:{sM1+1}]")
        A(f"buffer_load_dwordx4 {slot(fsl(k))}, v{vOA}, {S4(SN)}, s{sT} offen {pola}")
        A("s_mov_b64 exec, -1")
    for k in range(da): f1load(k)
    gemv(32, (vP0, vP1),
         lambda k: A(f"s_waitcnt vmcnt({2*min(da-1, 31-k)})"),
         lambda k: f1load(k + da) if k + da < 32 else None, fsl)
    A("s_mov_b32 exec_hi, 0")
    A(f"ds_write_b128 v{vL0}, {q4(vD0)} offset:{L_FP}")
    A("s_mov_b64 exec, 1")
    A(f"v_mov_b32 v{vT}, {L_CF}")
    A(f"v_mov_b32 v{vT+1}, 1")
    A("s_waitcnt lgkmcnt(0)")
    A(f"ds_add_u32 v{vT}, v{vT+1}")
    A("s_mov_b64 exec, -1")
    srd(SA, sW2, 0 if nul_aux in (True,'ffn') else 1792 * 512 * 2)
    rows512_off()
    A(f"s_lshl_b32 s{sBASE}, s{sIDX}, 16")
    A(f"s_lshl_b32 s{sT}, s{sJ}, 8")
    A(f"s_add_u32 s{sBASE}, s{sBASE}, s{sT}")
    for k in range(da): r512load(k, SA, fsl(k))
    lds_wait(L_CF, 4, "cf")
    A(f"v_lshlrev_b32 v{vT}, 4, v{vR}")
    A(f"v_lshlrev_b32 v{vT+1}, 2, v{vG}")
    A(f"v_add_u32 v{vT}, v{vT}, v{vT+1}")
    for w in range(4):
        A(f"ds_read_b32 v{vBQ+w}, v{vT} offset:{L_FP + w*512}")
        A(f"ds_read_b32 v{vBQ+4+w}, v{vT} offset:{L_FP + w*512 + 256}")
    A("s_waitcnt lgkmcnt(0)")
    for b0 in (vBQ, vBQ + 4):
        A(f"v_add_f32 v{b0}, v{b0}, v{b0+1}")
        A(f"v_add_f32 v{b0+2}, v{b0+2}, v{b0+3}")
        A(f"v_add_f32 v{b0}, v{b0}, v{b0+2}")
        rne(b0, vT + 1)
    silu(vBQ, vT + 1)
    rne(vBQ, vT + 1)
    A(f"v_mul_f32 v{vBQ}, v{vBQ}, v{vBQ+4}")
    A(f"v_cvt_pk_bf16_f32 v{vBQ+8}, v{vBQ}, v{vBQ}")
    A("s_nop 1")
    gemv(16, (vBQ + 8,),
         lambda k: A(f"s_waitcnt vmcnt({min(da-1, 15-k)})"),
         lambda k: r512load(k + da, SA, fsl(k + da)) if k + da < 16 else None, fsl)
    for i in range(4):
        A(f"v_min_u32 v{vD0+i}, -2, v{vD0+i}")
    A(f"s_lshl_b32 s{sT}, s{sB}, 5")
    A(f"s_add_u32 s{sT}, s{sT}, s{sIDX}")
    A(f"s_lshl_b32 s{sT}, s{sT}, 11")
    A(f"s_add_u32 s{sT}, s{sT}, {hex(W_Z)}")
    A("s_mov_b32 exec_hi, 0")
    A(f"buffer_store_dwordx4 {q4(vD0)}, v{vL0}, {S4(SC)}, s{sT} offen sc1")
    A("s_mov_b64 exec, -1")
    A.lab("L_noffn")
    stamp(4)
    if not wofirst: wo_block()
    vPO = SL + 128
    vGt = vPO + 8
    vXr = vPO + 12
    NV2 = max(NV, vPO + 32)
    A(f"v_lshrrev_b32 v{vT}, 3, v{vLANE}")
    A(f"v_lshlrev_b32 v{vT}, 11, v{vT}")
    A(f"v_and_b32 v{vT+1}, 7, v{vLANE}")
    A(f"v_lshlrev_b32 v{vT+2}, 4, v{vT+1}")
    A(f"v_add_u32 v{vPO}, v{vT}, v{vT+2}")
    for n in range(1, 8):
        A(f"v_add_u32 v{vPO+n}, {hex(n*16384)}, v{vPO}")
    A(f"v_lshlrev_b32 v{vL1}, 3, v{vT+1}")
    A(f"s_cmp_eq_u32 s{sJ}, 3")
    A("s_cbranch_scc0 L_bar2")
    srd(SD_, sDBG, 256)
    A(f"v_mov_b32 v{vT}, 0")
    A(f"s_mov_b32 s{sSPIN}, 0")
    A.lab("L_c0")
    A(f"buffer_load_dword v{vT+1}, v{vT}, {S4(SD_)}, 0 offen sc1")
    A("s_waitcnt vmcnt(0)")
    A(f"v_readfirstlane_b32 s{sT}, v{vT+1}")
    A(f"s_add_u32 s{sSPIN}, s{sSPIN}, 1")
    A(f"s_cmp_ge_u32 s{sT}, 256")
    A("s_cbranch_scc1 L_c0_ok")
    A("s_sleep 8")
    A(f"s_cmp_lt_u32 s{sSPIN}, {SPINMAX}")
    A("s_cbranch_scc1 L_c0")
    A.lab("L_c0_ok")

    def poll(nload, regs, voffs, soff, tag, sleep):
        lab = A.uid("pl")
        A(f"s_mov_b32 s{sSPIN}, 0")
        A.lab(lab)
        for n in range(nload):
            A(f"buffer_load_dwordx4 {q4(regs+4*n)}, v{voffs[n]}, {S4(SC)}, s{soff} offen sc1")
        A(f"s_add_u32 s{sSPIN}, s{sSPIN}, 1")
        for n in range(nload):
            A(f"s_waitcnt vmcnt({nload-1-n})")
            r = regs + 4 * n
            if n == 0:
                A(f"v_max3_u32 v{vT}, v{r}, v{r+1}, v{r+2}")
                A(f"v_max_u32 v{vT}, v{vT}, v{r+3}")
            else:
                A(f"v_max3_u32 v{vT}, v{vT}, v{r}, v{r+1}")
                A(f"v_max3_u32 v{vT}, v{vT}, v{r+2}, v{r+3}")
        A(f"v_cmp_eq_u32 vcc, -1, v{vT}")
        A("s_nop 1")
        A("s_cmp_eq_u64 vcc, 0")
        A(f"s_cbranch_scc1 {lab}_ok")
        if sleep: A(f"s_sleep {sleep}")
        A(f"s_cmp_lt_u32 s{sSPIN}, {SPINMAX}")
        A(f"s_cbranch_scc1 {lab}")
        A.lab(lab + "_ok")

    def reduce_rows(regs, nload):
        n = nload
        while n > 1:
            h = n // 2
            for a in range(h):
                for i in range(4):
                    A(f"v_add_f32 v{regs+4*a+i}, v{regs+4*a+i}, v{regs+4*(a+h)+i}")
            n = h
        A("s_nop 1")
        for i in range(4):
            A(f"v_add_f32_dpp v{regs+i}, v{regs+i}, v{regs+i} row_ror:8 row_mask:0xf bank_mask:0xf")
        for sw in ("v_permlane16_swap_b32", "v_permlane32_swap_b32"):
            for i in range(4):
                A(f"v_mov_b32 v{regs+4+i}, v{regs+i}")
            A("s_nop 1")
            for i in range(4):
                A(f"{sw} v{regs+i}, v{regs+4+i}")
            A("s_nop 1")
            for i in range(4):
                A(f"v_add_f32 v{regs+i}, v{regs+i}, v{regs+4+i}")

    A(f"s_cmp_ge_u32 s{sIDX}, 48")
    A("s_cbranch_scc0 L_nocons1")
    srd(SA, sX, 4096)
    A(f"s_sub_u32 s{sT2}, s{sIDX}, 48")
    A(f"s_lshl_b32 s{sT3}, s{sT2}, 6")
    A(f"s_lshl_b32 s{sT}, s{sB}, 10")
    A(f"s_add_u32 s{sT3}, s{sT3}, s{sT}")
    A(f"buffer_load_dwordx2 v[{vXr}:{vXr+1}], v{vL1}, {S4(SA)}, s{sT3} offen")
    A(f"v_cmp_gt_u32 vcc, {(NFFN-24)*8}, v{vLANE}")
    A(f"v_mov_b32 v{vT+3}, 0x40000000")
    A("s_nop 0")
    A(f"v_cndmask_b32 v{vL2}, v{vT+3}, v{vPO+3}, vcc")
    A(f"s_lshl_b32 s{sCUR}, s{sB}, 16")
    A(f"s_lshl_b32 s{sT}, s{sT2}, 7")
    A(f"s_add_u32 s{sCUR}, s{sCUR}, s{sT}")
    A(f"s_add_u32 s{sCUR}, s{sCUR}, {hex(W_Z)}")
    poll(4, vBQ, [vPO, vPO + 1, vPO + 2, vL2], sCUR, "z", 8)
    reduce_rows(vBQ, 4)
    for i in range(4):
        rne(vBQ + i, vT + 1)
        silu(vBQ + i, vT + 1)
        rne(vBQ + i, vT + 1)
        A(f"v_mov_b32 v{vGt+i}, v{vBQ+i}")
    A(f"v_and_b32 v{vXr+3}, 0xffff0000, v{vXr+1}")
    A(f"v_lshlrev_b32 v{vXr+2}, 16, v{vXr+1}")
    A(f"v_and_b32 v{vXr+1}, 0xffff0000, v{vXr}")
    A(f"v_lshlrev_b32 v{vXr}, 16, v{vXr}")
    A(f"s_lshl_b32 s{sCUR}, s{sB}, 17")
    A(f"s_lshl_b32 s{sT}, s{sT2}, 7")
    A(f"s_add_u32 s{sCUR}, s{sCUR}, s{sT}")
    A.lab("L_nocons1")
    stamp(6)
    lds_wait(L_CM, 4, "cm")
    stamp(12)
    A(f"v_mov_b32 v{vT}, {L_ML}")
    A(f"ds_read_b128 {q4(vBQ)}, v{vT}")
    A(f"ds_read_b128 {q4(vBQ+4)}, v{vT} offset:16")
    A("s_waitcnt lgkmcnt(0)")
    A(f"v_max_f32 v{vBQ+8}, v{vBQ}, v{vBQ+2}")
    A(f"v_max3_f32 v{vBQ+8}, v{vBQ+8}, v{vBQ+4}, v{vBQ+6}")
    A(f"v_mov_b32 v{vBQ+9}, 0")
    A(f"s_mov_b32 s{sT2}, {hex(LOG2E)}")
    for w in range(4):
        A(f"v_sub_f32 v{vT}, v{vBQ+2*w}, v{vBQ+8}")
        A(f"v_mul_f32 v{vT}, s{sT2}, v{vT}")
        A(f"v_exp_f32 v{vT}, v{vT}")
        A("s_nop 0")
        A(f"v_fmac_f32 v{vBQ+9}, v{vT}, v{vBQ+2*w+1}")
    A(f"v_min_u32 v{vBQ+10}, -2, v{vBQ+8}")
    A(f"v_min_u32 v{vBQ+11}, -2, v{vBQ+9}")
    A(f"v_mov_b32 v{vT+2}, 0")
    A(f"s_lshl_b32 s{sT}, s2, 6")
    A(f"s_add_u32 s{sT}, s{sT}, {hex(W_ML)}")
    A("s_mov_b64 exec, 1")
    A(f"buffer_store_dwordx2 v[{vBQ+10}:{vBQ+11}], v{vT+2}, {S4(SC)}, s{sT} offen sc1")
    A("s_mov_b64 exec, -1")
    A(f"s_xor_b32 s{sNXT}, s{sT}, {8<<6}")
    A(f"s_mov_b32 s{sSPIN}, 0")
    A.lab("L_ml")
    A(f"buffer_load_dwordx2 v[{vBQ+12}:{vBQ+13}], v{vT+2}, {S4(SC)}, s{sNXT} offen sc1")
    A(f"s_add_u32 s{sSPIN}, s{sSPIN}, 1")
    A("s_waitcnt vmcnt(0)")
    A(f"v_max_u32 v{vT}, v{vBQ+12}, v{vBQ+13}")
    A("s_nop 0")
    A(f"v_readfirstlane_b32 s{sT}, v{vT}")
    A(f"s_cmp_lg_u32 s{sT}, -1")
    A("s_cbranch_scc1 L_ml_ok")
    A("s_sleep 8")
    A(f"s_cmp_lt_u32 s{sSPIN}, {SPINMAX}")
    A("s_cbranch_scc1 L_ml")
    A.lab("L_ml_ok")
    A(f"v_max_f32 v{vBQ+14}, v{vBQ+8}, v{vBQ+12}")
    A(f"v_sub_f32 v{vT}, v{vBQ+8}, v{vBQ+14}")
    A(f"v_sub_f32 v{vT+1}, v{vBQ+12}, v{vBQ+14}")
    A(f"v_mul_f32 v{vT}, s{sT2}, v{vT}")
    A(f"v_mul_f32 v{vT+1}, s{sT2}, v{vT+1}")
    A(f"v_exp_f32 v{vT}, v{vT}")
    A(f"v_exp_f32 v{vT+1}, v{vT+1}")
    A("s_nop 0")
    A(f"v_mul_f32 v{vT}, v{vT}, v{vBQ+9}")
    A(f"v_fmac_f32 v{vT}, v{vT+1}, v{vBQ+13}")
    A(f"v_rcp_f32 v{vT+1}, v{vT}")
    for w in range(4):
        A(f"v_sub_f32 v{vT+2+w}, v{vBQ+2*w}, v{vBQ+14}")
        A(f"v_mul_f32 v{vT+2+w}, s{sT2}, v{vT+2+w}")
        A(f"v_exp_f32 v{vT+2+w}, v{vT+2+w}")
        A("s_nop 0")
        A(f"v_mul_f32 v{vT+2+w}, v{vT+2+w}, v{vT+1}")
    A(f"v_mov_b32 v{vT}, {L_FW}")
    A("s_mov_b64 exec, 1")
    A(f"ds_write_b128 v{vT}, v[{vT+2}:{vT+5}]")
    A("s_mov_b64 exec, -1")
    A("s_waitcnt lgkmcnt(0)")
    A.lab("L_bar2")
    A(f"v_lshlrev_b32 v{vT}, 4, v{vR}")
    A(f"v_lshlrev_b32 v{vT+1}, 2, v{vG}")
    A(f"v_add_u32 v{vT}, v{vT}, v{vT+1}")
    A(f"v_mov_b32 v{vT+1}, {L_FW}")
    A(f"s_lshl_b32 s{sNXT}, s2, 11")
    stamp(7)
    A("s_barrier")
    stamp(13)
    A(f"ds_read_b128 {q4(vBQ+8)}, v{vT+1}")
    for w in range(4):
        A(f"ds_read_b32 v{vBQ+w}, v{vT} offset:{L_OP + w*512}")
        A(f"ds_read_b32 v{vBQ+4+w}, v{vT} offset:{L_OP + w*512 + 256}")
    A("s_waitcnt lgkmcnt(0)")
    for u, p in ((0, vP0), (1, vP1)):
        A(f"v_mul_f32 v{p}, v{vBQ+4*u}, v{vBQ+8}")
    for w in range(1, 4):
        for u, p in ((0, vP0), (1, vP1)):
            A(f"v_fmac_f32 v{p}, v{vBQ+4*u+w}, v{vBQ+8+w}")
    A(f"v_cvt_pk_bf16_f32 v{vP0}, v{vP0}, v{vP0}")
    A(f"v_cvt_pk_bf16_f32 v{vP1}, v{vP1}, v{vP1}")
    A("s_nop 1")
    gemv(32, (vP0, vP1), lambda k: None)
    for i in range(4):
        A(f"v_min_u32 v{vD0+i}, -2, v{vD0+i}")
    A("s_mov_b32 exec_hi, 0")
    A(f"buffer_store_dwordx4 {q4(vD0)}, v{vL0}, {S4(SC)}, s{sNXT} offen sc1")
    A("s_mov_b64 exec, -1")
    stamp(8)
    A(f"s_cmp_eq_u32 s{sJ}, 3")
    A("s_cbranch_scc0 L_auxend")
    A(f"s_cmp_ge_u32 s{sIDX}, 48")
    A("s_cbranch_scc0 L_auxend")
    srd(SA, sOUT, 4096)
    poll(8, SL, [vPO + n for n in range(8)], sCUR, "y", 1)
    reduce_rows(SL, 8)
    for i in range(4):
        rne(SL + i, vT + i)
    for i in range(4):
        A(f"v_mul_f32 v{SL+i}, v{SL+i}, v{vGt+i}")
    for i in range(4):
        rne(SL + i, vT + i)
    for i in range(4):
        A(f"v_add_f32 v{SL+i}, v{SL+i}, v{vXr+i}")
    A(f"v_cvt_pk_bf16_f32 v{SL+4}, v{SL}, v{SL+1}")
    A(f"v_cvt_pk_bf16_f32 v{SL+5}, v{SL+2}, v{SL+3}")
    A("s_mov_b64 exec, 0xff")
    A(f"buffer_store_dwordx2 v[{SL+4}:{SL+5}], v{vL1}, {S4(SA)}, s{sT3} offen")
    A("s_mov_b64 exec, -1")
    stamp(9)
    if diag_end is not None:
        A("s_add_u32 s78, s78, 15000")
        A.lab("L_dg")
        A("s_memrealtime s[70:71]")
        A("s_waitcnt lgkmcnt(0)")
        A("s_sub_u32 s70, s70, s78")
        A("s_cmp_lt_i32 s70, 0")
        A("s_cbranch_scc1 L_dg")
    A.lab("L_auxend")
    stamp_flush()
    A.lab("L_end")
    A("s_endpgm")

    ref = open("recurrent_scan__mha_block_cached__glu_gated_swiglu__decode.s.ref").read()
    head = ref.split("; @launch")[0]
    nv = (NV2 + 7) // 8 * 8
    out = head
    out += f"; @launch grid=(256,1,1) block=(512,1,1) lds={LDS + 256}\n"
    out += '.amdgcn_target "amdgcn-amd-amdhsa--gfx950"\n.text\n'
    out += f".globl {NAME}\n.p2align 8\n.type {NAME},@function\n{NAME}:\n"
    out += "\n".join(A.L) + "\n"
    out += '.section .rodata,"a"\n.p2align 6\n'
    out += f".amdhsa_kernel {NAME}\n"
    out += f"  .amdhsa_next_free_vgpr {nv}\n  .amdhsa_next_free_sgpr 80\n  .amdhsa_accum_offset {nv}\n"
    out += "  .amdhsa_group_segment_fixed_size 0\n  .amdhsa_kernarg_size 96\n  .amdhsa_user_sgpr_count 2\n"
    out += "  .amdhsa_user_sgpr_kernarg_segment_ptr 1\n  .amdhsa_system_sgpr_workgroup_id_x 1\n.end_amdhsa_kernel\n"
    return out

if __name__ == "__main__":
    fn = sys.argv[1]
    kw = eval("dict(%s)" % (sys.argv[2] if len(sys.argv) > 2 else ""))
    open(fn, "w").write(gen(**kw))
```

```python
import sys

NAME = "recurrent_scan__mha_block_cached__glu_gated_swiglu__decode_kernel"

class G:
    def __init__(s):
        s.L = []
        s.n = 0
    def __call__(s, t):
        s.L.append("    " + t)
    def lab(s, t):
        s.L.append(t + ":")
    def c(s, t):
        s.L.append("    ; " + t)
    def uid(s, p):
        s.n += 1
        return f"L_{p}{s.n}"

def gen(d=5, dpro=8, da=2, sb=15, stamps=False, R=48, LAG=8, NA=8, VLATE=4,
        polq="", polf="", polp="", pola="nt", bare=0, qprio=3, fc=None, dlast=None):
    dlast = dlast or d
    A = G()
    levels = [d] if fc is None else fc["levels"]
    assert max(levels) <= LAG
    sX, sK, sV, sWQ, sWO, sW1, sW3, sW2, sOUT, sDBG, sWS = 4, 6, 8, 10, 12, 16, 18, 20, 22, 24, 26
    sWAVE, sB, sH, sSP, sIDX, sJ, sMU = 28, 29, 30, 31, 32, 33, 34
    SA, SN, SC, SD_, SE = 36, 40, 44, 48, 52
    sCUR, sNXT, sT, sIT, sT2, sT3 = 56, 57, 58, 59, 60, 61
    sM0, sM1 = 62, 64
    sBASE, sSPIN, sLV, sPO = 66, 67, 68, 69
    sST = 70
    vLANE, vOA, vON, vOV, vG, vR, vT7 = 1, 2, 3, 4, 5, 6, 7
    vMK = 8
    vBQ = 12
    vD0, vD1 = 28, 32
    vS, vM = 36, 37
    vT = 38
    vA0, vA1 = 48, 52
    vP0, vP1 = 56, 57
    vL0, vL1, vL2 = 58, 59, 60
    vPG, vST, vPB = 61, 62, 63
    SL = 64
    NV = SL + 4 * R
    assert R >= 48 and NV <= 256
    slot = lambda i: f"v[{SL+4*i}:{SL+4*i+3}]"
    q4 = lambda r: f"v[{r}:{r+3}]"
    p2 = lambda r: f"v[{r}:{r+1}]"
    S4 = lambda b: f"s[{b}:{b+3}]"
    L_Q = 0
    L_TG = 256
    L_ML = 272
    L_FW = 304
    L_CM = 320
    L_LV = 352
    L_PW = 336
    L_OP = 2048
    L_XE = 4096
    L_SC = 8192
    LDS = L_SC + 4 * 16 * 64 * 4 + 256
    W_Y, W_Z, W_ML, W_EH, W_EB, W_PG = 0, 0x80000, 0xC0000, 0xC8000, 0xC9000, 0xCA000
    W_QA, W_QB, W_FP, W_SZ = 0x100000, 0x200000, 0x300000, 0x400000
    W_ST = 0x400000
    NFFN = 28
    LOG2E = 0x3FB8AA3B
    SCALE = 0x3DB504F3
    SPINMAX = 200000

    def srd(base, ptr, nbytes):
        A(f"s_mov_b32 s{base}, s{ptr}")
        A(f"s_mov_b32 s{base+1}, s{ptr+1}")
        A(f"s_mov_b32 s{base+2}, {hex(nbytes)}")
        A(f"s_mov_b32 s{base+3}, 0x00020000")
    def stamp(i):
        if not stamps: return
        A(f"s_memrealtime s[{sST}:{sST+1}]")
        A("s_waitcnt lgkmcnt(0)")
        A(f"v_writelane_b32 v{vST}, s{sST}, {i}")
    def stamp_it(base):
        if not stamps: return
        A(f"s_memrealtime s[{sST}:{sST+1}]")
        A(f"s_add_u32 m0, s{sIT}, {base}")
        A("s_waitcnt lgkmcnt(0)")
        A(f"v_writelane_b32 v{vST}, s{sST}, m0")
    def stamp_flush():
        if not stamps: return
        A(f"v_writelane_b32 v{vST}, s76, 10")
        A(f"v_writelane_b32 v{vST}, s75, 61")
        srd(SE, sWS, 0x500000)
        A(f"s_lshl_b32 s{sT}, s2, 3")
        A(f"s_add_u32 s{sT}, s{sT}, s{sWAVE}")
        A(f"s_lshl_b32 s{sT}, s{sT}, 8")
        A(f"s_add_u32 s{sT}, s{sT}, {hex(W_ST)}")
        A(f"v_lshlrev_b32 v{vT7}, 2, v{vLANE}")
        A(f"buffer_store_dword v{vST}, v{vT7}, {S4(SE)}, s{sT} offen")
    def cut(n):
        if bare == n:
            A("s_barrier"); A("s_endpgm")

    def swaps(op, reg, tmp):
        for sw in ("v_permlane16_swap_b32", "v_permlane32_swap_b32"):
            A("s_nop 0")
            A(f"v_mov_b32 v{tmp}, v{reg}")
            A("s_nop 1")
            A(f"{sw} v{reg}, v{tmp}")
            A("s_nop 0")
            A(f"{op} v{reg}, v{reg}, v{tmp}")
    def allreduce(op, reg, tmp):
        for n in (8, 4, 2, 1):
            A("s_nop 1")
            A(f"{op}_dpp v{reg}, v{reg}, v{reg} row_ror:{n} row_mask:0xf bank_mask:0xf")
        swaps(op, reg, tmp)
    def rne(reg, tmp):
        A(f"v_cvt_pk_bf16_f32 v{tmp}, v{reg}, v{reg}")
        A(f"v_and_b32 v{reg}, 0xffff0000, v{tmp}")
    def diag(dst, pp, j):
        for m in range(4):
            A(f"v_and_b32_dpp v{dst+m}, v{pp}, v{vMK+m} row_newbcast:{j} row_mask:0xf bank_mask:0xf")
    def silu(reg, t):
        A(f"v_mul_f32 v{t}, {hex(LOG2E | 0x80000000)}, v{reg}")
        A(f"v_exp_f32 v{t}, v{t}")
        A("s_nop 0")
        A(f"v_add_f32 v{t}, 1.0, v{t}")
        A(f"v_rcp_f32 v{t}, v{t}")
        A("s_nop 0")
        A(f"v_mul_f32 v{reg}, v{reg}, v{t}")
    def build_masks():
        A(f"v_and_b32 v{vT}, 1, v{vR}")
        A(f"v_lshlrev_b32 v{vT}, 4, v{vT}")
        A(f"v_mov_b32 v{vT+1}, 0xffff")
        A(f"v_lshlrev_b32 v{vT}, v{vT}, v{vT+1}")
        A(f"v_bfe_u32 v{vT+1}, v{vR}, 1, 2")
        for m in range(4):
            A(f"v_cmp_eq_u32 vcc, {m}, v{vT+1}")
            A("s_nop 1")
            A(f"v_cndmask_b32 v{vMK+m}, 0, v{vT}, vcc")
    def tag_from_epoch(reg, tmp):
        A(f"v_mov_b32 v{tmp}, 0x9e3779b9")
        A(f"v_add_co_u32 v{reg}, vcc, 0x7f4a7c15, v{reg}")
        A("s_nop 1")
        A(f"v_addc_co_u32 v{reg+1}, vcc, v{tmp}, v{reg+1}, vcc")

    if sb == 15:
        koff = lambda k: ((k & 7) << 12) | ((k >> 3) << 16); wsh = 10; GSTR = 1 << 17
    elif sb == 10:
        koff = lambda k: k << 13; wsh = 11; GSTR = 1 << 17
    elif sb == 16:
        koff = lambda k: k << 12; wsh = 10; GSTR = 1 << 17
    elif sb == 14:
        koff = lambda k: ((k & 3) << 12) | ((k >> 2) << 15); wsh = 10; GSTR = 1 << 17
    elif sb == 20:
        koff = lambda k: k << 12; wsh = 10; GSTR = 1 << 16

    A("s_cmp_ge_u32 s2, 256")
    A("s_cbranch_scc1 L_end")
    if stamps: A("s_memrealtime s[76:77]")
    A("s_load_dwordx16 s[4:19], s[0:1], 0")
    A("s_load_dwordx8 s[20:27], s[0:1], 64")
    A(f"v_lshrrev_b32 v{vT7}, 6, v0")
    A(f"v_and_b32 v{vLANE}, 63, v0")
    A(f"v_readfirstlane_b32 s{sWAVE}, v{vT7}")
    A(f"v_lshrrev_b32 v{vG}, 4, v{vLANE}")
    A(f"v_and_b32 v{vR}, 15, v{vLANE}")
    A(f"v_lshlrev_b32 v{vOV}, 4, v{vLANE}")
    if stamps:
        A(f"v_mov_b32 v{vST}, 0")
        A("s_mov_b32 s75, 0")
    A(f"s_lshr_b32 s{sB}, s2, 6")
    A(f"s_and_b32 s{sIDX}, s2, 63")
    A(f"s_bfe_u32 s{sSP}, s2, {(1<<16)|3}")
    A(f"s_bfe_u32 s{sT}, s2, {(2<<16)|4}")
    A(f"s_lshl_b32 s{sT}, s{sT}, 3")
    A(f"s_and_b32 s{sH}, s2, 7")
    A(f"s_or_b32 s{sH}, s{sH}, s{sT}")
    A(f"s_lshl_b32 s{sMU}, s{sB}, 1")
    A(f"s_or_b32 s{sMU}, s{sMU}, s{sSP}")
    A(f"s_cmp_ge_u32 s{sWAVE}, 4")
    A("s_cbranch_scc1 L_aux")

    A.c("---- stream waves ----")
    A(f"s_lshl_b32 s{sT3}, s{sH}, 16")
    A(f"s_lshl_b32 s{sT}, s{sMU}, 13")
    A(f"s_add_u32 s{sT3}, s{sT3}, s{sT}")
    A(f"s_lshl_b32 s{sT}, s{sWAVE}, 11")
    A(f"s_add_u32 s{sT3}, s{sT3}, s{sT}")
    A(f"s_lshl_b32 s{sT2}, s{sT3}, 1")
    A(f"v_lshrrev_b32 v{vT}, 2, v{vR}")
    A(f"v_lshlrev_b32 v{vT}, 8, v{vT}")
    A(f"v_and_b32 v{vT+1}, 3, v{vR}")
    A(f"v_lshlrev_b32 v{vT+1}, 4, v{vT+1}")
    A(f"v_lshlrev_b32 v{vT+2}, 6, v{vG}")
    A(f"v_add3_u32 v{vOA}, v{vT}, v{vT+1}, v{vT+2}")
    A(f"v_mov_b32 v{vON}, v{vOA}")
    A(f"s_lshl_b32 s{sBASE}, s{sB}, 26")
    A(f"s_lshl_b32 s{sT}, s{sH}, 21")
    A(f"s_or_b32 s{sBASE}, s{sBASE}, s{sT}")
    A(f"s_lshl_b32 s{sT}, s{sSP}, {sb}")
    A(f"s_or_b32 s{sBASE}, s{sBASE}, s{sT}")
    A(f"s_lshl_b32 s{sT}, s{sWAVE}, {wsh}")
    A(f"s_or_b32 s{sBASE}, s{sBASE}, s{sT}")
    A("s_waitcnt lgkmcnt(0)")
    nis = [0]
    def pace():
        if nis[0] >= dpro: A(f"s_waitcnt vmcnt({dpro-1})")
        nis[0] += 1
    if bare != 2:
        srd(SC, sWO, 0x400000)
        for k in range(4):
            pace()
            A(f"buffer_load_dwordx4 {q4(vA0)}, v{vOV}, {S4(SC)}, s{sT2} offen offset:{k*1024} {polp}")
        srd(SD_, sW2, 1792 * 512 * 2)
        for k in range(2):
            pace()
            A(f"buffer_load_dwordx4 {q4(vA0)}, v{vOV}, {S4(SD_)}, s{sT3} offen offset:{k*1024} {polp}")
    srd(SA, sK, 0x10000000)
    def sload(sl, srdb, voff, sbase, off):
        A(f"s_add_u32 s{sT}, s{sbase}, {hex(off)}")
        A(f"buffer_load_dwordx4 {slot(sl)}, v{voff}, {S4(srdb)}, s{sT} offen nt")
    gk = lambda i: (i >> 4) * GSTR + koff(i & 15)
    setup_done = False
    for i in range(R):
        if nis[0] >= dpro and not setup_done:
            setup_done = True
            stamp(0)
            srd(SN, sK, 0x10000000)
            build_masks()
            A(f"v_lshlrev_b32 v{vL0}, 2, v{vLANE}")
            A(f"s_lshl_b32 s{sT2}, s{sWAVE}, 12")
            A(f"s_add_u32 s{sT2}, s{sT2}, {L_SC}")
            A(f"v_add_u32 v{vL0}, s{sT2}, v{vL0}")
            A(f"v_mov_b32 v{vL1}, v{vL0}")
            A(f"v_lshrrev_b32 v{vT}, 2, v{vR}")
            A(f"v_lshlrev_b32 v{vT}, 4, v{vT}")
            A(f"v_lshlrev_b32 v{vL2}, 6, v{vG}")
            A(f"v_add_u32 v{vL2}, v{vL2}, v{vT}")
            A(f"v_mov_b32 v{vM}, 0xff800000")
        pace()
        sload(i, SA, vOA, sBASE, gk(i))
        if i in (15, 31): stamp(7 + (i >> 4))
    stamp(1)
    A("s_barrier")
    stamp(2)
    A(f"ds_read_b128 {q4(vT+2)}, v{vL2} offset:{L_Q}")
    A(f"v_and_b32 v{vT}, 3, v{vR}")
    A("s_waitcnt lgkmcnt(0)")
    for t in range(4):
        A(f"v_cmp_eq_u32 vcc, {t}, v{vT}")
        A("s_nop 1")
        for m in range(4):
            A(f"v_cndmask_b32 v{vBQ+4*t+m}, 0, v{vT+2+m}, vcc")
    A("s_nop 1")

    def dpp_gather(u, i):
        D = vD0 if (u & 1) == 0 else vD1
        n = (4 * (u - i)) % 16
        ctrl = "quad_perm:[0,1,2,3]" if n == 0 else f"row_ror:{n}"
        if i == 0:
            A(f"v_mov_b32_dpp v{vS}, v{D} {ctrl} row_mask:0xf bank_mask:{hex(1<<u)}")
        else:
            A(f"v_add_f32_dpp v{vS}, v{D+i}, v{vS} {ctrl} row_mask:0xf bank_mask:{hex(1<<u)}")
    def kgroup(slot0, waitf, issuef):
        for k in range(16):
            u, t = k >> 2, k & 3
            D = vD0 if (u & 1) == 0 else vD1
            waitf(k)
            A(f"v_mfma_f32_16x16x32_bf16 {q4(D)}, {slot(slot0+k)}, {q4(vBQ+4*t)}, {'0' if t==0 else q4(D)}")
            issuef(k)
            if u > 0:
                A("s_nop 6" if t == 0 else "s_nop 0")
                dpp_gather(u - 1, t)
        A("s_nop 7")
        for i in range(4):
            dpp_gather(3, i)
            A("s_nop 1")
        rne(vS, vT)
        A(f"v_mul_f32 v{vT+1}, {hex(SCALE)}, v{vS}")
        rne(vT + 1, vT)
        A(f"v_max_f32 v{vM}, v{vM}, v{vT+1}")
        A(f"ds_write_b32 v{vL1}, v{vT+1}")
        A(f"v_add_u32 v{vL1}, 256, v{vL1}")

    issued = [0]
    for G0 in range(R // 16):
        def waitf(k, G0=G0):
            i = G0 * 16 + k
            A(f"s_waitcnt vmcnt({min(63, R-1-i + issued[0])})")
        def issuef(k, G0=G0):
            i = G0 * 16 + k
            if i < d:
                sload(i, SA, vOA, sBASE, gk(R + i)); issued[0] += 1
        kgroup(G0 * 16, waitf, issuef)
    for i in range(d, LAG):
        A(f"s_waitcnt vmcnt({d-1})")
        sload(i, SA, vOA, sBASE, gk(R + i))
    stamp(3)
    A(f"s_add_u32 s{sCUR}, s{sBASE}, {hex((R//16)*GSTR)}")
    A(f"s_mov_b32 s{sIT}, {R//16}")
    if fc:
        U = fc.get("U", 8)
        A(f"s_lshl_b32 s{sT}, s{sWAVE}, 2")
        A(f"s_add_u32 s{sT}, s{sT}, {L_PW}")
        A(f"v_mov_b32 v{vPB}, s{sT}")
        A(f"v_mov_b32 v{vPG}, 0")
        A(f"v_mov_b32 v{vT+8}, {fc.get('nom', 1)}")
    def steady_issue(k):
        kk = k + LAG
        if kk < 16:
            sload(kk, SA, vOA, sCUR, koff(kk))
        else:
            sload(kk - 16, SN, vON, sNXT, koff(kk - 16))
        if fc:
            if k % (16 // U) == 0:
                A(f"v_add_u32 v{vPG}, 1, v{vPG}")
                A(f"ds_write_b32 v{vPB}, v{vPG}")
            if k == 14:
                A(f"ds_read_b32 v{vT+8}, v{vPB} offset:{L_LV-L_PW}")
    def dispatch(tag, body):
        if not fc:
            body(d); return
        A(f"v_readfirstlane_b32 s{sLV}, v{vT+8}")
        if stamps: A(f"s_add_u32 s75, s75, s{sLV}")
        for li in range(1, len(levels)):
            A(f"s_cmp_eq_u32 s{sLV}, {li}")
            A(f"s_cbranch_scc1 L_{tag}_b{li}")
        for li, dd in enumerate(levels):
            A.lab(f"L_{tag}_b{li}")
            body(dd)
            if li + 1 < len(levels): A(f"s_branch L_{tag}_e")
        A.lab(f"L_{tag}_e")
    A.lab("L_kloop")
    A(f"s_add_u32 s{sNXT}, s{sCUR}, {hex(GSTR)}")
    A(f"s_cmp_eq_u32 s{sIT}, 15")
    A("s_cbranch_scc0 L_knl")
    A(f"s_mov_b32 s{sNXT}, s{sBASE}")
    A(f"s_mov_b32 s{SN}, s{sV}")
    A(f"s_mov_b32 s{SN+1}, s{sV+1}")
    A(f"v_mov_b32 v{vON}, v{vOV}")
    A.lab("L_knl")
    if fc: A("s_waitcnt lgkmcnt(0)")
    dispatch("k", lambda dd: kgroup(0, lambda k: A(f"s_waitcnt vmcnt({dd-1})"), steady_issue))
    stamp_it(16)
    A(f"s_mov_b32 s{sCUR}, s{sNXT}")
    A(f"s_add_u32 s{sIT}, s{sIT}, 1")
    A(f"s_cmp_lt_u32 s{sIT}, 16")
    A("s_cbranch_scc1 L_kloop")
    stamp(4)
    A(f"s_mov_b32 s{SA}, s{sV}")
    A(f"s_mov_b32 s{SA+1}, s{sV+1}")
    A(f"v_mov_b32 v{vOA}, v{vOV}")
    X = SL + 64
    A("s_waitcnt lgkmcnt(0)")
    for i in range(8):
        A(f"ds_read2st64_b32 v[{X+2*i}:{X+2*i+1}], v{vL0} offset0:{2*i} offset1:{2*i+1}")
    allreduce("v_max_f32", vM, vT)
    A(f"s_mov_b32 s{sT2}, {hex(LOG2E)}")
    A("s_waitcnt lgkmcnt(0)")
    for i in range(16):
        A(f"v_sub_f32 v{X+i}, v{X+i}, v{vM}")
    for i in range(16):
        A(f"v_mul_f32 v{X+i}, s{sT2}, v{X+i}")
    for i in range(16):
        A(f"v_exp_f32 v{X+i}, v{X+i}")
    A("s_nop 0")
    for i in range(16):
        A(f"v_cvt_pk_bf16_f32 v{X+16+i}, v{X+i}, v{X+i}")
    for i in range(8):
        A(f"ds_write2st64_b32 v{vL0}, v{X+16+2*i}, v{X+16+2*i+1} offset0:{2*i} offset1:{2*i+1}")
    A(f"v_mov_b32 v{vP1}, v{X+16}")
    for st in (8, 4, 2, 1):
        for i in range(st):
            A(f"v_add_f32 v{X+i}, v{X+i}, v{X+i+st}")
    allreduce("v_add_f32", X, vT)
    A(f"v_mov_b32 v{vT}, v{vM}")
    A(f"v_mov_b32 v{vT+1}, v{X}")
    A(f"s_lshl_b32 s{sT2}, s{sWAVE}, 3")
    A(f"s_add_u32 s{sT2}, s{sT2}, {L_ML}")
    A(f"v_mov_b32 v{vT+2}, s{sT2}")
    A(f"v_mov_b32 v{vT+3}, {L_CM}")
    A(f"v_mov_b32 v{vT+4}, 1")
    A("s_mov_b64 exec, 1")
    A(f"ds_write_b64 v{vT+2}, v[{vT}:{vT+1}]")
    A("s_waitcnt lgkmcnt(0)")
    A(f"ds_add_u32 v{vT+3}, v{vT+4}")
    A("s_mov_b64 exec, -1")
    A(f"v_mov_b32 v{vT+7}, 16")
    for i in range(4):
        A(f"v_mov_b32 v{vD0+i}, 0")
    A(f"v_add_u32 v{vL1}, 256, v{vL0}")
    A(f"v_lshlrev_b32 v{vT+5}, 5, v{vR}")
    A(f"v_lshlrev_b32 v{vT+6}, 4, v{vG}")
    A(f"s_lshl_b32 s{sT2}, s{sWAVE}, 9")
    A(f"v_add3_u32 v{vL2}, v{vT+5}, v{vT+6}, s{sT2}")
    A(f"s_mov_b32 s{sIT}, 0")
    stamp(5)
    def vbody(waitf, issuef):
        A(f"v_mov_b32 v{vP0}, v{vP1}")
        A(f"ds_read_b32 v{vP1}, v{vL1}")
        A(f"v_add_u32 v{vL1}, 256, v{vL1}")
        diag(vA0, vP0, 0)
        for k in range(16):
            Acur = vA0 if (k & 1) == 0 else vA1
            Anxt = vA1 if (k & 1) == 0 else vA0
            if k < 15: diag(Anxt, vP0, k + 1)
            waitf(k)
            A(f"v_mfma_f32_16x16x32_bf16 {q4(vD0)}, {q4(Acur)}, {slot(k)}, {q4(vD0)}")
            issuef(k)
    A.lab("L_vloop")
    A(f"s_add_u32 s{sNXT}, s{sCUR}, {hex(GSTR)}")
    A(f"s_cmp_eq_u32 s{sIT}, {VLATE}")
    A("s_cbranch_scc0 L_vnl")
    A("s_mov_b64 exec, 1")
    A(f"ds_add_u32 v{vT+3}, v{vT+7}")
    A("s_mov_b64 exec, -1")
    A.lab("L_vnl")
    A("s_waitcnt lgkmcnt(0)")
    dispatch("v", lambda dd: vbody(lambda k: A(f"s_waitcnt vmcnt({dd-1})"), steady_issue))
    stamp_it(32)
    A(f"s_mov_b32 s{sCUR}, s{sNXT}")
    A(f"s_add_u32 s{sIT}, s{sIT}, 1")
    A(f"s_cmp_lt_u32 s{sIT}, 15")
    A("s_cbranch_scc1 L_vloop")
    def lwait(k):
        if k + LAG < 16: A(f"s_waitcnt vmcnt({dlast-1})")
        else: A(f"s_waitcnt vmcnt({15-k})")
    A("s_waitcnt lgkmcnt(0)")
    vbody(lwait, lambda k: sload(k + LAG, SA, vOA, sCUR, koff(k + LAG)) if k + LAG < 16 else None)
    A("s_mov_b32 exec_hi, 0")
    A("s_nop 6")
    A(f"ds_write_b128 v{vL2}, {q4(vD0)} offset:{L_OP}")
    A("s_waitcnt lgkmcnt(0)")
    A("s_barrier")
    if stamps:
        A("s_mov_b64 exec, -1")
        stamp_it(32)
        stamp(6)
        stamp_flush()
    A("s_endpgm")

    XR = SL + 64
    XF = SL + 80
    XE = vBQ
    XD = SL + 128
    vTG = vBQ + 8
    A.lab("L_aux")
    if bare == 2:
        A("s_barrier"); A("s_barrier"); A("s_endpgm")
    A(f"s_sub_u32 s{sJ}, s{sWAVE}, 4")
    A(f"s_cmp_eq_u32 s{sJ}, 0")
    A("s_cbranch_scc1 L_qw")
    A(f"s_cmp_eq_u32 s{sJ}, 1")
    A("s_cbranch_scc1 L_fw")
    A(f"v_mov_b32 v{vT}, {L_CM}")
    A(f"v_mov_b32 v{vT+2}, 0")
    A(f"ds_write_b32 v{vT}, v{vT+2}")
    if fc:
        for i in range(3, 6): A(f"v_mov_b32 v{vT+i}, 0")
        for i in range(6, 10): A(f"v_mov_b32 v{vT+i}, {fc.get('nom', 1)}")
        A(f"ds_write_b128 v{vT}, {q4(vT+2)} offset:{L_PW-L_CM}")
        A(f"ds_write_b128 v{vT}, {q4(vT+6)} offset:{L_LV-L_CM}")
    A("s_waitcnt lgkmcnt(0)")
    srd(SC, sWS, W_SZ)
    A("s_branch L_bar1")
    A.lab("L_fw")
    A(f"v_mul_u32_u24 v{vT}, {8*3584}, v{vG}")
    A(f"v_and_b32 v{vT+1}, 7, v{vR}")
    A(f"v_lshl_add_u32 v{vOA}, v{vT+1}, 4, v{vT}")
    A(f"s_mul_i32 s{sBASE}, s{sMU}, {64*3584}")
    A(f"s_lshl_b32 s{sT}, s{sH}, 7")
    A(f"s_add_u32 s{sBASE}, s{sBASE}, s{sT}")
    A(f"s_mov_b32 s{sM0}, 0x00ff00ff")
    A(f"s_mov_b32 s{sM0+1}, 0x00ff00ff")
    A("s_waitcnt lgkmcnt(0)")
    srd(SC, sWS, W_SZ)
    A(f"s_cmp_lt_u32 s{sH}, {NFFN}")
    A("s_cbranch_scc0 L_bar1")
    srd(SA, sW1, 512 * 1792 * 2)
    srd(SN, sW3, 512 * 1792 * 2)
    for half, sr in ((0, SA), (1, SN)):
        A(f"s_mov_b64 exec, s[{sM0}:{sM0+1}]" if half == 0 else f"s_not_b64 exec, s[{sM0}:{sM0+1}]")
        for k in range(16):
            A(f"s_add_u32 s{sT}, s{sBASE}, {hex(((k>>3)*32 + (k&7))*3584)}")
            A(f"buffer_load_dwordx4 {slot(k)}, v{vOA}, {S4(sr)}, s{sT} offen {polf}")
    A("s_mov_b64 exec, -1")
    A("s_branch L_bar1")
    A.lab("L_qw")
    if qprio: A(f"s_setprio {qprio}")
    A(f"v_lshrrev_b32 v{vT}, 2, v{vR}")
    A(f"v_lshlrev_b32 v{vT}, 10, v{vT}")
    A(f"v_and_b32 v{vT+1}, 3, v{vR}")
    A(f"v_lshlrev_b32 v{vT+1}, 6, v{vT+1}")
    A(f"v_lshlrev_b32 v{vT+2}, 8, v{vG}")
    A(f"v_add3_u32 v{vON}, v{vT}, v{vT+1}, v{vT+2}")
    A(f"v_lshl_add_u32 v{vL1}, v{vG}, 4, v{vT}")
    A(f"v_lshlrev_b32 v{vT}, 16, v{vG}")
    A(f"v_lshl_add_u32 v{vOA}, v{vR}, 4, v{vT}")
    A(f"v_mov_b32 v{vL2}, 0")
    A(f"s_lshl_b32 s{sT2}, s{sMU}, 7")
    A(f"s_lshl_b32 s{sBASE}, s{sMU}, 19")
    A(f"s_lshl_b32 s{sT}, s{sH}, 8")
    A(f"s_add_u32 s{sBASE}, s{sBASE}, s{sT}")
    A(f"s_lshl_b32 s{sT3}, s{sH}, 6")
    A(f"s_add_u32 s{sT3}, s{sT3}, {hex(W_EH)}")
    A("s_waitcnt lgkmcnt(0)")
    srd(SA, sX, 4096)
    for i in range(4):
        A(f"buffer_load_dwordx4 {q4(XR+4*i)}, v{vON}, {S4(SA)}, 0 offen offset:{16*i}")
    for s_ in range(2):
        A(f"buffer_load_dwordx4 {q4(XE+4*s_)}, v{vL1}, {S4(SA)}, s{sT2} offen offset:{64*s_}")
    srd(SN, sWQ, 0x400000)
    for k in range(16):
        A(f"s_add_u32 s{sT}, s{sBASE}, {hex(((k>>3)*32 + (k&7))*8192)}")
        A(f"buffer_load_dwordx4 {slot(k)}, v{vOA}, {S4(SN)}, s{sT} offen {polq}")
    srd(SC, sWS, W_SZ)
    A(f"buffer_load_dwordx2 {p2(vTG)}, v{vL2}, {S4(SC)}, s{sT3} offen sc1")
    stamp(0)
    def red16(reg, tmp):
        for qp in ("[1,0,3,2]", "[2,3,0,1]"):
            A("s_nop 1")
            A(f"v_add_f32_dpp v{reg}, v{reg}, v{reg} quad_perm:{qp} row_mask:0xf bank_mask:0xf")
        swaps("v_add_f32", reg, tmp)
    A("s_waitcnt vmcnt(19)")
    for i in range(16):
        A(f"v_lshlrev_b32 v{XF+2*i}, 16, v{XR+i}")
        A(f"v_and_b32 v{XF+2*i+1}, 0xffff0000, v{XR+i}")
    for i in range(8):
        A(f"v_pk_add_f32 {p2(XR+2*i)}, {p2(XF+4*i)}, {p2(XF+4*i+2)}")
    for st in (4, 2, 1):
        for i in range(st):
            A(f"v_pk_add_f32 {p2(XR+2*i)}, {p2(XR+2*i)}, {p2(XR+2*(i+st))}")
    A(f"v_add_f32 v{vT}, v{XR}, v{XR+1}")
    red16(vT, vT + 1)
    A(f"v_mul_f32 v{vT}, 0x3b000000, v{vT}")
    A(f"v_mov_b32 v{vT+1}, v{vT}")
    for i in range(16):
        A(f"v_pk_add_f32 {p2(XF+2*i)}, {p2(XF+2*i)}, {p2(vT)} neg_lo:[0,1] neg_hi:[0,1]")
    for c_ in range(2):
        A(f"v_pk_mul_f32 {p2(XR+2*c_)}, {p2(XF+2*c_)}, {p2(XF+2*c_)}")
    for i in range(2, 16):
        c_ = i & 1
        A(f"v_pk_fma_f32 {p2(XR+2*c_)}, {p2(XF+2*i)}, {p2(XF+2*i)}, {p2(XR+2*c_)}")
    A(f"v_pk_add_f32 {p2(XR)}, {p2(XR)}, {p2(XR+2)}")
    A(f"v_add_f32 v{vT+2}, v{XR}, v{XR+1}")
    red16(vT + 2, vT + 1)
    A(f"v_mul_f32 v{vT+2}, 0x3b000000, v{vT+2}")
    rne(vT, vT + 1)
    rne(vT + 2, vT + 1)
    A(f"v_add_f32 v{vT+2}, 0x3727c5ac, v{vT+2}")
    rne(vT + 2, vT + 1)
    A(f"v_sqrt_f32 v{vT+2}, v{vT+2}")
    A("s_nop 0")
    rne(vT + 2, vT + 1)
    A(f"v_rcp_f32 v{vT+2}, v{vT+2}")
    A("s_waitcnt vmcnt(17)")
    for i in range(8):
        A(f"v_lshlrev_b32 v{XF+2*i}, 16, v{XE+i}")
        A(f"v_and_b32 v{XF+2*i+1}, 0xffff0000, v{XE+i}")
    for i in range(16):
        A(f"v_sub_f32 v{XF+i}, v{XF+i}, v{vT}")
    for i in range(8):
        A(f"v_cvt_pk_bf16_f32 v{XE+i}, v{XF+2*i}, v{XF+2*i+1}")
    for i in range(8):
        A(f"v_lshlrev_b32 v{XF+2*i}, 16, v{XE+i}")
        A(f"v_and_b32 v{XF+2*i+1}, 0xffff0000, v{XE+i}")
    for i in range(16):
        A(f"v_mul_f32 v{XF+i}, v{XF+i}, v{vT+2}")
    for i in range(8):
        A(f"v_cvt_pk_bf16_f32 v{XE+i}, v{XF+2*i}, v{XF+2*i+1}")
    stamp(1)
    def bperm(dst, s_, jj):
        for m in range(4):
            lo = SL + 4 * (8 * s_ + 2 * m) + (jj >> 1)
            hi = SL + 4 * (8 * s_ + 2 * m + 1) + (jj >> 1)
            A(f"v_perm_b32 v{dst+m}, v{hi}, v{lo}, s{sM0 + (jj & 1)}")
    def tile_mma(w0, w1):
        A(f"s_mov_b32 s{sM0}, 0x05040100")
        A(f"s_mov_b32 s{sM0+1}, 0x07060302")
        A(w0)
        bperm(vA0, 0, 0)
        for n in range(16):
            s_, jj = n >> 3, n & 7
            cur = vA0 if (n & 1) == 0 else vA1
            nxt = vA1 if (n & 1) == 0 else vA0
            if n == 7 and w1: A(w1)
            if n + 1 < 16: bperm(nxt, (n + 1) >> 3, (n + 1) & 7)
            else: A("s_nop 1")
            A(f"v_mfma_f32_16x16x32_bf16 {q4(XD+4*jj)}, {q4(XE+4*s_)}, {q4(cur)}, {'0' if s_==0 else q4(XD+4*jj)}")
    def msg_addr(wbase):
        A(f"v_lshlrev_b32 v{vON}, 13, v{vG}")
        A(f"v_lshl_add_u32 v{vON}, v{vR}, 4, v{vON}")
        A(f"s_lshl_b32 s{sCUR}, s{sH}, 15")
        A(f"s_add_u32 s{sCUR}, s{sCUR}, {hex(wbase)}")
        A(f"s_lshl_b32 s{sT}, s{sMU}, 10")
        A(f"s_add_u32 s{sT}, s{sT}, s{sCUR}")
    def msg_pack_store(pol):
        for n in range(4):
            A(f"v_mov_b32 v{XD+8*n+1}, v{XD+8*n+4}")
            A(f"v_mov_b32 v{XD+8*n+2}, v{vTG}")
            A(f"v_mov_b32 v{XD+8*n+3}, v{vTG+1}")
            A(f"buffer_store_dwordx4 {q4(XD+8*n)}, v{vON}, {S4(SC)}, s{sT} offen offset:{256*n} {pol}")
    def msg_round(sl0):
        for n in range(8):
            A(f"buffer_load_dwordx4 {slot(sl0+n)}, v{vOV}, {S4(SC)}, s{sCUR if n<4 else sNXT} offen offset:{1024*(n&3)} sc1")
        A(f"s_add_u32 s{sSPIN}, s{sSPIN}, 1")
        A(f"v_mov_b32 v{vT}, 0")
        for n in range(8):
            A(f"s_waitcnt vmcnt({7-n})")
            A(f"v_xor_b32 v{vT+1}, v{SL+4*(sl0+n)+2}, v{vTG}")
            A(f"v_xor_b32 v{vT+2}, v{SL+4*(sl0+n)+3}, v{vTG+1}")
            A(f"v_or3_b32 v{vT}, v{vT}, v{vT+1}, v{vT+2}")
        A(f"v_cmp_ne_u32 vcc, 0, v{vT}")
        A("s_nop 1")
        A("s_cmp_eq_u64 vcc, 0")
    def msg_sum(sl0):
        for st in (4, 2, 1):
            for n in range(st):
                A(f"v_pk_add_f32 {p2(SL+4*(sl0+n))}, {p2(SL+4*(sl0+n))}, {p2(SL+4*(sl0+n+st))}")
    tile_mma("s_waitcnt vmcnt(9)", "s_waitcnt vmcnt(1)")
    A("s_waitcnt vmcnt(0)")
    tag_from_epoch(vTG, vT)
    msg_addr(W_QA)
    A(f"s_add_u32 s{sBASE}, s{sT}, {hex(W_QB-W_QA)}")
    A("s_nop 2")
    msg_pack_store("")
    def storeB():
        for n in range(4):
            A(f"buffer_store_dwordx4 {q4(XD+8*n)}, v{vON}, {S4(SC)}, s{sBASE} offen offset:{256*n} sc1")
    stamp(2)
    A(f"ds_write_b128 v{vOV}, {q4(XE)} offset:{L_XE}")
    A(f"ds_write_b128 v{vOV}, {q4(XE+4)} offset:{L_XE+1024}")
    A(f"ds_write_b64 v{vL2}, {p2(vTG)} offset:{L_TG}")
    A(f"s_lshl_b32 s{sT}, s{sB}, 13")
    A(f"s_add_u32 s{sCUR}, s{sCUR}, s{sT}")
    A(f"s_add_u32 s{sNXT}, s{sCUR}, 4096")
    A(f"s_mov_b32 s{sSPIN}, 0")
    A.lab("L_qp")
    msg_round(0)
    A("s_cbranch_scc1 L_qp_ok")
    A(f"s_cmp_eq_u32 s{sSPIN}, {NA}")
    A("s_cbranch_scc0 L_qp_c")
    storeB()
    A(f"s_add_u32 s{sCUR}, s{sCUR}, {hex(W_QB-W_QA)}")
    A(f"s_add_u32 s{sNXT}, s{sNXT}, {hex(W_QB-W_QA)}")
    A.lab("L_qp_c")
    A(f"s_cmp_lt_u32 s{sSPIN}, {SPINMAX}")
    A("s_cbranch_scc1 L_qp")
    A.lab("L_qp_ok")
    stamp(6)
    if stamps: A(f"v_writelane_b32 v{vST}, s{sSPIN}, 60")
    msg_sum(0)
    A(f"v_cvt_pk_bf16_f32 v{vT}, v{SL}, v{SL+1}")
    A(f"v_lshlrev_b32 v{vT+1}, 2, v{vG}")
    A(f"v_lshl_add_u32 v{vT+1}, v{vR}, 4, v{vT+1}")
    A(f"ds_write_b32 v{vT+1}, v{vT} offset:{L_Q}")
    storeB()
    A(f"s_cmp_eq_u32 s{sMU}, 0")
    A("s_cbranch_scc0 L_qnl")
    A("s_mov_b64 exec, 1")
    A(f"buffer_store_dwordx2 {p2(vTG)}, v{vL2}, {S4(SC)}, s{sT3} offen sc1")
    A("s_mov_b64 exec, -1")
    A.lab("L_qnl")
    A("s_waitcnt lgkmcnt(0)")
    if qprio: A("s_setprio 0")
    A.lab("L_bar1")
    A("s_barrier")
    stamp(3)
    cut(1)
    build_masks()
    A(f"v_mov_b32 v{vL2}, 0")
    A(f"v_lshlrev_b32 v{vT}, 5, v{vR}")
    A(f"v_lshl_add_u32 v{vL0}, v{vG}, 4, v{vT}")
    A(f"s_lshl_b32 s{sPO}, s{sB}, 5")
    A(f"s_add_u32 s{sPO}, s{sPO}, s{sH}")
    A(f"s_lshl_b32 s{sPO}, s{sPO}, 1")
    A(f"s_add_u32 s{sPO}, s{sPO}, s{sSP}")
    A(f"s_lshl_b32 s{sPO}, s{sPO}, 10")
    A(f"s_add_u32 s{sPO}, s{sPO}, {hex(W_Z)}")
    vTB = vBQ + 10
    vPO = SL + 128
    vGt = vPO + 8
    vXr = vPO + 12
    if fc:
        A(f"s_cmp_eq_u32 s{sJ}, 2")
        A("s_cbranch_scc0 L_nz")
        A(f"s_and_b32 s{sCUR}, s2, 7")
        A(f"s_lshl_b32 s{sCUR}, s{sCUR}, 8")
        A(f"s_add_u32 s{sCUR}, s{sCUR}, {hex(W_PG)}")
        A(f"s_lshr_b32 s{sNXT}, s2, 3")
        A(f"s_lshl_b32 s{sNXT}, s{sNXT}, 2")
        A(f"s_add_u32 s{sNXT}, s{sNXT}, s{sCUR}")
        A(f"v_mov_b32 v{vT}, 0x40000000")
        A("s_mov_b64 exec, 1")
        A(f"buffer_store_dword v{vT}, v{vL2}, {S4(SC)}, s{sNXT} offen")
        A(f"buffer_store_dword v{vT}, v{vL2}, {S4(SC)}, s{sCUR} offen offset:128")
        A("s_mov_b64 exec, -1")
        A.lab("L_nz")
    A(f"s_cmp_eq_u32 s{sJ}, 1")
    A("s_cbranch_scc1 L_f1")
    A(f"s_cmp_eq_u32 s{sJ}, 3")
    A("s_cbranch_scc0 L_wo")
    for i in range(4):
        A(f"v_mov_b32 v{vBQ+i}, -1")
    A(f"s_lshl_b32 s{sT}, s2, 11")
    A(f"buffer_store_dwordx4 {q4(vBQ)}, v{vOV}, {S4(SC)}, s{sT} offen sc1")
    A(f"buffer_store_dwordx4 {q4(vBQ)}, v{vOV}, {S4(SC)}, s{sT} offen offset:1024 sc1")
    A(f"s_lshl_b32 s{sT}, s{sB}, 7")
    A(f"s_add_u32 s{sT}, s{sT}, {hex(W_EB)}")
    A(f"buffer_load_dwordx2 {p2(vTB)}, v{vL2}, {S4(SC)}, s{sT} offen sc1")
    A("s_branch L_wo")
    A.lab("L_f1")
    A(f"s_cmp_lt_u32 s{sH}, {NFFN}")
    A("s_cbranch_scc0 L_f1x")
    A(f"ds_read_b128 {q4(XE)}, v{vOV} offset:{L_XE}")
    A(f"ds_read_b128 {q4(XE+4)}, v{vOV} offset:{L_XE+1024}")
    A(f"ds_read_b64 {p2(vTG)}, v{vL2} offset:{L_TG}")
    for i in range(4):
        A(f"v_mov_b32 v{vD0+i}, -1")
    A(f"buffer_store_dwordx4 {q4(vD0)}, v{vOV}, {S4(SC)}, s{sPO} offen sc1")
    tile_mma("s_waitcnt vmcnt(1) lgkmcnt(0)", None)
    msg_addr(W_FP)
    A("s_nop 4")
    msg_pack_store("sc1")
    A("s_waitcnt vmcnt(0)")
    A.lab("L_f1x")
    A(f"v_mov_b32 v{vT}, {L_CM}")
    A(f"v_mov_b32 v{vT+1}, 256")
    A("s_mov_b64 exec, 1")
    A(f"ds_add_u32 v{vT}, v{vT+1}")
    A("s_mov_b64 exec, -1")
    A.lab("L_wo")
    stamp(4)
    cut(3)
    srd(SN, sWO, 0x400000)
    A(f"v_lshlrev_b32 v{vT}, 10, v{vG}")
    A(f"v_lshl_add_u32 v{vOA}, v{vR}, 4, v{vT}")
    A(f"s_lshl_b32 s{sBASE}, s{sH}, 17")
    A(f"s_lshl_b32 s{sT}, s{sJ}, 8")
    A(f"s_add_u32 s{sBASE}, s{sBASE}, s{sT}")
    def wo_loads(dd):
        for k in range(32):
            if k >= dd: A(f"s_waitcnt vmcnt({dd-1})")
            A(f"s_add_u32 s{sT}, s{sBASE}, {hex(k*4096)}")
            A(f"buffer_load_dwordx4 {slot(k)}, v{vOA}, {S4(SN)}, s{sT} offen {pola}")
    if fc and fc.get("d2"):
        A(f"s_cmp_eq_u32 s{sJ}, 2")
        A("s_cbranch_scc0 L_wos")
        wo_loads(fc["d2"])
        A("s_branch L_woe")
        A.lab("L_wos")
    wo_loads(da)
    A.lab("L_woe")
    A("s_waitcnt vmcnt(0)")
    stamp(5)
    cut(4)
    A(f"v_lshrrev_b32 v{vT}, 3, v{vLANE}")
    A(f"v_lshlrev_b32 v{vT}, 11, v{vT}")
    A(f"v_and_b32 v{vT+1}, 7, v{vLANE}")
    A(f"v_lshl_add_u32 v{vPO}, v{vT+1}, 4, v{vT}")
    for n in range(1, 8):
        A(f"v_add_u32 v{vPO+n}, {hex(n*16384)}, v{vPO}")
    A(f"v_lshlrev_b32 v{vL1}, 3, v{vT+1}")

    def gemv(n, ppf, waitf, issuef=None, slotf=lambda k: k):
        diag(vA0, *ppf(0))
        for k in range(n):
            Acur = vA0 if (k & 1) == 0 else vA1
            Anxt = vA1 if (k & 1) == 0 else vA0
            if k + 1 < n: diag(Anxt, *ppf(k + 1))
            else: A("s_nop 1")
            waitf(k)
            A(f"v_mfma_f32_16x16x32_bf16 {q4(vD0)}, {q4(Acur)}, {slot(slotf(k))}, {'0' if k==0 else q4(vD0)}")
            if issuef: issuef(k)
        A("s_nop 7")
    def lds_wait(mask, val):
        lab = A.uid("lw")
        A(f"v_mov_b32 v{vT}, {L_CM}")
        A(f"s_mov_b32 s{sSPIN}, 0")
        A.lab(lab)
        A(f"ds_read_b32 v{vT+1}, v{vT}")
        A("s_waitcnt lgkmcnt(0)")
        A(f"v_readfirstlane_b32 s{sT}, v{vT+1}")
        A(f"s_add_u32 s{sSPIN}, s{sSPIN}, 1")
        A(f"s_and_b32 s{sT}, s{sT}, {hex(mask)}")
        A(f"s_cmp_eq_u32 s{sT}, {hex(val)}")
        A(f"s_cbranch_scc1 {lab}_ok")
        A("s_sleep 16")
        A(f"s_cmp_lt_u32 s{sSPIN}, {SPINMAX}")
        A(f"s_cbranch_scc1 {lab}")
        A.lab(lab + "_ok")
    def poll(nload, regs, voffs, soff, sleep):
        lab = A.uid("pl")
        A(f"s_mov_b32 s{sSPIN}, 0")
        A.lab(lab)
        for n in range(nload):
            A(f"buffer_load_dwordx4 {q4(regs+4*n)}, v{voffs[n]}, {S4(SC)}, s{soff} offen sc1")
        A(f"s_add_u32 s{sSPIN}, s{sSPIN}, 1")
        for n in range(nload):
            A(f"s_waitcnt vmcnt({nload-1-n})")
            r = regs + 4 * n
            if n == 0:
                A(f"v_max3_u32 v{vT}, v{r}, v{r+1}, v{r+2}")
                A(f"v_max_u32 v{vT}, v{vT}, v{r+3}")
            else:
                A(f"v_max3_u32 v{vT}, v{vT}, v{r}, v{r+1}")
                A(f"v_max3_u32 v{vT}, v{vT}, v{r+2}, v{r+3}")
        A(f"v_cmp_eq_u32 vcc, -1, v{vT}")
        A("s_nop 1")
        A("s_cmp_eq_u64 vcc, 0")
        A(f"s_cbranch_scc1 {lab}_ok")
        if sleep: A(f"s_sleep {sleep}")
        A(f"s_cmp_lt_u32 s{sSPIN}, {SPINMAX}")
        A(f"s_cbranch_scc1 {lab}")
        A.lab(lab + "_ok")
    def reduce_rows(regs, nload):
        n = nload
        while n > 1:
            h = n // 2
            for a in range(h):
                for i in (0, 2):
                    A(f"v_pk_add_f32 {p2(regs+4*a+i)}, {p2(regs+4*a+i)}, {p2(regs+4*(a+h)+i)}")
            n = h
        A("s_nop 1")
        for i in range(4):
            A(f"v_add_f32_dpp v{regs+i}, v{regs+i}, v{regs+i} row_ror:8 row_mask:0xf bank_mask:0xf")
        for sw in ("v_permlane16_swap_b32", "v_permlane32_swap_b32"):
            for i in range(4):
                A(f"v_mov_b32 v{regs+4+i}, v{regs+i}")
            A("s_nop 1")
            for i in range(4):
                A(f"{sw} v{regs+i}, v{regs+4+i}")
            A("s_nop 1")
            for i in range(4):
                A(f"v_add_f32 v{regs+i}, v{regs+i}, v{regs+4+i}")

    A(f"s_cmp_eq_u32 s{sJ}, 3")
    A("s_cbranch_scc1 L_w3")
    if fc:
        U = fc.get("U", 8)
        PEND = 4 * U * (16 - R // 16 + fc.get("vend", 13))
        LIM = 2 * 4 * U * 3
        sPP, sGP, sP, sE = 72, 73, 74, 78
        A(f"s_cmp_eq_u32 s{sJ}, 2")
        A("s_cbranch_scc0 L_nctl")
        A(f"s_and_b32 s{sCUR}, s2, 7")
        A(f"s_lshl_b32 s{sCUR}, s{sCUR}, 8")
        A(f"s_add_u32 s{sCUR}, s{sCUR}, {hex(W_PG)}")
        A(f"s_lshr_b32 s{sNXT}, s2, 3")
        A(f"s_lshl_b32 s{sNXT}, s{sNXT}, 2")
        A(f"s_add_u32 s{sNXT}, s{sNXT}, s{sCUR}")
        A(f"v_lshlrev_b32 v{vON}, 2, v{vLANE}")
        A(f"v_mov_b32 v{vT7}, {L_PW}")
        A(f"v_and_b32 v{vPB}, 3, v{vLANE}")
        A(f"v_lshlrev_b32 v{vPB}, 2, v{vPB}")
        A(f"s_mov_b32 s{sPP}, -1")
        A(f"s_mov_b32 s{sGP}, 0")
        A(f"s_mov_b32 s{sSPIN}, 0")
        A.lab("L_ctl")
        A(f"ds_read_b128 {q4(vBQ)}, v{vT7}")
        A("s_waitcnt lgkmcnt(0)")
        A(f"v_add3_u32 v{vBQ}, v{vBQ}, v{vBQ+1}, v{vBQ+2}")
        A(f"v_add_u32 v{vBQ}, v{vBQ}, v{vBQ+3}")
        A("s_mov_b64 exec, 1")
        A(f"buffer_store_dword v{vBQ}, v{vL2}, {S4(SC)}, s{sNXT} offen")
        A("s_mov_b64 exec, -1")
        A(f"buffer_load_dword v{vBQ+4}, v{vON}, {S4(SC)}, s{sCUR} offen {fc.get('pol','sc1')}")
        A(f"v_readfirstlane_b32 s{sP}, v{vBQ}")
        A(f"s_add_u32 s{sSPIN}, s{sSPIN}, 1")
        A(f"s_cmp_eq_u32 s{sPP}, -1")
        A(f"s_cselect_b32 s{sPP}, s{sP}, s{sPP}")
        A(f"s_add_u32 s{sT}, s{sP}, s{sPP}")
        A(f"s_mov_b32 s{sPP}, s{sP}")
        A("s_waitcnt vmcnt(0)")
        A(f"v_lshlrev_b32 v{vBQ+5}, 1, v{vBQ+4}")
        A(f"v_subrev_u32 v{vBQ+5}, s{sT}, v{vBQ+5}")
        A(f"v_add_u32 v{vBQ+6}, {LIM}, v{vBQ+5}")
        A(f"v_cmp_gt_u32 vcc, {2*LIM}, v{vBQ+6}")
        A("s_nop 1")
        A("s_mov_b32 vcc_hi, 0")
        A("s_nop 1")
        A(f"v_cndmask_b32 v{vBQ+5}, 0, v{vBQ+5}, vcc")
        A(f"v_readlane_b32 s{sE}, v{vBQ+4}, 32")
        for n in (8, 4, 2, 1):
            A("s_nop 1")
            A(f"v_add_u32_dpp v{vBQ+5}, v{vBQ+5}, v{vBQ+5} row_ror:{n} row_mask:0xf bank_mask:0xf")
        A("s_nop 0")
        A(f"v_readlane_b32 s{sM0}, v{vBQ+5}, 0")
        A(f"v_readlane_b32 s{sM0+1}, v{vBQ+5}, 16")
        A(f"s_add_u32 s{sT2}, s{sE}, {32*LIM}")
        A(f"s_cmp_lt_u32 s{sT2}, {64*LIM}")
        A(f"s_cselect_b32 s{sE}, s{sE}, 0")
        if not fc.get("glob", True): A(f"s_mov_b32 s{sE}, 0")
        if fc.get("clamp"):
            cl = int(fc["clamp"] * 64 * 4 * U / 2.2)
            A(f"s_min_i32 s{sE}, s{sE}, {cl}")
            A(f"s_max_i32 s{sE}, s{sE}, {-cl if not fc.get('oneside') else 0}")
        A(f"s_add_u32 s{sM0}, s{sM0}, s{sM0+1}")
        A(f"s_sub_u32 s{sE}, s{sM0}, s{sE}")
        A(f"ds_read_b128 {q4(vBQ+8)}, v{vT7}")
        A(f"ds_read_b32 v{vBQ+6}, v{vPB} offset:{L_PW}")
        A("s_waitcnt lgkmcnt(0)")
        A(f"v_add3_u32 v{vBQ+8}, v{vBQ+8}, v{vBQ+9}, v{vBQ+10}")
        A(f"v_lshlrev_b32 v{vBQ+6}, 2, v{vBQ+6}")
        A(f"v_add_u32 v{vBQ+8}, v{vBQ+8}, v{vBQ+11}")
        A(f"v_sub_u32 v{vBQ+6}, v{vBQ+8}, v{vBQ+6}")
        A(f"v_mul_i32_i24 v{vBQ+6}, {fc.get('wgain', 64)}, v{vBQ+6}")
        A(f"v_add_u32 v{vBQ+6}, s{sE}, v{vBQ+6}")
        A(f"v_mov_b32 v{vBQ+7}, 0")
        for th in fc["thr"]:
            A(f"v_cmp_le_i32 vcc, {int(th * 64 * 4 * U / 2.2)}, v{vBQ+6}")
            A("s_nop 1")
            A(f"v_addc_co_u32 v{vBQ+7}, vcc, 0, v{vBQ+7}, vcc")
        A(f"ds_write_b32 v{vPB}, v{vBQ+7} offset:{L_LV}")
        if fc.get("glob", True):
            A(f"s_and_b32 s{sT2}, s{sSPIN}, {fc.get('gper', 2) - 1}")
            A(f"s_lshr_b32 s{sT3}, s2, 3")
            A(f"s_or_b32 s{sT2}, s{sT2}, s{sT3}")
            A("s_cbranch_scc1 L_nrep")
            A(f"s_lshl_b32 s{sT}, s{sT}, 5")
            A(f"s_add_u32 s{sT}, s{sT}, s{sM0}")
            A(f"s_sub_u32 s{sT2}, s{sT}, s{sGP}")
            A(f"s_mov_b32 s{sT3}, s{sT2}")
            A(f"s_atomic_add s{sT3}, s[{sDBG}:{sDBG+1}], 0x0 glc")
            A(f"s_add_u32 s{sM1}, s{sT}, s{sGP}")
            A(f"s_lshr_b32 s{sM1}, s{sM1}, 1")
            A(f"s_lshr_b32 s{sT2}, s{sT2}, 1")
            A("s_waitcnt lgkmcnt(0)")
            A(f"s_add_u32 s{sT3}, s{sT3}, s{sT2}")
            A(f"s_lshr_b32 s{sT3}, s{sT3}, 3")
            A(f"s_sub_u32 s{sM1}, s{sM1}, s{sT3}")
            A(f"s_cmp_le_u32 s{sSPIN}, {2*fc.get('gper', 2)}")
            A(f"s_cselect_b32 s{sM1}, 0, s{sM1}")
            A(f"s_mov_b32 s{sGP}, s{sT}")
            A(f"v_mov_b32 v{vBQ+6}, s{sM1}")
            A("s_mov_b64 exec, 1")
            A(f"buffer_store_dword v{vBQ+6}, v{vL2}, {S4(SC)}, s{sCUR} offen offset:128")
            A("s_mov_b64 exec, -1")
            A.lab("L_nrep")
        if fc.get("sleep", 0): A(f"s_sleep {fc['sleep']}")
        A(f"s_cmp_ge_u32 s{sSPIN}, {SPINMAX}")
        A("s_cbranch_scc1 L_bar2")
        A(f"s_cmp_lt_u32 s{sP}, {PEND}")
        A("s_cbranch_scc1 L_ctl")
        if stamps: A(f"v_writelane_b32 v{vST}, s{sSPIN}, 60")
        A("s_branch L_bar2")
        A.lab("L_nctl")
    A(f"s_cmp_eq_u32 s{sJ}, 1")
    A("s_cbranch_scc0 L_bar2")
    A(f"s_cmp_lt_u32 s{sH}, {NFFN}")
    A("s_cbranch_scc0 L_bar2")
    A(f"s_lshl_b32 s{sCUR}, s{sH}, 15")
    A(f"s_lshl_b32 s{sT}, s{sB}, 13")
    A(f"s_add_u32 s{sCUR}, s{sCUR}, s{sT}")
    A(f"s_add_u32 s{sCUR}, s{sCUR}, {hex(W_FP)}")
    A(f"s_add_u32 s{sNXT}, s{sCUR}, 4096")
    A(f"s_mov_b32 s{sSPIN}, 0")
    A.lab("L_fp")
    msg_round(40)
    A("s_cbranch_scc1 L_fp_ok")
    A("s_sleep 16")
    A(f"s_cmp_lt_u32 s{sSPIN}, {SPINMAX}")
    A("s_cbranch_scc1 L_fp")
    A.lab("L_fp_ok")
    msg_sum(40)
    H = SL + 160
    for i in range(2):
        rne(H + i, vT)
    A("s_nop 1")
    for i in range(2):
        A(f"v_mov_b32_dpp v{vBQ+i}, v{H+i} row_ror:8 row_mask:0xf bank_mask:0xf")
    for i in range(2):
        silu(H + i, vT)
        rne(H + i, vT)
        A(f"v_mul_f32 v{H+i}, v{H+i}, v{vBQ+i}")
        A(f"v_cvt_pk_bf16_f32 v{vP0+i}, v{H+i}, v{H+i}")
    srd(SA, sW2, 1792 * 512 * 2)
    A(f"v_lshlrev_b32 v{vT}, 11, v{vG}")
    A(f"v_lshl_add_u32 v{vOA}, v{vR}, 4, v{vT}")
    A(f"s_lshl_b32 s{sBASE}, s{sH}, 16")
    A(f"s_lshl_b32 s{sT}, s{sSP}, 9")
    A(f"s_add_u32 s{sBASE}, s{sBASE}, s{sT}")
    fsl = lambda k: 40 + (k & 7)
    df = 4
    def w2load(kk):
        cb, k = kk >> 4, kk & 15
        A(f"s_add_u32 s{sT}, s{sBASE}, {hex((8*(k&7) + (k>>3))*1024 + cb*256)}")
        A(f"buffer_load_dwordx4 {slot(fsl(kk))}, v{vOA}, {S4(SA)}, s{sT} offen {pola}")
    for cb in range(2):
        for k in range(df): w2load(16 * cb + k)
        gemv(16, lambda k: (vP0 + (k >> 3), k & 7),
             lambda k: A(f"s_waitcnt vmcnt({min(df-1, 15-k)})"),
             lambda k: w2load(16 * cb + k + df) if k + df < 16 else None, fsl)
        for i in range(4):
            A(f"v_min_u32 v{vD0+i}, -2, v{vD0+i}")
        A("s_mov_b32 exec_hi, 0")
        A(f"buffer_store_dwordx4 {q4(vD0)}, v{vL0}, {S4(SC)}, s{sPO} offen offset:{512*cb} sc1")
        A("s_mov_b64 exec, -1")
    stamp(6)
    A("s_branch L_bar2")
    A.lab("L_w3")
    if bare == 5:
        A("s_branch L_bar2")
    tag_from_epoch(vTB, vT)
    lds_wait(0x10f, 0x104)
    A(f"v_mov_b32 v{vT}, {L_ML}")
    A(f"ds_read_b128 {q4(vBQ)}, v{vT}")
    A(f"ds_read_b128 {q4(vBQ+4)}, v{vT} offset:16")
    A("s_waitcnt lgkmcnt(0)")
    A(f"v_max_f32 v{vBQ+8}, v{vBQ}, v{vBQ+2}")
    A(f"v_max3_f32 v{vBQ+8}, v{vBQ+8}, v{vBQ+4}, v{vBQ+6}")
    A(f"v_mov_b32 v{vBQ+9}, 0")
    A(f"s_mov_b32 s{sT2}, {hex(LOG2E)}")
    for w in range(4):
        A(f"v_sub_f32 v{vT}, v{vBQ+2*w}, v{vBQ+8}")
        A(f"v_mul_f32 v{vT}, s{sT2}, v{vT}")
        A(f"v_exp_f32 v{vT}, v{vT}")
        A("s_nop 0")
        A(f"v_fmac_f32 v{vBQ+9}, v{vT}, v{vBQ+2*w+1}")
    A(f"s_lshl_b32 s{sT}, s2, 4")
    A(f"s_add_u32 s{sT}, s{sT}, {hex(W_ML)}")
    A("s_mov_b64 exec, 1")
    A(f"buffer_store_dwordx4 {q4(vBQ+8)}, v{vL2}, {S4(SC)}, s{sT} offen sc1")
    A("s_mov_b64 exec, -1")
    stamp(6)
    lds_wait(0xf0, 0x40)
    A(f"s_lshl_b32 s{sNXT}, s{sB}, 10")
    A(f"s_add_u32 s{sNXT}, s{sNXT}, {hex(W_ML)}")
    A(f"s_mov_b32 s{sSPIN}, 0")
    A.lab("L_ml")
    A(f"buffer_load_dwordx4 {q4(vBQ+12)}, v{vOV}, {S4(SC)}, s{sNXT} offen sc1")
    A(f"s_add_u32 s{sSPIN}, s{sSPIN}, 1")
    A("s_waitcnt vmcnt(0)")
    A(f"v_xor_b32 v{vT}, v{vBQ+14}, v{vTB}")
    A(f"v_xor_b32 v{vT+1}, v{vBQ+15}, v{vTB+1}")
    A(f"v_or_b32 v{vT}, v{vT}, v{vT+1}")
    A(f"v_cmp_ne_u32 vcc, 0, v{vT}")
    A("s_nop 1")
    A("s_cmp_eq_u64 vcc, 0")
    A("s_cbranch_scc1 L_ml_ok")
    A("s_sleep 16")
    A(f"s_cmp_lt_u32 s{sSPIN}, {SPINMAX}")
    A("s_cbranch_scc1 L_ml")
    A.lab("L_ml_ok")
    A(f"s_xor_b32 s{sT}, s{sIDX}, 8")
    A("s_nop 0")
    A(f"v_readlane_b32 s{sM0}, v{vBQ+12}, s{sT}")
    A(f"v_readlane_b32 s{sM0+1}, v{vBQ+13}, s{sT}")
    A("s_nop 1")
    A(f"v_max_f32 v{vBQ+14}, s{sM0}, v{vBQ+8}")
    A(f"v_sub_f32 v{vT}, v{vBQ+8}, v{vBQ+14}")
    A(f"v_sub_f32 v{vT+1}, s{sM0}, v{vBQ+14}")
    A(f"v_mul_f32 v{vT}, s{sT2}, v{vT}")
    A(f"v_mul_f32 v{vT+1}, s{sT2}, v{vT+1}")
    A(f"v_exp_f32 v{vT}, v{vT}")
    A(f"v_exp_f32 v{vT+1}, v{vT+1}")
    A("s_nop 0")
    A(f"v_mul_f32 v{vT}, v{vT}, v{vBQ+9}")
    A(f"v_fmac_f32 v{vT}, s{sM0+1}, v{vT+1}")
    A(f"v_rcp_f32 v{vT+1}, v{vT}")
    for w in range(4):
        A(f"v_sub_f32 v{vT+2+w}, v{vBQ+2*w}, v{vBQ+14}")
        A(f"v_mul_f32 v{vT+2+w}, s{sT2}, v{vT+2+w}")
        A(f"v_exp_f32 v{vT+2+w}, v{vT+2+w}")
        A("s_nop 0")
        A(f"v_mul_f32 v{vT+2+w}, v{vT+2+w}, v{vT+1}")
    A(f"v_mov_b32 v{vT}, {L_FW}")
    A("s_mov_b64 exec, 1")
    A(f"ds_write_b128 v{vT}, {q4(vT+2)}")
    A("s_mov_b64 exec, -1")
    A(f"s_cmp_ge_u32 s{sIDX}, 48")
    A("s_cbranch_scc0 L_w3x")
    A(f"s_cmp_eq_u32 s{sIDX}, 48")
    A("s_cbranch_scc0 L_neb")
    A(f"s_lshl_b32 s{sT}, s{sB}, 7")
    A(f"s_add_u32 s{sT}, s{sT}, {hex(W_EB)}")
    A("s_mov_b64 exec, 1")
    A(f"buffer_store_dwordx2 {p2(vTB)}, v{vL2}, {S4(SC)}, s{sT} offen sc1")
    A("s_mov_b64 exec, -1")
    A.lab("L_neb")
    srd(SA, sX, 4096)
    A(f"s_sub_u32 s{sT2}, s{sIDX}, 48")
    A(f"s_lshl_b32 s{sT3}, s{sT2}, 6")
    A(f"s_lshl_b32 s{sT}, s{sB}, 10")
    A(f"s_add_u32 s{sT3}, s{sT3}, s{sT}")
    A(f"buffer_load_dwordx2 {p2(vXr)}, v{vL1}, {S4(SA)}, s{sT3} offen")
    A(f"v_cmp_gt_u32 vcc, {(NFFN-24)*8}, v{vLANE}")
    A(f"v_mov_b32 v{vT+3}, 0x40000000")
    A("s_nop 0")
    A(f"v_cndmask_b32 v{vON}, v{vT+3}, v{vPO+3}, vcc")
    A(f"s_lshl_b32 s{sCUR}, s{sB}, 16")
    A(f"s_lshl_b32 s{sT}, s{sT2}, 7")
    A(f"s_add_u32 s{sCUR}, s{sCUR}, s{sT}")
    A(f"s_add_u32 s{sCUR}, s{sCUR}, {hex(W_Z)}")
    poll(4, vBQ, [vPO, vPO + 1, vPO + 2, vON], sCUR, 16)
    reduce_rows(vBQ, 4)
    for i in range(4):
        rne(vBQ + i, vT + 1)
        silu(vBQ + i, vT + 1)
        rne(vBQ + i, vT + 1)
        A(f"v_mov_b32 v{vGt+i}, v{vBQ+i}")
    A(f"v_and_b32 v{vXr+3}, 0xffff0000, v{vXr+1}")
    A(f"v_lshlrev_b32 v{vXr+2}, 16, v{vXr+1}")
    A(f"v_and_b32 v{vXr+1}, 0xffff0000, v{vXr}")
    A(f"v_lshlrev_b32 v{vXr}, 16, v{vXr}")
    A(f"s_lshl_b32 s{sCUR}, s{sB}, 17")
    A(f"s_lshl_b32 s{sT}, s{sT2}, 7")
    A(f"s_add_u32 s{sCUR}, s{sCUR}, s{sT}")
    A.lab("L_w3x")
    A("s_waitcnt lgkmcnt(0)")
    A.lab("L_bar2")
    A(f"v_lshlrev_b32 v{vT}, 4, v{vR}")
    A(f"v_lshl_add_u32 v{vT}, v{vG}, 2, v{vT}")
    A(f"v_mov_b32 v{vT+1}, {L_FW}")
    A(f"s_lshl_b32 s{sNXT}, s2, 11")
    A(f"s_lshl_b32 s{sT}, s{sJ}, 9")
    A(f"s_add_u32 s{sNXT}, s{sNXT}, s{sT}")
    srd(SA, sOUT, 4096)
    stamp(7)
    A("s_barrier")
    if bare in (5, 6): A("s_endpgm")
    A(f"ds_read_b128 {q4(vBQ+8)}, v{vT+1}")
    for w in range(4):
        A(f"ds_read_b32 v{vBQ+w}, v{vT} offset:{L_OP + w*512}")
        A(f"ds_read_b32 v{vBQ+4+w}, v{vT} offset:{L_OP + w*512 + 256}")
    A("s_waitcnt lgkmcnt(0)")
    for u, p in ((0, vP0), (1, vP1)):
        A(f"v_mul_f32 v{p}, v{vBQ+4*u}, v{vBQ+8}")
    for w in range(1, 4):
        for u, p in ((0, vP0), (1, vP1)):
            A(f"v_fmac_f32 v{p}, v{vBQ+4*u+w}, v{vBQ+8+w}")
    A(f"v_cvt_pk_bf16_f32 v{vP0}, v{vP0}, v{vP0}")
    A(f"v_cvt_pk_bf16_f32 v{vP1}, v{vP1}, v{vP1}")
    A("s_nop 1")
    gemv(32, lambda k: (vP0 + (k >> 4), k & 15), lambda k: None)
    for i in range(4):
        A(f"v_min_u32 v{vD0+i}, -2, v{vD0+i}")
    A("s_mov_b32 exec_hi, 0")
    A(f"buffer_store_dwordx4 {q4(vD0)}, v{vL0}, {S4(SC)}, s{sNXT} offen sc1")
    A("s_mov_b64 exec, -1")
    stamp(8)
    A(f"s_cmp_eq_u32 s{sJ}, 3")
    A("s_cbranch_scc0 L_auxend")
    A(f"s_cmp_ge_u32 s{sIDX}, 48")
    A("s_cbranch_scc0 L_auxend")
    poll(8, SL, [vPO + n for n in range(8)], sCUR, 1)
    reduce_rows(SL, 8)
    for i in range(4):
        rne(SL + i, vT + i)
    for i in range(4):
        A(f"v_mul_f32 v{SL+i}, v{SL+i}, v{vGt+i}")
    for i in range(4):
        rne(SL + i, vT + i)
    for i in range(4):
        A(f"v_add_f32 v{SL+i}, v{SL+i}, v{vXr+i}")
    A(f"v_cvt_pk_bf16_f32 v{SL+4}, v{SL}, v{SL+1}")
    A(f"v_cvt_pk_bf16_f32 v{SL+5}, v{SL+2}, v{SL+3}")
    A("s_mov_b64 exec, 0xff")
    A(f"buffer_store_dwordx2 v[{SL+4}:{SL+5}], v{vL1}, {S4(SA)}, s{sT3} offen")
    A("s_mov_b64 exec, -1")
    stamp(9)
    A.lab("L_auxend")
    stamp_flush()
    A.lab("L_end")
    A("s_endpgm")

    ref = open("recurrent_scan__mha_block_cached__glu_gated_swiglu__decode.s.ref").read()
    out = ref.split("; @launch")[0]
    out += f"; @launch grid=(256,1,1) block=(512,1,1) lds={LDS}\n"
    out += '.amdgcn_target "amdgcn-amd-amdhsa--gfx950"\n.text\n'
    out += f".globl {NAME}\n.p2align 8\n.type {NAME},@function\n{NAME}:\n"
    out += "\n".join(A.L) + "\n"
    out += '.section .rodata,"a"\n.p2align 6\n'
    out += f".amdhsa_kernel {NAME}\n"
    out += f"  .amdhsa_next_free_vgpr {NV}\n  .amdhsa_next_free_sgpr 80\n  .amdhsa_accum_offset {NV}\n"
    out += "  .amdhsa_group_segment_fixed_size 0\n  .amdhsa_kernarg_size 96\n  .amdhsa_user_sgpr_count 2\n"
    out += "  .amdhsa_user_sgpr_kernarg_segment_ptr 1\n  .amdhsa_system_sgpr_workgroup_id_x 1\n.end_amdhsa_kernel\n"
    return out

if __name__ == "__main__":
    fn = sys.argv[1]
    kw = eval("dict(%s)" % (sys.argv[2] if len(sys.argv) > 2 else ""))
    open(fn, "w").write(gen(**kw))
```

```python
import sys

NAME = "recurrent_scan__mha_block_cached__glu_gated_swiglu__decode_kernel"

class G:
    def __init__(s):
        s.L = []
        s.n = 0
    def __call__(s, t):
        s.L.append("    " + t)
    def lab(s, t):
        s.L.append(t + ":")
    def c(s, t):
        s.L.append("    ; " + t)
    def uid(s, p):
        s.n += 1
        return f"L_{p}{s.n}"

def gen(d=5, dpro=8, da=2, sb=15, stamps=False, R=48, LAG=8, NA=8, VLATE=4,
        polq="", polf="", polp="", pola="nt", bare=0, qprio=3, fc=None, dlast=None,
        dpro2=None, n1=24, df=4, gpace=0, tfill=0, vwarm=False, poll2=False, polo='', vboost=None, fullml=True, fearly=0, noq=0, skip='', clr0=False, qlite=False, qpre=0, polGA='sc1', fstag=None, fdual=None, swap=False, hx=None, npos=None, d0=None, fdelay=0):
    dlast = dlast or d
    if fdual is None: fdual = bool(fearly)
    A = G()
    levels = [d] if fc is None else fc["levels"]
    assert max(levels) <= LAG
    sX, sK, sV, sWQ, sWO, sW1, sW3, sW2, sOUT, sDBG, sWS = 4, 6, 8, 10, 12, 16, 18, 20, 22, 24, 26
    sWAVE, sB, sH, sSP, sIDX, sJ, sMU = 28, 29, 30, 31, 32, 33, 34
    SA, SN, SC, SD_, SE = 36, 40, 44, 48, 52
    sCUR, sNXT, sT, sIT, sT2, sT3 = 56, 57, 58, 59, 60, 61
    sM0, sM1 = 62, 64
    sBASE, sSPIN, sLV, sPO = 66, 67, 68, 69
    sST = 70
    vLANE, vOA, vON, vOV, vG, vR, vT7 = 1, 2, 3, 4, 5, 6, 7
    vMK = 8
    vBQ = 12
    vD0, vD1 = 28, 32
    vS, vM = 36, 37
    vT = 38
    vA0, vA1 = 48, 52
    vP0, vP1 = 56, 57
    vL0, vL1, vL2 = 58, 59, 60
    vPG, vST, vPB = 61, 62, 63
    SL = 64
    NV = SL + 4 * R
    assert R >= 48 and NV <= 256
    slot = lambda i: f"v[{SL+4*i}:{SL+4*i+3}]"
    q4 = lambda r: f"v[{r}:{r+3}]"
    p2 = lambda r: f"v[{r}:{r+1}]"
    S4 = lambda b: f"s[{b}:{b+3}]"
    L_Q = 0
    L_TG = 256
    L_ML = 272
    L_FW = 304
    L_CM = 320
    L_LV = 352
    L_PW = 336
    L_OP = 2048
    L_XE = 4096
    L_SC = 8192
    LDS = L_SC + 4 * 16 * 64 * 4 + 256
    W_Y, W_Z, W_ML, W_EH, W_EB, W_PG = 0, 0x80000, 0xC0000, 0xC8000, 0xC9000, 0xCA000
    W_QA, W_QB, W_FP, W_FB, W_SZ = 0x100000, 0x200000, 0x300000, 0x400000, 0x500000
    W_ST = 0x500000
    NFFN = 28
    LOG2E = 0x3FB8AA3B
    SCALE = 0x3DB504F3
    SPINMAX = 200000

    def srd(base, ptr, nbytes):
        A(f"s_mov_b32 s{base}, s{ptr}")
        A(f"s_mov_b32 s{base+1}, s{ptr+1}")
        A(f"s_mov_b32 s{base+2}, {hex(nbytes)}")
        A(f"s_mov_b32 s{base+3}, 0x00020000")
    def stamp(i):
        if not stamps: return
        A(f"s_memrealtime s[{sST}:{sST+1}]")
        A("s_waitcnt lgkmcnt(0)")
        A(f"v_writelane_b32 v{vST}, s{sST}, {i}")
    def stamp_it(base):
        if not stamps: return
        A(f"s_memrealtime s[{sST}:{sST+1}]")
        A(f"s_add_u32 m0, s{sIT}, {base}")
        A("s_waitcnt lgkmcnt(0)")
        A(f"v_writelane_b32 v{vST}, s{sST}, m0")
    def stamp_flush():
        if not stamps: return
        A(f"v_writelane_b32 v{vST}, s76, 10")
        A(f"v_writelane_b32 v{vST}, s75, 61")
        srd(SE, sWS, 0x600000)
        A(f"s_lshl_b32 s{sT}, s2, 3")
        A(f"s_add_u32 s{sT}, s{sT}, s{sWAVE}")
        A(f"s_lshl_b32 s{sT}, s{sT}, 8")
        A(f"s_add_u32 s{sT}, s{sT}, {hex(W_ST)}")
        A(f"v_lshlrev_b32 v{vT7}, 2, v{vLANE}")
        A(f"buffer_store_dword v{vST}, v{vT7}, {S4(SE)}, s{sT} offen")
    def cut(n):
        if bare == n:
            A("s_barrier"); A("s_endpgm")

    def swaps(op, reg, tmp):
        for sw in ("v_permlane16_swap_b32", "v_permlane32_swap_b32"):
            A("s_nop 0")
            A(f"v_mov_b32 v{tmp}, v{reg}")
            A("s_nop 1")
            A(f"{sw} v{reg}, v{tmp}")
            A("s_nop 0")
            A(f"{op} v{reg}, v{reg}, v{tmp}")
    def allreduce(op, reg, tmp):
        for n in (8, 4, 2, 1):
            A("s_nop 1")
            A(f"{op}_dpp v{reg}, v{reg}, v{reg} row_ror:{n} row_mask:0xf bank_mask:0xf")
        swaps(op, reg, tmp)
    def rne(reg, tmp):
        A(f"v_cvt_pk_bf16_f32 v{tmp}, v{reg}, v{reg}")
        A(f"v_and_b32 v{reg}, 0xffff0000, v{tmp}")
    def diag(dst, pp, j):
        for m in range(4):
            A(f"v_and_b32_dpp v{dst+m}, v{pp}, v{vMK+m} row_newbcast:{j} row_mask:0xf bank_mask:0xf")
    def silu(reg, t):
        A(f"v_mul_f32 v{t}, {hex(LOG2E | 0x80000000)}, v{reg}")
        A(f"v_exp_f32 v{t}, v{t}")
        A("s_nop 0")
        A(f"v_add_f32 v{t}, 1.0, v{t}")
        A(f"v_rcp_f32 v{t}, v{t}")
        A("s_nop 0")
        A(f"v_mul_f32 v{reg}, v{reg}, v{t}")
    def build_masks():
        A(f"v_and_b32 v{vT}, 1, v{vR}")
        A(f"v_lshlrev_b32 v{vT}, 4, v{vT}")
        A(f"v_mov_b32 v{vT+1}, 0xffff")
        A(f"v_lshlrev_b32 v{vT}, v{vT}, v{vT+1}")
        A(f"v_bfe_u32 v{vT+1}, v{vR}, 1, 2")
        for m in range(4):
            A(f"v_cmp_eq_u32 vcc, {m}, v{vT+1}")
            A("s_nop 1")
            A(f"v_cndmask_b32 v{vMK+m}, 0, v{vT}, vcc")
    def tag_from_epoch(reg, tmp):
        A(f"v_mov_b32 v{tmp}, 0x9e3779b9")
        A(f"v_add_co_u32 v{reg}, vcc, 0x7f4a7c15, v{reg}")
        A("s_nop 1")
        A(f"v_addc_co_u32 v{reg+1}, vcc, v{tmp}, v{reg+1}, vcc")

    if sb == 15:
        koff = lambda k: ((k & 7) << 12) | ((k >> 3) << 16); wsh = 10; GSTR = 1 << 17
    elif sb == 10:
        koff = lambda k: k << 13; wsh = 11; GSTR = 1 << 17
    elif sb == 16:
        koff = lambda k: k << 12; wsh = 10; GSTR = 1 << 17
    elif sb == 14:
        koff = lambda k: ((k & 3) << 12) | ((k >> 2) << 15); wsh = 10; GSTR = 1 << 17
    elif sb == 20:
        koff = lambda k: k << 12; wsh = 10; GSTR = 1 << 16

    if npos:
        wsh, kb, sb = npos
        assert sorted([wsh, wsh + 1] + list(kb) + [sb]) == list(range(10, 17))
        koff = lambda k: sum(((k >> i) & 1) << kb[i] for i in range(4)); GSTR = 1 << 17
    A("s_cmp_ge_u32 s2, 256")
    A("s_cbranch_scc1 L_end")
    if stamps: A("s_memrealtime s[76:77]")
    A("s_load_dwordx16 s[4:19], s[0:1], 0")
    A("s_load_dwordx8 s[20:27], s[0:1], 64")
    A(f"v_lshrrev_b32 v{vT7}, 6, v0")
    A(f"v_and_b32 v{vLANE}, 63, v0")
    A(f"v_readfirstlane_b32 s{sWAVE}, v{vT7}")
    A(f"v_lshrrev_b32 v{vG}, 4, v{vLANE}")
    A(f"v_and_b32 v{vR}, 15, v{vLANE}")
    A(f"v_lshlrev_b32 v{vOV}, 4, v{vLANE}")
    if stamps:
        A(f"v_mov_b32 v{vST}, 0")
        A("s_mov_b32 s75, 0")
    if swap: A(f"s_xor_b32 s{sWAVE}, s{sWAVE}, 4")
    A(f"s_lshr_b32 s{sB}, s2, 6")
    A(f"s_and_b32 s{sIDX}, s2, 63")
    A(f"s_bfe_u32 s{sSP}, s2, {(1<<16)|3}")
    if hx is None:
        A(f"s_bfe_u32 s{sT}, s2, {(2<<16)|4}")
        A(f"s_lshl_b32 s{sT}, s{sT}, 3")
        A(f"s_and_b32 s{sH}, s2, 7")
        A(f"s_or_b32 s{sH}, s{sH}, s{sT}")
    else:
        rest = [b_ for b_ in range(5) if b_ not in hx]
        A(f"s_mov_b32 s{sH}, 0")
        for src, dst in zip((0, 1, 2, 4, 5), list(hx) + rest):
            A(f"s_bfe_u32 s{sT}, s2, {(1<<16)|src}")
            A(f"s_lshl_b32 s{sT}, s{sT}, {dst}")
            A(f"s_or_b32 s{sH}, s{sH}, s{sT}")
    A(f"s_lshl_b32 s{sMU}, s{sB}, 1")
    A(f"s_or_b32 s{sMU}, s{sMU}, s{sSP}")
    A(f"s_cmp_ge_u32 s{sWAVE}, 4")
    A("s_cbranch_scc1 L_aux")

    A.c("---- stream waves ----")
    A(f"s_lshl_b32 s{sT3}, s{sH}, 16")
    A(f"s_lshl_b32 s{sT}, s{sMU}, 13")
    A(f"s_add_u32 s{sT3}, s{sT3}, s{sT}")
    A(f"s_lshl_b32 s{sT}, s{sWAVE}, 11")
    A(f"s_add_u32 s{sT3}, s{sT3}, s{sT}")
    A(f"s_lshl_b32 s{sT2}, s{sT3}, 1")
    A(f"v_lshrrev_b32 v{vT}, 2, v{vR}")
    A(f"v_lshlrev_b32 v{vT}, 8, v{vT}")
    A(f"v_and_b32 v{vT+1}, 3, v{vR}")
    A(f"v_lshlrev_b32 v{vT+1}, 4, v{vT+1}")
    A(f"v_lshlrev_b32 v{vT+2}, 6, v{vG}")
    A(f"v_add3_u32 v{vOA}, v{vT}, v{vT+1}, v{vT+2}")
    A(f"v_mov_b32 v{vON}, v{vOA}")
    A(f"s_lshl_b32 s{sBASE}, s{sB}, 26")
    A(f"s_lshl_b32 s{sT}, s{sH}, 21")
    A(f"s_or_b32 s{sBASE}, s{sBASE}, s{sT}")
    A(f"s_lshl_b32 s{sT}, s{sSP}, {sb}")
    A(f"s_or_b32 s{sBASE}, s{sBASE}, s{sT}")
    A(f"s_lshl_b32 s{sT}, s{sWAVE}, {wsh}")
    A(f"s_or_b32 s{sBASE}, s{sBASE}, s{sT}")
    A("s_waitcnt lgkmcnt(0)")
    nis = [0]
    def pace():
        if d0 and nis[0] == d0: A(f"s_waitcnt vmcnt({d0-1})")
        if nis[0] >= dpro: A(f"s_waitcnt vmcnt({(dpro2 if dpro2 and nis[0] >= n1 else dpro)-1})")
        nis[0] += 1
    if bare != 2:
        srd(SC, sWO, 0x400000)
        for k in range(4):
            pace()
            A(f"buffer_load_dwordx4 {q4(vA0)}, v{vOV}, {S4(SC)}, s{sT2} offen offset:{k*1024} {polp}")
        srd(SD_, sW2, 1792 * 512 * 2)
        for k in range(2):
            pace()
            A(f"buffer_load_dwordx4 {q4(vA0)}, v{vOV}, {S4(SD_)}, s{sT3} offen offset:{k*1024} {polp}")
    srd(SA, sK, 0x10000000)
    def sload(sl, srdb, voff, sbase, off):
        A(f"s_add_u32 s{sT}, s{sbase}, {hex(off)}")
        A(f"buffer_load_dwordx4 {slot(sl)}, v{voff}, {S4(srdb)}, s{sT} offen nt")
    gk = lambda i: (i >> 4) * GSTR + koff(i & 15)
    setup_done = False
    for i in range(R):
        if nis[0] >= dpro and not setup_done:
            setup_done = True
            stamp(0)
            srd(SN, sK, 0x10000000)
            build_masks()
            A(f"v_lshlrev_b32 v{vL0}, 2, v{vLANE}")
            A(f"s_lshl_b32 s{sT2}, s{sWAVE}, 12")
            A(f"s_add_u32 s{sT2}, s{sT2}, {L_SC}")
            A(f"v_add_u32 v{vL0}, s{sT2}, v{vL0}")
            A(f"v_mov_b32 v{vL1}, v{vL0}")
            A(f"v_lshrrev_b32 v{vT}, 2, v{vR}")
            A(f"v_lshlrev_b32 v{vT}, 4, v{vT}")
            A(f"v_lshlrev_b32 v{vL2}, 6, v{vG}")
            A(f"v_add_u32 v{vL2}, v{vL2}, v{vT}")
            A(f"v_mov_b32 v{vM}, 0xff800000")
        pace()
        sload(i, SA, vOA, sBASE, gk(i))
        if i in (15, 31): stamp(7 + (i >> 4))
    stamp(1)
    A("s_barrier")
    stamp(2)
    A(f"ds_read_b128 {q4(vT+2)}, v{vL2} offset:{L_Q}")
    A(f"v_and_b32 v{vT}, 3, v{vR}")
    A("s_waitcnt lgkmcnt(0)")
    for t in range(4):
        A(f"v_cmp_eq_u32 vcc, {t}, v{vT}")
        A("s_nop 1")
        for m in range(4):
            A(f"v_cndmask_b32 v{vBQ+4*t+m}, 0, v{vT+2+m}, vcc")
    A("s_nop 1")

    def dpp_gather(u, i):
        D = vD0 if (u & 1) == 0 else vD1
        n = (4 * (u - i)) % 16
        ctrl = "quad_perm:[0,1,2,3]" if n == 0 else f"row_ror:{n}"
        if i == 0:
            A(f"v_mov_b32_dpp v{vS}, v{D} {ctrl} row_mask:0xf bank_mask:{hex(1<<u)}")
        else:
            A(f"v_add_f32_dpp v{vS}, v{D+i}, v{vS} {ctrl} row_mask:0xf bank_mask:{hex(1<<u)}")
    def kgroup(slot0, waitf, issuef):
        for k in range(16):
            u, t = k >> 2, k & 3
            D = vD0 if (u & 1) == 0 else vD1
            waitf(k)
            A(f"v_mfma_f32_16x16x32_bf16 {q4(D)}, {slot(slot0+k)}, {q4(vBQ+4*t)}, {'0' if t==0 else q4(D)}")
            issuef(k)
            if u > 0:
                A("s_nop 6" if t == 0 else "s_nop 0")
                dpp_gather(u - 1, t)
        A("s_nop 7")
        for i in range(4):
            dpp_gather(3, i)
            A("s_nop 1")
        rne(vS, vT)
        A(f"v_mul_f32 v{vT+1}, {hex(SCALE)}, v{vS}")
        rne(vT + 1, vT)
        A(f"v_max_f32 v{vM}, v{vM}, v{vT+1}")
        A(f"ds_write_b32 v{vL1}, v{vT+1}")
        A(f"v_add_u32 v{vL1}, 256, v{vL1}")

    issued = [0]
    for G0 in range(R // 16):
        def waitf(k, G0=G0):
            i = G0 * 16 + k
            A(f"s_waitcnt vmcnt({min(63, R-1-i + issued[0])})")
        def issuef(k, G0=G0):
            i = G0 * 16 + k
            if i < d:
                sload(i, SA, vOA, sBASE, gk(R + i)); issued[0] += 1
        kgroup(G0 * 16, waitf, issuef)
    for i in range(d, LAG):
        A(f"s_waitcnt vmcnt({d-1})")
        sload(i, SA, vOA, sBASE, gk(R + i))
    stamp(3)
    A(f"s_add_u32 s{sCUR}, s{sBASE}, {hex((R//16)*GSTR)}")
    A(f"s_mov_b32 s{sIT}, {R//16}")
    if fc:
        U = fc.get("U", 8)
        A(f"s_lshl_b32 s{sT}, s{sWAVE}, 2")
        A(f"s_add_u32 s{sT}, s{sT}, {L_PW}")
        A(f"v_mov_b32 v{vPB}, s{sT}")
        A(f"v_mov_b32 v{vPG}, 0")
        A(f"v_mov_b32 v{vT+8}, {fc.get('nom', 1)}")
    def steady_issue(k):
        kk = k + LAG
        if kk < 16:
            sload(kk, SA, vOA, sCUR, koff(kk))
        else:
            sload(kk - 16, SN, vON, sNXT, koff(kk - 16))
        if fc:
            if k % (16 // U) == 0:
                A(f"v_add_u32 v{vPG}, 1, v{vPG}")
                A(f"ds_write_b32 v{vPB}, v{vPG}")
            if k == 14:
                A(f"ds_read_b32 v{vT+8}, v{vPB} offset:{L_LV-L_PW}")
    def wv(dd, k):
        lo = int(dd); fr = dd - lo
        up = int((k + 1) * fr + 1e-9) > int(k * fr + 1e-9)
        return (lo + (1 if up else 0)) - 1
    def dispatch(tag, body):
        if not fc:
            body(d); return
        A(f"v_readfirstlane_b32 s{sLV}, v{vT+8}")
        if tag == "v" and vboost:
            A(f"s_cmp_ge_u32 s{sIT}, {vboost[0]}")
            A(f"s_cselect_b32 s{sT}, {vboost[1]}, 0")
            A(f"s_add_u32 s{sLV}, s{sLV}, s{sT}")
            A(f"s_min_u32 s{sLV}, s{sLV}, {len(levels)-1}")
        if stamps: A(f"s_add_u32 s75, s75, s{sLV}")
        for li in range(1, len(levels)):
            A(f"s_cmp_eq_u32 s{sLV}, {li}")
            A(f"s_cbranch_scc1 L_{tag}_b{li}")
        for li, dd in enumerate(levels):
            A.lab(f"L_{tag}_b{li}")
            body(dd)
            if li + 1 < len(levels): A(f"s_branch L_{tag}_e")
        A.lab(f"L_{tag}_e")
    A.lab("L_kloop")
    A(f"s_add_u32 s{sNXT}, s{sCUR}, {hex(GSTR)}")
    A(f"s_cmp_eq_u32 s{sIT}, 15")
    A("s_cbranch_scc0 L_knl")
    A(f"s_mov_b32 s{sNXT}, s{sBASE}")
    A(f"s_mov_b32 s{SN}, s{sV}")
    A(f"s_mov_b32 s{SN+1}, s{sV+1}")
    A(f"v_mov_b32 v{vON}, v{vOV}")
    A.lab("L_knl")
    if fc: A("s_waitcnt lgkmcnt(0)")
    dispatch("k", lambda dd: kgroup(0, lambda k: A(f"s_waitcnt vmcnt({wv(dd,k)})"), steady_issue))
    stamp_it(16)
    A(f"s_mov_b32 s{sCUR}, s{sNXT}")
    A(f"s_add_u32 s{sIT}, s{sIT}, 1")
    A(f"s_cmp_lt_u32 s{sIT}, 16")
    A("s_cbranch_scc1 L_kloop")
    stamp(4)
    A(f"s_mov_b32 s{SA}, s{sV}")
    A(f"s_mov_b32 s{SA+1}, s{sV+1}")
    A(f"v_mov_b32 v{vOA}, v{vOV}")
    X = SL + 64
    tf = [0]
    def tfi():
        if tf[0] < tfill:
            A(f"s_waitcnt vmcnt({d-1})")
            steady_issue(tf[0]); tf[0] += 1
    tfi()
    A("s_waitcnt lgkmcnt(0)")
    for i in range(8):
        A(f"ds_read2st64_b32 v[{X+2*i}:{X+2*i+1}], v{vL0} offset0:{2*i} offset1:{2*i+1}")
    allreduce("v_max_f32", vM, vT)
    A(f"s_mov_b32 s{sT2}, {hex(LOG2E)}")
    A("s_waitcnt lgkmcnt(0)")
    for i in range(16):
        A(f"v_sub_f32 v{X+i}, v{X+i}, v{vM}")
    tfi()
    for i in range(16):
        A(f"v_mul_f32 v{X+i}, s{sT2}, v{X+i}")
    for i in range(16):
        A(f"v_exp_f32 v{X+i}, v{X+i}")
    A("s_nop 0")
    for i in range(16):
        A(f"v_cvt_pk_bf16_f32 v{X+16+i}, v{X+i}, v{X+i}")
    for i in range(8):
        A(f"ds_write2st64_b32 v{vL0}, v{X+16+2*i}, v{X+16+2*i+1} offset0:{2*i} offset1:{2*i+1}")
    A(f"v_mov_b32 v{vP1}, v{X+16}")
    tfi()
    for st in (8, 4, 2, 1):
        for i in range(st):
            A(f"v_add_f32 v{X+i}, v{X+i}, v{X+i+st}")
    allreduce("v_add_f32", X, vT)
    tfi()
    A(f"v_mov_b32 v{vT}, v{vM}")
    A(f"v_mov_b32 v{vT+1}, v{X}")
    A(f"s_lshl_b32 s{sT2}, s{sWAVE}, 3")
    A(f"s_add_u32 s{sT2}, s{sT2}, {L_ML}")
    A(f"v_mov_b32 v{vT+2}, s{sT2}")
    A(f"v_mov_b32 v{vT+3}, {L_CM}")
    A(f"v_mov_b32 v{vT+4}, 1")
    A("s_mov_b64 exec, 1")
    A(f"ds_write_b64 v{vT+2}, v[{vT}:{vT+1}]")
    A("s_waitcnt lgkmcnt(0)")
    A(f"ds_add_u32 v{vT+3}, v{vT+4}")
    A("s_mov_b64 exec, -1")
    A(f"v_mov_b32 v{vT+7}, 16")
    for i in range(4):
        A(f"v_mov_b32 v{vD0+i}, 0")
    A(f"v_add_u32 v{vL1}, 256, v{vL0}")
    A(f"v_lshlrev_b32 v{vT+5}, 5, v{vR}")
    A(f"v_lshlrev_b32 v{vT+6}, 4, v{vG}")
    A(f"s_lshl_b32 s{sT2}, s{sWAVE}, 9")
    A(f"v_add3_u32 v{vL2}, v{vT+5}, v{vT+6}, s{sT2}")
    A(f"s_mov_b32 s{sIT}, 0")
    stamp(5)
    def vbody(waitf, issuef):
        A(f"v_mov_b32 v{vP0}, v{vP1}")
        A(f"ds_read_b32 v{vP1}, v{vL1}")
        A(f"v_add_u32 v{vL1}, 256, v{vL1}")
        diag(vA0, vP0, 0)
        for k in range(16):
            Acur = vA0 if (k & 1) == 0 else vA1
            Anxt = vA1 if (k & 1) == 0 else vA0
            if k < 15: diag(Anxt, vP0, k + 1)
            waitf(k)
            A(f"v_mfma_f32_16x16x32_bf16 {q4(vD0)}, {q4(Acur)}, {slot(k)}, {q4(vD0)}")
            issuef(k)
    if tfill:
        assert tf[0] == tfill
        A(f"s_add_u32 s{sNXT}, s{sCUR}, {hex(GSTR)}")
        A("s_waitcnt lgkmcnt(0)")
        vbody(lambda k: A(f"s_waitcnt vmcnt({d-1 if k >= tfill else LAG+tfill-1-k})"), lambda k: steady_issue(k) if k >= tfill else None)
        stamp_it(32)
        A(f"s_mov_b32 s{sCUR}, s{sNXT}")
        A(f"s_mov_b32 s{sIT}, 1")
    A.lab("L_vloop")
    A(f"s_add_u32 s{sNXT}, s{sCUR}, {hex(GSTR)}")
    A(f"s_cmp_eq_u32 s{sIT}, {VLATE}")
    A("s_cbranch_scc0 L_vnl")
    A("s_mov_b64 exec, 1")
    A(f"ds_add_u32 v{vT+3}, v{vT+7}")
    A("s_mov_b64 exec, -1")
    A.lab("L_vnl")
    A("s_waitcnt lgkmcnt(0)")
    dispatch("v", lambda dd: vbody(lambda k: A(f"s_waitcnt vmcnt({wv(dd,k)})"), steady_issue))
    stamp_it(32)
    A(f"s_mov_b32 s{sCUR}, s{sNXT}")
    A(f"s_add_u32 s{sIT}, s{sIT}, 1")
    A(f"s_cmp_lt_u32 s{sIT}, 15")
    A("s_cbranch_scc1 L_vloop")
    def lwait(k):
        if k + LAG < 16: A(f"s_waitcnt vmcnt({dlast-1})")
        else: A(f"s_waitcnt vmcnt({15-k})")
    A("s_waitcnt lgkmcnt(0)")
    vbody(lwait, lambda k: sload(k + LAG, SA, vOA, sCUR, koff(k + LAG)) if k + LAG < 16 else None)
    A("s_mov_b32 exec_hi, 0")
    A("s_nop 6")
    A(f"ds_write_b128 v{vL2}, {q4(vD0)} offset:{L_OP}")
    A("s_waitcnt lgkmcnt(0)")
    A("s_barrier")
    if stamps:
        A("s_mov_b64 exec, -1")
        stamp_it(32)
        stamp(6)
        stamp_flush()
    A("s_endpgm")

    XR = SL + 64
    XF = SL + 80
    XE = vBQ
    XD = SL + 128
    vTG = vBQ + 8
    A.lab("L_aux")
    if bare == 2:
        A("s_barrier"); A("s_barrier"); A("s_endpgm")
    A(f"s_sub_u32 s{sJ}, s{sWAVE}, 4")
    A(f"s_cmp_eq_u32 s{sJ}, 0")
    A("s_cbranch_scc1 L_qw")
    A(f"s_cmp_eq_u32 s{sJ}, 1")
    A("s_cbranch_scc1 L_fw")
    A(f"v_mov_b32 v{vT}, {L_CM}")
    A(f"v_mov_b32 v{vT+2}, 0")
    A(f"ds_write_b32 v{vT}, v{vT+2}")
    if fc:
        for i in range(3, 6): A(f"v_mov_b32 v{vT+i}, 0")
        for i in range(6, 10): A(f"v_mov_b32 v{vT+i}, {fc.get('nom', 1)}")
        A(f"ds_write_b128 v{vT}, {q4(vT+2)} offset:{L_PW-L_CM}")
        A(f"ds_write_b128 v{vT}, {q4(vT+6)} offset:{L_LV-L_CM}")
    A("s_waitcnt lgkmcnt(0)")
    srd(SC, sWS, W_SZ)
    if clr0:
        A(f"s_cmp_eq_u32 s{sJ}, 3")
        A("s_cbranch_scc0 L_bar1")
        for i in range(4):
            A(f"v_mov_b32 v{vBQ+i}, -1")
        A(f"s_lshl_b32 s{sT}, s2, 11")
        A(f"buffer_store_dwordx4 {q4(vBQ)}, v{vOV}, {S4(SC)}, s{sT} offen sc1")
        A(f"buffer_store_dwordx4 {q4(vBQ)}, v{vOV}, {S4(SC)}, s{sT} offen offset:1024 sc1")
        A(f"s_lshl_b32 s{sPO}, s{sB}, 5")
        A(f"s_add_u32 s{sPO}, s{sPO}, s{sH}")
        A(f"s_lshl_b32 s{sPO}, s{sPO}, 1")
        A(f"s_add_u32 s{sPO}, s{sPO}, s{sSP}")
        A(f"s_lshl_b32 s{sPO}, s{sPO}, 10")
        A(f"s_add_u32 s{sPO}, s{sPO}, {hex(W_Z)}")
        A(f"buffer_store_dwordx4 {q4(vBQ)}, v{vOV}, {S4(SC)}, s{sPO} offen sc1")
        A("s_waitcnt vmcnt(0)")
    A("s_branch L_bar1")
    A.lab("L_fw")
    A(f"v_mul_u32_u24 v{vT}, {8*3584}, v{vG}")
    A(f"v_and_b32 v{vT+1}, 7, v{vR}")
    A(f"v_lshl_add_u32 v{vOA}, v{vT+1}, 4, v{vT}")
    A(f"s_mul_i32 s{sBASE}, s{sMU}, {64*3584}")
    A(f"s_lshl_b32 s{sT}, s{sH}, 7")
    A(f"s_add_u32 s{sBASE}, s{sBASE}, s{sT}")
    A(f"s_mov_b32 s{sM0}, 0x00ff00ff")
    A(f"s_mov_b32 s{sM0+1}, 0x00ff00ff")
    A("s_waitcnt lgkmcnt(0)")
    srd(SC, sWS, W_SZ)
    A(f"s_cmp_lt_u32 s{sH}, {NFFN}")
    A("s_cbranch_scc0 L_bar1")
    srd(SA, sW1, 512 * 1792 * 2)
    srd(SN, sW3, 512 * 1792 * 2)
    if fdelay: A(f"s_sleep {fdelay}")
    for half, sr in ((0, SA), (1, SN)):
        A(f"s_mov_b64 exec, s[{sM0}:{sM0+1}]" if half == 0 else f"s_not_b64 exec, s[{sM0}:{sM0+1}]")
        for k in range(16):
            A(f"s_add_u32 s{sT}, s{sBASE}, {hex(((k>>3)*32 + (k&7))*3584)}")
            A(f"buffer_load_dwordx4 {slot(k)}, v{vOA}, {S4(sr)}, s{sT} offen {polf}")
    A("s_mov_b64 exec, -1")
    A("s_branch L_bar1")
    A.lab("L_qw")
    if qprio: A(f"s_setprio {qprio}")
    A(f"v_lshrrev_b32 v{vT}, 2, v{vR}")
    A(f"v_lshlrev_b32 v{vT}, 10, v{vT}")
    A(f"v_and_b32 v{vT+1}, 3, v{vR}")
    A(f"v_lshlrev_b32 v{vT+1}, 6, v{vT+1}")
    A(f"v_lshlrev_b32 v{vT+2}, 8, v{vG}")
    A(f"v_add3_u32 v{vON}, v{vT}, v{vT+1}, v{vT+2}")
    A(f"v_lshl_add_u32 v{vL1}, v{vG}, 4, v{vT}")
    A(f"v_lshlrev_b32 v{vT}, 16, v{vG}")
    A(f"v_lshl_add_u32 v{vOA}, v{vR}, 4, v{vT}")
    A(f"v_mov_b32 v{vL2}, 0")
    A(f"s_lshl_b32 s{sT2}, s{sMU}, 7")
    A(f"s_lshl_b32 s{sBASE}, s{sMU}, 19")
    A(f"s_lshl_b32 s{sT}, s{sH}, 8")
    A(f"s_add_u32 s{sBASE}, s{sBASE}, s{sT}")
    A(f"s_lshl_b32 s{sT3}, s{sH}, 7")
    A(f"s_add_u32 s{sT3}, s{sT3}, {hex(W_EH)}")
    A("s_waitcnt lgkmcnt(0)")
    srd(SA, sX, 4096)
    for i in range(4):
        A(f"buffer_load_dwordx4 {q4(XR+4*i)}, v{vON}, {S4(SA)}, 0 offen offset:{16*i}")
    for s_ in range(2):
        A(f"buffer_load_dwordx4 {q4(XE+4*s_)}, v{vL1}, {S4(SA)}, s{sT2} offen offset:{64*s_}")
    srd(SN, sWQ, 0x400000)
    for k in range(16):
        A(f"s_add_u32 s{sT}, s{sBASE}, {hex(((k>>3)*32 + (k&7))*8192)}")
        A(f"buffer_load_dwordx4 {slot(k)}, v{vOA}, {S4(SN)}, s{sT} offen {polq}")
    srd(SC, sWS, W_SZ)
    A(f"buffer_load_dwordx2 {p2(vTG)}, v{vL2}, {S4(SC)}, s{sT3} offen sc1")
    stamp(0)
    def red16(reg, tmp):
        for qp in ("[1,0,3,2]", "[2,3,0,1]"):
            A("s_nop 1")
            A(f"v_add_f32_dpp v{reg}, v{reg}, v{reg} quad_perm:{qp} row_mask:0xf bank_mask:0xf")
        swaps("v_add_f32", reg, tmp)
    A("s_waitcnt vmcnt(19)")
    for i in range(16):
        A(f"v_lshlrev_b32 v{XF+2*i}, 16, v{XR+i}")
        A(f"v_and_b32 v{XF+2*i+1}, 0xffff0000, v{XR+i}")
    for i in range(8):
        A(f"v_pk_add_f32 {p2(XR+2*i)}, {p2(XF+4*i)}, {p2(XF+4*i+2)}")
    for st in (4, 2, 1):
        for i in range(st):
            A(f"v_pk_add_f32 {p2(XR+2*i)}, {p2(XR+2*i)}, {p2(XR+2*(i+st))}")
    A(f"v_add_f32 v{vT}, v{XR}, v{XR+1}")
    red16(vT, vT + 1)
    A(f"v_mul_f32 v{vT}, 0x3b000000, v{vT}")
    A(f"v_mov_b32 v{vT+1}, v{vT}")
    for i in range(16):
        A(f"v_pk_add_f32 {p2(XF+2*i)}, {p2(XF+2*i)}, {p2(vT)} neg_lo:[0,1] neg_hi:[0,1]")
    for c_ in range(2):
        A(f"v_pk_mul_f32 {p2(XR+2*c_)}, {p2(XF+2*c_)}, {p2(XF+2*c_)}")
    for i in range(2, 16):
        c_ = i & 1
        A(f"v_pk_fma_f32 {p2(XR+2*c_)}, {p2(XF+2*i)}, {p2(XF+2*i)}, {p2(XR+2*c_)}")
    A(f"v_pk_add_f32 {p2(XR)}, {p2(XR)}, {p2(XR+2)}")
    A(f"v_add_f32 v{vT+2}, v{XR}, v{XR+1}")
    red16(vT + 2, vT + 1)
    A(f"v_mul_f32 v{vT+2}, 0x3b000000, v{vT+2}")
    rne(vT, vT + 1)
    rne(vT + 2, vT + 1)
    A(f"v_add_f32 v{vT+2}, 0x3727c5ac, v{vT+2}")
    rne(vT + 2, vT + 1)
    A(f"v_sqrt_f32 v{vT+2}, v{vT+2}")
    A("s_nop 0")
    rne(vT + 2, vT + 1)
    A(f"v_rcp_f32 v{vT+2}, v{vT+2}")
    A("s_waitcnt vmcnt(17)")
    for i in range(8):
        A(f"v_lshlrev_b32 v{XF+2*i}, 16, v{XE+i}")
        A(f"v_and_b32 v{XF+2*i+1}, 0xffff0000, v{XE+i}")
    for i in range(16):
        A(f"v_sub_f32 v{XF+i}, v{XF+i}, v{vT}")
    for i in range(8):
        A(f"v_cvt_pk_bf16_f32 v{XE+i}, v{XF+2*i}, v{XF+2*i+1}")
    for i in range(8):
        A(f"v_lshlrev_b32 v{XF+2*i}, 16, v{XE+i}")
        A(f"v_and_b32 v{XF+2*i+1}, 0xffff0000, v{XE+i}")
    for i in range(16):
        A(f"v_mul_f32 v{XF+i}, v{XF+i}, v{vT+2}")
    for i in range(8):
        A(f"v_cvt_pk_bf16_f32 v{XE+i}, v{XF+2*i}, v{XF+2*i+1}")
    stamp(1)
    def bperm(dst, s_, jj):
        for m in range(4):
            lo = SL + 4 * (8 * s_ + 2 * m) + (jj >> 1)
            hi = SL + 4 * (8 * s_ + 2 * m + 1) + (jj >> 1)
            A(f"v_perm_b32 v{dst+m}, v{hi}, v{lo}, s{sM0 + (jj & 1)}")
    def tile_mma(w0, w1):
        A(f"s_mov_b32 s{sM0}, 0x05040100")
        A(f"s_mov_b32 s{sM0+1}, 0x07060302")
        A(w0)
        bperm(vA0, 0, 0)
        for n in range(16):
            s_, jj = n >> 3, n & 7
            cur = vA0 if (n & 1) == 0 else vA1
            nxt = vA1 if (n & 1) == 0 else vA0
            if n == 7 and w1: A(w1)
            if n + 1 < 16: bperm(nxt, (n + 1) >> 3, (n + 1) & 7)
            else: A("s_nop 1")
            A(f"v_mfma_f32_16x16x32_bf16 {q4(XD+4*jj)}, {q4(XE+4*s_)}, {q4(cur)}, {'0' if s_==0 else q4(XD+4*jj)}")
    def msg_addr(wbase):
        A(f"v_lshlrev_b32 v{vON}, 13, v{vG}")
        A(f"v_lshl_add_u32 v{vON}, v{vR}, 4, v{vON}")
        A(f"s_lshl_b32 s{sCUR}, s{sH}, 15")
        A(f"s_add_u32 s{sCUR}, s{sCUR}, {hex(wbase)}")
        A(f"s_lshl_b32 s{sT}, s{sMU}, 10")
        A(f"s_add_u32 s{sT}, s{sT}, s{sCUR}")
    def msg_pack_store(pol):
        for n in range(4):
            A(f"v_mov_b32 v{XD+8*n+1}, v{XD+8*n+4}")
            A(f"v_mov_b32 v{XD+8*n+2}, v{vTG}")
            A(f"v_mov_b32 v{XD+8*n+3}, v{vTG+1}")
            A(f"buffer_store_dwordx4 {q4(XD+8*n)}, v{vON}, {S4(SC)}, s{sT} offen offset:{256*n} {pol}")
    def msg_round(sl0, pc=0, pol="sc1"):
        for n in range(8):
            if pc and n >= pc: A(f"s_waitcnt vmcnt({pc-1})")
            A(f"buffer_load_dwordx4 {slot(sl0+n)}, v{vOV}, {S4(SC)}, s{sCUR if n<4 else sNXT} offen offset:{1024*(n&3)} {pol}")
        A(f"s_add_u32 s{sSPIN}, s{sSPIN}, 1")
        A(f"v_mov_b32 v{vT}, 0")
        for n in range(8):
            A(f"s_waitcnt vmcnt({7-n})")
            A(f"v_xor_b32 v{vT+1}, v{SL+4*(sl0+n)+2}, v{vTG}")
            A(f"v_xor_b32 v{vT+2}, v{SL+4*(sl0+n)+3}, v{vTG+1}")
            A(f"v_or3_b32 v{vT}, v{vT}, v{vT+1}, v{vT+2}")
        A(f"v_cmp_ne_u32 vcc, 0, v{vT}")
        A("s_nop 1")
        A("s_cmp_eq_u64 vcc, 0")
    def msg_sum(sl0):
        for st in (4, 2, 1):
            for n in range(st):
                A(f"v_pk_add_f32 {p2(SL+4*(sl0+n))}, {p2(SL+4*(sl0+n))}, {p2(SL+4*(sl0+n+st))}")
    tile_mma("s_waitcnt vmcnt(9)", "s_waitcnt vmcnt(1)")
    A("s_waitcnt vmcnt(0)")
    tag_from_epoch(vTG, vT)
    msg_addr(W_QA)
    A(f"s_add_u32 s{sBASE}, s{sT}, {hex(W_QB-W_QA)}")
    A("s_nop 2")
    if noq == 1: A("s_branch L_qnl")
    msg_pack_store("")
    def storeB():
        for n in range(4):
            A(f"buffer_store_dwordx4 {q4(XD+8*n)}, v{vON}, {S4(SC)}, s{sBASE} offen offset:{256*n} sc1")
    stamp(2)
    A(f"ds_write_b128 v{vOV}, {q4(XE)} offset:{L_XE}")
    A(f"ds_write_b128 v{vOV}, {q4(XE+4)} offset:{L_XE+1024}")
    A(f"ds_write_b64 v{vL2}, {p2(vTG)} offset:{L_TG}")
    A(f"s_lshl_b32 s{sT}, s{sB}, 13")
    A(f"s_add_u32 s{sCUR}, s{sCUR}, s{sT}")
    A(f"s_add_u32 s{sNXT}, s{sCUR}, 4096")
    A(f"s_mov_b32 s{sSPIN}, 0")
    if qpre: A(f"s_sleep {qpre}")
    if qlite:
        A(f"v_lshlrev_b32 v{vT+3}, 10, v{vLANE}")
        A(f"v_add_u32 v{vT+3}, 1008, v{vT+3}")
        A("s_mov_b64 exec, 0xff")
        A.lab("L_ql")
        A(f"buffer_load_dwordx4 {slot(0)}, v{vT+3}, {S4(SC)}, s{sCUR} offen sc1")
        A(f"s_add_u32 s{sSPIN}, s{sSPIN}, 1")
        A("s_waitcnt vmcnt(0)")
        A(f"v_xor_b32 v{vT+1}, v{SL+2}, v{vTG}")
        A(f"v_xor_b32 v{vT+2}, v{SL+3}, v{vTG+1}")
        A(f"v_or_b32 v{vT}, v{vT+1}, v{vT+2}")
        A(f"v_cmp_ne_u32 vcc, 0, v{vT}")
        A("s_nop 1")
        A("s_cmp_eq_u64 vcc, 0")
        A("s_cbranch_scc1 L_ql_ok")
        A(f"s_cmp_lt_u32 s{sSPIN}, {NA-1}")
        A("s_cbranch_scc1 L_ql")
        A.lab("L_ql_ok")
        A("s_mov_b64 exec, -1")
    A.lab("L_qp")
    msg_round(0)
    A("s_cbranch_scc1 L_qp_ok")
    A(f"s_cmp_eq_u32 s{sSPIN}, {NA}")
    A("s_cbranch_scc0 L_qp_c")
    storeB()
    A(f"s_add_u32 s{sCUR}, s{sCUR}, {hex(W_QB-W_QA)}")
    A(f"s_add_u32 s{sNXT}, s{sNXT}, {hex(W_QB-W_QA)}")
    A.lab("L_qp_c")
    A(f"s_cmp_lt_u32 s{sSPIN}, {SPINMAX}")
    A("s_cbranch_scc1 L_qp")
    A.lab("L_qp_ok")
    stamp(6)
    if stamps: A(f"v_writelane_b32 v{vST}, s{sSPIN}, 60")
    msg_sum(0)
    A(f"v_cvt_pk_bf16_f32 v{vT}, v{SL}, v{SL+1}")
    A(f"v_lshlrev_b32 v{vT+1}, 2, v{vG}")
    A(f"v_lshl_add_u32 v{vT+1}, v{vR}, 4, v{vT+1}")
    A(f"ds_write_b32 v{vT+1}, v{vT} offset:{L_Q}")
    if noq == 2: A("s_branch L_qnl")
    storeB()
    A(f"s_cmp_eq_u32 s{sMU}, 0")
    A("s_cbranch_scc0 L_qnl")
    A(f"v_lshlrev_b32 v{vT}, 3, v{vLANE}")
    A("s_mov_b64 exec, 0xffff")
    A(f"buffer_store_dwordx2 {p2(vTG)}, v{vT}, {S4(SC)}, s{sT3} offen sc1")
    A("s_mov_b64 exec, -1")
    A.lab("L_qnl")
    A("s_waitcnt lgkmcnt(0)")
    if qprio: A("s_setprio 0")
    A.lab("L_bar1")
    A("s_barrier")
    stamp(3)
    cut(1)
    build_masks()
    A(f"v_mov_b32 v{vL2}, 0")
    A(f"v_lshlrev_b32 v{vT}, 5, v{vR}")
    A(f"v_lshl_add_u32 v{vL0}, v{vG}, 4, v{vT}")
    A(f"s_lshl_b32 s{sPO}, s{sB}, 5")
    A(f"s_add_u32 s{sPO}, s{sPO}, s{sH}")
    A(f"s_lshl_b32 s{sPO}, s{sPO}, 1")
    A(f"s_add_u32 s{sPO}, s{sPO}, s{sSP}")
    A(f"s_lshl_b32 s{sPO}, s{sPO}, 10")
    A(f"s_add_u32 s{sPO}, s{sPO}, {hex(W_Z)}")
    vTB = vBQ + 10
    vPO = SL + 128
    vGt = vPO + 8
    vXr = vPO + 12
    if fc:
        A(f"s_cmp_eq_u32 s{sJ}, 2")
        A("s_cbranch_scc0 L_nz")
        A(f"s_and_b32 s{sCUR}, s2, 7")
        A(f"s_lshl_b32 s{sCUR}, s{sCUR}, 8")
        A(f"s_add_u32 s{sCUR}, s{sCUR}, {hex(W_PG)}")
        A(f"s_lshr_b32 s{sNXT}, s2, 3")
        A(f"s_lshl_b32 s{sNXT}, s{sNXT}, 2")
        A(f"s_add_u32 s{sNXT}, s{sNXT}, s{sCUR}")
        A(f"v_mov_b32 v{vT}, 0x40000000")
        A("s_mov_b64 exec, 1")
        A(f"buffer_store_dword v{vT}, v{vL2}, {S4(SC)}, s{sNXT} offen")
        A(f"buffer_store_dword v{vT}, v{vL2}, {S4(SC)}, s{sCUR} offen offset:128")
        if fc.get("glob", True):
            A("s_cmp_lt_u32 s2, 8")
            A("s_cbranch_scc0 L_nz2")
            A(f"s_add_u32 s{sT}, s{sCUR}, 0x1000")
            A(f"buffer_store_dword v{vT}, v{vL2}, {S4(SC)}, s{sT} offen sc1")
            A.lab("L_nz2")
        A("s_mov_b64 exec, -1")
        A.lab("L_nz")
    A(f"s_cmp_eq_u32 s{sJ}, 1")
    A("s_cbranch_scc1 L_f1")
    A(f"s_cmp_eq_u32 s{sJ}, 3")
    A("s_cbranch_scc0 L_wo")
    if 'c' in skip: A("s_branch L_wo")
    if not clr0:
        for i in range(4):
            A(f"v_mov_b32 v{vBQ+i}, -1")
        A(f"s_lshl_b32 s{sT}, s2, 11")
        A(f"buffer_store_dwordx4 {q4(vBQ)}, v{vOV}, {S4(SC)}, s{sT} offen sc1")
        A(f"buffer_store_dwordx4 {q4(vBQ)}, v{vOV}, {S4(SC)}, s{sT} offen offset:1024 sc1")
    A(f"s_lshl_b32 s{sT}, s{sB}, 7")
    A(f"s_add_u32 s{sT}, s{sT}, {hex(W_EB)}")
    A(f"buffer_load_dwordx2 {p2(vTB)}, v{vL2}, {S4(SC)}, s{sT} offen sc1")
    A("s_branch L_wo")
    A.lab("L_f1")
    if 'f' in skip: A("s_branch L_f1x")
    A(f"s_cmp_lt_u32 s{sH}, {NFFN}")
    A("s_cbranch_scc0 L_f1x")
    A(f"ds_read_b128 {q4(XE)}, v{vOV} offset:{L_XE}")
    A(f"ds_read_b128 {q4(XE+4)}, v{vOV} offset:{L_XE+1024}")
    A(f"ds_read_b64 {p2(vTG)}, v{vL2} offset:{L_TG}")
    for i in range(4):
        A(f"v_mov_b32 v{vD0+i}, -1")
    if not clr0: A(f"buffer_store_dwordx4 {q4(vD0)}, v{vOV}, {S4(SC)}, s{sPO} offen sc1")
    tile_mma(f"s_waitcnt vmcnt({0 if clr0 else 1}) lgkmcnt(0)", None)
    msg_addr(W_FP)
    A("s_nop 4")
    if fdual:
        A(f"s_add_u32 s{sBASE}, s{sT}, {hex(W_FB-W_FP)}")
        msg_pack_store("")
        storeB()
    else:
        msg_pack_store("sc1")
    A("s_waitcnt vmcnt(0)")
    A.lab("L_f1x")
    A(f"v_mov_b32 v{vT}, {L_CM}")
    A(f"v_mov_b32 v{vT+1}, 256")
    A("s_mov_b64 exec, 1")
    A(f"ds_add_u32 v{vT}, v{vT+1}")
    A("s_mov_b64 exec, -1")
    A.lab("L_wo")
    stamp(4)
    cut(3)
    def wo_setup():
        srd(SN, sWO, 0x400000)
        A(f"v_lshlrev_b32 v{vT}, 10, v{vG}")
        A(f"v_lshl_add_u32 v{vOA}, v{vR}, 4, v{vT}")
        A(f"s_lshl_b32 s{sBASE}, s{sH}, 17")
        A(f"s_lshl_b32 s{sT}, s{sJ}, 8")
        A(f"s_add_u32 s{sBASE}, s{sBASE}, s{sT}")
    wo_setup()
    if 'w' in skip: A("s_branch L_woe")
    def wo_loads(dd, hook=False):
        for k in range(32):
            if hook and k == fearly:
                A(f"s_cmp_eq_u32 s{sJ}, 1")
                A("s_cbranch_scc0 L_woc")
                A(f"s_cmp_lt_u32 s{sH}, {NFFN}")
                A("s_cbranch_scc1 L_st2")
                A.lab("L_wor")
                wo_setup()
                A.lab("L_woc")
            if k >= dd: A(f"s_waitcnt vmcnt({dd-1})")
            A(f"s_add_u32 s{sT}, s{sBASE}, {hex(k*4096)}")
            A(f"buffer_load_dwordx4 {slot(k)}, v{vOA}, {S4(SN)}, s{sT} offen {pola}")
    if fc and fc.get("d2"):
        A(f"s_lshr_b32 s{sT}, s2, 3")
        A(f"s_or_b32 s{sT}, s{sT}, s{sJ}")
        A(f"s_cselect_b32 s{sT}, s{sJ}, {2 if fc.get('glob', True) else 0}")
        A(f"s_cmp_eq_u32 s{sT}, 2")
        A("s_cbranch_scc0 L_wos")
        wo_loads(fc["d2"])
        A("s_branch L_woe")
        A.lab("L_wos")
    wo_loads(da, bool(fearly))
    A.lab("L_woe")
    A("s_waitcnt vmcnt(0)")
    stamp(5)
    cut(4)
    A(f"v_lshrrev_b32 v{vT}, 3, v{vLANE}")
    A(f"v_lshlrev_b32 v{vT}, 11, v{vT}")
    A(f"v_and_b32 v{vT+1}, 7, v{vLANE}")
    A(f"v_lshl_add_u32 v{vPO}, v{vT+1}, 4, v{vT}")
    for n in range(1, 8):
        A(f"v_add_u32 v{vPO+n}, {hex(n*16384)}, v{vPO}")
    A(f"v_lshlrev_b32 v{vL1}, 3, v{vT+1}")

    def gemv(n, ppf, waitf, issuef=None, slotf=lambda k: k):
        diag(vA0, *ppf(0))
        for k in range(n):
            Acur = vA0 if (k & 1) == 0 else vA1
            Anxt = vA1 if (k & 1) == 0 else vA0
            if k + 1 < n: diag(Anxt, *ppf(k + 1))
            else: A("s_nop 1")
            waitf(k)
            A(f"v_mfma_f32_16x16x32_bf16 {q4(vD0)}, {q4(Acur)}, {slot(slotf(k))}, {'0' if k==0 else q4(vD0)}")
            if issuef: issuef(k)
        A("s_nop 7")
    def lds_wait(mask, val):
        lab = A.uid("lw")
        A(f"v_mov_b32 v{vT}, {L_CM}")
        A(f"s_mov_b32 s{sSPIN}, 0")
        A.lab(lab)
        A(f"ds_read_b32 v{vT+1}, v{vT}")
        A("s_waitcnt lgkmcnt(0)")
        A(f"v_readfirstlane_b32 s{sT}, v{vT+1}")
        A(f"s_add_u32 s{sSPIN}, s{sSPIN}, 1")
        A(f"s_and_b32 s{sT}, s{sT}, {hex(mask)}")
        A(f"s_cmp_eq_u32 s{sT}, {hex(val)}")
        A(f"s_cbranch_scc1 {lab}_ok")
        A("s_sleep 16")
        A(f"s_cmp_lt_u32 s{sSPIN}, {SPINMAX}")
        A(f"s_cbranch_scc1 {lab}")
        A.lab(lab + "_ok")
    def poll(nload, regs, voffs, soff, sleep):
        lab = A.uid("pl")
        A(f"s_mov_b32 s{sSPIN}, 0")
        A.lab(lab)
        for n in range(nload):
            A(f"buffer_load_dwordx4 {q4(regs+4*n)}, v{voffs[n]}, {S4(SC)}, s{soff} offen sc1")
        A(f"s_add_u32 s{sSPIN}, s{sSPIN}, 1")
        for n in range(nload):
            A(f"s_waitcnt vmcnt({nload-1-n})")
            r = regs + 4 * n
            if n == 0:
                A(f"v_max3_u32 v{vT}, v{r}, v{r+1}, v{r+2}")
                A(f"v_max_u32 v{vT}, v{vT}, v{r+3}")
            else:
                A(f"v_max3_u32 v{vT}, v{vT}, v{r}, v{r+1}")
                A(f"v_max3_u32 v{vT}, v{vT}, v{r+2}, v{r+3}")
        A(f"v_cmp_eq_u32 vcc, -1, v{vT}")
        A("s_nop 1")
        A("s_cmp_eq_u64 vcc, 0")
        A(f"s_cbranch_scc1 {lab}_ok")
        if sleep: A(f"s_sleep {sleep}")
        A(f"s_cmp_lt_u32 s{sSPIN}, {SPINMAX}")
        A(f"s_cbranch_scc1 {lab}")
        A.lab(lab + "_ok")
    def reduce_rows(regs, nload):
        n = nload
        while n > 1:
            h = n // 2
            for a in range(h):
                for i in (0, 2):
                    A(f"v_pk_add_f32 {p2(regs+4*a+i)}, {p2(regs+4*a+i)}, {p2(regs+4*(a+h)+i)}")
            n = h
        A("s_nop 1")
        for i in range(4):
            A(f"v_add_f32_dpp v{regs+i}, v{regs+i}, v{regs+i} row_ror:8 row_mask:0xf bank_mask:0xf")
        for sw in ("v_permlane16_swap_b32", "v_permlane32_swap_b32"):
            for i in range(4):
                A(f"v_mov_b32 v{regs+4+i}, v{regs+i}")
            A("s_nop 1")
            for i in range(4):
                A(f"{sw} v{regs+i}, v{regs+4+i}")
            A("s_nop 1")
            for i in range(4):
                A(f"v_add_f32 v{regs+i}, v{regs+i}, v{regs+4+i}")

    A(f"s_cmp_eq_u32 s{sJ}, 3")
    A("s_cbranch_scc1 L_w3")
    if fc:
        U = fc.get("U", 8)
        PEND = 4 * U * (16 - R // 16 + fc.get("vend", 13))
        LIM = 2 * 4 * U * 3
        sPP, sGP, sP, sE = 72, 73, 74, 78
        A(f"s_cmp_eq_u32 s{sJ}, 2")
        A("s_cbranch_scc0 L_nctl")
        A(f"s_and_b32 s{sCUR}, s2, 7")
        A(f"s_lshl_b32 s{sCUR}, s{sCUR}, 8")
        A(f"s_add_u32 s{sCUR}, s{sCUR}, {hex(W_PG)}")
        A(f"s_lshr_b32 s{sNXT}, s2, 3")
        A(f"s_lshl_b32 s{sNXT}, s{sNXT}, 2")
        A(f"s_add_u32 s{sNXT}, s{sNXT}, s{sCUR}")
        A(f"v_lshlrev_b32 v{vON}, 2, v{vLANE}")
        A(f"v_mov_b32 v{vT7}, {L_PW}")
        A(f"v_and_b32 v{vPB}, 3, v{vLANE}")
        A(f"v_lshlrev_b32 v{vPB}, 2, v{vPB}")
        A(f"s_mov_b32 s{sPP}, -1")
        for th in fc["thr"]:
            if isinstance(th, tuple):
                A(f"s_getreg_b32 s{sT}, hwreg(HW_REG_XCC_ID)")
                A(f"s_mov_b32 s79, {int(th[0] * 64 * 4 * U / 2.2)}")
                A(f"s_bitcmp1_b32 s{sT}, 0")
                A(f"s_cselect_b32 s79, {int(th[1] * 64 * 4 * U / 2.2)}, s79")
        A(f"s_mov_b32 s{sGP}, 0")
        A(f"s_mov_b32 s{sSPIN}, 0")
        A.lab("L_ctl")
        A(f"ds_read_b128 {q4(vBQ)}, v{vT7}")
        A("s_waitcnt lgkmcnt(0)")
        A(f"v_add3_u32 v{vBQ}, v{vBQ}, v{vBQ+1}, v{vBQ+2}")
        A(f"v_add_u32 v{vBQ}, v{vBQ}, v{vBQ+3}")
        A("s_mov_b64 exec, 1")
        A(f"buffer_store_dword v{vBQ}, v{vL2}, {S4(SC)}, s{sNXT} offen")
        A("s_mov_b64 exec, -1")
        if fc.get("half"): A("s_mov_b32 exec_hi, 0")
        A(f"buffer_load_dword v{vBQ+4}, v{vON}, {S4(SC)}, s{sCUR} offen {fc.get('pol','sc1')}")
        if fc.get("half"): A("s_mov_b64 exec, -1")
        A(f"v_readfirstlane_b32 s{sP}, v{vBQ}")
        A(f"s_add_u32 s{sSPIN}, s{sSPIN}, 1")
        A(f"s_cmp_eq_u32 s{sPP}, -1")
        A(f"s_cselect_b32 s{sPP}, s{sP}, s{sPP}")
        A(f"s_add_u32 s{sT}, s{sP}, s{sPP}")
        A(f"s_mov_b32 s{sPP}, s{sP}")
        A("s_waitcnt vmcnt(0)")
        A(f"v_lshlrev_b32 v{vBQ+5}, 1, v{vBQ+4}")
        A(f"v_subrev_u32 v{vBQ+5}, s{sT}, v{vBQ+5}")
        A(f"v_add_u32 v{vBQ+6}, {LIM}, v{vBQ+5}")
        A(f"v_cmp_gt_u32 vcc, {2*LIM}, v{vBQ+6}")
        A("s_nop 1")
        A("s_mov_b32 vcc_hi, 0")
        A("s_nop 1")
        A(f"v_cndmask_b32 v{vBQ+5}, 0, v{vBQ+5}, vcc")
        A(f"v_readlane_b32 s{sE}, v{vBQ+4}, 32")
        for n in (8, 4, 2, 1):
            A("s_nop 1")
            A(f"v_add_u32_dpp v{vBQ+5}, v{vBQ+5}, v{vBQ+5} row_ror:{n} row_mask:0xf bank_mask:0xf")
        A("s_nop 0")
        A(f"v_readlane_b32 s{sM0}, v{vBQ+5}, 0")
        A(f"v_readlane_b32 s{sM0+1}, v{vBQ+5}, 16")
        A(f"s_add_u32 s{sT2}, s{sE}, {32*LIM}")
        A(f"s_cmp_lt_u32 s{sT2}, {64*LIM}")
        A(f"s_cselect_b32 s{sE}, s{sE}, 0")
        if not fc.get("glob", True): A(f"s_mov_b32 s{sE}, 0")
        if fc.get("clamp"):
            cl = int(fc["clamp"] * 64 * 4 * U / 2.2)
            A(f"s_min_i32 s{sE}, s{sE}, {cl}")
            A(f"s_max_i32 s{sE}, s{sE}, {-cl if not fc.get('oneside') else 0}")
        A(f"s_add_u32 s{sM0}, s{sM0}, s{sM0+1}")
        A(f"s_sub_u32 s{sE}, s{sM0}, s{sE}")
        A(f"ds_read_b128 {q4(vBQ+8)}, v{vT7}")
        A(f"ds_read_b32 v{vBQ+6}, v{vPB} offset:{L_PW}")
        A("s_waitcnt lgkmcnt(0)")
        A(f"v_add3_u32 v{vBQ+8}, v{vBQ+8}, v{vBQ+9}, v{vBQ+10}")
        A(f"v_lshlrev_b32 v{vBQ+6}, 2, v{vBQ+6}")
        A(f"v_add_u32 v{vBQ+8}, v{vBQ+8}, v{vBQ+11}")
        A(f"v_sub_u32 v{vBQ+6}, v{vBQ+8}, v{vBQ+6}")
        A(f"v_mul_i32_i24 v{vBQ+6}, {fc.get('wgain', 64)}, v{vBQ+6}")
        A(f"v_add_u32 v{vBQ+6}, s{sE}, v{vBQ+6}")
        A(f"v_mov_b32 v{vBQ+7}, 0")
        for ti, th in enumerate(fc["thr"]):
            if isinstance(th, tuple): A(f"v_cmp_le_i32 vcc, s79, v{vBQ+6}")
            else: A(f"v_cmp_le_i32 vcc, {int(th * 64 * 4 * U / 2.2)}, v{vBQ+6}")
            A("s_nop 1")
            A(f"v_addc_co_u32 v{vBQ+7}, vcc, 0, v{vBQ+7}, vcc")
        A(f"ds_write_b32 v{vPB}, v{vBQ+7} offset:{L_LV}")
        if fc.get("sleep", 0): A(f"s_sleep {fc['sleep']}")
        A(f"s_cmp_ge_u32 s{sSPIN}, {SPINMAX}")
        A("s_cbranch_scc1 L_bar2")
        A(f"s_cmp_lt_u32 s{sP}, {PEND}")
        A("s_cbranch_scc1 L_ctl")
        if stamps: A(f"v_writelane_b32 v{vST}, s{sSPIN}, 60")
        A("s_branch L_bar2")
        A.lab("L_nctl")
        if fc.get("glob", True):
            A(f"s_lshr_b32 s{sT}, s2, 3")
            A(f"s_or_b32 s{sT}, s{sT}, s{sJ}")
            A("s_cbranch_scc1 L_nrep")
            A(f"s_lshl_b32 s{sCUR}, s2, 8")
            A(f"s_add_u32 s{sCUR}, s{sCUR}, {hex(W_PG)}")
            A(f"v_lshlrev_b32 v{vON}, 2, v{vLANE}")
            A(f"s_mov_b32 s{sGP}, 0")
            A(f"s_mov_b32 s{sSPIN}, 0")
            A(f"s_mov_b32 s{sPP}, 0")
            A(f"v_lshlrev_b32 v{vOA}, 8, v{vLANE}")
            A(f"s_mov_b32 s{sNXT}, {hex(W_PG + 0x1000)}")
            A(f"s_add_u32 s{sBASE}, s{sCUR}, 0x1000")
            if stamps: A(f"v_mov_b32 v{vPG}, 0")
            A.lab("L_rep")
            A(f"s_add_u32 s{sPP}, s{sPP}, 1")
            A(f"s_cmp_ge_u32 s{sPP}, {SPINMAX}")
            A("s_cbranch_scc1 L_bar2")
            A(f"buffer_load_dword v{vBQ+4}, v{vON}, {S4(SC)}, s{sCUR} offen sc1")
            A("s_waitcnt vmcnt(0)")
            A(f"v_readlane_b32 s{sP}, v{vBQ+4}, 0")
            A("s_nop 1")
            A(f"s_cmp_ge_u32 s{sP}, 0x10000000")
            A("s_cbranch_scc1 L_rep")
            A(f"s_add_u32 s{sSPIN}, s{sSPIN}, 1")
            A(f"v_subrev_u32 v{vBQ+5}, s{sP}, v{vBQ+4}")
            A(f"v_add_u32 v{vBQ+6}, {LIM//2}, v{vBQ+5}")
            A(f"v_cmp_gt_u32 vcc, {LIM}, v{vBQ+6}")
            A("s_nop 1")
            A(f"v_cndmask_b32 v{vBQ+5}, 0, v{vBQ+5}, vcc")
            for n in (8, 4, 2, 1):
                A("s_nop 1")
                A(f"v_add_u32_dpp v{vBQ+5}, v{vBQ+5}, v{vBQ+5} row_ror:{n} row_mask:0xf bank_mask:0xf")
            A("s_nop 0")
            A(f"v_readlane_b32 s{sM0}, v{vBQ+5}, 0")
            A(f"v_readlane_b32 s{sM0+1}, v{vBQ+5}, 16")
            A(f"s_lshl_b32 s{sT}, s{sP}, 5")
            A(f"s_add_u32 s{sT}, s{sT}, s{sM0}")
            A(f"s_add_u32 s{sT}, s{sT}, s{sM0+1}")
            A(f"s_lshl_b32 s{sT}, s{sT}, 1")
            A(f"v_mov_b32 v{vBQ+6}, s{sT}")
            A("s_mov_b64 exec, 0xff")
            A(f"buffer_load_dword v{vBQ+8}, v{vOA}, {S4(SC)}, s{sNXT} offen sc1")
            A("s_mov_b32 exec_lo, -1")
            A(f"buffer_store_dword v{vBQ+6}, v{vON}, {S4(SC)}, s{sBASE} offen sc1")
            A("s_mov_b64 exec, -1")
            A(f"s_add_u32 s{sM1}, s{sT}, s{sGP}")
            A(f"s_lshr_b32 s{sM1}, s{sM1}, 1")
            A("s_waitcnt vmcnt(1)")
            A(f"v_sub_u32 v{vBQ+8}, s{sM1}, v{vBQ+8}")
            A(f"v_add_u32 v{vBQ+9}, {32*LIM}, v{vBQ+8}")
            A(f"v_cmp_gt_u32 vcc, {64*LIM}, v{vBQ+9}")
            A("s_nop 1")
            A(f"s_lshl_b32 s{sT2}, 1, s2")
            A(f"s_xor_b32 s{sT2}, s{sT2}, 0xff")
            A(f"s_and_b32 vcc_lo, vcc_lo, s{sT2}")
            A("s_nop 1")
            A(f"v_cndmask_b32 v{vBQ+8}, 0, v{vBQ+8}, vcc")
            for n in (4, 2, 1):
                A("s_nop 1")
                A(f"v_add_u32_dpp v{vBQ+8}, v{vBQ+8}, v{vBQ+8} row_ror:{n} row_mask:0xf bank_mask:0xf")
            A("s_nop 0")
            A(f"v_readlane_b32 s{sM1}, v{vBQ+8}, 7")
            A("s_nop 0")
            A(f"s_ashr_i32 s{sM1}, s{sM1}, 3")
            A(f"s_sub_i32 s{sM1}, s{sM1}, {int(fc.get('gbias', 0.0) * 64 * 4 * U / 2.2)}")
            A(f"s_cmp_le_u32 s{sSPIN}, 1")
            A(f"s_cselect_b32 s{sM1}, 0, s{sM1}")
            A(f"s_mov_b32 s{sGP}, s{sT}")
            A(f"v_mov_b32 v{vBQ+6}, s{sM1}")
            A("s_mov_b64 exec, 1")
            if not fc.get("nost"): A(f"buffer_store_dword v{vBQ+6}, v{vL2}, {S4(SC)}, s{sCUR} offen offset:128")
            A("s_mov_b64 exec, -1")
            if fc.get("gsleep"): A(f"s_sleep {fc['gsleep']}")
            if stamps:
                A(f"s_min_u32 m0, s{sSPIN}, 47")
                A(f"s_add_u32 m0, m0, 12")
                A("s_nop 0")
                A(f"v_writelane_b32 v{vPG}, s{sM1}, m0")
            A(f"s_cmp_ge_u32 s{sSPIN}, {SPINMAX}")
            A("s_cbranch_scc1 L_bar2")
            A(f"s_cmp_lt_u32 s{sP}, {PEND - 4*U}")
            A("s_cbranch_scc1 L_rep")
            if stamps:
                srd(SE, sWS, 0x700000)
                A(f"s_lshl_b32 s{sT}, s2, 8")
                A(f"s_add_u32 s{sT}, s{sT}, 0x600000")
                A(f"buffer_store_dword v{vPG}, v{vON}, {S4(SE)}, s{sT} offen")
            A("s_branch L_bar2")
            A.lab("L_nrep")
    A(f"s_cmp_eq_u32 s{sJ}, 1")
    A("s_cbranch_scc0 L_bar2")
    A(f"s_cmp_lt_u32 s{sH}, {NFFN}")
    A("s_cbranch_scc0 L_bar2")
    if fearly or 's' in skip: A("s_branch L_bar2")
    A.lab("L_st2")
    A(f"s_lshl_b32 s{sCUR}, s{sH}, 15")
    A(f"s_lshl_b32 s{sT}, s{sB}, 13")
    A(f"s_add_u32 s{sCUR}, s{sCUR}, s{sT}")
    A(f"s_add_u32 s{sCUR}, s{sCUR}, {hex(W_FP)}")
    A(f"s_add_u32 s{sNXT}, s{sCUR}, 4096")
    A(f"s_mov_b32 s{sSPIN}, 0")
    if fstag:
        U_ = fc.get("U", 8)
        A(f"s_lshr_b32 s{sT2}, s2, 3")
        A(f"s_mul_i32 s{sT2}, s{sT2}, {fstag[1]}")
        A(f"s_add_u32 s{sT2}, s{sT2}, {fstag[0]}")
        A(f"v_mov_b32 v{vT}, {L_PW}")
        A.lab("L_fs")
        A(f"ds_read_b32 v{vT+1}, v{vT}")
        A("s_waitcnt lgkmcnt(0)")
        A(f"v_readfirstlane_b32 s{sT}, v{vT+1}")
        A(f"s_add_u32 s{sSPIN}, s{sSPIN}, 1")
        A(f"s_cmp_ge_u32 s{sT}, s{sT2}")
        A("s_cbranch_scc1 L_fs_ok")
        A("s_sleep 8")
        A(f"s_cmp_lt_u32 s{sSPIN}, {SPINMAX}")
        A("s_cbranch_scc1 L_fs")
        A.lab("L_fs_ok")
        A(f"s_mov_b32 s{sSPIN}, 0")
    if 'g' in skip: A("s_branch L_fp_ok")
    if fdual:
        A.lab("L_fa")
        msg_round(40, gpace, polGA)
        A("s_cbranch_scc1 L_fp_ok")
        A("s_sleep 16")
        A(f"s_cmp_lt_u32 s{sSPIN}, 4")
        A("s_cbranch_scc1 L_fa")
        A(f"s_add_u32 s{sCUR}, s{sCUR}, {hex(W_FB-W_FP)}")
        A(f"s_add_u32 s{sNXT}, s{sNXT}, {hex(W_FB-W_FP)}")
    A.lab("L_fp")
    msg_round(40, gpace)
    A("s_cbranch_scc1 L_fp_ok")
    A("s_sleep 16")
    A(f"s_cmp_lt_u32 s{sSPIN}, {SPINMAX}")
    A("s_cbranch_scc1 L_fp")
    A.lab("L_fp_ok")
    msg_sum(40)
    H = SL + 160
    for i in range(2):
        rne(H + i, vT)
    A("s_nop 1")
    for i in range(2):
        A(f"v_mov_b32_dpp v{vBQ+i}, v{H+i} row_ror:8 row_mask:0xf bank_mask:0xf")
    for i in range(2):
        silu(H + i, vT)
        rne(H + i, vT)
        A(f"v_mul_f32 v{H+i}, v{H+i}, v{vBQ+i}")
        A(f"v_cvt_pk_bf16_f32 v{vP0+i}, v{H+i}, v{H+i}")
    srd(SA, sW2, 0 if '2' in skip else 1792 * 512 * 2)
    A(f"v_lshlrev_b32 v{vT}, 11, v{vG}")
    A(f"v_lshl_add_u32 v{vOA}, v{vR}, 4, v{vT}")
    A(f"s_lshl_b32 s{sBASE}, s{sH}, 16")
    A(f"s_lshl_b32 s{sT}, s{sSP}, 9")
    A(f"s_add_u32 s{sBASE}, s{sBASE}, s{sT}")
    fsl = lambda k: 40 + (k & 7)
    def w2load(kk):
        cb, k = kk >> 4, kk & 15
        A(f"s_add_u32 s{sT}, s{sBASE}, {hex((8*(k&7) + (k>>3))*1024 + cb*256)}")
        A(f"buffer_load_dwordx4 {slot(fsl(kk))}, v{vOA}, {S4(SA)}, s{sT} offen {pola}")
    for cb in range(2):
        for k in range(df): w2load(16 * cb + k)
        gemv(16, lambda k: (vP0 + (k >> 3), k & 7),
             lambda k: A(f"s_waitcnt vmcnt({min(df-1, 15-k)})"),
             lambda k: w2load(16 * cb + k + df) if k + df < 16 else None, fsl)
        for i in range(4):
            A(f"v_min_u32 v{vD0+i}, -2, v{vD0+i}")
        A("s_mov_b32 exec_hi, 0")
        A(f"buffer_store_dwordx4 {q4(vD0)}, v{vL0}, {S4(SC)}, s{sPO} offen offset:{512*cb} sc1")
        A("s_mov_b64 exec, -1")
    stamp(6)
    A("s_branch L_wor" if fearly else "s_branch L_bar2")
    A.lab("L_w3")
    if bare == 5 or 'm' in skip:
        A("s_branch L_bar2")
    tag_from_epoch(vTB, vT)
    if vwarm:
        srd(SA, sV, 0x10000000)
        A(f"s_lshl_b32 s{sT}, s{sB}, 26")
        A(f"s_lshl_b32 s{sT2}, s{sH}, 21")
        A(f"s_or_b32 s{sT}, s{sT}, s{sT2}")
        A(f"buffer_load_dword v{vT+9}, v{vL2}, {S4(SA)}, s{sT} offen nt")
    lds_wait(0x10f, 0x104)
    A(f"v_mov_b32 v{vT}, {L_ML}")
    A(f"ds_read_b128 {q4(vBQ)}, v{vT}")
    A(f"ds_read_b128 {q4(vBQ+4)}, v{vT} offset:16")
    A("s_waitcnt lgkmcnt(0)")
    A(f"v_max_f32 v{vBQ+8}, v{vBQ}, v{vBQ+2}")
    A(f"v_max3_f32 v{vBQ+8}, v{vBQ+8}, v{vBQ+4}, v{vBQ+6}")
    A(f"v_mov_b32 v{vBQ+9}, 0")
    A(f"s_mov_b32 s{sT2}, {hex(LOG2E)}")
    for w in range(4):
        A(f"v_sub_f32 v{vT}, v{vBQ+2*w}, v{vBQ+8}")
        A(f"v_mul_f32 v{vT}, s{sT2}, v{vT}")
        A(f"v_exp_f32 v{vT}, v{vT}")
        A("s_nop 0")
        A(f"v_fmac_f32 v{vBQ+9}, v{vT}, v{vBQ+2*w+1}")
    A(f"s_lshl_b32 s{sT}, s2, {7 if fullml else 4}")
    A(f"s_add_u32 s{sT}, s{sT}, {hex(W_ML)}")
    A(f"s_mov_b64 exec, {0xff if fullml else 1}")
    A(f"buffer_store_dwordx4 {q4(vBQ+8)}, v{vOV}, {S4(SC)}, s{sT} offen sc1")
    A("s_mov_b64 exec, -1")
    stamp(6)
    lds_wait(0xf0, 0x40)
    A(f"s_lshl_b32 s{sNXT}, s{sB}, {13 if fullml else 10}")
    A(f"s_add_u32 s{sNXT}, s{sNXT}, {hex(W_ML)}")
    A(f"s_mov_b32 s{sSPIN}, 0")
    A(f"v_lshlrev_b32 v{vON}, {7 if fullml else 4}, v{vLANE}")
    if fullml:
        A(f"s_cmp_ge_u32 s{sIDX}, 48")
        A("s_cbranch_scc1 L_ml")
        A(f"s_xor_b32 s{sT}, s{sIDX}, 8")
        A(f"s_lshl_b32 s{sT}, s{sT}, 7")
        A(f"v_mov_b32 v{vON}, s{sT}")
    A.lab("L_ml")
    A(f"buffer_load_dwordx4 {q4(vBQ+12)}, v{vON}, {S4(SC)}, s{sNXT} offen sc1")
    A(f"s_add_u32 s{sSPIN}, s{sSPIN}, 1")
    A("s_waitcnt vmcnt(0)")
    A(f"v_xor_b32 v{vT}, v{vBQ+14}, v{vTB}")
    A(f"v_xor_b32 v{vT+1}, v{vBQ+15}, v{vTB+1}")
    A(f"v_or_b32 v{vT}, v{vT}, v{vT+1}")
    A(f"v_cmp_ne_u32 vcc, 0, v{vT}")
    A("s_nop 1")
    A("s_cmp_eq_u64 vcc, 0")
    A("s_cbranch_scc1 L_ml_ok")
    A("s_sleep 16")
    A(f"s_cmp_lt_u32 s{sSPIN}, {SPINMAX}")
    A("s_cbranch_scc1 L_ml")
    A.lab("L_ml_ok")
    A(f"s_xor_b32 s{sT}, s{sIDX}, 8")
    A("s_nop 0")
    A(f"v_readlane_b32 s{sM0}, v{vBQ+12}, s{sT}")
    A(f"v_readlane_b32 s{sM0+1}, v{vBQ+13}, s{sT}")
    A("s_nop 1")
    A(f"v_max_f32 v{vBQ+14}, s{sM0}, v{vBQ+8}")
    A(f"v_sub_f32 v{vT}, v{vBQ+8}, v{vBQ+14}")
    A(f"v_sub_f32 v{vT+1}, s{sM0}, v{vBQ+14}")
    A(f"v_mul_f32 v{vT}, s{sT2}, v{vT}")
    A(f"v_mul_f32 v{vT+1}, s{sT2}, v{vT+1}")
    A(f"v_exp_f32 v{vT}, v{vT}")
    A(f"v_exp_f32 v{vT+1}, v{vT+1}")
    A("s_nop 0")
    A(f"v_mul_f32 v{vT}, v{vT}, v{vBQ+9}")
    A(f"v_fmac_f32 v{vT}, s{sM0+1}, v{vT+1}")
    A(f"v_rcp_f32 v{vT+1}, v{vT}")
    for w in range(4):
        A(f"v_sub_f32 v{vT+2+w}, v{vBQ+2*w}, v{vBQ+14}")
        A(f"v_mul_f32 v{vT+2+w}, s{sT2}, v{vT+2+w}")
        A(f"v_exp_f32 v{vT+2+w}, v{vT+2+w}")
        A("s_nop 0")
        A(f"v_mul_f32 v{vT+2+w}, v{vT+2+w}, v{vT+1}")
    A(f"v_mov_b32 v{vT}, {L_FW}")
    A("s_mov_b64 exec, 1")
    A(f"ds_write_b128 v{vT}, {q4(vT+2)}")
    A("s_mov_b64 exec, -1")
    A(f"s_cmp_ge_u32 s{sIDX}, 48")
    A("s_cbranch_scc0 L_w3x")
    A(f"s_cmp_eq_u32 s{sIDX}, 48")
    A("s_cbranch_scc0 L_neb")
    A(f"s_lshl_b32 s{sT}, s{sB}, 7")
    A(f"s_add_u32 s{sT}, s{sT}, {hex(W_EB)}")
    A(f"v_lshlrev_b32 v{vT+1}, 3, v{vLANE}")
    A("s_mov_b64 exec, 0xffff")
    A(f"buffer_store_dwordx2 {p2(vTB)}, v{vT+1}, {S4(SC)}, s{sT} offen sc1")
    A("s_mov_b64 exec, -1")
    A.lab("L_neb")
    srd(SA, sX, 4096)
    A(f"s_sub_u32 s{sT2}, s{sIDX}, 48")
    A(f"s_lshl_b32 s{sT3}, s{sT2}, 6")
    A(f"s_lshl_b32 s{sT}, s{sB}, 10")
    A(f"s_add_u32 s{sT3}, s{sT3}, s{sT}")
    A(f"buffer_load_dwordx2 {p2(vXr)}, v{vL1}, {S4(SA)}, s{sT3} offen")
    A(f"v_cmp_gt_u32 vcc, {(NFFN-24)*8}, v{vLANE}")
    A(f"v_mov_b32 v{vT+3}, 0x40000000")
    A("s_nop 0")
    A(f"v_cndmask_b32 v{vON}, v{vT+3}, v{vPO+3}, vcc")
    A(f"s_lshl_b32 s{sCUR}, s{sB}, 16")
    A(f"s_lshl_b32 s{sT}, s{sT2}, 7")
    A(f"s_add_u32 s{sCUR}, s{sCUR}, s{sT}")
    A(f"s_add_u32 s{sCUR}, s{sCUR}, {hex(W_Z)}")
    if 's' not in skip: poll(4, vBQ, [vPO, vPO + 1, vPO + 2, vON], sCUR, 16)
    reduce_rows(vBQ, 4)
    for i in range(4):
        rne(vBQ + i, vT + 1)
        silu(vBQ + i, vT + 1)
        rne(vBQ + i, vT + 1)
        A(f"v_mov_b32 v{vGt+i}, v{vBQ+i}")
    A(f"v_and_b32 v{vXr+3}, 0xffff0000, v{vXr+1}")
    A(f"v_lshlrev_b32 v{vXr+2}, 16, v{vXr+1}")
    A(f"v_and_b32 v{vXr+1}, 0xffff0000, v{vXr}")
    A(f"v_lshlrev_b32 v{vXr}, 16, v{vXr}")
    A(f"s_lshl_b32 s{sCUR}, s{sB}, 17")
    A(f"s_lshl_b32 s{sT}, s{sT2}, 7")
    A(f"s_add_u32 s{sCUR}, s{sCUR}, s{sT}")
    A.lab("L_w3x")
    A("s_waitcnt lgkmcnt(0)")
    A.lab("L_bar2")
    A(f"v_lshlrev_b32 v{vT}, 4, v{vR}")
    A(f"v_lshl_add_u32 v{vT}, v{vG}, 2, v{vT}")
    A(f"v_mov_b32 v{vT+1}, {L_FW}")
    A(f"s_lshl_b32 s{sNXT}, s2, 11")
    A(f"s_lshl_b32 s{sT}, s{sJ}, 9")
    A(f"s_add_u32 s{sNXT}, s{sNXT}, s{sT}")
    srd(SA, sOUT, 4096)
    stamp(7)
    A("s_barrier")
    if bare in (5, 6) or 't' in skip: A("s_endpgm")
    A(f"ds_read_b128 {q4(vBQ+8)}, v{vT+1}")
    for w in range(4):
        A(f"ds_read_b32 v{vBQ+w}, v{vT} offset:{L_OP + w*512}")
        A(f"ds_read_b32 v{vBQ+4+w}, v{vT} offset:{L_OP + w*512 + 256}")
    A("s_waitcnt lgkmcnt(0)")
    for u, p in ((0, vP0), (1, vP1)):
        A(f"v_mul_f32 v{p}, v{vBQ+4*u}, v{vBQ+8}")
    for w in range(1, 4):
        for u, p in ((0, vP0), (1, vP1)):
            A(f"v_fmac_f32 v{p}, v{vBQ+4*u+w}, v{vBQ+8+w}")
    A(f"v_cvt_pk_bf16_f32 v{vP0}, v{vP0}, v{vP0}")
    A(f"v_cvt_pk_bf16_f32 v{vP1}, v{vP1}, v{vP1}")
    A("s_nop 1")
    gemv(32, lambda k: (vP0 + (k >> 4), k & 15), lambda k: None)
    for i in range(4):
        A(f"v_min_u32 v{vD0+i}, -2, v{vD0+i}")
    A("s_mov_b32 exec_hi, 0")
    A(f"buffer_store_dwordx4 {q4(vD0)}, v{vL0}, {S4(SC)}, s{sNXT} offen sc1")
    A("s_mov_b64 exec, -1")
    stamp(8)
    A(f"s_cmp_eq_u32 s{sJ}, 3")
    A("s_cbranch_scc0 L_auxend")
    A(f"s_cmp_ge_u32 s{sIDX}, 48")
    A("s_cbranch_scc0 L_auxend")
    if poll2:
        def pissue(r0):
            for n in range(8):
                A(f"buffer_load_dwordx4 {q4(r0+4*n)}, v{vPO+n}, {S4(SC)}, s{sCUR} offen sc1")
        def pcheck(r0):
            for n in range(8):
                A(f"s_waitcnt vmcnt({15-n})")
                r = r0 + 4 * n
                if n == 0:
                    A(f"v_max3_u32 v{vT}, v{r}, v{r+1}, v{r+2}")
                    A(f"v_max_u32 v{vT}, v{vT}, v{r+3}")
                else:
                    A(f"v_max3_u32 v{vT}, v{vT}, v{r}, v{r+1}")
                    A(f"v_max3_u32 v{vT}, v{vT}, v{r+2}, v{r+3}")
            A(f"v_cmp_eq_u32 vcc, -1, v{vT}")
            A("s_nop 1")
            A("s_cmp_eq_u64 vcc, 0")
        A(f"s_mov_b32 s{sSPIN}, 0")
        pissue(SL)
        A(f"s_sleep {poll2}")
        A.lab("L_p2")
        pissue(SL + 32)
        pcheck(SL)
        A("s_cbranch_scc1 L_p2a")
        pissue(SL)
        pcheck(SL + 32)
        A("s_cbranch_scc1 L_p2b")
        A(f"s_add_u32 s{sSPIN}, s{sSPIN}, 1")
        A(f"s_cmp_lt_u32 s{sSPIN}, {SPINMAX}")
        A("s_cbranch_scc1 L_p2")
        A.lab("L_p2b")
        for a in range(4):
            for i in (0, 2):
                A(f"v_pk_add_f32 {p2(SL+64+4*a+i)}, {p2(SL+32+4*a+i)}, {p2(SL+32+4*(a+4)+i)}")
        A("s_branch L_p2c")
        A.lab("L_p2a")
        for a in range(4):
            for i in (0, 2):
                A(f"v_pk_add_f32 {p2(SL+64+4*a+i)}, {p2(SL+4*a+i)}, {p2(SL+4*(a+4)+i)}")
        A.lab("L_p2c")
        FR = SL + 64
        reduce_rows(FR, 4)
    else:
        FR = SL
        poll(8, SL, [vPO + n for n in range(8)], sCUR, 1)
        reduce_rows(SL, 8)
    for i in range(4):
        rne(FR + i, vT + i)
    for i in range(4):
        A(f"v_mul_f32 v{FR+i}, v{FR+i}, v{vGt+i}")
    for i in range(4):
        rne(FR + i, vT + i)
    for i in range(4):
        A(f"v_add_f32 v{FR+i}, v{FR+i}, v{vXr+i}")
    A(f"v_cvt_pk_bf16_f32 v{FR+4}, v{FR}, v{FR+1}")
    A(f"v_cvt_pk_bf16_f32 v{FR+5}, v{FR+2}, v{FR+3}")
    A("s_mov_b64 exec, 0xff")
    A(f"buffer_store_dwordx2 v[{FR+4}:{FR+5}], v{vL1}, {S4(SA)}, s{sT3} offen {polo}")
    A("s_mov_b64 exec, -1")
    stamp(9)
    A.lab("L_auxend")
    stamp_flush()
    A.lab("L_end")
    A("s_endpgm")

    ref = open("recurrent_scan__mha_block_cached__glu_gated_swiglu__decode.s.ref").read()
    out = ref.split("; @launch")[0]
    out += f"; @launch grid=(256,1,1) block=(512,1,1) lds={LDS}\n"
    out += '.amdgcn_target "amdgcn-amd-amdhsa--gfx950"\n.text\n'
    out += f".globl {NAME}\n.p2align 8\n.type {NAME},@function\n{NAME}:\n"
    out += "\n".join(A.L) + "\n"
    out += '.section .rodata,"a"\n.p2align 6\n'
    out += f".amdhsa_kernel {NAME}\n"
    out += f"  .amdhsa_next_free_vgpr {NV}\n  .amdhsa_next_free_sgpr 80\n  .amdhsa_accum_offset {NV}\n"
    out += "  .amdhsa_group_segment_fixed_size 0\n  .amdhsa_kernarg_size 96\n  .amdhsa_user_sgpr_count 2\n"
    out += "  .amdhsa_user_sgpr_kernarg_segment_ptr 1\n  .amdhsa_system_sgpr_workgroup_id_x 1\n.end_amdhsa_kernel\n"
    return out

if __name__ == "__main__":
    fn = sys.argv[1]
    kw = eval("dict(%s)" % (sys.argv[2] if len(sys.argv) > 2 else ""))
    open(fn, "w").write(gen(**kw))
```

```python
import sys

NAME = "recurrent_scan__mha_block_cached__glu_gated_swiglu__decode_kernel"

class G:
    def __init__(s):
        s.L = []
        s.n = 0
    def __call__(s, t):
        s.L.append("    " + t)
    def lab(s, t):
        s.L.append(t + ":")
    def c(s, t):
        s.L.append("    ; " + t)
    def uid(s, p):
        s.n += 1
        return f"L_{p}{s.n}"

def gen(d=5, dpro=8, da=2, sb=15, stamps=False, R=48, LAG=8, NA=8, VLATE=4,
        polq="", polf="", polp="", pola="nt", bare=0, qprio=3, fc=None, dlast=None):
    dlast = dlast or d
    A = G()
    levels = [d] if fc is None else fc["levels"]
    assert max(levels) <= LAG
    sX, sK, sV, sWQ, sWO, sW1, sW3, sW2, sOUT, sDBG, sWS = 4, 6, 8, 10, 12, 16, 18, 20, 22, 24, 26
    sWAVE, sB, sH, sSP, sIDX, sJ, sMU = 28, 29, 30, 31, 32, 33, 34
    SA, SN, SC, SD_, SE = 36, 40, 44, 48, 52
    sCUR, sNXT, sT, sIT, sT2, sT3 = 56, 57, 58, 59, 60, 61
    sM0, sM1 = 62, 64
    sBASE, sSPIN, sLV, sPO = 66, 67, 68, 69
    sST = 70
    vLANE, vOA, vON, vOV, vG, vR, vT7 = 1, 2, 3, 4, 5, 6, 7
    vMK = 8
    vBQ = 12
    vD0, vD1 = 28, 32
    vS, vM = 36, 37
    vT = 38
    vA0, vA1 = 48, 52
    vP0, vP1 = 56, 57
    vL0, vL1, vL2 = 58, 59, 60
    vPG, vST, vPB = 61, 62, 63
    SL = 64
    NV = SL + 4 * R
    assert R >= 48 and NV <= 256
    slot = lambda i: f"v[{SL+4*i}:{SL+4*i+3}]"
    q4 = lambda r: f"v[{r}:{r+3}]"
    p2 = lambda r: f"v[{r}:{r+1}]"
    S4 = lambda b: f"s[{b}:{b+3}]"
    L_Q = 0
    L_TG = 256
    L_ML = 272
    L_FW = 304
    L_CM = 320
    L_LV = 324
    L_PW = 336
    L_OP = 2048
    L_XE = 4096
    L_SC = 8192
    LDS = L_SC + 4 * 16 * 64 * 4 + 256
    W_Y, W_Z, W_ML, W_EH, W_EB, W_PG = 0, 0x80000, 0xC0000, 0xC8000, 0xC9000, 0xCA000
    W_QA, W_QB, W_FP, W_SZ = 0x100000, 0x200000, 0x300000, 0x400000
    W_ST = 0x400000
    NFFN = 28
    LOG2E = 0x3FB8AA3B
    SCALE = 0x3DB504F3
    SPINMAX = 200000

    def srd(base, ptr, nbytes):
        A(f"s_mov_b32 s{base}, s{ptr}")
        A(f"s_mov_b32 s{base+1}, s{ptr+1}")
        A(f"s_mov_b32 s{base+2}, {hex(nbytes)}")
        A(f"s_mov_b32 s{base+3}, 0x00020000")
    def stamp(i):
        if not stamps: return
        A(f"s_memrealtime s[{sST}:{sST+1}]")
        A("s_waitcnt lgkmcnt(0)")
        A(f"v_writelane_b32 v{vST}, s{sST}, {i}")
    def stamp_it(base):
        if not stamps: return
        A(f"s_memrealtime s[{sST}:{sST+1}]")
        A(f"s_add_u32 m0, s{sIT}, {base}")
        A("s_waitcnt lgkmcnt(0)")
        A(f"v_writelane_b32 v{vST}, s{sST}, m0")
    def stamp_flush():
        if not stamps: return
        A(f"v_writelane_b32 v{vST}, s76, 10")
        A(f"v_writelane_b32 v{vST}, s75, 61")
        srd(SE, sWS, 0x500000)
        A(f"s_lshl_b32 s{sT}, s2, 3")
        A(f"s_add_u32 s{sT}, s{sT}, s{sWAVE}")
        A(f"s_lshl_b32 s{sT}, s{sT}, 8")
        A(f"s_add_u32 s{sT}, s{sT}, {hex(W_ST)}")
        A(f"v_lshlrev_b32 v{vT7}, 2, v{vLANE}")
        A(f"buffer_store_dword v{vST}, v{vT7}, {S4(SE)}, s{sT} offen")
    def cut(n):
        if bare == n:
            A("s_barrier"); A("s_endpgm")

    def swaps(op, reg, tmp):
        for sw in ("v_permlane16_swap_b32", "v_permlane32_swap_b32"):
            A("s_nop 0")
            A(f"v_mov_b32 v{tmp}, v{reg}")
            A("s_nop 1")
            A(f"{sw} v{reg}, v{tmp}")
            A("s_nop 0")
            A(f"{op} v{reg}, v{reg}, v{tmp}")
    def allreduce(op, reg, tmp):
        for n in (8, 4, 2, 1):
            A("s_nop 1")
            A(f"{op}_dpp v{reg}, v{reg}, v{reg} row_ror:{n} row_mask:0xf bank_mask:0xf")
        swaps(op, reg, tmp)
    def rne(reg, tmp):
        A(f"v_cvt_pk_bf16_f32 v{tmp}, v{reg}, v{reg}")
        A(f"v_and_b32 v{reg}, 0xffff0000, v{tmp}")
    def diag(dst, pp, j):
        for m in range(4):
            A(f"v_and_b32_dpp v{dst+m}, v{pp}, v{vMK+m} row_newbcast:{j} row_mask:0xf bank_mask:0xf")
    def silu(reg, t):
        A(f"v_mul_f32 v{t}, {hex(LOG2E | 0x80000000)}, v{reg}")
        A(f"v_exp_f32 v{t}, v{t}")
        A("s_nop 0")
        A(f"v_add_f32 v{t}, 1.0, v{t}")
        A(f"v_rcp_f32 v{t}, v{t}")
        A("s_nop 0")
        A(f"v_mul_f32 v{reg}, v{reg}, v{t}")
    def build_masks():
        A(f"v_and_b32 v{vT}, 1, v{vR}")
        A(f"v_lshlrev_b32 v{vT}, 4, v{vT}")
        A(f"v_mov_b32 v{vT+1}, 0xffff")
        A(f"v_lshlrev_b32 v{vT}, v{vT}, v{vT+1}")
        A(f"v_bfe_u32 v{vT+1}, v{vR}, 1, 2")
        for m in range(4):
            A(f"v_cmp_eq_u32 vcc, {m}, v{vT+1}")
            A("s_nop 1")
            A(f"v_cndmask_b32 v{vMK+m}, 0, v{vT}, vcc")
    def tag_from_epoch(reg, tmp):
        A(f"v_mov_b32 v{tmp}, 0x9e3779b9")
        A(f"v_add_co_u32 v{reg}, vcc, 0x7f4a7c15, v{reg}")
        A("s_nop 1")
        A(f"v_addc_co_u32 v{reg+1}, vcc, v{tmp}, v{reg+1}, vcc")

    if sb == 15:
        koff = lambda k: ((k & 7) << 12) | ((k >> 3) << 16); wsh = 10; GSTR = 1 << 17
    elif sb == 10:
        koff = lambda k: k << 13; wsh = 11; GSTR = 1 << 17
    elif sb == 16:
        koff = lambda k: k << 12; wsh = 10; GSTR = 1 << 17
    elif sb == 14:
        koff = lambda k: ((k & 3) << 12) | ((k >> 2) << 15); wsh = 10; GSTR = 1 << 17
    elif sb == 20:
        koff = lambda k: k << 12; wsh = 10; GSTR = 1 << 16

    A("s_cmp_ge_u32 s2, 256")
    A("s_cbranch_scc1 L_end")
    if stamps: A("s_memrealtime s[76:77]")
    A("s_load_dwordx16 s[4:19], s[0:1], 0")
    A("s_load_dwordx8 s[20:27], s[0:1], 64")
    A(f"v_lshrrev_b32 v{vT7}, 6, v0")
    A(f"v_and_b32 v{vLANE}, 63, v0")
    A(f"v_readfirstlane_b32 s{sWAVE}, v{vT7}")
    A(f"v_lshrrev_b32 v{vG}, 4, v{vLANE}")
    A(f"v_and_b32 v{vR}, 15, v{vLANE}")
    A(f"v_lshlrev_b32 v{vOV}, 4, v{vLANE}")
    if stamps:
        A(f"v_mov_b32 v{vST}, 0")
        A("s_mov_b32 s75, 0")
    A(f"s_lshr_b32 s{sB}, s2, 6")
    A(f"s_and_b32 s{sIDX}, s2, 63")
    A(f"s_bfe_u32 s{sSP}, s2, {(1<<16)|3}")
    A(f"s_bfe_u32 s{sT}, s2, {(2<<16)|4}")
    A(f"s_lshl_b32 s{sT}, s{sT}, 3")
    A(f"s_and_b32 s{sH}, s2, 7")
    A(f"s_or_b32 s{sH}, s{sH}, s{sT}")
    A(f"s_lshl_b32 s{sMU}, s{sB}, 1")
    A(f"s_or_b32 s{sMU}, s{sMU}, s{sSP}")
    A(f"s_cmp_ge_u32 s{sWAVE}, 4")
    A("s_cbranch_scc1 L_aux")

    A.c("---- stream waves ----")
    A(f"s_lshl_b32 s{sT3}, s{sH}, 16")
    A(f"s_lshl_b32 s{sT}, s{sMU}, 13")
    A(f"s_add_u32 s{sT3}, s{sT3}, s{sT}")
    A(f"s_lshl_b32 s{sT}, s{sWAVE}, 11")
    A(f"s_add_u32 s{sT3}, s{sT3}, s{sT}")
    A(f"s_lshl_b32 s{sT2}, s{sT3}, 1")
    A(f"v_lshrrev_b32 v{vT}, 2, v{vR}")
    A(f"v_lshlrev_b32 v{vT}, 8, v{vT}")
    A(f"v_and_b32 v{vT+1}, 3, v{vR}")
    A(f"v_lshlrev_b32 v{vT+1}, 4, v{vT+1}")
    A(f"v_lshlrev_b32 v{vT+2}, 6, v{vG}")
    A(f"v_add3_u32 v{vOA}, v{vT}, v{vT+1}, v{vT+2}")
    A(f"v_mov_b32 v{vON}, v{vOA}")
    A(f"s_lshl_b32 s{sBASE}, s{sB}, 26")
    A(f"s_lshl_b32 s{sT}, s{sH}, 21")
    A(f"s_or_b32 s{sBASE}, s{sBASE}, s{sT}")
    A(f"s_lshl_b32 s{sT}, s{sSP}, {sb}")
    A(f"s_or_b32 s{sBASE}, s{sBASE}, s{sT}")
    A(f"s_lshl_b32 s{sT}, s{sWAVE}, {wsh}")
    A(f"s_or_b32 s{sBASE}, s{sBASE}, s{sT}")
    A("s_waitcnt lgkmcnt(0)")
    nis = [0]
    def pace():
        if nis[0] >= dpro: A(f"s_waitcnt vmcnt({dpro-1})")
        nis[0] += 1
    if bare != 2:
        srd(SC, sWO, 0x400000)
        for k in range(4):
            pace()
            A(f"buffer_load_dwordx4 {q4(vA0)}, v{vOV}, {S4(SC)}, s{sT2} offen offset:{k*1024} {polp}")
        srd(SD_, sW2, 1792 * 512 * 2)
        for k in range(2):
            pace()
            A(f"buffer_load_dwordx4 {q4(vA0)}, v{vOV}, {S4(SD_)}, s{sT3} offen offset:{k*1024} {polp}")
    srd(SA, sK, 0x10000000)
    def sload(sl, srdb, voff, sbase, off):
        A(f"s_add_u32 s{sT}, s{sbase}, {hex(off)}")
        A(f"buffer_load_dwordx4 {slot(sl)}, v{voff}, {S4(srdb)}, s{sT} offen nt")
    gk = lambda i: (i >> 4) * GSTR + koff(i & 15)
    setup_done = False
    for i in range(R):
        if nis[0] >= dpro and not setup_done:
            setup_done = True
            stamp(0)
            srd(SN, sK, 0x10000000)
            build_masks()
            A(f"v_lshlrev_b32 v{vL0}, 2, v{vLANE}")
            A(f"s_lshl_b32 s{sT2}, s{sWAVE}, 12")
            A(f"s_add_u32 s{sT2}, s{sT2}, {L_SC}")
            A(f"v_add_u32 v{vL0}, s{sT2}, v{vL0}")
            A(f"v_mov_b32 v{vL1}, v{vL0}")
            A(f"v_lshrrev_b32 v{vT}, 2, v{vR}")
            A(f"v_lshlrev_b32 v{vT}, 4, v{vT}")
            A(f"v_lshlrev_b32 v{vL2}, 6, v{vG}")
            A(f"v_add_u32 v{vL2}, v{vL2}, v{vT}")
            A(f"v_mov_b32 v{vM}, 0xff800000")
        pace()
        sload(i, SA, vOA, sBASE, gk(i))
        if i in (15, 31): stamp(7 + (i >> 4))
    stamp(1)
    A("s_barrier")
    stamp(2)
    A(f"ds_read_b128 {q4(vT+2)}, v{vL2} offset:{L_Q}")
    A(f"v_and_b32 v{vT}, 3, v{vR}")
    A("s_waitcnt lgkmcnt(0)")
    for t in range(4):
        A(f"v_cmp_eq_u32 vcc, {t}, v{vT}")
        A("s_nop 1")
        for m in range(4):
            A(f"v_cndmask_b32 v{vBQ+4*t+m}, 0, v{vT+2+m}, vcc")
    A("s_nop 1")

    def dpp_gather(u, i):
        D = vD0 if (u & 1) == 0 else vD1
        n = (4 * (u - i)) % 16
        ctrl = "quad_perm:[0,1,2,3]" if n == 0 else f"row_ror:{n}"
        if i == 0:
            A(f"v_mov_b32_dpp v{vS}, v{D} {ctrl} row_mask:0xf bank_mask:{hex(1<<u)}")
        else:
            A(f"v_add_f32_dpp v{vS}, v{D+i}, v{vS} {ctrl} row_mask:0xf bank_mask:{hex(1<<u)}")
    def kgroup(slot0, waitf, issuef):
        for k in range(16):
            u, t = k >> 2, k & 3
            D = vD0 if (u & 1) == 0 else vD1
            waitf(k)
            A(f"v_mfma_f32_16x16x32_bf16 {q4(D)}, {slot(slot0+k)}, {q4(vBQ+4*t)}, {'0' if t==0 else q4(D)}")
            issuef(k)
            if u > 0:
                A("s_nop 6" if t == 0 else "s_nop 0")
                dpp_gather(u - 1, t)
        A("s_nop 7")
        for i in range(4):
            dpp_gather(3, i)
            A("s_nop 1")
        rne(vS, vT)
        A(f"v_mul_f32 v{vT+1}, {hex(SCALE)}, v{vS}")
        rne(vT + 1, vT)
        A(f"v_max_f32 v{vM}, v{vM}, v{vT+1}")
        A(f"ds_write_b32 v{vL1}, v{vT+1}")
        A(f"v_add_u32 v{vL1}, 256, v{vL1}")

    issued = [0]
    for G0 in range(R // 16):
        def waitf(k, G0=G0):
            i = G0 * 16 + k
            A(f"s_waitcnt vmcnt({min(63, R-1-i + issued[0])})")
        def issuef(k, G0=G0):
            i = G0 * 16 + k
            if i < d:
                sload(i, SA, vOA, sBASE, gk(R + i)); issued[0] += 1
        kgroup(G0 * 16, waitf, issuef)
    for i in range(d, LAG):
        A(f"s_waitcnt vmcnt({d-1})")
        sload(i, SA, vOA, sBASE, gk(R + i))
    stamp(3)
    A(f"s_add_u32 s{sCUR}, s{sBASE}, {hex((R//16)*GSTR)}")
    A(f"s_mov_b32 s{sIT}, {R//16}")
    if fc:
        U = fc.get("U", 8)
        A(f"s_lshl_b32 s{sT}, s{sWAVE}, 2")
        A(f"s_add_u32 s{sT}, s{sT}, {L_PW}")
        A(f"v_mov_b32 v{vPB}, s{sT}")
        A(f"v_mov_b32 v{vPG}, 0")
        A(f"v_mov_b32 v{vT7}, {L_LV}")
        A(f"v_mov_b32 v{vT+8}, {fc.get('nom', 1)}")
    def steady_issue(k):
        kk = k + LAG
        if kk < 16:
            sload(kk, SA, vOA, sCUR, koff(kk))
        else:
            sload(kk - 16, SN, vON, sNXT, koff(kk - 16))
        if fc:
            if k % (16 // U) == 0:
                A(f"v_add_u32 v{vPG}, 1, v{vPG}")
                A(f"ds_write_b32 v{vPB}, v{vPG}")
            if k == 14:
                A(f"ds_read_b32 v{vT+8}, v{vT7}")
    def dispatch(tag, body):
        if not fc:
            body(d); return
        A(f"v_readfirstlane_b32 s{sLV}, v{vT+8}")
        if stamps: A(f"s_add_u32 s75, s75, s{sLV}")
        for li in range(1, len(levels)):
            A(f"s_cmp_eq_u32 s{sLV}, {li}")
            A(f"s_cbranch_scc1 L_{tag}_b{li}")
        for li, dd in enumerate(levels):
            A.lab(f"L_{tag}_b{li}")
            body(dd)
            if li + 1 < len(levels): A(f"s_branch L_{tag}_e")
        A.lab(f"L_{tag}_e")
    A.lab("L_kloop")
    A(f"s_add_u32 s{sNXT}, s{sCUR}, {hex(GSTR)}")
    A(f"s_cmp_eq_u32 s{sIT}, 15")
    A("s_cbranch_scc0 L_knl")
    A(f"s_mov_b32 s{sNXT}, s{sBASE}")
    A(f"s_mov_b32 s{SN}, s{sV}")
    A(f"s_mov_b32 s{SN+1}, s{sV+1}")
    A(f"v_mov_b32 v{vON}, v{vOV}")
    A.lab("L_knl")
    if fc: A("s_waitcnt lgkmcnt(0)")
    dispatch("k", lambda dd: kgroup(0, lambda k: A(f"s_waitcnt vmcnt({dd-1})"), steady_issue))
    stamp_it(16)
    A(f"s_mov_b32 s{sCUR}, s{sNXT}")
    A(f"s_add_u32 s{sIT}, s{sIT}, 1")
    A(f"s_cmp_lt_u32 s{sIT}, 16")
    A("s_cbranch_scc1 L_kloop")
    stamp(4)
    A(f"s_mov_b32 s{SA}, s{sV}")
    A(f"s_mov_b32 s{SA+1}, s{sV+1}")
    A(f"v_mov_b32 v{vOA}, v{vOV}")
    X = SL + 64
    A("s_waitcnt lgkmcnt(0)")
    for i in range(8):
        A(f"ds_read2st64_b32 v[{X+2*i}:{X+2*i+1}], v{vL0} offset0:{2*i} offset1:{2*i+1}")
    allreduce("v_max_f32", vM, vT)
    A(f"s_mov_b32 s{sT2}, {hex(LOG2E)}")
    A("s_waitcnt lgkmcnt(0)")
    for i in range(16):
        A(f"v_sub_f32 v{X+i}, v{X+i}, v{vM}")
    for i in range(16):
        A(f"v_mul_f32 v{X+i}, s{sT2}, v{X+i}")
    for i in range(16):
        A(f"v_exp_f32 v{X+i}, v{X+i}")
    A("s_nop 0")
    for i in range(16):
        A(f"v_cvt_pk_bf16_f32 v{X+16+i}, v{X+i}, v{X+i}")
    for i in range(8):
        A(f"ds_write2st64_b32 v{vL0}, v{X+16+2*i}, v{X+16+2*i+1} offset0:{2*i} offset1:{2*i+1}")
    A(f"v_mov_b32 v{vP1}, v{X+16}")
    for st in (8, 4, 2, 1):
        for i in range(st):
            A(f"v_add_f32 v{X+i}, v{X+i}, v{X+i+st}")
    allreduce("v_add_f32", X, vT)
    A(f"v_mov_b32 v{vT}, v{vM}")
    A(f"v_mov_b32 v{vT+1}, v{X}")
    A(f"s_lshl_b32 s{sT2}, s{sWAVE}, 3")
    A(f"s_add_u32 s{sT2}, s{sT2}, {L_ML}")
    A(f"v_mov_b32 v{vT+2}, s{sT2}")
    A(f"v_mov_b32 v{vT+3}, {L_CM}")
    A(f"v_mov_b32 v{vT+4}, 1")
    A("s_mov_b64 exec, 1")
    A(f"ds_write_b64 v{vT+2}, v[{vT}:{vT+1}]")
    A("s_waitcnt lgkmcnt(0)")
    A(f"ds_add_u32 v{vT+3}, v{vT+4}")
    A("s_mov_b64 exec, -1")
    A(f"v_mov_b32 v{vT+7}, 16")
    for i in range(4):
        A(f"v_mov_b32 v{vD0+i}, 0")
    A(f"v_add_u32 v{vL1}, 256, v{vL0}")
    A(f"v_lshlrev_b32 v{vT+5}, 5, v{vR}")
    A(f"v_lshlrev_b32 v{vT+6}, 4, v{vG}")
    A(f"s_lshl_b32 s{sT2}, s{sWAVE}, 9")
    A(f"v_add3_u32 v{vL2}, v{vT+5}, v{vT+6}, s{sT2}")
    A(f"s_mov_b32 s{sIT}, 0")
    stamp(5)
    def vbody(waitf, issuef):
        A(f"v_mov_b32 v{vP0}, v{vP1}")
        A(f"ds_read_b32 v{vP1}, v{vL1}")
        A(f"v_add_u32 v{vL1}, 256, v{vL1}")
        diag(vA0, vP0, 0)
        for k in range(16):
            Acur = vA0 if (k & 1) == 0 else vA1
            Anxt = vA1 if (k & 1) == 0 else vA0
            if k < 15: diag(Anxt, vP0, k + 1)
            waitf(k)
            A(f"v_mfma_f32_16x16x32_bf16 {q4(vD0)}, {q4(Acur)}, {slot(k)}, {q4(vD0)}")
            issuef(k)
    A.lab("L_vloop")
    A(f"s_add_u32 s{sNXT}, s{sCUR}, {hex(GSTR)}")
    A(f"s_cmp_eq_u32 s{sIT}, {VLATE}")
    A("s_cbranch_scc0 L_vnl")
    A("s_mov_b64 exec, 1")
    A(f"ds_add_u32 v{vT+3}, v{vT+7}")
    A("s_mov_b64 exec, -1")
    A.lab("L_vnl")
    A("s_waitcnt lgkmcnt(0)")
    dispatch("v", lambda dd: vbody(lambda k: A(f"s_waitcnt vmcnt({dd-1})"), steady_issue))
    stamp_it(32)
    A(f"s_mov_b32 s{sCUR}, s{sNXT}")
    A(f"s_add_u32 s{sIT}, s{sIT}, 1")
    A(f"s_cmp_lt_u32 s{sIT}, 15")
    A("s_cbranch_scc1 L_vloop")
    def lwait(k):
        if k + LAG < 16: A(f"s_waitcnt vmcnt({dlast-1})")
        else: A(f"s_waitcnt vmcnt({15-k})")
    A("s_waitcnt lgkmcnt(0)")
    vbody(lwait, lambda k: sload(k + LAG, SA, vOA, sCUR, koff(k + LAG)) if k + LAG < 16 else None)
    A("s_mov_b32 exec_hi, 0")
    A("s_nop 6")
    A(f"ds_write_b128 v{vL2}, {q4(vD0)} offset:{L_OP}")
    A("s_waitcnt lgkmcnt(0)")
    A("s_barrier")
    if stamps:
        A("s_mov_b64 exec, -1")
        stamp_it(32)
        stamp(6)
        stamp_flush()
    A("s_endpgm")

    XR = SL + 64
    XF = SL + 80
    XE = vBQ
    XD = SL + 128
    vTG = vBQ + 8
    A.lab("L_aux")
    if bare == 2:
        A("s_barrier"); A("s_barrier"); A("s_endpgm")
    A(f"s_sub_u32 s{sJ}, s{sWAVE}, 4")
    A(f"s_cmp_eq_u32 s{sJ}, 0")
    A("s_cbranch_scc1 L_qw")
    A(f"s_cmp_eq_u32 s{sJ}, 1")
    A("s_cbranch_scc1 L_fw")
    A(f"v_mov_b32 v{vT}, {L_CM}")
    A(f"v_mov_b32 v{vT+2}, 0")
    A(f"ds_write_b32 v{vT}, v{vT+2}")
    if fc:
        A(f"v_mov_b32 v{vT+1}, {fc.get('nom', 1)}")
        A(f"ds_write_b32 v{vT}, v{vT+1} offset:4")
        for i in range(3, 6): A(f"v_mov_b32 v{vT+i}, 0")
        A(f"ds_write_b128 v{vT}, {q4(vT+2)} offset:16")
    A("s_waitcnt lgkmcnt(0)")
    srd(SC, sWS, W_SZ)
    A("s_branch L_bar1")
    A.lab("L_fw")
    A(f"v_mul_u32_u24 v{vT}, {8*3584}, v{vG}")
    A(f"v_and_b32 v{vT+1}, 7, v{vR}")
    A(f"v_lshl_add_u32 v{vOA}, v{vT+1}, 4, v{vT}")
    A(f"s_mul_i32 s{sBASE}, s{sMU}, {64*3584}")
    A(f"s_lshl_b32 s{sT}, s{sH}, 7")
    A(f"s_add_u32 s{sBASE}, s{sBASE}, s{sT}")
    A(f"s_mov_b32 s{sM0}, 0x00ff00ff")
    A(f"s_mov_b32 s{sM0+1}, 0x00ff00ff")
    A("s_waitcnt lgkmcnt(0)")
    srd(SC, sWS, W_SZ)
    A(f"s_cmp_lt_u32 s{sH}, {NFFN}")
    A("s_cbranch_scc0 L_bar1")
    srd(SA, sW1, 512 * 1792 * 2)
    srd(SN, sW3, 512 * 1792 * 2)
    for half, sr in ((0, SA), (1, SN)):
        A(f"s_mov_b64 exec, s[{sM0}:{sM0+1}]" if half == 0 else f"s_not_b64 exec, s[{sM0}:{sM0+1}]")
        for k in range(16):
            A(f"s_add_u32 s{sT}, s{sBASE}, {hex(((k>>3)*32 + (k&7))*3584)}")
            A(f"buffer_load_dwordx4 {slot(k)}, v{vOA}, {S4(sr)}, s{sT} offen {polf}")
    A("s_mov_b64 exec, -1")
    A("s_branch L_bar1")
    A.lab("L_qw")
    if qprio: A(f"s_setprio {qprio}")
    A(f"v_lshrrev_b32 v{vT}, 2, v{vR}")
    A(f"v_lshlrev_b32 v{vT}, 10, v{vT}")
    A(f"v_and_b32 v{vT+1}, 3, v{vR}")
    A(f"v_lshlrev_b32 v{vT+1}, 6, v{vT+1}")
    A(f"v_lshlrev_b32 v{vT+2}, 8, v{vG}")
    A(f"v_add3_u32 v{vON}, v{vT}, v{vT+1}, v{vT+2}")
    A(f"v_lshl_add_u32 v{vL1}, v{vG}, 4, v{vT}")
    A(f"v_lshlrev_b32 v{vT}, 16, v{vG}")
    A(f"v_lshl_add_u32 v{vOA}, v{vR}, 4, v{vT}")
    A(f"v_mov_b32 v{vL2}, 0")
    A(f"s_lshl_b32 s{sT2}, s{sMU}, 7")
    A(f"s_lshl_b32 s{sBASE}, s{sMU}, 19")
    A(f"s_lshl_b32 s{sT}, s{sH}, 8")
    A(f"s_add_u32 s{sBASE}, s{sBASE}, s{sT}")
    A(f"s_lshl_b32 s{sT3}, s{sH}, 6")
    A(f"s_add_u32 s{sT3}, s{sT3}, {hex(W_EH)}")
    A("s_waitcnt lgkmcnt(0)")
    srd(SA, sX, 4096)
    for i in range(4):
        A(f"buffer_load_dwordx4 {q4(XR+4*i)}, v{vON}, {S4(SA)}, 0 offen offset:{16*i}")
    for s_ in range(2):
        A(f"buffer_load_dwordx4 {q4(XE+4*s_)}, v{vL1}, {S4(SA)}, s{sT2} offen offset:{64*s_}")
    srd(SN, sWQ, 0x400000)
    for k in range(16):
        A(f"s_add_u32 s{sT}, s{sBASE}, {hex(((k>>3)*32 + (k&7))*8192)}")
        A(f"buffer_load_dwordx4 {slot(k)}, v{vOA}, {S4(SN)}, s{sT} offen {polq}")
    srd(SC, sWS, W_SZ)
    A(f"buffer_load_dwordx2 {p2(vTG)}, v{vL2}, {S4(SC)}, s{sT3} offen sc1")
    stamp(0)
    def red16(reg, tmp):
        for qp in ("[1,0,3,2]", "[2,3,0,1]"):
            A("s_nop 1")
            A(f"v_add_f32_dpp v{reg}, v{reg}, v{reg} quad_perm:{qp} row_mask:0xf bank_mask:0xf")
        swaps("v_add_f32", reg, tmp)
    A("s_waitcnt vmcnt(19)")
    for i in range(16):
        A(f"v_lshlrev_b32 v{XF+2*i}, 16, v{XR+i}")
        A(f"v_and_b32 v{XF+2*i+1}, 0xffff0000, v{XR+i}")
    for i in range(8):
        A(f"v_pk_add_f32 {p2(XR+2*i)}, {p2(XF+4*i)}, {p2(XF+4*i+2)}")
    for st in (4, 2, 1):
        for i in range(st):
            A(f"v_pk_add_f32 {p2(XR+2*i)}, {p2(XR+2*i)}, {p2(XR+2*(i+st))}")
    A(f"v_add_f32 v{vT}, v{XR}, v{XR+1}")
    red16(vT, vT + 1)
    A(f"v_mul_f32 v{vT}, 0x3b000000, v{vT}")
    A(f"v_mov_b32 v{vT+1}, v{vT}")
    for i in range(16):
        A(f"v_pk_add_f32 {p2(XF+2*i)}, {p2(XF+2*i)}, {p2(vT)} neg_lo:[0,1] neg_hi:[0,1]")
    for c_ in range(2):
        A(f"v_pk_mul_f32 {p2(XR+2*c_)}, {p2(XF+2*c_)}, {p2(XF+2*c_)}")
    for i in range(2, 16):
        c_ = i & 1
        A(f"v_pk_fma_f32 {p2(XR+2*c_)}, {p2(XF+2*i)}, {p2(XF+2*i)}, {p2(XR+2*c_)}")
    A(f"v_pk_add_f32 {p2(XR)}, {p2(XR)}, {p2(XR+2)}")
    A(f"v_add_f32 v{vT+2}, v{XR}, v{XR+1}")
    red16(vT + 2, vT + 1)
    A(f"v_mul_f32 v{vT+2}, 0x3b000000, v{vT+2}")
    rne(vT, vT + 1)
    rne(vT + 2, vT + 1)
    A(f"v_add_f32 v{vT+2}, 0x3727c5ac, v{vT+2}")
    rne(vT + 2, vT + 1)
    A(f"v_sqrt_f32 v{vT+2}, v{vT+2}")
    A("s_nop 0")
    rne(vT + 2, vT + 1)
    A(f"v_rcp_f32 v{vT+2}, v{vT+2}")
    A("s_waitcnt vmcnt(17)")
    for i in range(8):
        A(f"v_lshlrev_b32 v{XF+2*i}, 16, v{XE+i}")
        A(f"v_and_b32 v{XF+2*i+1}, 0xffff0000, v{XE+i}")
    for i in range(16):
        A(f"v_sub_f32 v{XF+i}, v{XF+i}, v{vT}")
    for i in range(8):
        A(f"v_cvt_pk_bf16_f32 v{XE+i}, v{XF+2*i}, v{XF+2*i+1}")
    for i in range(8):
        A(f"v_lshlrev_b32 v{XF+2*i}, 16, v{XE+i}")
        A(f"v_and_b32 v{XF+2*i+1}, 0xffff0000, v{XE+i}")
    for i in range(16):
        A(f"v_mul_f32 v{XF+i}, v{XF+i}, v{vT+2}")
    for i in range(8):
        A(f"v_cvt_pk_bf16_f32 v{XE+i}, v{XF+2*i}, v{XF+2*i+1}")
    stamp(1)
    def bperm(dst, s_, jj):
        for m in range(4):
            lo = SL + 4 * (8 * s_ + 2 * m) + (jj >> 1)
            hi = SL + 4 * (8 * s_ + 2 * m + 1) + (jj >> 1)
            A(f"v_perm_b32 v{dst+m}, v{hi}, v{lo}, s{sM0 + (jj & 1)}")
    def tile_mma(w0, w1):
        A(f"s_mov_b32 s{sM0}, 0x05040100")
        A(f"s_mov_b32 s{sM0+1}, 0x07060302")
        A(w0)
        bperm(vA0, 0, 0)
        for n in range(16):
            s_, jj = n >> 3, n & 7
            cur = vA0 if (n & 1) == 0 else vA1
            nxt = vA1 if (n & 1) == 0 else vA0
            if n == 7 and w1: A(w1)
            if n + 1 < 16: bperm(nxt, (n + 1) >> 3, (n + 1) & 7)
            else: A("s_nop 1")
            A(f"v_mfma_f32_16x16x32_bf16 {q4(XD+4*jj)}, {q4(XE+4*s_)}, {q4(cur)}, {'0' if s_==0 else q4(XD+4*jj)}")
    def msg_addr(wbase):
        A(f"v_lshlrev_b32 v{vON}, 13, v{vG}")
        A(f"v_lshl_add_u32 v{vON}, v{vR}, 4, v{vON}")
        A(f"s_lshl_b32 s{sCUR}, s{sH}, 15")
        A(f"s_add_u32 s{sCUR}, s{sCUR}, {hex(wbase)}")
        A(f"s_lshl_b32 s{sT}, s{sMU}, 10")
        A(f"s_add_u32 s{sT}, s{sT}, s{sCUR}")
    def msg_pack_store(pol):
        for n in range(4):
            A(f"v_mov_b32 v{XD+8*n+1}, v{XD+8*n+4}")
            A(f"v_mov_b32 v{XD+8*n+2}, v{vTG}")
            A(f"v_mov_b32 v{XD+8*n+3}, v{vTG+1}")
            A(f"buffer_store_dwordx4 {q4(XD+8*n)}, v{vON}, {S4(SC)}, s{sT} offen offset:{256*n} {pol}")
    def msg_round(sl0):
        for n in range(8):
            A(f"buffer_load_dwordx4 {slot(sl0+n)}, v{vOV}, {S4(SC)}, s{sCUR if n<4 else sNXT} offen offset:{1024*(n&3)} sc1")
        A(f"s_add_u32 s{sSPIN}, s{sSPIN}, 1")
        A(f"v_mov_b32 v{vT}, 0")
        for n in range(8):
            A(f"s_waitcnt vmcnt({7-n})")
            A(f"v_xor_b32 v{vT+1}, v{SL+4*(sl0+n)+2}, v{vTG}")
            A(f"v_xor_b32 v{vT+2}, v{SL+4*(sl0+n)+3}, v{vTG+1}")
            A(f"v_or3_b32 v{vT}, v{vT}, v{vT+1}, v{vT+2}")
        A(f"v_cmp_ne_u32 vcc, 0, v{vT}")
        A("s_nop 1")
        A("s_cmp_eq_u64 vcc, 0")
    def msg_sum(sl0):
        for st in (4, 2, 1):
            for n in range(st):
                A(f"v_pk_add_f32 {p2(SL+4*(sl0+n))}, {p2(SL+4*(sl0+n))}, {p2(SL+4*(sl0+n+st))}")
    tile_mma("s_waitcnt vmcnt(9)", "s_waitcnt vmcnt(1)")
    A("s_waitcnt vmcnt(0)")
    tag_from_epoch(vTG, vT)
    msg_addr(W_QA)
    A(f"s_add_u32 s{sBASE}, s{sT}, {hex(W_QB-W_QA)}")
    A("s_nop 2")
    msg_pack_store("")
    def storeB():
        for n in range(4):
            A(f"buffer_store_dwordx4 {q4(XD+8*n)}, v{vON}, {S4(SC)}, s{sBASE} offen offset:{256*n} sc1")
    stamp(2)
    A(f"ds_write_b128 v{vOV}, {q4(XE)} offset:{L_XE}")
    A(f"ds_write_b128 v{vOV}, {q4(XE+4)} offset:{L_XE+1024}")
    A(f"ds_write_b64 v{vL2}, {p2(vTG)} offset:{L_TG}")
    A(f"s_lshl_b32 s{sT}, s{sB}, 13")
    A(f"s_add_u32 s{sCUR}, s{sCUR}, s{sT}")
    A(f"s_add_u32 s{sNXT}, s{sCUR}, 4096")
    A(f"s_mov_b32 s{sSPIN}, 0")
    A.lab("L_qp")
    msg_round(0)
    A("s_cbranch_scc1 L_qp_ok")
    A(f"s_cmp_eq_u32 s{sSPIN}, {NA}")
    A("s_cbranch_scc0 L_qp_c")
    storeB()
    A(f"s_add_u32 s{sCUR}, s{sCUR}, {hex(W_QB-W_QA)}")
    A(f"s_add_u32 s{sNXT}, s{sNXT}, {hex(W_QB-W_QA)}")
    A.lab("L_qp_c")
    A(f"s_cmp_lt_u32 s{sSPIN}, {SPINMAX}")
    A("s_cbranch_scc1 L_qp")
    A.lab("L_qp_ok")
    stamp(6)
    if stamps: A(f"v_writelane_b32 v{vST}, s{sSPIN}, 60")
    msg_sum(0)
    A(f"v_cvt_pk_bf16_f32 v{vT}, v{SL}, v{SL+1}")
    A(f"v_lshlrev_b32 v{vT+1}, 2, v{vG}")
    A(f"v_lshl_add_u32 v{vT+1}, v{vR}, 4, v{vT+1}")
    A(f"ds_write_b32 v{vT+1}, v{vT} offset:{L_Q}")
    storeB()
    A(f"s_cmp_eq_u32 s{sMU}, 0")
    A("s_cbranch_scc0 L_qnl")
    A("s_mov_b64 exec, 1")
    A(f"buffer_store_dwordx2 {p2(vTG)}, v{vL2}, {S4(SC)}, s{sT3} offen sc1")
    A("s_mov_b64 exec, -1")
    A.lab("L_qnl")
    A("s_waitcnt lgkmcnt(0)")
    if qprio: A("s_setprio 0")
    A.lab("L_bar1")
    A("s_barrier")
    stamp(3)
    cut(1)
    build_masks()
    A(f"v_mov_b32 v{vL2}, 0")
    A(f"v_lshlrev_b32 v{vT}, 5, v{vR}")
    A(f"v_lshl_add_u32 v{vL0}, v{vG}, 4, v{vT}")
    A(f"s_lshl_b32 s{sPO}, s{sB}, 5")
    A(f"s_add_u32 s{sPO}, s{sPO}, s{sH}")
    A(f"s_lshl_b32 s{sPO}, s{sPO}, 1")
    A(f"s_add_u32 s{sPO}, s{sPO}, s{sSP}")
    A(f"s_lshl_b32 s{sPO}, s{sPO}, 10")
    A(f"s_add_u32 s{sPO}, s{sPO}, {hex(W_Z)}")
    vTB = vBQ + 10
    vPO = SL + 128
    vGt = vPO + 8
    vXr = vPO + 12
    if fc:
        A(f"s_cmp_eq_u32 s{sJ}, 2")
        A("s_cbranch_scc0 L_nz")
        A(f"s_and_b32 s{sCUR}, s2, 7")
        A(f"s_lshl_b32 s{sCUR}, s{sCUR}, 8")
        A(f"s_add_u32 s{sCUR}, s{sCUR}, {hex(W_PG)}")
        A(f"s_lshr_b32 s{sNXT}, s2, 3")
        A(f"s_lshl_b32 s{sNXT}, s{sNXT}, 2")
        A(f"s_add_u32 s{sNXT}, s{sNXT}, s{sCUR}")
        A(f"v_mov_b32 v{vT}, 0x40000000")
        A("s_mov_b64 exec, 1")
        A(f"buffer_store_dword v{vT}, v{vL2}, {S4(SC)}, s{sNXT} offen")
        A(f"buffer_store_dword v{vT}, v{vL2}, {S4(SC)}, s{sCUR} offen offset:128")
        A("s_mov_b64 exec, -1")
        A.lab("L_nz")
    A(f"s_cmp_eq_u32 s{sJ}, 1")
    A("s_cbranch_scc1 L_f1")
    A(f"s_cmp_eq_u32 s{sJ}, 3")
    A("s_cbranch_scc0 L_wo")
    for i in range(4):
        A(f"v_mov_b32 v{vBQ+i}, -1")
    A(f"s_lshl_b32 s{sT}, s2, 11")
    A(f"buffer_store_dwordx4 {q4(vBQ)}, v{vOV}, {S4(SC)}, s{sT} offen sc1")
    A(f"buffer_store_dwordx4 {q4(vBQ)}, v{vOV}, {S4(SC)}, s{sT} offen offset:1024 sc1")
    A(f"s_lshl_b32 s{sT}, s{sB}, 7")
    A(f"s_add_u32 s{sT}, s{sT}, {hex(W_EB)}")
    A(f"buffer_load_dwordx2 {p2(vTB)}, v{vL2}, {S4(SC)}, s{sT} offen sc1")
    A("s_branch L_wo")
    A.lab("L_f1")
    A(f"s_cmp_lt_u32 s{sH}, {NFFN}")
    A("s_cbranch_scc0 L_f1x")
    A(f"ds_read_b128 {q4(XE)}, v{vOV} offset:{L_XE}")
    A(f"ds_read_b128 {q4(XE+4)}, v{vOV} offset:{L_XE+1024}")
    A(f"ds_read_b64 {p2(vTG)}, v{vL2} offset:{L_TG}")
    for i in range(4):
        A(f"v_mov_b32 v{vD0+i}, -1")
    A(f"buffer_store_dwordx4 {q4(vD0)}, v{vOV}, {S4(SC)}, s{sPO} offen sc1")
    tile_mma("s_waitcnt vmcnt(1) lgkmcnt(0)", None)
    msg_addr(W_FP)
    A("s_nop 4")
    msg_pack_store("sc1")
    A("s_waitcnt vmcnt(0)")
    A.lab("L_f1x")
    A(f"v_mov_b32 v{vT}, {L_CM}")
    A(f"v_mov_b32 v{vT+1}, 256")
    A("s_mov_b64 exec, 1")
    A(f"ds_add_u32 v{vT}, v{vT+1}")
    A("s_mov_b64 exec, -1")
    A.lab("L_wo")
    stamp(4)
    cut(3)
    srd(SN, sWO, 0x400000)
    A(f"v_lshlrev_b32 v{vT}, 10, v{vG}")
    A(f"v_lshl_add_u32 v{vOA}, v{vR}, 4, v{vT}")
    A(f"s_lshl_b32 s{sBASE}, s{sH}, 17")
    A(f"s_lshl_b32 s{sT}, s{sJ}, 8")
    A(f"s_add_u32 s{sBASE}, s{sBASE}, s{sT}")
    for k in range(32):
        if k >= da: A(f"s_waitcnt vmcnt({da-1})")
        A(f"s_add_u32 s{sT}, s{sBASE}, {hex(k*4096)}")
        A(f"buffer_load_dwordx4 {slot(k)}, v{vOA}, {S4(SN)}, s{sT} offen {pola}")
    A("s_waitcnt vmcnt(0)")
    stamp(5)
    cut(4)
    A(f"v_lshrrev_b32 v{vT}, 3, v{vLANE}")
    A(f"v_lshlrev_b32 v{vT}, 11, v{vT}")
    A(f"v_and_b32 v{vT+1}, 7, v{vLANE}")
    A(f"v_lshl_add_u32 v{vPO}, v{vT+1}, 4, v{vT}")
    for n in range(1, 8):
        A(f"v_add_u32 v{vPO+n}, {hex(n*16384)}, v{vPO}")
    A(f"v_lshlrev_b32 v{vL1}, 3, v{vT+1}")

    def gemv(n, ppf, waitf, issuef=None, slotf=lambda k: k):
        diag(vA0, *ppf(0))
        for k in range(n):
            Acur = vA0 if (k & 1) == 0 else vA1
            Anxt = vA1 if (k & 1) == 0 else vA0
            if k + 1 < n: diag(Anxt, *ppf(k + 1))
            else: A("s_nop 1")
            waitf(k)
            A(f"v_mfma_f32_16x16x32_bf16 {q4(vD0)}, {q4(Acur)}, {slot(slotf(k))}, {'0' if k==0 else q4(vD0)}")
            if issuef: issuef(k)
        A("s_nop 7")
    def lds_wait(mask, val):
        lab = A.uid("lw")
        A(f"v_mov_b32 v{vT}, {L_CM}")
        A(f"s_mov_b32 s{sSPIN}, 0")
        A.lab(lab)
        A(f"ds_read_b32 v{vT+1}, v{vT}")
        A("s_waitcnt lgkmcnt(0)")
        A(f"v_readfirstlane_b32 s{sT}, v{vT+1}")
        A(f"s_add_u32 s{sSPIN}, s{sSPIN}, 1")
        A(f"s_and_b32 s{sT}, s{sT}, {hex(mask)}")
        A(f"s_cmp_eq_u32 s{sT}, {hex(val)}")
        A(f"s_cbranch_scc1 {lab}_ok")
        A("s_sleep 16")
        A(f"s_cmp_lt_u32 s{sSPIN}, {SPINMAX}")
        A(f"s_cbranch_scc1 {lab}")
        A.lab(lab + "_ok")
    def poll(nload, regs, voffs, soff, sleep):
        lab = A.uid("pl")
        A(f"s_mov_b32 s{sSPIN}, 0")
        A.lab(lab)
        for n in range(nload):
            A(f"buffer_load_dwordx4 {q4(regs+4*n)}, v{voffs[n]}, {S4(SC)}, s{soff} offen sc1")
        A(f"s_add_u32 s{sSPIN}, s{sSPIN}, 1")
        for n in range(nload):
            A(f"s_waitcnt vmcnt({nload-1-n})")
            r = regs + 4 * n
            if n == 0:
                A(f"v_max3_u32 v{vT}, v{r}, v{r+1}, v{r+2}")
                A(f"v_max_u32 v{vT}, v{vT}, v{r+3}")
            else:
                A(f"v_max3_u32 v{vT}, v{vT}, v{r}, v{r+1}")
                A(f"v_max3_u32 v{vT}, v{vT}, v{r+2}, v{r+3}")
        A(f"v_cmp_eq_u32 vcc, -1, v{vT}")
        A("s_nop 1")
        A("s_cmp_eq_u64 vcc, 0")
        A(f"s_cbranch_scc1 {lab}_ok")
        if sleep: A(f"s_sleep {sleep}")
        A(f"s_cmp_lt_u32 s{sSPIN}, {SPINMAX}")
        A(f"s_cbranch_scc1 {lab}")
        A.lab(lab + "_ok")
    def reduce_rows(regs, nload):
        n = nload
        while n > 1:
            h = n // 2
            for a in range(h):
                for i in (0, 2):
                    A(f"v_pk_add_f32 {p2(regs+4*a+i)}, {p2(regs+4*a+i)}, {p2(regs+4*(a+h)+i)}")
            n = h
        A("s_nop 1")
        for i in range(4):
            A(f"v_add_f32_dpp v{regs+i}, v{regs+i}, v{regs+i} row_ror:8 row_mask:0xf bank_mask:0xf")
        for sw in ("v_permlane16_swap_b32", "v_permlane32_swap_b32"):
            for i in range(4):
                A(f"v_mov_b32 v{regs+4+i}, v{regs+i}")
            A("s_nop 1")
            for i in range(4):
                A(f"{sw} v{regs+i}, v{regs+4+i}")
            A("s_nop 1")
            for i in range(4):
                A(f"v_add_f32 v{regs+i}, v{regs+i}, v{regs+4+i}")

    A(f"s_cmp_eq_u32 s{sJ}, 3")
    A("s_cbranch_scc1 L_w3")
    if fc:
        U = fc.get("U", 8)
        PEND = 4 * U * (16 - R // 16 + fc.get("vend", 13))
        LIM = 2 * 4 * U * 3
        sPP, sGP, sP, sE = 72, 73, 74, 78
        A(f"s_cmp_eq_u32 s{sJ}, 2")
        A("s_cbranch_scc0 L_nctl")
        A(f"s_and_b32 s{sCUR}, s2, 7")
        A(f"s_lshl_b32 s{sCUR}, s{sCUR}, 8")
        A(f"s_add_u32 s{sCUR}, s{sCUR}, {hex(W_PG)}")
        A(f"s_lshr_b32 s{sNXT}, s2, 3")
        A(f"s_lshl_b32 s{sNXT}, s{sNXT}, 2")
        A(f"s_add_u32 s{sNXT}, s{sNXT}, s{sCUR}")
        A(f"v_lshlrev_b32 v{vON}, 2, v{vLANE}")
        A(f"v_mov_b32 v{vT7}, {L_LV}")
        A(f"s_mov_b32 s{sPP}, -1")
        A(f"s_mov_b32 s{sGP}, 0")
        A(f"s_mov_b32 s{sSPIN}, 0")
        A.lab("L_ctl")
        A(f"ds_read_b128 {q4(vBQ)}, v{vT7} offset:{L_PW-L_LV}")
        A("s_waitcnt lgkmcnt(0)")
        A(f"v_add3_u32 v{vBQ}, v{vBQ}, v{vBQ+1}, v{vBQ+2}")
        A(f"v_add_u32 v{vBQ}, v{vBQ}, v{vBQ+3}")
        A("s_mov_b64 exec, 1")
        A(f"buffer_store_dword v{vBQ}, v{vL2}, {S4(SC)}, s{sNXT} offen")
        A("s_mov_b64 exec, -1")
        A(f"buffer_load_dword v{vBQ+4}, v{vON}, {S4(SC)}, s{sCUR} offen {fc.get('pol','sc1')}")
        A(f"v_readfirstlane_b32 s{sP}, v{vBQ}")
        A(f"s_add_u32 s{sSPIN}, s{sSPIN}, 1")
        A(f"s_cmp_eq_u32 s{sPP}, -1")
        A(f"s_cselect_b32 s{sPP}, s{sP}, s{sPP}")
        A(f"s_add_u32 s{sT}, s{sP}, s{sPP}")
        A(f"s_mov_b32 s{sPP}, s{sP}")
        A("s_waitcnt vmcnt(0)")
        A(f"v_lshlrev_b32 v{vBQ+5}, 1, v{vBQ+4}")
        A(f"v_subrev_u32 v{vBQ+5}, s{sT}, v{vBQ+5}")
        A(f"v_add_u32 v{vBQ+6}, {LIM}, v{vBQ+5}")
        A(f"v_cmp_gt_u32 vcc, {2*LIM}, v{vBQ+6}")
        A("s_nop 1")
        A("s_mov_b32 vcc_hi, 0")
        A("s_nop 1")
        A(f"v_cndmask_b32 v{vBQ+5}, 0, v{vBQ+5}, vcc")
        A(f"v_readlane_b32 s{sE}, v{vBQ+4}, 32")
        for n in (8, 4, 2, 1):
            A("s_nop 1")
            A(f"v_add_u32_dpp v{vBQ+5}, v{vBQ+5}, v{vBQ+5} row_ror:{n} row_mask:0xf bank_mask:0xf")
        A("s_nop 0")
        A(f"v_readlane_b32 s{sM0}, v{vBQ+5}, 0")
        A(f"v_readlane_b32 s{sM0+1}, v{vBQ+5}, 16")
        A(f"s_add_u32 s{sT2}, s{sE}, {32*LIM}")
        A(f"s_cmp_lt_u32 s{sT2}, {64*LIM}")
        A(f"s_cselect_b32 s{sE}, s{sE}, 0")
        if not fc.get("glob", True): A(f"s_mov_b32 s{sE}, 0")
        A(f"s_add_u32 s{sM0}, s{sM0}, s{sM0+1}")
        A(f"s_sub_u32 s{sE}, s{sM0}, s{sE}")
        A(f"s_mov_b32 s{sLV}, 0")
        for th in fc["thr"]:
            A(f"s_cmp_ge_i32 s{sE}, {int(th * 64 * 4 * U / 2.2)}")
            A(f"s_addc_u32 s{sLV}, s{sLV}, 0")
        A(f"v_mov_b32 v{vBQ+6}, s{sLV}")
        A(f"ds_write_b32 v{vT7}, v{vBQ+6}")
        if fc.get("glob", True):
            A(f"s_and_b32 s{sT2}, s{sSPIN}, {fc.get('gper', 2) - 1}")
            A(f"s_lshr_b32 s{sT3}, s2, 3")
            A(f"s_or_b32 s{sT2}, s{sT2}, s{sT3}")
            A("s_cbranch_scc1 L_nrep")
            A(f"s_lshl_b32 s{sT}, s{sT}, 5")
            A(f"s_add_u32 s{sT}, s{sT}, s{sM0}")
            A(f"s_sub_u32 s{sT2}, s{sT}, s{sGP}")
            A(f"s_mov_b32 s{sT3}, s{sT2}")
            A(f"s_atomic_add s{sT3}, s[{sDBG}:{sDBG+1}], 0x0 glc")
            A(f"s_add_u32 s{sM1}, s{sT}, s{sGP}")
            A(f"s_lshr_b32 s{sM1}, s{sM1}, 1")
            A(f"s_mov_b32 s{sGP}, s{sT}")
            A(f"s_lshr_b32 s{sT2}, s{sT2}, 1")
            A("s_waitcnt lgkmcnt(0)")
            A(f"s_add_u32 s{sT3}, s{sT3}, s{sT2}")
            A(f"s_lshr_b32 s{sT3}, s{sT3}, 3")
            A(f"s_sub_u32 s{sM1}, s{sM1}, s{sT3}")
            A(f"v_mov_b32 v{vBQ+6}, s{sM1}")
            A("s_mov_b64 exec, 1")
            A(f"buffer_store_dword v{vBQ+6}, v{vL2}, {S4(SC)}, s{sCUR} offen offset:128")
            A("s_mov_b64 exec, -1")
            A.lab("L_nrep")
        if fc.get("sleep", 0): A(f"s_sleep {fc['sleep']}")
        A(f"s_cmp_ge_u32 s{sSPIN}, {SPINMAX}")
        A("s_cbranch_scc1 L_bar2")
        A(f"s_cmp_lt_u32 s{sP}, {PEND}")
        A("s_cbranch_scc1 L_ctl")
        if stamps: A(f"v_writelane_b32 v{vST}, s{sSPIN}, 60")
        A("s_branch L_bar2")
        A.lab("L_nctl")
    A(f"s_cmp_eq_u32 s{sJ}, 1")
    A("s_cbranch_scc0 L_bar2")
    A(f"s_cmp_lt_u32 s{sH}, {NFFN}")
    A("s_cbranch_scc0 L_bar2")
    A(f"s_lshl_b32 s{sCUR}, s{sH}, 15")
    A(f"s_lshl_b32 s{sT}, s{sB}, 13")
    A(f"s_add_u32 s{sCUR}, s{sCUR}, s{sT}")
    A(f"s_add_u32 s{sCUR}, s{sCUR}, {hex(W_FP)}")
    A(f"s_add_u32 s{sNXT}, s{sCUR}, 4096")
    A(f"s_mov_b32 s{sSPIN}, 0")
    A.lab("L_fp")
    msg_round(40)
    A("s_cbranch_scc1 L_fp_ok")
    A("s_sleep 16")
    A(f"s_cmp_lt_u32 s{sSPIN}, {SPINMAX}")
    A("s_cbranch_scc1 L_fp")
    A.lab("L_fp_ok")
    msg_sum(40)
    H = SL + 160
    for i in range(2):
        rne(H + i, vT)
    A("s_nop 1")
    for i in range(2):
        A(f"v_mov_b32_dpp v{vBQ+i}, v{H+i} row_ror:8 row_mask:0xf bank_mask:0xf")
    for i in range(2):
        silu(H + i, vT)
        rne(H + i, vT)
        A(f"v_mul_f32 v{H+i}, v{H+i}, v{vBQ+i}")
        A(f"v_cvt_pk_bf16_f32 v{vP0+i}, v{H+i}, v{H+i}")
    srd(SA, sW2, 1792 * 512 * 2)
    A(f"v_lshlrev_b32 v{vT}, 11, v{vG}")
    A(f"v_lshl_add_u32 v{vOA}, v{vR}, 4, v{vT}")
    A(f"s_lshl_b32 s{sBASE}, s{sH}, 16")
    A(f"s_lshl_b32 s{sT}, s{sSP}, 9")
    A(f"s_add_u32 s{sBASE}, s{sBASE}, s{sT}")
    fsl = lambda k: 40 + (k & 7)
    df = 4
    def w2load(kk):
        cb, k = kk >> 4, kk & 15
        A(f"s_add_u32 s{sT}, s{sBASE}, {hex((8*(k&7) + (k>>3))*1024 + cb*256)}")
        A(f"buffer_load_dwordx4 {slot(fsl(kk))}, v{vOA}, {S4(SA)}, s{sT} offen {pola}")
    for cb in range(2):
        for k in range(df): w2load(16 * cb + k)
        gemv(16, lambda k: (vP0 + (k >> 3), k & 7),
             lambda k: A(f"s_waitcnt vmcnt({min(df-1, 15-k)})"),
             lambda k: w2load(16 * cb + k + df) if k + df < 16 else None, fsl)
        for i in range(4):
            A(f"v_min_u32 v{vD0+i}, -2, v{vD0+i}")
        A("s_mov_b32 exec_hi, 0")
        A(f"buffer_store_dwordx4 {q4(vD0)}, v{vL0}, {S4(SC)}, s{sPO} offen offset:{512*cb} sc1")
        A("s_mov_b64 exec, -1")
    stamp(6)
    A("s_branch L_bar2")
    A.lab("L_w3")
    if bare == 5:
        A("s_branch L_bar2")
    tag_from_epoch(vTB, vT)
    lds_wait(0x10f, 0x104)
    A(f"v_mov_b32 v{vT}, {L_ML}")
    A(f"ds_read_b128 {q4(vBQ)}, v{vT}")
    A(f"ds_read_b128 {q4(vBQ+4)}, v{vT} offset:16")
    A("s_waitcnt lgkmcnt(0)")
    A(f"v_max_f32 v{vBQ+8}, v{vBQ}, v{vBQ+2}")
    A(f"v_max3_f32 v{vBQ+8}, v{vBQ+8}, v{vBQ+4}, v{vBQ+6}")
    A(f"v_mov_b32 v{vBQ+9}, 0")
    A(f"s_mov_b32 s{sT2}, {hex(LOG2E)}")
    for w in range(4):
        A(f"v_sub_f32 v{vT}, v{vBQ+2*w}, v{vBQ+8}")
        A(f"v_mul_f32 v{vT}, s{sT2}, v{vT}")
        A(f"v_exp_f32 v{vT}, v{vT}")
        A("s_nop 0")
        A(f"v_fmac_f32 v{vBQ+9}, v{vT}, v{vBQ+2*w+1}")
    A(f"s_lshl_b32 s{sT}, s2, 4")
    A(f"s_add_u32 s{sT}, s{sT}, {hex(W_ML)}")
    A("s_mov_b64 exec, 1")
    A(f"buffer_store_dwordx4 {q4(vBQ+8)}, v{vL2}, {S4(SC)}, s{sT} offen sc1")
    A("s_mov_b64 exec, -1")
    stamp(6)
    lds_wait(0xf0, 0x40)
    A(f"s_lshl_b32 s{sNXT}, s{sB}, 10")
    A(f"s_add_u32 s{sNXT}, s{sNXT}, {hex(W_ML)}")
    A(f"s_mov_b32 s{sSPIN}, 0")
    A.lab("L_ml")
    A(f"buffer_load_dwordx4 {q4(vBQ+12)}, v{vOV}, {S4(SC)}, s{sNXT} offen sc1")
    A(f"s_add_u32 s{sSPIN}, s{sSPIN}, 1")
    A("s_waitcnt vmcnt(0)")
    A(f"v_xor_b32 v{vT}, v{vBQ+14}, v{vTB}")
    A(f"v_xor_b32 v{vT+1}, v{vBQ+15}, v{vTB+1}")
    A(f"v_or_b32 v{vT}, v{vT}, v{vT+1}")
    A(f"v_cmp_ne_u32 vcc, 0, v{vT}")
    A("s_nop 1")
    A("s_cmp_eq_u64 vcc, 0")
    A("s_cbranch_scc1 L_ml_ok")
    A("s_sleep 16")
    A(f"s_cmp_lt_u32 s{sSPIN}, {SPINMAX}")
    A("s_cbranch_scc1 L_ml")
    A.lab("L_ml_ok")
    A(f"s_xor_b32 s{sT}, s{sIDX}, 8")
    A("s_nop 0")
    A(f"v_readlane_b32 s{sM0}, v{vBQ+12}, s{sT}")
    A(f"v_readlane_b32 s{sM0+1}, v{vBQ+13}, s{sT}")
    A("s_nop 1")
    A(f"v_max_f32 v{vBQ+14}, s{sM0}, v{vBQ+8}")
    A(f"v_sub_f32 v{vT}, v{vBQ+8}, v{vBQ+14}")
    A(f"v_sub_f32 v{vT+1}, s{sM0}, v{vBQ+14}")
    A(f"v_mul_f32 v{vT}, s{sT2}, v{vT}")
    A(f"v_mul_f32 v{vT+1}, s{sT2}, v{vT+1}")
    A(f"v_exp_f32 v{vT}, v{vT}")
    A(f"v_exp_f32 v{vT+1}, v{vT+1}")
    A("s_nop 0")
    A(f"v_mul_f32 v{vT}, v{vT}, v{vBQ+9}")
    A(f"v_fmac_f32 v{vT}, s{sM0+1}, v{vT+1}")
    A(f"v_rcp_f32 v{vT+1}, v{vT}")
    for w in range(4):
        A(f"v_sub_f32 v{vT+2+w}, v{vBQ+2*w}, v{vBQ+14}")
        A(f"v_mul_f32 v{vT+2+w}, s{sT2}, v{vT+2+w}")
        A(f"v_exp_f32 v{vT+2+w}, v{vT+2+w}")
        A("s_nop 0")
        A(f"v_mul_f32 v{vT+2+w}, v{vT+2+w}, v{vT+1}")
    A(f"v_mov_b32 v{vT}, {L_FW}")
    A("s_mov_b64 exec, 1")
    A(f"ds_write_b128 v{vT}, {q4(vT+2)}")
    A("s_mov_b64 exec, -1")
    A(f"s_cmp_ge_u32 s{sIDX}, 48")
    A("s_cbranch_scc0 L_w3x")
    A(f"s_cmp_eq_u32 s{sIDX}, 48")
    A("s_cbranch_scc0 L_neb")
    A(f"s_lshl_b32 s{sT}, s{sB}, 7")
    A(f"s_add_u32 s{sT}, s{sT}, {hex(W_EB)}")
    A("s_mov_b64 exec, 1")
    A(f"buffer_store_dwordx2 {p2(vTB)}, v{vL2}, {S4(SC)}, s{sT} offen sc1")
    A("s_mov_b64 exec, -1")
    A.lab("L_neb")
    srd(SA, sX, 4096)
    A(f"s_sub_u32 s{sT2}, s{sIDX}, 48")
    A(f"s_lshl_b32 s{sT3}, s{sT2}, 6")
    A(f"s_lshl_b32 s{sT}, s{sB}, 10")
    A(f"s_add_u32 s{sT3}, s{sT3}, s{sT}")
    A(f"buffer_load_dwordx2 {p2(vXr)}, v{vL1}, {S4(SA)}, s{sT3} offen")
    A(f"v_cmp_gt_u32 vcc, {(NFFN-24)*8}, v{vLANE}")
    A(f"v_mov_b32 v{vT+3}, 0x40000000")
    A("s_nop 0")
    A(f"v_cndmask_b32 v{vON}, v{vT+3}, v{vPO+3}, vcc")
    A(f"s_lshl_b32 s{sCUR}, s{sB}, 16")
    A(f"s_lshl_b32 s{sT}, s{sT2}, 7")
    A(f"s_add_u32 s{sCUR}, s{sCUR}, s{sT}")
    A(f"s_add_u32 s{sCUR}, s{sCUR}, {hex(W_Z)}")
    poll(4, vBQ, [vPO, vPO + 1, vPO + 2, vON], sCUR, 16)
    reduce_rows(vBQ, 4)
    for i in range(4):
        rne(vBQ + i, vT + 1)
        silu(vBQ + i, vT + 1)
        rne(vBQ + i, vT + 1)
        A(f"v_mov_b32 v{vGt+i}, v{vBQ+i}")
    A(f"v_and_b32 v{vXr+3}, 0xffff0000, v{vXr+1}")
    A(f"v_lshlrev_b32 v{vXr+2}, 16, v{vXr+1}")
    A(f"v_and_b32 v{vXr+1}, 0xffff0000, v{vXr}")
    A(f"v_lshlrev_b32 v{vXr}, 16, v{vXr}")
    A(f"s_lshl_b32 s{sCUR}, s{sB}, 17")
    A(f"s_lshl_b32 s{sT}, s{sT2}, 7")
    A(f"s_add_u32 s{sCUR}, s{sCUR}, s{sT}")
    A.lab("L_w3x")
    A("s_waitcnt lgkmcnt(0)")
    A.lab("L_bar2")
    A(f"v_lshlrev_b32 v{vT}, 4, v{vR}")
    A(f"v_lshl_add_u32 v{vT}, v{vG}, 2, v{vT}")
    A(f"v_mov_b32 v{vT+1}, {L_FW}")
    A(f"s_lshl_b32 s{sNXT}, s2, 11")
    A(f"s_lshl_b32 s{sT}, s{sJ}, 9")
    A(f"s_add_u32 s{sNXT}, s{sNXT}, s{sT}")
    srd(SA, sOUT, 4096)
    stamp(7)
    A("s_barrier")
    if bare in (5, 6): A("s_endpgm")
    A(f"ds_read_b128 {q4(vBQ+8)}, v{vT+1}")
    for w in range(4):
        A(f"ds_read_b32 v{vBQ+w}, v{vT} offset:{L_OP + w*512}")
        A(f"ds_read_b32 v{vBQ+4+w}, v{vT} offset:{L_OP + w*512 + 256}")
    A("s_waitcnt lgkmcnt(0)")
    for u, p in ((0, vP0), (1, vP1)):
        A(f"v_mul_f32 v{p}, v{vBQ+4*u}, v{vBQ+8}")
    for w in range(1, 4):
        for u, p in ((0, vP0), (1, vP1)):
            A(f"v_fmac_f32 v{p}, v{vBQ+4*u+w}, v{vBQ+8+w}")
    A(f"v_cvt_pk_bf16_f32 v{vP0}, v{vP0}, v{vP0}")
    A(f"v_cvt_pk_bf16_f32 v{vP1}, v{vP1}, v{vP1}")
    A("s_nop 1")
    gemv(32, lambda k: (vP0 + (k >> 4), k & 15), lambda k: None)
    for i in range(4):
        A(f"v_min_u32 v{vD0+i}, -2, v{vD0+i}")
    A("s_mov_b32 exec_hi, 0")
    A(f"buffer_store_dwordx4 {q4(vD0)}, v{vL0}, {S4(SC)}, s{sNXT} offen sc1")
    A("s_mov_b64 exec, -1")
    stamp(8)
    A(f"s_cmp_eq_u32 s{sJ}, 3")
    A("s_cbranch_scc0 L_auxend")
    A(f"s_cmp_ge_u32 s{sIDX}, 48")
    A("s_cbranch_scc0 L_auxend")
    poll(8, SL, [vPO + n for n in range(8)], sCUR, 1)
    reduce_rows(SL, 8)
    for i in range(4):
        rne(SL + i, vT + i)
    for i in range(4):
        A(f"v_mul_f32 v{SL+i}, v{SL+i}, v{vGt+i}")
    for i in range(4):
        rne(SL + i, vT + i)
    for i in range(4):
        A(f"v_add_f32 v{SL+i}, v{SL+i}, v{vXr+i}")
    A(f"v_cvt_pk_bf16_f32 v{SL+4}, v{SL}, v{SL+1}")
    A(f"v_cvt_pk_bf16_f32 v{SL+5}, v{SL+2}, v{SL+3}")
    A("s_mov_b64 exec, 0xff")
    A(f"buffer_store_dwordx2 v[{SL+4}:{SL+5}], v{vL1}, {S4(SA)}, s{sT3} offen")
    A("s_mov_b64 exec, -1")
    stamp(9)
    A.lab("L_auxend")
    stamp_flush()
    A.lab("L_end")
    A("s_endpgm")

    ref = open("recurrent_scan__mha_block_cached__glu_gated_swiglu__decode.s.ref").read()
    out = ref.split("; @launch")[0]
    out += f"; @launch grid=(256,1,1) block=(512,1,1) lds={LDS}\n"
    out += '.amdgcn_target "amdgcn-amd-amdhsa--gfx950"\n.text\n'
    out += f".globl {NAME}\n.p2align 8\n.type {NAME},@function\n{NAME}:\n"
    out += "\n".join(A.L) + "\n"
    out += '.section .rodata,"a"\n.p2align 6\n'
    out += f".amdhsa_kernel {NAME}\n"
    out += f"  .amdhsa_next_free_vgpr {NV}\n  .amdhsa_next_free_sgpr 80\n  .amdhsa_accum_offset {NV}\n"
    out += "  .amdhsa_group_segment_fixed_size 0\n  .amdhsa_kernarg_size 96\n  .amdhsa_user_sgpr_count 2\n"
    out += "  .amdhsa_user_sgpr_kernarg_segment_ptr 1\n  .amdhsa_system_sgpr_workgroup_id_x 1\n.end_amdhsa_kernel\n"
    return out

if __name__ == "__main__":
    fn = sys.argv[1]
    kw = eval("dict(%s)" % (sys.argv[2] if len(sys.argv) > 2 else ""))
    open(fn, "w").write(gen(**kw))
```

```python
import sys

NAME = "recurrent_scan__mha_block_cached__glu_gated_swiglu__decode_kernel"


DOC = """;
;   wave 7: (max, sum) exchange of the two splits; 64 workgroups also reduce the final outputs.
"""

class G:
    def __init__(s):
        s.L = []
        s.n = 0
    def __call__(s, t):
        s.L.append("    " + t)
    def lab(s, t):
        s.L.append(t + ":")
    def c(s, t):
        s.L.append("    ; " + t)
    def uid(s, p):
        s.n += 1
        return f"L_{p}{s.n}"

def gen(d=5, dpro=8, da=2, sb=15, stamps=False, R=48, LAG=8, NA=8, VLATE=4,
        polq="", polf="", polp="", pola="nt", bare=0, qprio=3, fc=None, dlast=None,
        dpro2=None, n1=24, df=4, gpace=0, tfill=0, vwarm=False, poll2=False, polo='', vboost=None, fullml=True, fearly=0, noq=0, skip='', clr0=False, qlite=False, qpre=0, polGA='sc1', fstag=None, fdual=None, swap=False, pt=False, xr=None, halfmsg=False, qonlyB=False, qack=False, ifirst=False, galign=False, order='oooo22', mergeB=False, mergeZ=0, hx=None, npos=None, d0=None, fdelay=0):
    dlast = dlast or d
    if fdual is None: fdual = bool(fearly)
    A = G()
    levels = [d] if fc is None else fc["levels"]
    assert max(levels) <= LAG
    sX, sK, sV, sWQ, sWO, sW1, sW3, sW2, sOUT, sDBG, sWS = 4, 6, 8, 10, 12, 16, 18, 20, 22, 24, 26
    sWAVE, sB, sH, sSP, sIDX, sJ, sMU = 28, 29, 30, 31, 32, 33, 34
    SA, SN, SC, SD_, SE = 36, 40, 44, 48, 52
    sCUR, sNXT, sT, sIT, sT2, sT3 = 56, 57, 58, 59, 60, 61
    sM0, sM1 = 62, 64
    sBASE, sSPIN, sLV, sPO = 66, 67, 68, 69
    sST = 70
    vLANE, vOA, vON, vOV, vG, vR, vT7 = 1, 2, 3, 4, 5, 6, 7
    vMK = 8
    vBQ = 12
    vD0, vD1 = 28, 32
    vS, vM = 36, 37
    vT = 38
    vA0, vA1 = 48, 52
    vP0, vP1 = 56, 57
    vL0, vL1, vL2 = 58, 59, 60
    vPG, vST, vPB = 61, 62, 63
    SL = 64
    NV = 256
    assert SL + 4 * R <= NV
    slot = lambda i: f"v[{SL+4*i}:{SL+4*i+3}]"
    q4 = lambda r: f"v[{r}:{r+3}]"
    p2 = lambda r: f"v[{r}:{r+1}]"
    S4 = lambda b: f"s[{b}:{b+3}]"
    L_Q = 0
    L_TG = 256
    L_ML = 272
    L_FW = 304
    L_CM = 320
    L_LV = 352
    L_PW = 336
    L_OP = 2048
    L_ZR = 512
    L_XE = 4096
    L_SC = 8192
    LDS = L_SC + 4 * 16 * 64 * 4 + 256
    W_Y, W_Z, W_ML, W_EH, W_EB, W_PG = 0, 0x80000, 0xC0000, 0xC8000, 0xC9000, 0xCA000
    W_QA, W_QB, W_FP, W_FB, W_SZ = 0x100000, 0x200000, 0x300000, 0x400000, 0x500000
    W_ST = 0x500000
    NFFN = 28
    LOG2E = 0x3FB8AA3B
    SCALE = 0x3DB504F3
    SPINMAX = 200000

    def srd(base, ptr, nbytes):
        A(f"s_mov_b32 s{base}, s{ptr}")
        A(f"s_mov_b32 s{base+1}, s{ptr+1}")
        A(f"s_mov_b32 s{base+2}, {hex(nbytes)}")
        A(f"s_mov_b32 s{base+3}, 0x00020000")
    def stamp(i):
        if not stamps: return
        A(f"s_memrealtime s[{sST}:{sST+1}]")
        A("s_waitcnt lgkmcnt(0)")
        A(f"v_writelane_b32 v{vST}, s{sST}, {i}")
    def stamp_it(base):
        if not stamps: return
        A(f"s_memrealtime s[{sST}:{sST+1}]")
        A(f"s_add_u32 m0, s{sIT}, {base}")
        A("s_waitcnt lgkmcnt(0)")
        A(f"v_writelane_b32 v{vST}, s{sST}, m0")
    def stamp_flush():
        if not stamps: return
        A(f"v_writelane_b32 v{vST}, s76, 10")
        A(f"v_writelane_b32 v{vST}, s75, 61")
        srd(SE, sWS, 0x600000)
        A(f"s_lshl_b32 s{sT}, s2, 3")
        A(f"s_add_u32 s{sT}, s{sT}, s{sWAVE}")
        A(f"s_lshl_b32 s{sT}, s{sT}, 8")
        A(f"s_add_u32 s{sT}, s{sT}, {hex(W_ST)}")
        A(f"v_lshlrev_b32 v{vT7}, 2, v{vLANE}")
        A(f"buffer_store_dword v{vST}, v{vT7}, {S4(SE)}, s{sT} offen")
    def cut(n):
        if bare == n:
            A("s_barrier"); A("s_endpgm")

    def swaps(op, reg, tmp):
        for sw in ("v_permlane16_swap_b32", "v_permlane32_swap_b32"):
            A("s_nop 0")
            A(f"v_mov_b32 v{tmp}, v{reg}")
            A("s_nop 1")
            A(f"{sw} v{reg}, v{tmp}")
            A("s_nop 0")
            A(f"{op} v{reg}, v{reg}, v{tmp}")
    def allreduce(op, reg, tmp):
        for n in (8, 4, 2, 1):
            A("s_nop 1")
            A(f"{op}_dpp v{reg}, v{reg}, v{reg} row_ror:{n} row_mask:0xf bank_mask:0xf")
        swaps(op, reg, tmp)
    def rne(reg, tmp):
        A(f"v_cvt_pk_bf16_f32 v{tmp}, v{reg}, v{reg}")
        A(f"v_and_b32 v{reg}, 0xffff0000, v{tmp}")
    def diag(dst, pp, j):
        for m in range(4):
            A(f"v_and_b32_dpp v{dst+m}, v{pp}, v{vMK+m} row_newbcast:{j} row_mask:0xf bank_mask:0xf")
    def silu(reg, t):
        A(f"v_mul_f32 v{t}, {hex(LOG2E | 0x80000000)}, v{reg}")
        A(f"v_exp_f32 v{t}, v{t}")
        A("s_nop 0")
        A(f"v_add_f32 v{t}, 1.0, v{t}")
        A(f"v_rcp_f32 v{t}, v{t}")
        A("s_nop 0")
        A(f"v_mul_f32 v{reg}, v{reg}, v{t}")
    def build_masks():
        A(f"v_and_b32 v{vT}, 1, v{vR}")
        A(f"v_lshlrev_b32 v{vT}, 4, v{vT}")
        A(f"v_mov_b32 v{vT+1}, 0xffff")
        A(f"v_lshlrev_b32 v{vT}, v{vT}, v{vT+1}")
        A(f"v_bfe_u32 v{vT+1}, v{vR}, 1, 2")
        for m in range(4):
            A(f"v_cmp_eq_u32 vcc, {m}, v{vT+1}")
            A("s_nop 1")
            A(f"v_cndmask_b32 v{vMK+m}, 0, v{vT}, vcc")
    def tag_from_epoch(reg, tmp):
        A(f"v_mov_b32 v{tmp}, 0x9e3779b9")
        A(f"v_add_co_u32 v{reg}, vcc, 0x7f4a7c15, v{reg}")
        A("s_nop 1")
        A(f"v_addc_co_u32 v{reg+1}, vcc, v{tmp}, v{reg+1}, vcc")

    if sb == 15:
        koff = lambda k: ((k & 7) << 12) | ((k >> 3) << 16); wsh = 10; GSTR = 1 << 17
    elif sb == 10:
        koff = lambda k: k << 13; wsh = 11; GSTR = 1 << 17
    elif sb == 16:
        koff = lambda k: k << 12; wsh = 10; GSTR = 1 << 17
    elif sb == 14:
        koff = lambda k: ((k & 3) << 12) | ((k >> 2) << 15); wsh = 10; GSTR = 1 << 17
    elif sb == 20:
        koff = lambda k: k << 12; wsh = 10; GSTR = 1 << 16

    if npos:
        wsh, kb, sb = npos
        wb = (wsh, wsh + 1) if isinstance(wsh, int) else wsh
        used = sorted(list(wb) + list(kb) + [sb])
        rest = [b_ for b_ in range(10, 21) if b_ not in used]
        assert len(rest) == 4 and rest == list(range(rest[0], rest[0] + 4)), rest
        koff = lambda k: sum(((k >> i) & 1) << kb[i] for i in range(4)); GSTR = 1 << rest[0]
    A("s_cmp_ge_u32 s2, 256")
    A("s_cbranch_scc1 L_end")
    if stamps: A("s_memrealtime s[76:77]")
    A("s_load_dwordx16 s[4:19], s[0:1], 0")
    A("s_load_dwordx8 s[20:27], s[0:1], 64")
    A(f"v_lshrrev_b32 v{vT7}, 6, v0")
    A(f"v_and_b32 v{vLANE}, 63, v0")
    A(f"v_readfirstlane_b32 s{sWAVE}, v{vT7}")
    A(f"v_lshrrev_b32 v{vG}, 4, v{vLANE}")
    A(f"v_and_b32 v{vR}, 15, v{vLANE}")
    A(f"v_lshlrev_b32 v{vOV}, 4, v{vLANE}")
    if stamps:
        A(f"v_mov_b32 v{vST}, 0")
        A("s_mov_b32 s75, 0")
    if swap: A(f"s_xor_b32 s{sWAVE}, s{sWAVE}, 4")
    A(f"s_lshr_b32 s{sB}, s2, 6")
    A(f"s_and_b32 s{sIDX}, s2, 63")
    A(f"s_bfe_u32 s{sSP}, s2, {(1<<16)|3}")
    if hx is None:
        A(f"s_bfe_u32 s{sT}, s2, {(2<<16)|4}")
        A(f"s_lshl_b32 s{sT}, s{sT}, 3")
        A(f"s_and_b32 s{sH}, s2, 7")
        A(f"s_or_b32 s{sH}, s{sH}, s{sT}")
    else:
        rest = [b_ for b_ in range(5) if b_ not in hx]
        A(f"s_mov_b32 s{sH}, 0")
        for src, dst in zip((0, 1, 2, 4, 5), list(hx) + rest):
            A(f"s_bfe_u32 s{sT}, s2, {(1<<16)|src}")
            A(f"s_lshl_b32 s{sT}, s{sT}, {dst}")
            A(f"s_or_b32 s{sH}, s{sH}, s{sT}")
    A(f"s_lshl_b32 s{sMU}, s{sB}, 1")
    A(f"s_or_b32 s{sMU}, s{sMU}, s{sSP}")
    A(f"s_cmp_ge_u32 s{sWAVE}, 4")
    A("s_cbranch_scc1 L_aux")

    A.c("---- stream waves ----")
    A(f"s_lshl_b32 s{sT3}, s{sH}, 16")
    A(f"s_lshl_b32 s{sT}, s{sMU}, 13")
    A(f"s_add_u32 s{sT3}, s{sT3}, s{sT}")
    A(f"s_lshl_b32 s{sT}, s{sWAVE}, 11")
    A(f"s_add_u32 s{sT3}, s{sT3}, s{sT}")
    A(f"s_lshl_b32 s{sT2}, s{sT3}, 1")
    A(f"v_lshrrev_b32 v{vT}, 2, v{vR}")
    A(f"v_lshlrev_b32 v{vT}, 8, v{vT}")
    A(f"v_and_b32 v{vT+1}, 3, v{vR}")
    A(f"v_lshlrev_b32 v{vT+1}, 4, v{vT+1}")
    A(f"v_lshlrev_b32 v{vT+2}, 6, v{vG}")
    A(f"v_add3_u32 v{vOA}, v{vT}, v{vT+1}, v{vT+2}")
    A(f"v_mov_b32 v{vON}, v{vOA}")
    A(f"s_lshl_b32 s{sBASE}, s{sB}, 26")
    A(f"s_lshl_b32 s{sT}, s{sH}, 21")
    A(f"s_or_b32 s{sBASE}, s{sBASE}, s{sT}")
    A(f"s_lshl_b32 s{sT}, s{sSP}, {sb}")
    A(f"s_or_b32 s{sBASE}, s{sBASE}, s{sT}")
    if isinstance(wsh, int):
        A(f"s_lshl_b32 s{sT}, s{sWAVE}, {wsh}")
        A(f"s_or_b32 s{sBASE}, s{sBASE}, s{sT}")
    else:
        for i_ in range(2):
            A(f"s_bfe_u32 s{sT}, s{sWAVE}, {(1<<16)|i_}")
            A(f"s_lshl_b32 s{sT}, s{sT}, {wsh[i_]}")
            A(f"s_or_b32 s{sBASE}, s{sBASE}, s{sT}")
    A("s_waitcnt lgkmcnt(0)")
    nis = [0]
    def pace():
        if d0 and nis[0] == d0: A(f"s_waitcnt vmcnt({d0-1})")
        if nis[0] >= dpro: A(f"s_waitcnt vmcnt({(dpro2 if dpro2 and nis[0] >= n1 else dpro)-1})")
        nis[0] += 1
    if xr:
        A(f"s_bfe_u32 s35, s2, {(xr[1]<<16)|xr[0]}")
        A(f"s_lshl_b32 s35, s35, {xr[2]}")
    def sload(sl, srdb, voff, sbase, off):
        A(f"s_add_u32 s{sT}, s{sbase}, {hex(off)}")
        if xr: A(f"s_xor_b32 s{sT}, s{sT}, s35")
        A(f"buffer_load_dwordx4 {slot(sl)}, v{voff}, {S4(srdb)}, s{sT} offen nt")
    gk = lambda i: (i >> 4) * GSTR + koff(i & 15)
    cnt = {'o': 0, '2': 0, 'k': 0}
    for ch in (order if bare != 2 else ""):
        if cnt[ch] == 0:
            if ch == 'o': srd(SC, sWO, 0x400000)
            elif ch == '2': srd(SD_, sW2, 1792 * 512 * 2)
            else: srd(SA, sK, 0x10000000)
        pace()
        k = cnt[ch]; cnt[ch] += 1
        if ch == 'o': A(f"buffer_load_dwordx4 {q4(vA0)}, v{vOV}, {S4(SC)}, s{sT2} offen offset:{k*1024} {polp}")
        elif ch == '2': A(f"buffer_load_dwordx4 {q4(vA0)}, v{vOV}, {S4(SD_)}, s{sT3} offen offset:{k*1024} {polp}")
        else: sload(k, SA, vOA, sBASE, gk(k))
    if cnt['k'] == 0: srd(SA, sK, 0x10000000)
    setup_done = False
    for i in range(cnt['k'], R):
        if nis[0] >= dpro and not setup_done:
            setup_done = True
            stamp(0)
            srd(SN, sK, 0x10000000)
            build_masks()
            A(f"v_lshlrev_b32 v{vL0}, 2, v{vLANE}")
            A(f"s_lshl_b32 s{sT2}, s{sWAVE}, 12")
            A(f"s_add_u32 s{sT2}, s{sT2}, {L_SC}")
            A(f"v_add_u32 v{vL0}, s{sT2}, v{vL0}")
            A(f"v_mov_b32 v{vL1}, v{vL0}")
            A(f"v_lshrrev_b32 v{vT}, 2, v{vR}")
            A(f"v_lshlrev_b32 v{vT}, 4, v{vT}")
            A(f"v_lshlrev_b32 v{vL2}, 6, v{vG}")
            A(f"v_add_u32 v{vL2}, v{vL2}, v{vT}")
            A(f"v_mov_b32 v{vM}, 0xff800000")
        pace()
        sload(i, SA, vOA, sBASE, gk(i))
        if i in (15, 31): stamp(7 + (i >> 4))
    stamp(1)
    A("s_barrier")
    stamp(2)
    A(f"ds_read_b128 {q4(vT+2)}, v{vL2} offset:{L_Q}")
    A(f"v_and_b32 v{vT}, 3, v{vR}")
    A("s_waitcnt lgkmcnt(0)")
    for t in range(4):
        A(f"v_cmp_eq_u32 vcc, {t}, v{vT}")
        A("s_nop 1")
        for m in range(4):
            A(f"v_cndmask_b32 v{vBQ+4*t+m}, 0, v{vT+2+m}, vcc")
    A("s_nop 1")

    def dpp_gather(u, i):
        D = vD0 if (u & 1) == 0 else vD1
        n = (4 * (u - i)) % 16
        ctrl = "quad_perm:[0,1,2,3]" if n == 0 else f"row_ror:{n}"
        if i == 0:
            A(f"v_mov_b32_dpp v{vS}, v{D} {ctrl} row_mask:0xf bank_mask:{hex(1<<u)}")
        else:
            A(f"v_add_f32_dpp v{vS}, v{D+i}, v{vS} {ctrl} row_mask:0xf bank_mask:{hex(1<<u)}")
    midctx = [None]
    hook = [lambda: None]
    def kgroup(slot0, waitf, issuef):
        for k in range(16):
            if k == 8: hook[0]()
            u, t = k >> 2, k & 3
            D = vD0 if (u & 1) == 0 else vD1
            waitf(k)
            if ifirst and midctx[0]: issuef(k)
            A(f"v_mfma_f32_16x16x32_bf16 {q4(D)}, {slot(slot0+k)}, {q4(vBQ+4*t)}, {'0' if t==0 else q4(D)}")
            if not (ifirst and midctx[0]): issuef(k)
            if u > 0:
                A("s_nop 6" if t == 0 else "s_nop 0")
                dpp_gather(u - 1, t)
        A("s_nop 7")
        for i in range(4):
            dpp_gather(3, i)
            A("s_nop 1")
        rne(vS, vT)
        A(f"v_mul_f32 v{vT+1}, {hex(SCALE)}, v{vS}")
        rne(vT + 1, vT)
        A(f"v_max_f32 v{vM}, v{vM}, v{vT+1}")
        A(f"ds_write_b32 v{vL1}, v{vT+1}")
        A(f"v_add_u32 v{vL1}, 256, v{vL1}")

    issued = [0]
    for G0 in range(R // 16):
        def waitf(k, G0=G0):
            i = G0 * 16 + k
            A(f"s_waitcnt vmcnt({min(63, R-1-i + issued[0])})")
        def issuef(k, G0=G0):
            i = G0 * 16 + k
            if i < d:
                sload(i, SA, vOA, sBASE, gk(R + i)); issued[0] += 1
        kgroup(G0 * 16, waitf, issuef)
    for i in range(d, LAG):
        A(f"s_waitcnt vmcnt({d-1})")
        sload(i, SA, vOA, sBASE, gk(R + i))
    stamp(3)
    A(f"s_add_u32 s{sCUR}, s{sBASE}, {hex((R//16)*GSTR)}")
    A(f"s_mov_b32 s{sIT}, {R//16}")
    if fc:
        U = fc.get("U", 8)
        A(f"s_lshl_b32 s{sT}, s{sWAVE}, 2")
        A(f"s_add_u32 s{sT}, s{sT}, {L_PW}")
        A(f"v_mov_b32 v{vPB}, s{sT}")
        A(f"v_mov_b32 v{vPG}, 0")
        A(f"v_mov_b32 v{vT+8}, {fc.get('nom', 1)}")
    def steady_issue(k):
        kk = k + LAG
        if kk < 16:
            sload(kk, SA, vOA, sCUR, koff(kk))
        else:
            sload(kk - 16, SN, vON, sNXT, koff(kk - 16))
        if fc:
            if k % (16 // U) == 0:
                A(f"v_add_u32 v{vPG}, 1, v{vPG}")
                A(f"ds_write_b32 v{vPB}, v{vPG}")
            if k == 14 or (k == 6 and fc.get("mid")):
                A(f"ds_read_b32 v{vT+8}, v{vPB} offset:{L_LV-L_PW}")
    def midswitch():
        if not (fc and fc.get("mid") and midctx[0]): return
        tag, li = midctx[0]
        A("s_waitcnt lgkmcnt(0)")
        A(f"v_readfirstlane_b32 s{sLV}, v{vT+8}")
        for lj in range(len(levels)):
            if lj == li: continue
            A(f"s_cmp_eq_u32 s{sLV}, {lj}")
            A(f"s_cbranch_scc1 L_{tag}_h{lj}")
        A.lab(f"L_{tag}_h{li}")
    hook[0] = midswitch
    def wv(dd, k):
        lo = int(dd); fr = dd - lo
        up = int((k + 1) * fr + 1e-9) > int(k * fr + 1e-9)
        return (lo + (1 if up else 0)) - 1
    def dispatch(tag, body):
        if not fc:
            body(d); return
        A(f"v_readfirstlane_b32 s{sLV}, v{vT+8}")
        if tag == "v" and vboost:
            A(f"s_cmp_ge_u32 s{sIT}, {vboost[0]}")
            A(f"s_cselect_b32 s{sT}, {vboost[1]}, 0")
            A(f"s_add_u32 s{sLV}, s{sLV}, s{sT}")
            A(f"s_min_u32 s{sLV}, s{sLV}, {len(levels)-1}")
        if stamps: A(f"s_add_u32 s75, s75, s{sLV}")
        for li in range(1, len(levels)):
            A(f"s_cmp_eq_u32 s{sLV}, {li}")
            A(f"s_cbranch_scc1 L_{tag}_b{li}")
        for li, dd in enumerate(levels):
            A.lab(f"L_{tag}_b{li}")
            midctx[0] = (tag, li)
            body(dd)
            midctx[0] = None
            if li + 1 < len(levels): A(f"s_branch L_{tag}_e")
        A.lab(f"L_{tag}_e")
    A.c("---- K loop: one body per window size ----"); A.lab("L_kloop")
    A(f"s_add_u32 s{sNXT}, s{sCUR}, {hex(GSTR)}")
    A(f"s_cmp_eq_u32 s{sIT}, 15")
    A("s_cbranch_scc0 L_knl")
    A(f"s_mov_b32 s{sNXT}, s{sBASE}")
    A(f"s_mov_b32 s{SN}, s{sV}")
    A(f"s_mov_b32 s{SN+1}, s{sV+1}")
    A(f"v_mov_b32 v{vON}, v{vOV}")
    A.lab("L_knl")
    if fc: A("s_waitcnt lgkmcnt(0)")
    dispatch("k", lambda dd: kgroup(0, lambda k: A(f"s_waitcnt vmcnt({wv(dd,k)})"), steady_issue))
    stamp_it(16)
    A(f"s_mov_b32 s{sCUR}, s{sNXT}")
    A(f"s_add_u32 s{sIT}, s{sIT}, 1")
    A(f"s_cmp_lt_u32 s{sIT}, 16")
    A("s_cbranch_scc1 L_kloop")
    stamp(4)
    A(f"s_mov_b32 s{SA}, s{sV}")
    A(f"s_mov_b32 s{SA+1}, s{sV+1}")
    A(f"v_mov_b32 v{vOA}, v{vOV}")
    X = SL + 64
    tf = [0]
    def tfi():
        if tf[0] < tfill:
            A(f"s_waitcnt vmcnt({d-1})")
            steady_issue(tf[0]); tf[0] += 1
    tfi()
    A("s_waitcnt lgkmcnt(0)")
    for i in range(8):
        A(f"ds_read2st64_b32 v[{X+2*i}:{X+2*i+1}], v{vL0} offset0:{2*i} offset1:{2*i+1}")
    allreduce("v_max_f32", vM, vT)
    A(f"s_mov_b32 s{sT2}, {hex(LOG2E)}")
    A("s_waitcnt lgkmcnt(0)")
    for i in range(16):
        A(f"v_sub_f32 v{X+i}, v{X+i}, v{vM}")
    tfi()
    for i in range(16):
        A(f"v_mul_f32 v{X+i}, s{sT2}, v{X+i}")
    for i in range(16):
        A(f"v_exp_f32 v{X+i}, v{X+i}")
    A("s_nop 0")
    for i in range(16):
        A(f"v_cvt_pk_bf16_f32 v{X+16+i}, v{X+i}, v{X+i}")
    for i in range(8):
        A(f"ds_write2st64_b32 v{vL0}, v{X+16+2*i}, v{X+16+2*i+1} offset0:{2*i} offset1:{2*i+1}")
    A(f"v_mov_b32 v{vP1}, v{X+16}")
    tfi()
    for st in (8, 4, 2, 1):
        for i in range(st):
            A(f"v_add_f32 v{X+i}, v{X+i}, v{X+i+st}")
    allreduce("v_add_f32", X, vT)
    tfi()
    A(f"v_mov_b32 v{vT}, v{vM}")
    A(f"v_mov_b32 v{vT+1}, v{X}")
    A(f"s_lshl_b32 s{sT2}, s{sWAVE}, 3")
    A(f"s_add_u32 s{sT2}, s{sT2}, {L_ML}")
    A(f"v_mov_b32 v{vT+2}, s{sT2}")
    A(f"v_mov_b32 v{vT+3}, {L_CM}")
    A(f"v_mov_b32 v{vT+4}, 1")
    A("s_mov_b64 exec, 1")
    A(f"ds_write_b64 v{vT+2}, v[{vT}:{vT+1}]")
    A("s_waitcnt lgkmcnt(0)")
    A(f"ds_add_u32 v{vT+3}, v{vT+4}")
    A("s_mov_b64 exec, -1")
    A(f"v_mov_b32 v{vT+7}, 16")
    for i in range(4):
        A(f"v_mov_b32 v{vD0+i}, 0")
    A(f"v_add_u32 v{vL1}, 256, v{vL0}")
    A(f"v_lshlrev_b32 v{vT+5}, {4 if pt else 5}, v{vR}")
    A(f"v_lshlrev_b32 v{vT+6}, {3 if pt else 4}, v{vG}")
    A(f"s_mul_i32 s{sT2}, s{sWAVE}, {272 if pt else 512}")
    A(f"v_add3_u32 v{vL2}, v{vT+5}, v{vT+6}, s{sT2}")
    A(f"s_mov_b32 s{sIT}, 0")
    stamp(5)
    def vbody(waitf, issuef):
        A(f"v_mov_b32 v{vP0}, v{vP1}")
        A(f"ds_read_b32 v{vP1}, v{vL1}")
        A(f"v_add_u32 v{vL1}, 256, v{vL1}")
        diag(vA0, vP0, 0)
        for k in range(16):
            if k == 8: hook[0]()
            Acur = vA0 if (k & 1) == 0 else vA1
            Anxt = vA1 if (k & 1) == 0 else vA0
            if k < 15: diag(Anxt, vP0, k + 1)
            waitf(k)
            if ifirst and midctx[0]: issuef(k)
            A(f"v_mfma_f32_16x16x32_bf16 {q4(vD0)}, {q4(Acur)}, {slot(k)}, {q4(vD0)}")
            if not (ifirst and midctx[0]): issuef(k)
    if tfill:
        assert tf[0] == tfill
        A(f"s_add_u32 s{sNXT}, s{sCUR}, {hex(GSTR)}")
        A("s_waitcnt lgkmcnt(0)")
        vbody(lambda k: A(f"s_waitcnt vmcnt({d-1 if k >= tfill else LAG+tfill-1-k})"), lambda k: steady_issue(k) if k >= tfill else None)
        stamp_it(32)
        A(f"s_mov_b32 s{sCUR}, s{sNXT}")
        A(f"s_mov_b32 s{sIT}, 1")
    A.c("---- V loop: one body per window size ----"); A.lab("L_vloop")
    A(f"s_add_u32 s{sNXT}, s{sCUR}, {hex(GSTR)}")
    A(f"s_cmp_eq_u32 s{sIT}, {VLATE}")
    A("s_cbranch_scc0 L_vnl")
    A("s_mov_b64 exec, 1")
    A(f"ds_add_u32 v{vT+3}, v{vT+7}")
    A("s_mov_b64 exec, -1")
    A.lab("L_vnl")
    A("s_waitcnt lgkmcnt(0)")
    dispatch("v", lambda dd: vbody(lambda k: A(f"s_waitcnt vmcnt({wv(dd,k)})"), steady_issue))
    stamp_it(32)
    A(f"s_mov_b32 s{sCUR}, s{sNXT}")
    A(f"s_add_u32 s{sIT}, s{sIT}, 1")
    A(f"s_cmp_lt_u32 s{sIT}, 15")
    A("s_cbranch_scc1 L_vloop")
    def lwait(k):
        if k + LAG < 16: A(f"s_waitcnt vmcnt({dlast-1})")
        else: A(f"s_waitcnt vmcnt({15-k})")
    A("s_waitcnt lgkmcnt(0)")
    vbody(lwait, lambda k: sload(k + LAG, SA, vOA, sCUR, koff(k + LAG)) if k + LAG < 16 else None)
    A("s_mov_b32 exec_hi, 0")
    A("s_nop 6")
    if pt:
        A(f"v_cvt_pk_bf16_f32 v{vD1}, v{vD0}, v{vD0+1}")
        A(f"v_cvt_pk_bf16_f32 v{vD1+1}, v{vD0+2}, v{vD0+3}")
        A(f"ds_write_b64 v{vL2}, {p2(vD1)} offset:{L_OP}")
    else:
        A(f"ds_write_b128 v{vL2}, {q4(vD0)} offset:{L_OP}")
    A("s_waitcnt lgkmcnt(0)")
    A("s_barrier")
    if stamps:
        A("s_mov_b64 exec, -1")
        stamp_it(32)
        stamp(6)
        stamp_flush()
    A("s_endpgm")

    XR = SL + 64
    XF = SL + 80
    XE = vBQ
    XD = SL + 128
    vTG = vBQ + 8
    A.c("---- helper waves ----"); A.lab("L_aux")
    if bare == 2:
        A("s_barrier"); A("s_barrier"); A("s_endpgm")
    A(f"s_sub_u32 s{sJ}, s{sWAVE}, 4")
    A(f"s_cmp_eq_u32 s{sJ}, 0")
    A("s_cbranch_scc1 L_qw")
    A(f"s_cmp_eq_u32 s{sJ}, 1")
    A("s_cbranch_scc1 L_fw")
    A(f"v_mov_b32 v{vT}, {L_CM}")
    A(f"v_mov_b32 v{vT+2}, 0")
    A(f"ds_write_b32 v{vT}, v{vT+2}")
    if pt:
        A(f"v_lshlrev_b32 v{vT+1}, 2, v{vLANE}")
        A(f"ds_write_b32 v{vT+1}, v{vT+2} offset:{L_ZR}")
    if fc:
        for i in range(3, 6): A(f"v_mov_b32 v{vT+i}, 0")
        for i in range(6, 10): A(f"v_mov_b32 v{vT+i}, {fc.get('nom', 1)}")
        A(f"ds_write_b128 v{vT}, {q4(vT+2)} offset:{L_PW-L_CM}")
        A(f"ds_write_b128 v{vT}, {q4(vT+6)} offset:{L_LV-L_CM}")
    A("s_waitcnt lgkmcnt(0)")
    srd(SC, sWS, W_SZ)
    if fc and fc.get("inl"):
        A(f"s_cmp_eq_u32 s{sJ}, 2")
        A("s_cbranch_scc0 L_nz0")
        A(f"s_and_b32 s{sCUR}, s2, 7")
        A(f"s_lshl_b32 s{sCUR}, s{sCUR}, 8")
        A(f"s_lshr_b32 s{sNXT}, s2, 3")
        A(f"s_lshl_b32 s{sNXT}, s{sNXT}, 2")
        A(f"s_add_u32 s{sNXT}, s{sNXT}, s{sCUR}")
        A(f"s_add_u32 s{sNXT}, s{sNXT}, {hex(W_PG)}")
        A("s_mov_b64 exec, 1")
        A(f"buffer_store_dword v{vT+2}, v{vOV}, {S4(SC)}, s{sNXT} offen")
        A("s_mov_b64 exec, -1")
        A.lab("L_nz0")
    if clr0:
        A(f"s_cmp_eq_u32 s{sJ}, 3")
        A("s_cbranch_scc0 L_bar1")
        for i in range(4):
            A(f"v_mov_b32 v{vBQ+i}, -1")
        A(f"s_lshl_b32 s{sT}, s2, 11")
        A(f"buffer_store_dwordx4 {q4(vBQ)}, v{vOV}, {S4(SC)}, s{sT} offen sc1")
        A(f"buffer_store_dwordx4 {q4(vBQ)}, v{vOV}, {S4(SC)}, s{sT} offen offset:1024 sc1")
        A(f"s_lshl_b32 s{sPO}, s{sB}, 5")
        A(f"s_add_u32 s{sPO}, s{sPO}, s{sH}")
        A(f"s_lshl_b32 s{sPO}, s{sPO}, 1")
        A(f"s_add_u32 s{sPO}, s{sPO}, s{sSP}")
        A(f"s_lshl_b32 s{sPO}, s{sPO}, 10")
        A(f"s_add_u32 s{sPO}, s{sPO}, {hex(W_Z)}")
        A(f"buffer_store_dwordx4 {q4(vBQ)}, v{vOV}, {S4(SC)}, s{sPO} offen sc1")
        A("s_waitcnt vmcnt(0)")
    A("s_branch L_bar1")
    A.c("---- wave 5: w1/w3 tile loads ----"); A.lab("L_fw")
    A(f"v_mul_u32_u24 v{vT}, {8*3584}, v{vG}")
    A(f"v_and_b32 v{vT+1}, 7, v{vR}")
    A(f"v_lshl_add_u32 v{vOA}, v{vT+1}, 4, v{vT}")
    A(f"s_mul_i32 s{sBASE}, s{sMU}, {64*3584}")
    A(f"s_lshl_b32 s{sT}, s{sH}, 7")
    A(f"s_add_u32 s{sBASE}, s{sBASE}, s{sT}")
    A(f"s_mov_b32 s{sM0}, 0x00ff00ff")
    A(f"s_mov_b32 s{sM0+1}, 0x00ff00ff")
    A("s_waitcnt lgkmcnt(0)")
    srd(SC, sWS, W_SZ)
    A(f"s_cmp_lt_u32 s{sH}, {NFFN}")
    A("s_cbranch_scc0 L_bar1")
    srd(SA, sW1, 512 * 1792 * 2)
    srd(SN, sW3, 512 * 1792 * 2)
    if fdelay: A(f"s_sleep {fdelay}")
    for half, sr in ((0, SA), (1, SN)):
        A(f"s_mov_b64 exec, s[{sM0}:{sM0+1}]" if half == 0 else f"s_not_b64 exec, s[{sM0}:{sM0+1}]")
        for k in range(16):
            A(f"s_add_u32 s{sT}, s{sBASE}, {hex(((k>>3)*32 + (k&7))*3584)}")
            A(f"buffer_load_dwordx4 {slot(k)}, v{vOA}, {S4(sr)}, s{sT} offen {polf}")
    A("s_mov_b64 exec, -1")
    A("s_branch L_bar1")
    A.c("---- wave 4: layernorm, q partials, exchange ----"); A.lab("L_qw")
    if qprio: A(f"s_setprio {qprio}")
    A(f"v_lshrrev_b32 v{vT}, 2, v{vR}")
    A(f"v_lshlrev_b32 v{vT}, 10, v{vT}")
    A(f"v_and_b32 v{vT+1}, 3, v{vR}")
    A(f"v_lshlrev_b32 v{vT+1}, 6, v{vT+1}")
    A(f"v_lshlrev_b32 v{vT+2}, 8, v{vG}")
    A(f"v_add3_u32 v{vON}, v{vT}, v{vT+1}, v{vT+2}")
    A(f"v_lshl_add_u32 v{vL1}, v{vG}, 4, v{vT}")
    A(f"v_lshlrev_b32 v{vT}, 16, v{vG}")
    A(f"v_lshl_add_u32 v{vOA}, v{vR}, 4, v{vT}")
    A(f"v_mov_b32 v{vL2}, 0")
    A(f"s_lshl_b32 s{sT2}, s{sMU}, 7")
    A(f"s_lshl_b32 s{sBASE}, s{sMU}, 19")
    A(f"s_lshl_b32 s{sT}, s{sH}, 8")
    A(f"s_add_u32 s{sBASE}, s{sBASE}, s{sT}")
    A(f"s_lshl_b32 s{sT3}, s{sH}, 7")
    A(f"s_add_u32 s{sT3}, s{sT3}, {hex(W_EH)}")
    A("s_waitcnt lgkmcnt(0)")
    srd(SA, sX, 4096)
    for i in range(4):
        A(f"buffer_load_dwordx4 {q4(XR+4*i)}, v{vON}, {S4(SA)}, 0 offen offset:{16*i}")
    for s_ in range(2):
        A(f"buffer_load_dwordx4 {q4(XE+4*s_)}, v{vL1}, {S4(SA)}, s{sT2} offen offset:{64*s_}")
    srd(SN, sWQ, 0x400000)
    for k in range(16):
        A(f"s_add_u32 s{sT}, s{sBASE}, {hex(((k>>3)*32 + (k&7))*8192)}")
        A(f"buffer_load_dwordx4 {slot(k)}, v{vOA}, {S4(SN)}, s{sT} offen {polq}")
    srd(SC, sWS, W_SZ)
    A(f"buffer_load_dwordx2 {p2(vTG)}, v{vL2}, {S4(SC)}, s{sT3} offen sc1")
    stamp(0)
    def red16(reg, tmp):
        for qp in ("[1,0,3,2]", "[2,3,0,1]"):
            A("s_nop 1")
            A(f"v_add_f32_dpp v{reg}, v{reg}, v{reg} quad_perm:{qp} row_mask:0xf bank_mask:0xf")
        swaps("v_add_f32", reg, tmp)
    A("s_waitcnt vmcnt(19)")
    for i in range(16):
        A(f"v_lshlrev_b32 v{XF+2*i}, 16, v{XR+i}")
        A(f"v_and_b32 v{XF+2*i+1}, 0xffff0000, v{XR+i}")
    for i in range(8):
        A(f"v_pk_add_f32 {p2(XR+2*i)}, {p2(XF+4*i)}, {p2(XF+4*i+2)}")
    for st in (4, 2, 1):
        for i in range(st):
            A(f"v_pk_add_f32 {p2(XR+2*i)}, {p2(XR+2*i)}, {p2(XR+2*(i+st))}")
    A(f"v_add_f32 v{vT}, v{XR}, v{XR+1}")
    red16(vT, vT + 1)
    A(f"v_mul_f32 v{vT}, 0x3b000000, v{vT}")
    A(f"v_mov_b32 v{vT+1}, v{vT}")
    for i in range(16):
        A(f"v_pk_add_f32 {p2(XF+2*i)}, {p2(XF+2*i)}, {p2(vT)} neg_lo:[0,1] neg_hi:[0,1]")
    for c_ in range(2):
        A(f"v_pk_mul_f32 {p2(XR+2*c_)}, {p2(XF+2*c_)}, {p2(XF+2*c_)}")
    for i in range(2, 16):
        c_ = i & 1
        A(f"v_pk_fma_f32 {p2(XR+2*c_)}, {p2(XF+2*i)}, {p2(XF+2*i)}, {p2(XR+2*c_)}")
    A(f"v_pk_add_f32 {p2(XR)}, {p2(XR)}, {p2(XR+2)}")
    A(f"v_add_f32 v{vT+2}, v{XR}, v{XR+1}")
    red16(vT + 2, vT + 1)
    A(f"v_mul_f32 v{vT+2}, 0x3b000000, v{vT+2}")
    rne(vT, vT + 1)
    rne(vT + 2, vT + 1)
    A(f"v_add_f32 v{vT+2}, 0x3727c5ac, v{vT+2}")
    rne(vT + 2, vT + 1)
    A(f"v_sqrt_f32 v{vT+2}, v{vT+2}")
    A("s_nop 0")
    rne(vT + 2, vT + 1)
    A(f"v_rcp_f32 v{vT+2}, v{vT+2}")
    A("s_waitcnt vmcnt(17)")
    for i in range(8):
        A(f"v_lshlrev_b32 v{XF+2*i}, 16, v{XE+i}")
        A(f"v_and_b32 v{XF+2*i+1}, 0xffff0000, v{XE+i}")
    for i in range(16):
        A(f"v_sub_f32 v{XF+i}, v{XF+i}, v{vT}")
    for i in range(8):
        A(f"v_cvt_pk_bf16_f32 v{XE+i}, v{XF+2*i}, v{XF+2*i+1}")
    for i in range(8):
        A(f"v_lshlrev_b32 v{XF+2*i}, 16, v{XE+i}")
        A(f"v_and_b32 v{XF+2*i+1}, 0xffff0000, v{XE+i}")
    for i in range(16):
        A(f"v_mul_f32 v{XF+i}, v{XF+i}, v{vT+2}")
    for i in range(8):
        A(f"v_cvt_pk_bf16_f32 v{XE+i}, v{XF+2*i}, v{XF+2*i+1}")
    stamp(1)
    def bperm(dst, s_, jj):
        for m in range(4):
            lo = SL + 4 * (8 * s_ + 2 * m) + (jj >> 1)
            hi = SL + 4 * (8 * s_ + 2 * m + 1) + (jj >> 1)
            A(f"v_perm_b32 v{dst+m}, v{hi}, v{lo}, s{sM0 + (jj & 1)}")
    def tile_mma(w0, w1):
        A(f"s_mov_b32 s{sM0}, 0x05040100")
        A(f"s_mov_b32 s{sM0+1}, 0x07060302")
        A(w0)
        bperm(vA0, 0, 0)
        for n in range(16):
            s_, jj = n >> 3, n & 7
            cur = vA0 if (n & 1) == 0 else vA1
            nxt = vA1 if (n & 1) == 0 else vA0
            if n == 7 and w1: A(w1)
            if n + 1 < 16: bperm(nxt, (n + 1) >> 3, (n + 1) & 7)
            else: A("s_nop 1")
            A(f"v_mfma_f32_16x16x32_bf16 {q4(XD+4*jj)}, {q4(XE+4*s_)}, {q4(cur)}, {'0' if s_==0 else q4(XD+4*jj)}")
    def msg_addr(wbase):
        A(f"v_lshlrev_b32 v{vON}, 13, v{vG}")
        A(f"v_lshl_add_u32 v{vON}, v{vR}, 4, v{vON}")
        A(f"s_lshl_b32 s{sCUR}, s{sH}, 15")
        A(f"s_add_u32 s{sCUR}, s{sCUR}, {hex(wbase)}")
        A(f"s_lshl_b32 s{sT}, s{sMU}, 10")
        A(f"s_add_u32 s{sT}, s{sT}, s{sCUR}")
    def msg_pack_store(pol):
        for n in range(2 if halfmsg else 4):
            A(f"v_mov_b32 v{XD+8*n+1}, v{XD+8*n+4}")
            A(f"v_mov_b32 v{XD+8*n+2}, v{vTG}")
            A(f"v_mov_b32 v{XD+8*n+3}, v{vTG+1}")
            A(f"buffer_store_dwordx4 {q4(XD+8*n)}, v{vON}, {S4(SC)}, s{sT} offen offset:{256*n} {pol}")
    def msg_round(sl0, pc=0, pol="sc1"):
        if halfmsg: A("s_mov_b32 exec_hi, 0")
        for n in range(8):
            if pc and n >= pc: A(f"s_waitcnt vmcnt({pc-1})")
            A(f"buffer_load_dwordx4 {slot(sl0+n)}, v{vOV}, {S4(SC)}, s{sCUR if n<4 else sNXT} offen offset:{1024*(n&3)} {pol}")
        A(f"s_add_u32 s{sSPIN}, s{sSPIN}, 1")
        A(f"v_mov_b32 v{vT}, 0")
        for n in range(8):
            A(f"s_waitcnt vmcnt({7-n})")
            A(f"v_xor_b32 v{vT+1}, v{SL+4*(sl0+n)+2}, v{vTG}")
            A(f"v_xor_b32 v{vT+2}, v{SL+4*(sl0+n)+3}, v{vTG+1}")
            A(f"v_or3_b32 v{vT}, v{vT}, v{vT+1}, v{vT+2}")
        A(f"v_cmp_ne_u32 vcc, 0, v{vT}")
        A("s_nop 1")
        if halfmsg: A("s_mov_b64 exec, -1")
        A("s_cmp_eq_u64 vcc, 0")
    def msg_sum(sl0):
        for st in (4, 2, 1):
            for n in range(st):
                A(f"v_pk_add_f32 {p2(SL+4*(sl0+n))}, {p2(SL+4*(sl0+n))}, {p2(SL+4*(sl0+n+st))}")
    tile_mma("s_waitcnt vmcnt(9)", "s_waitcnt vmcnt(1)")
    A("s_waitcnt vmcnt(0)")
    tag_from_epoch(vTG, vT)
    msg_addr(W_QA)
    A(f"s_add_u32 s{sBASE}, s{sT}, {hex(W_QB-W_QA)}")
    A("s_nop 2")
    if noq == 1: A("s_branch L_qnl")
    msg_pack_store("sc1" if qonlyB else "")
    def storeB():
        for n in range(2 if halfmsg else 4):
            A(f"buffer_store_dwordx4 {q4(XD+8*n)}, v{vON}, {S4(SC)}, s{sBASE} offen offset:{256*n} sc1")
    stamp(2)
    A(f"ds_write_b128 v{vOV}, {q4(XE)} offset:{L_XE}")
    A(f"ds_write_b128 v{vOV}, {q4(XE+4)} offset:{L_XE+1024}")
    A(f"ds_write_b64 v{vL2}, {p2(vTG)} offset:{L_TG}")
    A(f"s_lshl_b32 s{sT}, s{sB}, 13")
    A(f"s_add_u32 s{sCUR}, s{sCUR}, s{sT}")
    A(f"s_add_u32 s{sNXT}, s{sCUR}, 4096")
    A(f"s_mov_b32 s{sSPIN}, 0")
    if qack: A("s_waitcnt vmcnt(0)")
    if qpre: A(f"s_sleep {qpre}")
    if qlite:
        A(f"v_lshlrev_b32 v{vT+3}, 10, v{vLANE}")
        A(f"v_add_u32 v{vT+3}, {496 if halfmsg else 1008}, v{vT+3}")
        A("s_mov_b64 exec, 0xff")
        A.lab("L_ql")
        A(f"buffer_load_dwordx4 {slot(0)}, v{vT+3}, {S4(SC)}, s{sCUR} offen sc1")
        A(f"s_add_u32 s{sSPIN}, s{sSPIN}, 1")
        A("s_waitcnt vmcnt(0)")
        A(f"v_xor_b32 v{vT+1}, v{SL+2}, v{vTG}")
        A(f"v_xor_b32 v{vT+2}, v{SL+3}, v{vTG+1}")
        A(f"v_or_b32 v{vT}, v{vT+1}, v{vT+2}")
        A(f"v_cmp_ne_u32 vcc, 0, v{vT}")
        A("s_nop 1")
        A("s_cmp_eq_u64 vcc, 0")
        A("s_cbranch_scc1 L_ql_ok")
        A(f"s_cmp_lt_u32 s{sSPIN}, {NA-1}")
        A("s_cbranch_scc1 L_ql")
        A.lab("L_ql_ok")
        A("s_mov_b64 exec, -1")
    A.lab("L_qp")
    msg_round(0)
    A("s_cbranch_scc1 L_qp_ok")
    if not qonlyB:
        A(f"s_cmp_eq_u32 s{sSPIN}, {NA}")
        A("s_cbranch_scc0 L_qp_c")
        storeB()
        A(f"s_add_u32 s{sCUR}, s{sCUR}, {hex(W_QB-W_QA)}")
        A(f"s_add_u32 s{sNXT}, s{sNXT}, {hex(W_QB-W_QA)}")
        A.lab("L_qp_c")
    A(f"s_cmp_lt_u32 s{sSPIN}, {SPINMAX}")
    A("s_cbranch_scc1 L_qp")
    A.lab("L_qp_ok")
    stamp(6)
    if stamps: A(f"v_writelane_b32 v{vST}, s{sSPIN}, 60")
    msg_sum(0)
    A(f"v_cvt_pk_bf16_f32 v{vT}, v{SL}, v{SL+1}")
    A(f"v_lshlrev_b32 v{vT+1}, 2, v{vG}")
    A(f"v_lshl_add_u32 v{vT+1}, v{vR}, 4, v{vT+1}")
    A(f"ds_write_b32 v{vT+1}, v{vT} offset:{L_Q}")
    if noq == 2: A("s_branch L_qnl")
    if mergeB:
        A("s_waitcnt lgkmcnt(0)")
        A("s_barrier")
    if not qonlyB: storeB()
    A(f"s_cmp_eq_u32 s{sMU}, 0")
    A("s_cbranch_scc0 L_qnl")
    A(f"v_lshlrev_b32 v{vT}, 3, v{vLANE}")
    A("s_mov_b64 exec, 0xffff")
    A(f"buffer_store_dwordx2 {p2(vTG)}, v{vT}, {S4(SC)}, s{sT3} offen sc1")
    A("s_mov_b64 exec, -1")
    A.lab("L_qnl")
    A("s_waitcnt lgkmcnt(0)")
    if qprio: A("s_setprio 0")
    if mergeB: A("s_branch L_ab1")
    A.lab("L_bar1")
    A("s_barrier")
    A.lab("L_ab1")
    stamp(3)
    cut(1)
    build_masks()
    A(f"v_mov_b32 v{vL2}, 0")
    A(f"v_lshlrev_b32 v{vT}, 5, v{vR}")
    A(f"v_lshl_add_u32 v{vL0}, v{vG}, 4, v{vT}")
    A(f"s_lshl_b32 s{sPO}, s{sB}, 5")
    A(f"s_add_u32 s{sPO}, s{sPO}, s{sH}")
    A(f"s_lshl_b32 s{sPO}, s{sPO}, 1")
    A(f"s_add_u32 s{sPO}, s{sPO}, s{sSP}")
    A(f"s_lshl_b32 s{sPO}, s{sPO}, 10")
    A(f"s_add_u32 s{sPO}, s{sPO}, {hex(W_Z)}")
    vTB = vBQ + 10
    vPO = SL + 128
    vGt = vPO + 8
    vXr = vPO + 12
    if fc and not fc.get('inl'):
        A(f"s_cmp_eq_u32 s{sJ}, 2")
        A("s_cbranch_scc0 L_nz")
        A(f"s_and_b32 s{sCUR}, s2, 7")
        A(f"s_lshl_b32 s{sCUR}, s{sCUR}, 8")
        A(f"s_add_u32 s{sCUR}, s{sCUR}, {hex(W_PG)}")
        A(f"s_lshr_b32 s{sNXT}, s2, 3")
        A(f"s_lshl_b32 s{sNXT}, s{sNXT}, 2")
        A(f"s_add_u32 s{sNXT}, s{sNXT}, s{sCUR}")
        A(f"v_mov_b32 v{vT}, 0x40000000")
        A("s_mov_b64 exec, 1")
        A(f"buffer_store_dword v{vT}, v{vL2}, {S4(SC)}, s{sNXT} offen")
        A(f"buffer_store_dword v{vT}, v{vL2}, {S4(SC)}, s{sCUR} offen offset:128")
        if fc.get("glob", True):
            A("s_cmp_lt_u32 s2, 8")
            A("s_cbranch_scc0 L_nz2")
            A(f"s_add_u32 s{sT}, s{sCUR}, 0x1000")
            A(f"buffer_store_dword v{vT}, v{vL2}, {S4(SC)}, s{sT} offen sc1")
            A.lab("L_nz2")
        A("s_mov_b64 exec, -1")
        A.lab("L_nz")
    A(f"s_cmp_eq_u32 s{sJ}, 1")
    A("s_cbranch_scc1 L_f1")
    A(f"s_cmp_eq_u32 s{sJ}, 3")
    A("s_cbranch_scc0 L_wo")
    if 'c' in skip: A("s_branch L_wo")
    if not clr0:
        for i in range(4):
            A(f"v_mov_b32 v{vBQ+i}, -1")
        A(f"s_lshl_b32 s{sT}, s2, 11")
        A(f"buffer_store_dwordx4 {q4(vBQ)}, v{vOV}, {S4(SC)}, s{sT} offen sc1")
        A(f"buffer_store_dwordx4 {q4(vBQ)}, v{vOV}, {S4(SC)}, s{sT} offen offset:1024 sc1")
    A(f"s_lshl_b32 s{sT}, s{sB}, 7")
    A(f"s_add_u32 s{sT}, s{sT}, {hex(W_EB)}")
    A(f"buffer_load_dwordx2 {p2(vTB)}, v{vL2}, {S4(SC)}, s{sT} offen sc1")
    A("s_branch L_wo")
    A.c("---- wave 5: FFN stage 1 partials ----"); A.lab("L_f1")
    if 'f' in skip: A("s_branch L_f1x")
    A(f"s_cmp_lt_u32 s{sH}, {NFFN}")
    A("s_cbranch_scc0 L_f1x")
    A(f"ds_read_b128 {q4(XE)}, v{vOV} offset:{L_XE}")
    A(f"ds_read_b128 {q4(XE+4)}, v{vOV} offset:{L_XE+1024}")
    A(f"ds_read_b64 {p2(vTG)}, v{vL2} offset:{L_TG}")
    for i in range(4):
        A(f"v_mov_b32 v{vD0+i}, -1")
    if not clr0: A(f"buffer_store_dwordx4 {q4(vD0)}, v{vOV}, {S4(SC)}, s{sPO} offen sc1")
    tile_mma(f"s_waitcnt vmcnt({0 if clr0 else 1}) lgkmcnt(0)", None)
    msg_addr(W_FP)
    A("s_nop 4")
    if fdual:
        A(f"s_add_u32 s{sBASE}, s{sT}, {hex(W_FB-W_FP)}")
        msg_pack_store("")
        storeB()
    else:
        msg_pack_store("sc1")
    A("s_waitcnt vmcnt(0)")
    A.lab("L_f1x")
    A(f"v_mov_b32 v{vT}, {L_CM}")
    A(f"v_mov_b32 v{vT+1}, 256")
    A("s_mov_b64 exec, 1")
    A(f"ds_add_u32 v{vT}, v{vT+1}")
    A("s_mov_b64 exec, -1")
    A.c("---- wo slice -> registers ----"); A.lab("L_wo")
    stamp(4)
    cut(3)
    wooff = (lambda k: ((k >> 3) * 32 + (k & 7)) * 1024) if pt else (lambda k: k * 4096)
    def wo_setup():
        srd(SN, sWO, 0x400000)
        A(f"v_lshlrev_b32 v{vT}, {13 if pt else 10}, v{vG}")
        A(f"v_lshl_add_u32 v{vOA}, v{vR}, 4, v{vT}")
        A(f"s_lshl_b32 s{sBASE}, s{sH}, 17")
        A(f"s_lshl_b32 s{sT}, s{sJ}, 8")
        A(f"s_add_u32 s{sBASE}, s{sBASE}, s{sT}")
    wo_setup()
    if 'w' in skip: A("s_branch L_woe")
    def wo_loads(dd, hook=False):
        for k in range(32):
            if hook and k == fearly:
                A(f"s_cmp_eq_u32 s{sJ}, 1")
                A("s_cbranch_scc0 L_woc")
                A(f"s_cmp_lt_u32 s{sH}, {NFFN}")
                A("s_cbranch_scc1 L_st2")
                A.lab("L_wor")
                wo_setup()
                A.lab("L_woc")
            if k >= dd: A(f"s_waitcnt vmcnt({dd-1})")
            A(f"s_add_u32 s{sT}, s{sBASE}, {hex(wooff(k))}")
            A(f"buffer_load_dwordx4 {slot(k)}, v{vOA}, {S4(SN)}, s{sT} offen {pola}")
    if fc and fc.get("inl"):
        A(f"s_cmp_eq_u32 s{sJ}, 2")
        A("s_cbranch_scc1 L_woe")
    elif fc and fc.get("d2"):
        A(f"s_lshr_b32 s{sT}, s2, 3")
        A(f"s_or_b32 s{sT}, s{sT}, s{sJ}")
        A(f"s_cselect_b32 s{sT}, s{sJ}, {2 if fc.get('glob', True) else 0}")
        A(f"s_cmp_eq_u32 s{sT}, 2")
        A("s_cbranch_scc0 L_wos")
        wo_loads(fc["d2"])
        A("s_branch L_woe")
        A.lab("L_wos")
    wo_loads(da, bool(fearly))
    A.lab("L_woe")
    A("s_waitcnt vmcnt(0)")
    stamp(5)
    cut(4)
    A(f"v_lshrrev_b32 v{vT}, 3, v{vLANE}")
    A(f"v_lshlrev_b32 v{vT}, 11, v{vT}")
    A(f"v_and_b32 v{vT+1}, 7, v{vLANE}")
    A(f"v_lshl_add_u32 v{vPO}, v{vT+1}, 4, v{vT}")
    for n in range(1, 8):
        A(f"v_add_u32 v{vPO+n}, {hex(n*16384)}, v{vPO}")
    A(f"v_lshlrev_b32 v{vL1}, 3, v{vT+1}")

    def gemv(n, ppf, waitf, issuef=None, slotf=lambda k: k):
        diag(vA0, *ppf(0))
        for k in range(n):
            Acur = vA0 if (k & 1) == 0 else vA1
            Anxt = vA1 if (k & 1) == 0 else vA0
            if k + 1 < n: diag(Anxt, *ppf(k + 1))
            else: A("s_nop 1")
            waitf(k)
            A(f"v_mfma_f32_16x16x32_bf16 {q4(vD0)}, {q4(Acur)}, {slot(slotf(k))}, {'0' if k==0 else q4(vD0)}")
            if issuef: issuef(k)
        A("s_nop 7")
    def lds_wait(mask, val):
        lab = A.uid("lw")
        A(f"v_mov_b32 v{vT}, {L_CM}")
        A(f"s_mov_b32 s{sSPIN}, 0")
        A.lab(lab)
        A(f"ds_read_b32 v{vT+1}, v{vT}")
        A("s_waitcnt lgkmcnt(0)")
        A(f"v_readfirstlane_b32 s{sT}, v{vT+1}")
        A(f"s_add_u32 s{sSPIN}, s{sSPIN}, 1")
        A(f"s_and_b32 s{sT}, s{sT}, {hex(mask)}")
        A(f"s_cmp_eq_u32 s{sT}, {hex(val)}")
        A(f"s_cbranch_scc1 {lab}_ok")
        A("s_sleep 16")
        A(f"s_cmp_lt_u32 s{sSPIN}, {SPINMAX}")
        A(f"s_cbranch_scc1 {lab}")
        A.lab(lab + "_ok")
    def poll(nload, regs, voffs, soff, sleep):
        lab = A.uid("pl")
        A(f"s_mov_b32 s{sSPIN}, 0")
        A.lab(lab)
        for n in range(nload):
            A(f"buffer_load_dwordx4 {q4(regs+4*n)}, v{voffs[n]}, {S4(SC)}, s{soff} offen sc1")
        A(f"s_add_u32 s{sSPIN}, s{sSPIN}, 1")
        for n in range(nload):
            A(f"s_waitcnt vmcnt({nload-1-n})")
            r = regs + 4 * n
            if n == 0:
                A(f"v_max3_u32 v{vT}, v{r}, v{r+1}, v{r+2}")
                A(f"v_max_u32 v{vT}, v{vT}, v{r+3}")
            else:
                A(f"v_max3_u32 v{vT}, v{vT}, v{r}, v{r+1}")
                A(f"v_max3_u32 v{vT}, v{vT}, v{r+2}, v{r+3}")
        A(f"v_cmp_eq_u32 vcc, -1, v{vT}")
        A("s_nop 1")
        A("s_cmp_eq_u64 vcc, 0")
        A(f"s_cbranch_scc1 {lab}_ok")
        if sleep: A(f"s_sleep {sleep}")
        A(f"s_cmp_lt_u32 s{sSPIN}, {SPINMAX}")
        A(f"s_cbranch_scc1 {lab}")
        A.lab(lab + "_ok")
    def reduce_rows(regs, nload):
        n = nload
        while n > 1:
            h = n // 2
            for a in range(h):
                for i in (0, 2):
                    A(f"v_pk_add_f32 {p2(regs+4*a+i)}, {p2(regs+4*a+i)}, {p2(regs+4*(a+h)+i)}")
            n = h
        A("s_nop 1")
        for i in range(4):
            A(f"v_add_f32_dpp v{regs+i}, v{regs+i}, v{regs+i} row_ror:8 row_mask:0xf bank_mask:0xf")
        for sw in ("v_permlane16_swap_b32", "v_permlane32_swap_b32"):
            for i in range(4):
                A(f"v_mov_b32 v{regs+4+i}, v{regs+i}")
            A("s_nop 1")
            for i in range(4):
                A(f"{sw} v{regs+i}, v{regs+4+i}")
            A("s_nop 1")
            for i in range(4):
                A(f"v_add_f32 v{regs+i}, v{regs+i}, v{regs+4+i}")

    A(f"s_cmp_eq_u32 s{sJ}, 3")
    A("s_cbranch_scc1 L_w3")
    if fc:
        U = fc.get("U", 8)
        PEND = int(4 * U * (16 - R // 16 + fc.get("vend", 13)))
        LIM = 2 * 4 * U * 3
        sPP, sGP, sP, sE = 72, 73, 74, 78
        A(f"s_cmp_eq_u32 s{sJ}, 2")
        A("s_cbranch_scc0 L_nctl")
        A(f"s_and_b32 s{sCUR}, s2, 7")
        A(f"s_lshl_b32 s{sCUR}, s{sCUR}, 8")
        A(f"s_add_u32 s{sCUR}, s{sCUR}, {hex(W_PG)}")
        A(f"s_lshr_b32 s{sNXT}, s2, 3")
        A(f"s_lshl_b32 s{sNXT}, s{sNXT}, 2")
        A(f"s_add_u32 s{sNXT}, s{sNXT}, s{sCUR}")
        A(f"v_lshlrev_b32 v{vON}, 2, v{vLANE}")
        A(f"v_mov_b32 v{vT7}, {L_PW}")
        A(f"v_and_b32 v{vPB}, 3, v{vLANE}")
        A(f"v_lshlrev_b32 v{vPB}, 2, v{vPB}")
        A(f"s_mov_b32 s{sPP}, -1")
        for th in fc["thr"]:
            if isinstance(th, tuple):
                A(f"s_getreg_b32 s{sT}, hwreg(HW_REG_XCC_ID)")
                A(f"s_mov_b32 s79, {int(th[0] * 64 * 4 * U / 2.2)}")
                A(f"s_bitcmp1_b32 s{sT}, 0")
                A(f"s_cselect_b32 s79, {int(th[1] * 64 * 4 * U / 2.2)}, s79")
        A(f"s_mov_b32 s{sGP}, 0")
        A(f"s_mov_b32 s{sSPIN}, 0")
        A.c("---- wave 6: stream balancing loop ----"); A.lab("L_ctl")
        if fc.get("inl"):
            npr = fc["inl"]; nst = 32 // npr
            A(f"s_cmp_ge_u32 s{sSPIN}, {nst}")
            A("s_cbranch_scc1 L_ctl_r")
            for r in range(1, nst):
                A(f"s_cmp_eq_u32 s{sSPIN}, {r}")
                A(f"s_cbranch_scc1 L_cw{r}")
            for r in range(nst):
                A.lab(f"L_cw{r}")
                for k in range(r * npr, (r + 1) * npr):
                    A(f"s_add_u32 s{sT}, s{sBASE}, {hex(wooff(k))}")
                    A(f"buffer_load_dwordx4 {slot(k)}, v{vOA}, {S4(SN)}, s{sT} offen {pola}")
                if r + 1 < nst: A("s_branch L_ctl_r")
            A.lab("L_ctl_r")
        A(f"ds_read_b128 {q4(vBQ)}, v{vT7}")
        A("s_waitcnt lgkmcnt(0)")
        A(f"v_add3_u32 v{vBQ}, v{vBQ}, v{vBQ+1}, v{vBQ+2}")
        A(f"v_add_u32 v{vBQ}, v{vBQ}, v{vBQ+3}")
        A("s_mov_b64 exec, 1")
        A(f"buffer_store_dword v{vBQ}, v{vL2}, {S4(SC)}, s{sNXT} offen")
        A("s_mov_b64 exec, -1")
        if fc.get("half"): A("s_mov_b32 exec_hi, 0")
        A(f"buffer_load_dword v{vBQ+4}, v{vON}, {S4(SC)}, s{sCUR} offen {fc.get('pol','sc1')}")
        if fc.get("half"): A("s_mov_b64 exec, -1")
        A(f"v_readfirstlane_b32 s{sP}, v{vBQ}")
        A(f"s_add_u32 s{sSPIN}, s{sSPIN}, 1")
        A(f"s_cmp_eq_u32 s{sPP}, -1")
        A(f"s_cselect_b32 s{sPP}, s{sP}, s{sPP}")
        A(f"s_add_u32 s{sT}, s{sP}, s{sPP}")
        A(f"s_mov_b32 s{sPP}, s{sP}")
        A("s_waitcnt vmcnt(0)")
        A(f"v_lshlrev_b32 v{vBQ+5}, 1, v{vBQ+4}")
        A(f"v_subrev_u32 v{vBQ+5}, s{sT}, v{vBQ+5}")
        A(f"v_add_u32 v{vBQ+6}, {LIM}, v{vBQ+5}")
        A(f"v_cmp_gt_u32 vcc, {2*LIM}, v{vBQ+6}")
        A("s_nop 1")
        A("s_mov_b32 vcc_hi, 0")
        A("s_nop 1")
        A(f"v_cndmask_b32 v{vBQ+5}, 0, v{vBQ+5}, vcc")
        A(f"v_readlane_b32 s{sE}, v{vBQ+4}, 32")
        for n in (8, 4, 2, 1):
            A("s_nop 1")
            A(f"v_add_u32_dpp v{vBQ+5}, v{vBQ+5}, v{vBQ+5} row_ror:{n} row_mask:0xf bank_mask:0xf")
        A("s_nop 0")
        A(f"v_readlane_b32 s{sM0}, v{vBQ+5}, 0")
        A(f"v_readlane_b32 s{sM0+1}, v{vBQ+5}, 16")
        A(f"s_add_u32 s{sT2}, s{sE}, {32*LIM}")
        A(f"s_cmp_lt_u32 s{sT2}, {64*LIM}")
        A(f"s_cselect_b32 s{sE}, s{sE}, 0")
        if not fc.get("glob", True): A(f"s_mov_b32 s{sE}, 0")
        if fc.get("clamp"):
            cl = int(fc["clamp"] * 64 * 4 * U / 2.2)
            A(f"s_min_i32 s{sE}, s{sE}, {cl}")
            A(f"s_max_i32 s{sE}, s{sE}, {-cl if not fc.get('oneside') else 0}")
        A(f"s_add_u32 s{sM0}, s{sM0}, s{sM0+1}")
        A(f"s_sub_u32 s{sE}, s{sM0}, s{sE}")
        A(f"ds_read_b128 {q4(vBQ+8)}, v{vT7}")
        A(f"ds_read_b32 v{vBQ+6}, v{vPB} offset:{L_PW}")
        A("s_waitcnt lgkmcnt(0)")
        A(f"v_add3_u32 v{vBQ+8}, v{vBQ+8}, v{vBQ+9}, v{vBQ+10}")
        A(f"v_lshlrev_b32 v{vBQ+6}, 2, v{vBQ+6}")
        A(f"v_add_u32 v{vBQ+8}, v{vBQ+8}, v{vBQ+11}")
        A(f"v_sub_u32 v{vBQ+6}, v{vBQ+8}, v{vBQ+6}")
        A(f"v_mul_i32_i24 v{vBQ+6}, {fc.get('wgain', 64)}, v{vBQ+6}")
        A(f"v_add_u32 v{vBQ+6}, s{sE}, v{vBQ+6}")
        A(f"v_mov_b32 v{vBQ+7}, 0")
        for ti, th in enumerate(fc["thr"]):
            if isinstance(th, tuple): A(f"v_cmp_le_i32 vcc, s79, v{vBQ+6}")
            else: A(f"v_cmp_le_i32 vcc, {int(th * 64 * 4 * U / 2.2)}, v{vBQ+6}")
            A("s_nop 1")
            A(f"v_addc_co_u32 v{vBQ+7}, vcc, 0, v{vBQ+7}, vcc")
        A(f"ds_write_b32 v{vPB}, v{vBQ+7} offset:{L_LV}")
        if fc.get("sleep", 0): A(f"s_sleep {fc['sleep']}")
        A(f"s_cmp_ge_u32 s{sSPIN}, {SPINMAX}")
        A("s_cbranch_scc1 L_bar2")
        A(f"s_cmp_lt_u32 s{sP}, {PEND}")
        A("s_cbranch_scc1 L_ctl")
        if fc.get("inl"):
            A(f"s_cmp_lt_u32 s{sSPIN}, {32 // fc['inl']}")
            A("s_cbranch_scc1 L_ctl")
        if fc.get("fin") is not None:
            A(f"v_max_u32 v{vBQ+7}, {fc['fin']}, v{vBQ+7}")
            A(f"ds_write_b32 v{vPB}, v{vBQ+7} offset:{L_LV}")
        if stamps: A(f"v_writelane_b32 v{vST}, s{sSPIN}, 60")
        A("s_branch L_bar2")
        A.lab("L_nctl")
        if fc.get("glob", True):
            A(f"s_lshr_b32 s{sT}, s2, 3")
            A(f"s_or_b32 s{sT}, s{sT}, s{sJ}")
            A("s_cbranch_scc1 L_nrep")
            A(f"s_lshl_b32 s{sCUR}, s2, 8")
            A(f"s_add_u32 s{sCUR}, s{sCUR}, {hex(W_PG)}")
            A(f"v_lshlrev_b32 v{vON}, 2, v{vLANE}")
            A(f"s_mov_b32 s{sGP}, 0")
            A(f"s_mov_b32 s{sSPIN}, 0")
            A(f"s_mov_b32 s{sPP}, 0")
            A(f"v_lshlrev_b32 v{vOA}, 8, v{vLANE}")
            A(f"s_mov_b32 s{sNXT}, {hex(W_PG + 0x1000)}")
            A(f"s_add_u32 s{sBASE}, s{sCUR}, 0x1000")
            if stamps: A(f"v_mov_b32 v{vPG}, 0")
            A.lab("L_rep")
            A(f"s_add_u32 s{sPP}, s{sPP}, 1")
            A(f"s_cmp_ge_u32 s{sPP}, {SPINMAX}")
            A("s_cbranch_scc1 L_bar2")
            A(f"buffer_load_dword v{vBQ+4}, v{vON}, {S4(SC)}, s{sCUR} offen sc1")
            A("s_waitcnt vmcnt(0)")
            A(f"v_readlane_b32 s{sP}, v{vBQ+4}, 0")
            A("s_nop 1")
            A(f"s_cmp_ge_u32 s{sP}, 0x10000000")
            A("s_cbranch_scc1 L_rep")
            A(f"s_add_u32 s{sSPIN}, s{sSPIN}, 1")
            A(f"v_subrev_u32 v{vBQ+5}, s{sP}, v{vBQ+4}")
            A(f"v_add_u32 v{vBQ+6}, {LIM//2}, v{vBQ+5}")
            A(f"v_cmp_gt_u32 vcc, {LIM}, v{vBQ+6}")
            A("s_nop 1")
            A(f"v_cndmask_b32 v{vBQ+5}, 0, v{vBQ+5}, vcc")
            for n in (8, 4, 2, 1):
                A("s_nop 1")
                A(f"v_add_u32_dpp v{vBQ+5}, v{vBQ+5}, v{vBQ+5} row_ror:{n} row_mask:0xf bank_mask:0xf")
            A("s_nop 0")
            A(f"v_readlane_b32 s{sM0}, v{vBQ+5}, 0")
            A(f"v_readlane_b32 s{sM0+1}, v{vBQ+5}, 16")
            A(f"s_lshl_b32 s{sT}, s{sP}, 5")
            A(f"s_add_u32 s{sT}, s{sT}, s{sM0}")
            A(f"s_add_u32 s{sT}, s{sT}, s{sM0+1}")
            A(f"s_lshl_b32 s{sT}, s{sT}, 1")
            A(f"v_mov_b32 v{vBQ+6}, s{sT}")
            A("s_mov_b64 exec, 0xff")
            A(f"buffer_load_dword v{vBQ+8}, v{vOA}, {S4(SC)}, s{sNXT} offen sc1")
            A("s_mov_b32 exec_lo, -1")
            A(f"buffer_store_dword v{vBQ+6}, v{vON}, {S4(SC)}, s{sBASE} offen sc1")
            A("s_mov_b64 exec, -1")
            A(f"s_add_u32 s{sM1}, s{sT}, s{sGP}")
            A(f"s_lshr_b32 s{sM1}, s{sM1}, 1")
            A("s_waitcnt vmcnt(1)")
            A(f"v_sub_u32 v{vBQ+8}, s{sM1}, v{vBQ+8}")
            A(f"v_add_u32 v{vBQ+9}, {32*LIM}, v{vBQ+8}")
            A(f"v_cmp_gt_u32 vcc, {64*LIM}, v{vBQ+9}")
            A("s_nop 1")
            A(f"s_lshl_b32 s{sT2}, 1, s2")
            A(f"s_xor_b32 s{sT2}, s{sT2}, 0xff")
            A(f"s_and_b32 vcc_lo, vcc_lo, s{sT2}")
            A("s_nop 1")
            A(f"v_cndmask_b32 v{vBQ+8}, 0, v{vBQ+8}, vcc")
            for n in (4, 2, 1):
                A("s_nop 1")
                A(f"v_add_u32_dpp v{vBQ+8}, v{vBQ+8}, v{vBQ+8} row_ror:{n} row_mask:0xf bank_mask:0xf")
            A("s_nop 0")
            A(f"v_readlane_b32 s{sM1}, v{vBQ+8}, 7")
            A("s_nop 0")
            A(f"s_ashr_i32 s{sM1}, s{sM1}, 3")
            A(f"s_sub_i32 s{sM1}, s{sM1}, {int(fc.get('gbias', 0.0) * 64 * 4 * U / 2.2)}")
            A(f"s_cmp_le_u32 s{sSPIN}, 1")
            A(f"s_cselect_b32 s{sM1}, 0, s{sM1}")
            A(f"s_mov_b32 s{sGP}, s{sT}")
            A(f"v_mov_b32 v{vBQ+6}, s{sM1}")
            A("s_mov_b64 exec, 1")
            if not fc.get("nost"): A(f"buffer_store_dword v{vBQ+6}, v{vL2}, {S4(SC)}, s{sCUR} offen offset:128")
            A("s_mov_b64 exec, -1")
            if fc.get("gsleep"): A(f"s_sleep {fc['gsleep']}")
            if stamps:
                A(f"s_min_u32 m0, s{sSPIN}, 47")
                A(f"s_add_u32 m0, m0, 12")
                A("s_nop 0")
                A(f"v_writelane_b32 v{vPG}, s{sM1}, m0")
            A(f"s_cmp_ge_u32 s{sSPIN}, {SPINMAX}")
            A("s_cbranch_scc1 L_bar2")
            A(f"s_cmp_lt_u32 s{sP}, {PEND - 4*U}")
            A("s_cbranch_scc1 L_rep")
            if stamps:
                srd(SE, sWS, 0x700000)
                A(f"s_lshl_b32 s{sT}, s2, 8")
                A(f"s_add_u32 s{sT}, s{sT}, 0x600000")
                A(f"buffer_store_dword v{vPG}, v{vON}, {S4(SE)}, s{sT} offen")
            A("s_branch L_bar2")
            A.lab("L_nrep")
    A(f"s_cmp_eq_u32 s{sJ}, 1")
    A("s_cbranch_scc0 L_bar2")
    A(f"s_cmp_lt_u32 s{sH}, {NFFN}")
    A("s_cbranch_scc0 L_bar2")
    if fearly or 's' in skip: A("s_branch L_bar2")
    A.c("---- wave 5: FFN stage 2 ----"); A.lab("L_st2")
    A(f"s_lshl_b32 s{sCUR}, s{sH}, 15")
    A(f"s_lshl_b32 s{sT}, s{sB}, 13")
    A(f"s_add_u32 s{sCUR}, s{sCUR}, s{sT}")
    A(f"s_add_u32 s{sCUR}, s{sCUR}, {hex(W_FP)}")
    A(f"s_add_u32 s{sNXT}, s{sCUR}, 4096")
    A(f"s_mov_b32 s{sSPIN}, 0")
    if galign:
        lds_wait(0xf, 0x4)
        A(f"s_mov_b32 s{sSPIN}, 0")
    if fstag:
        U_ = fc.get("U", 8)
        A(f"s_lshr_b32 s{sT2}, s2, 3")
        A(f"s_mul_i32 s{sT2}, s{sT2}, {fstag[1]}")
        A(f"s_add_u32 s{sT2}, s{sT2}, {fstag[0]}")
        A(f"v_mov_b32 v{vT}, {L_PW}")
        A.lab("L_fs")
        A(f"ds_read_b32 v{vT+1}, v{vT}")
        A("s_waitcnt lgkmcnt(0)")
        A(f"v_readfirstlane_b32 s{sT}, v{vT+1}")
        A(f"s_add_u32 s{sSPIN}, s{sSPIN}, 1")
        A(f"s_cmp_ge_u32 s{sT}, s{sT2}")
        A("s_cbranch_scc1 L_fs_ok")
        A("s_sleep 8")
        A(f"s_cmp_lt_u32 s{sSPIN}, {SPINMAX}")
        A("s_cbranch_scc1 L_fs")
        A.lab("L_fs_ok")
        A(f"s_mov_b32 s{sSPIN}, 0")
    if 'g' in skip: A("s_branch L_fp_ok")
    if fdual:
        A.lab("L_fa")
        msg_round(40, gpace, polGA)
        A("s_cbranch_scc1 L_fp_ok")
        A("s_sleep 16")
        A(f"s_cmp_lt_u32 s{sSPIN}, 4")
        A("s_cbranch_scc1 L_fa")
        A(f"s_add_u32 s{sCUR}, s{sCUR}, {hex(W_FB-W_FP)}")
        A(f"s_add_u32 s{sNXT}, s{sNXT}, {hex(W_FB-W_FP)}")
    A.lab("L_fp")
    msg_round(40, gpace)
    A("s_cbranch_scc1 L_fp_ok")
    A("s_sleep 16")
    A(f"s_cmp_lt_u32 s{sSPIN}, {SPINMAX}")
    A("s_cbranch_scc1 L_fp")
    A.lab("L_fp_ok")
    msg_sum(40)
    H = SL + 160
    for i in range(2):
        rne(H + i, vT)
    A("s_nop 1")
    for i in range(2):
        A(f"v_mov_b32_dpp v{vBQ+i}, v{H+i} row_ror:8 row_mask:0xf bank_mask:0xf")
    for i in range(2):
        silu(H + i, vT)
        rne(H + i, vT)
        A(f"v_mul_f32 v{H+i}, v{H+i}, v{vBQ+i}")
        A(f"v_cvt_pk_bf16_f32 v{vP0+i}, v{H+i}, v{H+i}")
    srd(SA, sW2, 0 if '2' in skip else 1792 * 512 * 2)
    A(f"v_lshlrev_b32 v{vT}, 11, v{vG}")
    A(f"v_lshl_add_u32 v{vOA}, v{vR}, 4, v{vT}")
    A(f"s_lshl_b32 s{sBASE}, s{sH}, 16")
    A(f"s_lshl_b32 s{sT}, s{sSP}, 9")
    A(f"s_add_u32 s{sBASE}, s{sBASE}, s{sT}")
    fsl = lambda k: 40 + (k & 7)
    def w2load(kk):
        cb, k = kk >> 4, kk & 15
        A(f"s_add_u32 s{sT}, s{sBASE}, {hex((8*(k&7) + (k>>3))*1024 + cb*256)}")
        A(f"buffer_load_dwordx4 {slot(fsl(kk))}, v{vOA}, {S4(SA)}, s{sT} offen {pola}")
    for cb in range(2):
        for k in range(df): w2load(16 * cb + k)
        gemv(16, lambda k: (vP0 + (k >> 3), k & 7),
             lambda k: A(f"s_waitcnt vmcnt({min(df-1, 15-k)})"),
             lambda k: w2load(16 * cb + k + df) if k + df < 16 else None, fsl)
        zr = vD1 if (mergeZ and cb == 0) else vD0
        for i in range(4):
            A(f"v_min_u32 v{zr+i}, -2, v{vD0+i}")
        if mergeZ and cb == 0: continue
        if mergeZ == 2: lds_wait(0xf, 0x4)
        A("s_mov_b32 exec_hi, 0")
        if mergeZ: A(f"buffer_store_dwordx4 {q4(vD1)}, v{vL0}, {S4(SC)}, s{sPO} offen sc1")
        A(f"buffer_store_dwordx4 {q4(vD0)}, v{vL0}, {S4(SC)}, s{sPO} offen offset:{512*cb} sc1")
        A("s_mov_b64 exec, -1")
    stamp(6)
    A("s_branch L_wor" if fearly else "s_branch L_bar2")
    A.c("---- wave 7: softmax merge factors, gate values ----"); A.lab("L_w3")
    if bare == 5 or 'm' in skip:
        A("s_branch L_bar2")
    tag_from_epoch(vTB, vT)
    if vwarm:
        srd(SA, sV, 0x10000000)
        A(f"s_lshl_b32 s{sT}, s{sB}, 26")
        A(f"s_lshl_b32 s{sT2}, s{sH}, 21")
        A(f"s_or_b32 s{sT}, s{sT}, s{sT2}")
        A(f"buffer_load_dword v{vT+9}, v{vL2}, {S4(SA)}, s{sT} offen nt")
    lds_wait(0x10f, 0x104)
    A(f"v_mov_b32 v{vT}, {L_ML}")
    A(f"ds_read_b128 {q4(vBQ)}, v{vT}")
    A(f"ds_read_b128 {q4(vBQ+4)}, v{vT} offset:16")
    A("s_waitcnt lgkmcnt(0)")
    A(f"v_max_f32 v{vBQ+8}, v{vBQ}, v{vBQ+2}")
    A(f"v_max3_f32 v{vBQ+8}, v{vBQ+8}, v{vBQ+4}, v{vBQ+6}")
    A(f"v_mov_b32 v{vBQ+9}, 0")
    A(f"s_mov_b32 s{sT2}, {hex(LOG2E)}")
    for w in range(4):
        A(f"v_sub_f32 v{vT}, v{vBQ+2*w}, v{vBQ+8}")
        A(f"v_mul_f32 v{vT}, s{sT2}, v{vT}")
        A(f"v_exp_f32 v{vT}, v{vT}")
        A("s_nop 0")
        A(f"v_fmac_f32 v{vBQ+9}, v{vT}, v{vBQ+2*w+1}")
    A(f"s_lshl_b32 s{sT}, s2, {7 if fullml else 4}")
    A(f"s_add_u32 s{sT}, s{sT}, {hex(W_ML)}")
    A(f"s_mov_b64 exec, {0xff if fullml else 1}")
    A(f"buffer_store_dwordx4 {q4(vBQ+8)}, v{vOV}, {S4(SC)}, s{sT} offen sc1")
    A("s_mov_b64 exec, -1")
    stamp(6)
    lds_wait(0xf0, 0x40)
    A(f"s_lshl_b32 s{sNXT}, s{sB}, {13 if fullml else 10}")
    A(f"s_add_u32 s{sNXT}, s{sNXT}, {hex(W_ML)}")
    A(f"s_mov_b32 s{sSPIN}, 0")
    A(f"v_lshlrev_b32 v{vON}, {7 if fullml else 4}, v{vLANE}")
    if fullml:
        A(f"s_cmp_ge_u32 s{sIDX}, 48")
        A("s_cbranch_scc1 L_ml")
        A(f"s_xor_b32 s{sT}, s{sIDX}, 8")
        A(f"s_lshl_b32 s{sT}, s{sT}, 7")
        A(f"v_mov_b32 v{vON}, s{sT}")
    A.lab("L_ml")
    A(f"buffer_load_dwordx4 {q4(vBQ+12)}, v{vON}, {S4(SC)}, s{sNXT} offen sc1")
    A(f"s_add_u32 s{sSPIN}, s{sSPIN}, 1")
    A("s_waitcnt vmcnt(0)")
    A(f"v_xor_b32 v{vT}, v{vBQ+14}, v{vTB}")
    A(f"v_xor_b32 v{vT+1}, v{vBQ+15}, v{vTB+1}")
    A(f"v_or_b32 v{vT}, v{vT}, v{vT+1}")
    A(f"v_cmp_ne_u32 vcc, 0, v{vT}")
    A("s_nop 1")
    A("s_cmp_eq_u64 vcc, 0")
    A("s_cbranch_scc1 L_ml_ok")
    A("s_sleep 16")
    A(f"s_cmp_lt_u32 s{sSPIN}, {SPINMAX}")
    A("s_cbranch_scc1 L_ml")
    A.lab("L_ml_ok")
    A(f"s_xor_b32 s{sT}, s{sIDX}, 8")
    A("s_nop 0")
    A(f"v_readlane_b32 s{sM0}, v{vBQ+12}, s{sT}")
    A(f"v_readlane_b32 s{sM0+1}, v{vBQ+13}, s{sT}")
    A("s_nop 1")
    A(f"v_max_f32 v{vBQ+14}, s{sM0}, v{vBQ+8}")
    A(f"v_sub_f32 v{vT}, v{vBQ+8}, v{vBQ+14}")
    A(f"v_sub_f32 v{vT+1}, s{sM0}, v{vBQ+14}")
    A(f"v_mul_f32 v{vT}, s{sT2}, v{vT}")
    A(f"v_mul_f32 v{vT+1}, s{sT2}, v{vT+1}")
    A(f"v_exp_f32 v{vT}, v{vT}")
    A(f"v_exp_f32 v{vT+1}, v{vT+1}")
    A("s_nop 0")
    A(f"v_mul_f32 v{vT}, v{vT}, v{vBQ+9}")
    A(f"v_fmac_f32 v{vT}, s{sM0+1}, v{vT+1}")
    A(f"v_rcp_f32 v{vT+1}, v{vT}")
    for w in range(4):
        A(f"v_sub_f32 v{vT+2+w}, v{vBQ+2*w}, v{vBQ+14}")
        A(f"v_mul_f32 v{vT+2+w}, s{sT2}, v{vT+2+w}")
        A(f"v_exp_f32 v{vT+2+w}, v{vT+2+w}")
        A("s_nop 0")
        A(f"v_mul_f32 v{vT+2+w}, v{vT+2+w}, v{vT+1}")
    A(f"v_mov_b32 v{vT}, {L_FW}")
    A("s_mov_b64 exec, 1")
    A(f"ds_write_b128 v{vT}, {q4(vT+2)}")
    A("s_mov_b64 exec, -1")
    A(f"s_cmp_ge_u32 s{sIDX}, 48")
    A("s_cbranch_scc0 L_w3x")
    A(f"s_cmp_eq_u32 s{sIDX}, 48")
    A("s_cbranch_scc0 L_neb")
    A(f"s_lshl_b32 s{sT}, s{sB}, 7")
    A(f"s_add_u32 s{sT}, s{sT}, {hex(W_EB)}")
    A(f"v_lshlrev_b32 v{vT+1}, 3, v{vLANE}")
    A("s_mov_b64 exec, 0xffff")
    A(f"buffer_store_dwordx2 {p2(vTB)}, v{vT+1}, {S4(SC)}, s{sT} offen sc1")
    A("s_mov_b64 exec, -1")
    A.lab("L_neb")
    srd(SA, sX, 4096)
    A(f"s_sub_u32 s{sT2}, s{sIDX}, 48")
    A(f"s_lshl_b32 s{sT3}, s{sT2}, 6")
    A(f"s_lshl_b32 s{sT}, s{sB}, 10")
    A(f"s_add_u32 s{sT3}, s{sT3}, s{sT}")
    A(f"buffer_load_dwordx2 {p2(vXr)}, v{vL1}, {S4(SA)}, s{sT3} offen")
    A(f"v_cmp_gt_u32 vcc, {(NFFN-24)*8}, v{vLANE}")
    A(f"v_mov_b32 v{vT+3}, 0x40000000")
    A("s_nop 0")
    A(f"v_cndmask_b32 v{vON}, v{vT+3}, v{vPO+3}, vcc")
    A(f"s_lshl_b32 s{sCUR}, s{sB}, 16")
    A(f"s_lshl_b32 s{sT}, s{sT2}, 7")
    A(f"s_add_u32 s{sCUR}, s{sCUR}, s{sT}")
    A(f"s_add_u32 s{sCUR}, s{sCUR}, {hex(W_Z)}")
    if 's' not in skip: poll(4, vBQ, [vPO, vPO + 1, vPO + 2, vON], sCUR, 16)
    reduce_rows(vBQ, 4)
    for i in range(4):
        rne(vBQ + i, vT + 1)
        silu(vBQ + i, vT + 1)
        rne(vBQ + i, vT + 1)
        A(f"v_mov_b32 v{vGt+i}, v{vBQ+i}")
    A(f"v_and_b32 v{vXr+3}, 0xffff0000, v{vXr+1}")
    A(f"v_lshlrev_b32 v{vXr+2}, 16, v{vXr+1}")
    A(f"v_and_b32 v{vXr+1}, 0xffff0000, v{vXr}")
    A(f"v_lshlrev_b32 v{vXr}, 16, v{vXr}")
    A(f"s_lshl_b32 s{sCUR}, s{sB}, 17")
    A(f"s_lshl_b32 s{sT}, s{sT2}, 7")
    A(f"s_add_u32 s{sCUR}, s{sCUR}, s{sT}")
    A.lab("L_w3x")
    A("s_waitcnt lgkmcnt(0)")
    A.c("---- tail: output projection, final reduction ----"); A.lab("L_bar2")
    if pt:
        A("s_waitcnt vmcnt(0)")
        A(f"s_mov_b32 s{sM0}, 0x05040100")
        A(f"s_mov_b32 s{sM0+1}, 0x07060302")
        BB = lambda s_: SL + 160 if s_ == 0 else SL + 32 * (s_ - 1)
        for s_ in range(4):
            for jj in range(8):
                for m in range(4):
                    lo = SL + 4 * (8 * s_ + 2 * m) + (jj >> 1)
                    hi = SL + 4 * (8 * s_ + 2 * m + 1) + (jj >> 1)
                    A(f"v_perm_b32 v{BB(s_)+4*jj+m}, v{hi}, v{lo}, s{sM0 + (jj & 1)}")
        A(f"v_and_b32 v{vT}, 3, v{vR}")
        A(f"v_mul_u32_u24 v{vT}, 272, v{vT}")
        A(f"v_add_u32 v{vT}, {L_OP}, v{vT}")
        A(f"v_mov_b32 v{vT+1}, {L_ZR}")
        A(f"v_and_b32 v{vT+2}, 4, v{vR}")
        A(f"v_cmp_eq_u32 vcc, 0, v{vT+2}")
        A(f"v_lshlrev_b32 v{vT+3}, 4, v{vG}")
        A("s_nop 0")
        A(f"v_cndmask_b32 v{vP0}, v{vT+1}, v{vT}, vcc")
        A(f"v_cndmask_b32 v{vP1}, v{vT}, v{vT+1}, vcc")
        A(f"v_add_u32 v{vP0}, v{vP0}, v{vT+3}")
        A(f"v_add_u32 v{vP1}, v{vP1}, v{vT+3}")
    A(f"v_lshlrev_b32 v{vT}, 4, v{vR}")
    A(f"v_lshl_add_u32 v{vT}, v{vG}, 2, v{vT}")
    A(f"v_mov_b32 v{vT+1}, {L_FW}")
    A(f"s_lshl_b32 s{sNXT}, s2, 11")
    A(f"s_lshl_b32 s{sT}, s{sJ}, 9")
    A(f"s_add_u32 s{sNXT}, s{sNXT}, s{sT}")
    srd(SA, sOUT, 4096)
    A(f"s_cmp_ge_u32 s{sIDX}, 48")
    A(f"s_cselect_b32 s{sLV}, 1, 0")
    A(f"s_cmp_eq_u32 s{sJ}, 3")
    A(f"s_cselect_b32 s{sLV}, s{sLV}, 0")
    stamp(7)
    A("s_barrier")
    if bare in (5, 6) or 't' in skip: A("s_endpgm")
    if not pt:
        A(f"ds_read_b128 {q4(vBQ+8)}, v{vT+1}")
        for w in range(4):
            A(f"ds_read_b32 v{vBQ+w}, v{vT} offset:{L_OP + w*512}")
            A(f"ds_read_b32 v{vBQ+4+w}, v{vT} offset:{L_OP + w*512 + 256}")
        A("s_waitcnt lgkmcnt(0)")
        for u, p in ((0, vP0), (1, vP1)):
            A(f"v_mul_f32 v{p}, v{vBQ+4*u}, v{vBQ+8}")
        for w in range(1, 4):
            for u, p in ((0, vP0), (1, vP1)):
                A(f"v_fmac_f32 v{p}, v{vBQ+4*u+w}, v{vBQ+8+w}")
        A(f"v_cvt_pk_bf16_f32 v{vP0}, v{vP0}, v{vP0}")
        A(f"v_cvt_pk_bf16_f32 v{vP1}, v{vP1}, v{vP1}")
        A("s_nop 1")
    RA, RB = (SL + 96 if pt else SL + 160), SL
    def pissue(r0):
        for n in range(8):
            A(f"buffer_load_dwordx4 {q4(r0+4*n)}, v{vPO+n}, {S4(SC)}, s{sCUR} offen sc1")
    def early(k):
        if poll2 and k == poll2:
            A(f"s_cmp_eq_u32 s{sLV}, 1")
            A("s_cbranch_scc0 L_ne")
            pissue(RA)
            A.lab("L_ne")
    if pt:
        AF = [vBQ, vBQ + 4, vBQ + 8, vBQ + 12, SL + 144, SL + 148, SL + 152, SL + 156]
        ACC = [vD0, vD1, vA0, vA1]
        FWr = vT + 2
        YO = vBQ
        for s_ in range(4):
            A(f"ds_read_b128 {q4(AF[2*s_])}, v{vP0} offset:{64*s_}")
            A(f"ds_read_b128 {q4(AF[2*s_+1])}, v{vP1} offset:{64*s_}")
        A(f"ds_read_b128 {q4(FWr)}, v{vT+1}")
        n = 0
        for s_ in range(4):
            A(f"s_waitcnt lgkmcnt({7-2*s_})")
            for i in range(4):
                for hl in range(2):
                    A(f"v_mfma_f32_16x16x32_bf16 {q4(ACC[i])}, {q4(AF[2*s_+hl])}, {q4(BB(s_)+4*(4*hl+i))}, {'0' if (s_==0 and hl==0) else q4(ACC[i])}")
                    early(n); n += 1
        A("s_waitcnt lgkmcnt(0)")
        A("s_mov_b32 exec_hi, 0")
        for i in range(4):
            A(f"v_pk_mul_f32 {p2(vT+6)}, {p2(ACC[i])}, {p2(FWr)}")
            A(f"v_pk_fma_f32 {p2(vT+6)}, {p2(ACC[i]+2)}, {p2(FWr+2)}, {p2(vT+6)}")
            A(f"v_add_f32 v{YO+i}, v{vT+6}, v{vT+7}")
            A(f"v_min_u32 v{YO+i}, -2, v{YO+i}")
        A(f"buffer_store_dwordx4 {q4(YO)}, v{vL0}, {S4(SC)}, s{sNXT} offen sc1")
    else:
        gemv(32, lambda k: (vP0 + (k >> 4), k & 15), lambda k: None, early)
        for i in range(4):
            A(f"v_min_u32 v{vD0+i}, -2, v{vD0+i}")
        A("s_mov_b32 exec_hi, 0")
        A(f"buffer_store_dwordx4 {q4(vD0)}, v{vL0}, {S4(SC)}, s{sNXT} offen sc1")
    A("s_mov_b64 exec, -1")
    stamp(8)
    A(f"s_cmp_eq_u32 s{sLV}, 1")
    A("s_cbranch_scc0 L_auxend")
    if poll2:
        FR = SL + 64
        def pcheck(r0):
            for n in range(8):
                A(f"s_waitcnt vmcnt({15-n})")
                r = r0 + 4 * n
                if n == 0:
                    A(f"v_max3_u32 v{vT}, v{r}, v{r+1}, v{r+2}")
                    A(f"v_max_u32 v{vT}, v{vT}, v{r+3}")
                else:
                    A(f"v_max3_u32 v{vT}, v{vT}, v{r}, v{r+1}")
                    A(f"v_max3_u32 v{vT}, v{vT}, v{r+2}, v{r+3}")
                    for i in (0, 2):
                        A(f"v_pk_add_f32 {p2(FR+i)}, {p2((r0 if n == 1 else FR)+i)}, {p2(r+i)}")
            A(f"v_cmp_eq_u32 vcc, -1, v{vT}")
            A("s_nop 1")
            A("s_cmp_eq_u64 vcc, 0")
            A("s_cbranch_scc1 L_p2c")
        A(f"s_mov_b32 s{sSPIN}, 0")
        A.lab("L_p2")
        pissue(RB)
        pcheck(RA)
        pissue(RA)
        pcheck(RB)
        A(f"s_add_u32 s{sSPIN}, s{sSPIN}, 1")
        A(f"s_cmp_lt_u32 s{sSPIN}, {SPINMAX}")
        A("s_cbranch_scc1 L_p2")
        A.lab("L_p2c")
        reduce_rows(FR, 1)
    else:
        FR = SL
        poll(8, SL, [vPO + n for n in range(8)], sCUR, 1)
        reduce_rows(SL, 8)
    for i in range(4):
        rne(FR + i, vT + i)
    for i in range(4):
        A(f"v_mul_f32 v{FR+i}, v{FR+i}, v{vGt+i}")
    for i in range(4):
        rne(FR + i, vT + i)
    for i in range(4):
        A(f"v_add_f32 v{FR+i}, v{FR+i}, v{vXr+i}")
    A(f"v_cvt_pk_bf16_f32 v{FR+4}, v{FR}, v{FR+1}")
    A(f"v_cvt_pk_bf16_f32 v{FR+5}, v{FR+2}, v{FR+3}")
    A("s_mov_b64 exec, 0xff")
    A(f"buffer_store_dwordx2 v[{FR+4}:{FR+5}], v{vL1}, {S4(SA)}, s{sT3} offen {polo}")
    A("s_mov_b64 exec, -1")
    stamp(9)
    A.lab("L_auxend")
    stamp_flush()
    A.lab("L_end")
    A("s_endpgm")

    ref = open("recurrent_scan__mha_block_cached__glu_gated_swiglu__decode.s.ref").read()
    out = ref.split("; @launch")[0]
    out += f"; @launch grid=(256,1,1) block=(512,1,1) lds={LDS}\n"
    out += DOC
    out += '.amdgcn_target "amdgcn-amd-amdhsa--gfx950"\n.text\n'
    out += f".globl {NAME}\n.p2align 8\n.type {NAME},@function\n{NAME}:\n"
    out += "\n".join(A.L) + "\n"
    out += '.section .rodata,"a"\n.p2align 6\n'
    out += f".amdhsa_kernel {NAME}\n"
    out += f"  .amdhsa_next_free_vgpr {NV}\n  .amdhsa_next_free_sgpr 80\n  .amdhsa_accum_offset {NV}\n"
    out += "  .amdhsa_group_segment_fixed_size 0\n  .amdhsa_kernarg_size 96\n  .amdhsa_user_sgpr_count 2\n"
    out += "  .amdhsa_user_sgpr_kernarg_segment_ptr 1\n  .amdhsa_system_sgpr_workgroup_id_x 1\n.end_amdhsa_kernel\n"
    return out

if __name__ == "__main__":
    fn = sys.argv[1]
    kw = eval("dict(%s)" % (sys.argv[2] if len(sys.argv) > 2 else ""))
    open(fn, "w").write(gen(**kw))
```

```python
import sys

NAME = "recurrent_scan__mha_block_cached__glu_gated_swiglu__decode_kernel"


DOC = """;
;   wave 7: (max, sum) exchange of the two splits; 64 workgroups also reduce the final outputs.
"""

class G:
    def __init__(s):
        s.L = []
        s.n = 0
    def __call__(s, t):
        s.L.append("    " + t)
    def lab(s, t):
        s.L.append(t + ":")
    def c(s, t):
        s.L.append("    ; " + t)
    def uid(s, p):
        s.n += 1
        return f"L_{p}{s.n}"

def gen(d=5, dpro=8, da=2, sb=15, stamps=False, R=48, LAG=8, NA=8, VLATE=4,
        polq="", polf="", polp="", pola="nt", bare=0, qprio=3, fc=None, dlast=None,
        dpro2=None, n1=24, df=4, gpace=0, tfill=0, vwarm=False, poll2=False, polo='', vboost=None, fullml=True, fearly=0, noq=0, skip='', clr0=False, qlite=False, qpre=0, polGA='sc1', fstag=None, fdual=None, swap=False, colo=False, VEV=None, kev=False, eplain=False, est='', sameB=False, pt=False, xr=None, halfmsg=False, qonlyB=False, qack=False, ifirst=False, galign=False, order='oooo22', mergeB=False, mergeZ=0, hx=None, npos=None, d0=None, fdelay=0):
    dlast = dlast or d
    if fdual is None: fdual = bool(fearly)
    A = G()
    levels = [d] if fc is None else fc["levels"]
    assert max(levels) <= LAG
    sX, sK, sV, sWQ, sWO, sW1, sW3, sW2, sOUT, sDBG, sWS = 4, 6, 8, 10, 12, 16, 18, 20, 22, 24, 26
    sWAVE, sB, sH, sSP, sIDX, sJ, sMU = 28, 29, 30, 31, 32, 33, 34
    SA, SN, SC, SD_, SE = 36, 40, 44, 48, 52
    sCUR, sNXT, sT, sIT, sT2, sT3 = 56, 57, 58, 59, 60, 61
    sM0, sM1 = 62, 64
    sBASE, sSPIN, sLV, sPO = 66, 67, 68, 69
    sST = 70
    vLANE, vOA, vON, vOV, vG, vR, vT7 = 1, 2, 3, 4, 5, 6, 7
    vMK = 8
    vBQ = 12
    vD0, vD1 = 28, 32
    vS, vM = 36, 37
    vT = 38
    vA0, vA1 = 48, 52
    vP0, vP1 = 56, 57
    vL0, vL1, vL2 = 58, 59, 60
    vPG, vST, vPB = 61, 62, 63
    SL = 64
    NV = 256
    assert SL + 4 * R <= NV
    slot = lambda i: f"v[{SL+4*i}:{SL+4*i+3}]"
    q4 = lambda r: f"v[{r}:{r+3}]"
    p2 = lambda r: f"v[{r}:{r+1}]"
    S4 = lambda b: f"s[{b}:{b+3}]"
    L_Q = 0
    L_TG = 256
    L_ML = 272
    L_FW = 304
    L_CM = 320
    L_LV = 352
    L_PW = 336
    L_OP = 2048
    L_ZR = 512
    L_XE = 4096
    L_SC = 8192
    LDS = L_SC + 4 * 16 * 64 * 4 + 256
    W_Y, W_Z, W_ML, W_EH, W_EB, W_PG = 0, 0x80000, 0xC0000, 0xC8000, 0xC9000, 0xCA000
    W_QA, W_QB, W_FP, W_FB, W_SZ = 0x100000, 0x200000, 0x300000, 0x400000, 0x500000
    W_ST = 0x500000
    if sameB: W_QB = W_QA; W_FB = W_FP
    NFFN = 28
    LOG2E = 0x3FB8AA3B
    SCALE = 0x3DB504F3
    SPINMAX = 200000

    def srd(base, ptr, nbytes):
        A(f"s_mov_b32 s{base}, s{ptr}")
        A(f"s_mov_b32 s{base+1}, s{ptr+1}")
        A(f"s_mov_b32 s{base+2}, {hex(nbytes)}")
        A(f"s_mov_b32 s{base+3}, 0x00020000")
    def stamp(i):
        if not stamps: return
        A(f"s_memrealtime s[{sST}:{sST+1}]")
        A("s_waitcnt lgkmcnt(0)")
        A(f"v_writelane_b32 v{vST}, s{sST}, {i}")
    def stamp_it(base):
        if not stamps: return
        A(f"s_memrealtime s[{sST}:{sST+1}]")
        A(f"s_add_u32 m0, s{sIT}, {base}")
        A("s_waitcnt lgkmcnt(0)")
        A(f"v_writelane_b32 v{vST}, s{sST}, m0")
    def stamp_flush():
        if not stamps: return
        A(f"v_writelane_b32 v{vST}, s76, 10")
        A(f"v_writelane_b32 v{vST}, s75, 61")
        srd(SE, sWS, 0x600000)
        A(f"s_lshl_b32 s{sT}, s2, 3")
        A(f"s_add_u32 s{sT}, s{sT}, s{sWAVE}")
        A(f"s_lshl_b32 s{sT}, s{sT}, 8")
        A(f"s_add_u32 s{sT}, s{sT}, {hex(W_ST)}")
        A(f"v_lshlrev_b32 v{vT7}, 2, v{vLANE}")
        A(f"buffer_store_dword v{vST}, v{vT7}, {S4(SE)}, s{sT} offen")
    def cut(n):
        if bare == n:
            A("s_barrier"); A("s_endpgm")

    def swaps(op, reg, tmp):
        for sw in ("v_permlane16_swap_b32", "v_permlane32_swap_b32"):
            A("s_nop 0")
            A(f"v_mov_b32 v{tmp}, v{reg}")
            A("s_nop 1")
            A(f"{sw} v{reg}, v{tmp}")
            A("s_nop 0")
            A(f"{op} v{reg}, v{reg}, v{tmp}")
    def allreduce(op, reg, tmp):
        for n in (8, 4, 2, 1):
            A("s_nop 1")
            A(f"{op}_dpp v{reg}, v{reg}, v{reg} row_ror:{n} row_mask:0xf bank_mask:0xf")
        swaps(op, reg, tmp)
    def rne(reg, tmp):
        A(f"v_cvt_pk_bf16_f32 v{tmp}, v{reg}, v{reg}")
        A(f"v_and_b32 v{reg}, 0xffff0000, v{tmp}")
    def diag(dst, pp, j):
        for m in range(4):
            A(f"v_and_b32_dpp v{dst+m}, v{pp}, v{vMK+m} row_newbcast:{j} row_mask:0xf bank_mask:0xf")
    def silu(reg, t):
        A(f"v_mul_f32 v{t}, {hex(LOG2E | 0x80000000)}, v{reg}")
        A(f"v_exp_f32 v{t}, v{t}")
        A("s_nop 0")
        A(f"v_add_f32 v{t}, 1.0, v{t}")
        A(f"v_rcp_f32 v{t}, v{t}")
        A("s_nop 0")
        A(f"v_mul_f32 v{reg}, v{reg}, v{t}")
    def build_masks():
        A(f"v_and_b32 v{vT}, 1, v{vR}")
        A(f"v_lshlrev_b32 v{vT}, 4, v{vT}")
        A(f"v_mov_b32 v{vT+1}, 0xffff")
        A(f"v_lshlrev_b32 v{vT}, v{vT}, v{vT+1}")
        A(f"v_bfe_u32 v{vT+1}, v{vR}, 1, 2")
        for m in range(4):
            A(f"v_cmp_eq_u32 vcc, {m}, v{vT+1}")
            A("s_nop 1")
            A(f"v_cndmask_b32 v{vMK+m}, 0, v{vT}, vcc")
    def tag_from_epoch(reg, tmp):
        A(f"v_mov_b32 v{tmp}, 0x9e3779b9")
        A(f"v_add_co_u32 v{reg}, vcc, 0x7f4a7c15, v{reg}")
        A("s_nop 1")
        A(f"v_addc_co_u32 v{reg+1}, vcc, v{tmp}, v{reg+1}, vcc")

    if sb == 15:
        koff = lambda k: ((k & 7) << 12) | ((k >> 3) << 16); wsh = 10; GSTR = 1 << 17
    elif sb == 10:
        koff = lambda k: k << 13; wsh = 11; GSTR = 1 << 17
    elif sb == 16:
        koff = lambda k: k << 12; wsh = 10; GSTR = 1 << 17
    elif sb == 14:
        koff = lambda k: ((k & 3) << 12) | ((k >> 2) << 15); wsh = 10; GSTR = 1 << 17
    elif sb == 20:
        koff = lambda k: k << 12; wsh = 10; GSTR = 1 << 16

    if npos:
        wsh, kb, sb = npos
        wb = (wsh, wsh + 1) if isinstance(wsh, int) else wsh
        used = sorted(list(wb) + list(kb) + [sb])
        rest = [b_ for b_ in range(10, 21) if b_ not in used]
        assert len(rest) == 4 and rest == list(range(rest[0], rest[0] + 4)), rest
        koff = lambda k: sum(((k >> i) & 1) << kb[i] for i in range(4)); GSTR = 1 << rest[0]
    A("s_cmp_ge_u32 s2, 256")
    A("s_cbranch_scc1 L_end")
    if stamps: A("s_memrealtime s[76:77]")
    A("s_load_dwordx16 s[4:19], s[0:1], 0")
    A("s_load_dwordx8 s[20:27], s[0:1], 64")
    A(f"v_lshrrev_b32 v{vT7}, 6, v0")
    A(f"v_and_b32 v{vLANE}, 63, v0")
    A(f"v_readfirstlane_b32 s{sWAVE}, v{vT7}")
    A(f"v_lshrrev_b32 v{vG}, 4, v{vLANE}")
    A(f"v_and_b32 v{vR}, 15, v{vLANE}")
    A(f"v_lshlrev_b32 v{vOV}, 4, v{vLANE}")
    if stamps:
        A(f"v_mov_b32 v{vST}, 0")
        A("s_mov_b32 s75, 0")
    if swap: A(f"s_xor_b32 s{sWAVE}, s{sWAVE}, 4")
    A(f"s_lshr_b32 s{sB}, s2, 6")
    A(f"s_and_b32 s{sIDX}, s2, 63")
    A(f"s_bfe_u32 s{sSP}, s2, {(1<<16)|3}")
    if hx is None:
        A(f"s_bfe_u32 s{sT}, s2, {(2<<16)|4}")
        A(f"s_lshl_b32 s{sT}, s{sT}, 3")
        A(f"s_and_b32 s{sH}, s2, 7")
        A(f"s_or_b32 s{sH}, s{sH}, s{sT}")
    else:
        rest = [b_ for b_ in range(5) if b_ not in hx]
        A(f"s_mov_b32 s{sH}, 0")
        for src, dst in zip((0, 1, 2, 4, 5), list(hx) + rest):
            A(f"s_bfe_u32 s{sT}, s2, {(1<<16)|src}")
            A(f"s_lshl_b32 s{sT}, s{sT}, {dst}")
            A(f"s_or_b32 s{sH}, s{sH}, s{sT}")
    A(f"s_lshl_b32 s{sMU}, s{sB}, 1")
    A(f"s_or_b32 s{sMU}, s{sMU}, s{sSP}")
    A(f"s_cmp_ge_u32 s{sWAVE}, 4")
    A("s_cbranch_scc1 L_aux")

    A.c("---- stream waves ----")
    A(f"s_lshl_b32 s{sT3}, s{sH}, 16")
    A(f"s_lshl_b32 s{sT}, s{sMU}, 13")
    A(f"s_add_u32 s{sT3}, s{sT3}, s{sT}")
    A(f"s_lshl_b32 s{sT}, s{sWAVE}, 11")
    A(f"s_add_u32 s{sT3}, s{sT3}, s{sT}")
    A(f"s_lshl_b32 s{sT2}, s{sT3}, 1")
    A(f"v_lshrrev_b32 v{vT}, 2, v{vR}")
    A(f"v_lshlrev_b32 v{vT}, 8, v{vT}")
    A(f"v_and_b32 v{vT+1}, 3, v{vR}")
    A(f"v_lshlrev_b32 v{vT+1}, 4, v{vT+1}")
    A(f"v_lshlrev_b32 v{vT+2}, 6, v{vG}")
    A(f"v_add3_u32 v{vOA}, v{vT}, v{vT+1}, v{vT+2}")
    A(f"v_mov_b32 v{vON}, v{vOA}")
    A(f"s_lshl_b32 s{sBASE}, s{sB}, 26")
    A(f"s_lshl_b32 s{sT}, s{sH}, 21")
    A(f"s_or_b32 s{sBASE}, s{sBASE}, s{sT}")
    A(f"s_lshl_b32 s{sT}, s{sSP}, {sb}")
    A(f"s_or_b32 s{sBASE}, s{sBASE}, s{sT}")
    if isinstance(wsh, int):
        A(f"s_lshl_b32 s{sT}, s{sWAVE}, {wsh}")
        A(f"s_or_b32 s{sBASE}, s{sBASE}, s{sT}")
    else:
        for i_ in range(2):
            A(f"s_bfe_u32 s{sT}, s{sWAVE}, {(1<<16)|i_}")
            A(f"s_lshl_b32 s{sT}, s{sT}, {wsh[i_]}")
            A(f"s_or_b32 s{sBASE}, s{sBASE}, s{sT}")
    A("s_waitcnt lgkmcnt(0)")
    nis = [0]
    def pace():
        if d0 and nis[0] == d0: A(f"s_waitcnt vmcnt({d0-1})")
        if nis[0] >= dpro: A(f"s_waitcnt vmcnt({(dpro2 if dpro2 and nis[0] >= n1 else dpro)-1})")
        nis[0] += 1
    if xr:
        A(f"s_bfe_u32 s35, s2, {(xr[1]<<16)|xr[0]}")
        A(f"s_lshl_b32 s35, s35, {xr[2]}")
    def sload(sl, srdb, voff, sbase, off):
        A(f"s_add_u32 s{sT}, s{sbase}, {hex(off)}")
        if xr: A(f"s_xor_b32 s{sT}, s{sT}, s35")
        A(f"buffer_load_dwordx4 {slot(sl)}, v{voff}, {S4(srdb)}, s{sT} offen nt")
    gk = lambda i: (i >> 4) * GSTR + koff(i & 15)
    cnt = {'o': 0, '2': 0, 'k': 0}
    for ch in (order if bare != 2 else ""):
        if cnt[ch] == 0:
            if ch == 'o': srd(SC, sWO, 0x400000)
            elif ch == '2': srd(SD_, sW2, 1792 * 512 * 2)
            else: srd(SA, sK, 0x10000000)
        pace()
        k = cnt[ch]; cnt[ch] += 1
        if ch == 'o': A(f"buffer_load_dwordx4 {q4(vA0)}, v{vOV}, {S4(SC)}, s{sT2} offen offset:{k*1024} {polp}")
        elif ch == '2': A(f"buffer_load_dwordx4 {q4(vA0)}, v{vOV}, {S4(SD_)}, s{sT3} offen offset:{k*1024} {polp}")
        else: sload(k, SA, vOA, sBASE, gk(k))
    if cnt['k'] == 0: srd(SA, sK, 0x10000000)
    setup_done = False
    for i in range(cnt['k'], R):
        if nis[0] >= dpro and not setup_done:
            setup_done = True
            stamp(0)
            srd(SN, sK, 0x10000000)
            build_masks()
            A(f"v_lshlrev_b32 v{vL0}, 2, v{vLANE}")
            A(f"s_lshl_b32 s{sT2}, s{sWAVE}, 12")
            A(f"s_add_u32 s{sT2}, s{sT2}, {L_SC}")
            A(f"v_add_u32 v{vL0}, s{sT2}, v{vL0}")
            A(f"v_mov_b32 v{vL1}, v{vL0}")
            A(f"v_lshrrev_b32 v{vT}, 2, v{vR}")
            A(f"v_lshlrev_b32 v{vT}, 4, v{vT}")
            A(f"v_lshlrev_b32 v{vL2}, 6, v{vG}")
            A(f"v_add_u32 v{vL2}, v{vL2}, v{vT}")
            A(f"v_mov_b32 v{vM}, 0xff800000")
        pace()
        sload(i, SA, vOA, sBASE, gk(i))
        if i in (15, 31): stamp(7 + (i >> 4))
    stamp(1)
    A("s_barrier")
    stamp(2)
    A(f"ds_read_b128 {q4(vT+2)}, v{vL2} offset:{L_Q}")
    A(f"v_and_b32 v{vT}, 3, v{vR}")
    A("s_waitcnt lgkmcnt(0)")
    for t in range(4):
        A(f"v_cmp_eq_u32 vcc, {t}, v{vT}")
        A("s_nop 1")
        for m in range(4):
            A(f"v_cndmask_b32 v{vBQ+4*t+m}, 0, v{vT+2+m}, vcc")
    A("s_nop 1")

    def dpp_gather(u, i):
        D = vD0 if (u & 1) == 0 else vD1
        n = (4 * (u - i)) % 16
        ctrl = "quad_perm:[0,1,2,3]" if n == 0 else f"row_ror:{n}"
        if i == 0:
            A(f"v_mov_b32_dpp v{vS}, v{D} {ctrl} row_mask:0xf bank_mask:{hex(1<<u)}")
        else:
            A(f"v_add_f32_dpp v{vS}, v{D+i}, v{vS} {ctrl} row_mask:0xf bank_mask:{hex(1<<u)}")
    midctx = [None]
    hook = [lambda: None]
    def kgroup(slot0, waitf, issuef):
        for k in range(16):
            if k == 8: hook[0]()
            u, t = k >> 2, k & 3
            D = vD0 if (u & 1) == 0 else vD1
            waitf(k)
            if ifirst and midctx[0]: issuef(k)
            A(f"v_mfma_f32_16x16x32_bf16 {q4(D)}, {slot(slot0+k)}, {q4(vBQ+4*t)}, {'0' if t==0 else q4(D)}")
            if not (ifirst and midctx[0]): issuef(k)
            if u > 0:
                A("s_nop 6" if t == 0 else "s_nop 0")
                dpp_gather(u - 1, t)
        A("s_nop 7")
        for i in range(4):
            dpp_gather(3, i)
            A("s_nop 1")
        rne(vS, vT)
        A(f"v_mul_f32 v{vT+1}, {hex(SCALE)}, v{vS}")
        rne(vT + 1, vT)
        A(f"v_max_f32 v{vM}, v{vM}, v{vT+1}")
        A(f"ds_write_b32 v{vL1}, v{vT+1}")
        A(f"v_add_u32 v{vL1}, 256, v{vL1}")

    issued = [0]
    for G0 in range(R // 16):
        def waitf(k, G0=G0):
            i = G0 * 16 + k
            A(f"s_waitcnt vmcnt({min(63, R-1-i + issued[0])})")
        def issuef(k, G0=G0):
            i = G0 * 16 + k
            if i < d:
                sload(i, SA, vOA, sBASE, gk(R + i)); issued[0] += 1
        kgroup(G0 * 16, waitf, issuef)
    for i in range(d, LAG):
        A(f"s_waitcnt vmcnt({d-1})")
        sload(i, SA, vOA, sBASE, gk(R + i))
    stamp(3)
    A(f"s_add_u32 s{sCUR}, s{sBASE}, {hex((R//16)*GSTR)}")
    A(f"s_mov_b32 s{sIT}, {R//16}")
    if fc:
        U = fc.get("U", 8)
        A(f"s_lshl_b32 s{sT}, s{sWAVE}, 2")
        A(f"s_add_u32 s{sT}, s{sT}, {L_PW}")
        A(f"v_mov_b32 v{vPB}, s{sT}")
        A(f"v_mov_b32 v{vPG}, 0")
        A(f"v_mov_b32 v{vT+8}, {fc.get('nom', 1)}")
    def steady_issue(k):
        kk = k + LAG
        if kk < 16:
            sload(kk, SA, vOA, sCUR, koff(kk))
        else:
            sload(kk - 16, SN, vON, sNXT, koff(kk - 16))
        if fc:
            if k % (16 // U) == 0:
                A(f"v_add_u32 v{vPG}, 1, v{vPG}")
                A(f"ds_write_b32 v{vPB}, v{vPG}")
            if k == 14 or (k == 6 and fc.get("mid")):
                A(f"ds_read_b32 v{vT+8}, v{vPB} offset:{L_LV-L_PW}")
    def midswitch():
        if not (fc and fc.get("mid") and midctx[0]): return
        tag, li = midctx[0]
        A("s_waitcnt lgkmcnt(0)")
        A(f"v_readfirstlane_b32 s{sLV}, v{vT+8}")
        for lj in range(len(levels)):
            if lj == li: continue
            A(f"s_cmp_eq_u32 s{sLV}, {lj}")
            A(f"s_cbranch_scc1 L_{tag}_h{lj}")
        A.lab(f"L_{tag}_h{li}")
    hook[0] = midswitch
    def wv(dd, k):
        lo = int(dd); fr = dd - lo
        up = int((k + 1) * fr + 1e-9) > int(k * fr + 1e-9)
        return (lo + (1 if up else 0)) - 1
    def dispatch(tag, body):
        if not fc:
            body(d); return
        A(f"v_readfirstlane_b32 s{sLV}, v{vT+8}")
        if tag == "v" and vboost:
            A(f"s_cmp_ge_u32 s{sIT}, {vboost[0]}")
            A(f"s_cselect_b32 s{sT}, {vboost[1]}, 0")
            A(f"s_add_u32 s{sLV}, s{sLV}, s{sT}")
            A(f"s_min_u32 s{sLV}, s{sLV}, {len(levels)-1}")
        if stamps: A(f"s_add_u32 s75, s75, s{sLV}")
        for li in range(1, len(levels)):
            A(f"s_cmp_eq_u32 s{sLV}, {li}")
            A(f"s_cbranch_scc1 L_{tag}_b{li}")
        for li, dd in enumerate(levels):
            A.lab(f"L_{tag}_b{li}")
            midctx[0] = (tag, li)
            body(dd)
            midctx[0] = None
            if li + 1 < len(levels): A(f"s_branch L_{tag}_e")
        A.lab(f"L_{tag}_e")
    A.c("---- K loop: one body per window size ----"); A.lab("L_kloop")
    A(f"s_add_u32 s{sNXT}, s{sCUR}, {hex(GSTR)}")
    A(f"s_cmp_eq_u32 s{sIT}, 15")
    A("s_cbranch_scc0 L_knl")
    A(f"s_mov_b32 s{sNXT}, s{sBASE}")
    A(f"s_mov_b32 s{SN}, s{sV}")
    A(f"s_mov_b32 s{SN+1}, s{sV+1}")
    A(f"v_mov_b32 v{vON}, v{vOV}")
    A.lab("L_knl")
    if fc: A("s_waitcnt lgkmcnt(0)")
    dispatch("k", lambda dd: kgroup(0, lambda k: A(f"s_waitcnt vmcnt({wv(dd,k)})"), steady_issue))
    stamp_it(16)
    A(f"s_mov_b32 s{sCUR}, s{sNXT}")
    A(f"s_add_u32 s{sIT}, s{sIT}, 1")
    A(f"s_cmp_lt_u32 s{sIT}, 16")
    A("s_cbranch_scc1 L_kloop")
    stamp(4)
    A(f"s_mov_b32 s{SA}, s{sV}")
    A(f"s_mov_b32 s{SA+1}, s{sV+1}")
    A(f"v_mov_b32 v{vOA}, v{vOV}")
    X = SL + 64
    tf = [0]
    def tfi():
        if tf[0] < tfill:
            A(f"s_waitcnt vmcnt({d-1})")
            steady_issue(tf[0]); tf[0] += 1
    tfi()
    A("s_waitcnt lgkmcnt(0)")
    for i in range(8):
        A(f"ds_read2st64_b32 v[{X+2*i}:{X+2*i+1}], v{vL0} offset0:{2*i} offset1:{2*i+1}")
    allreduce("v_max_f32", vM, vT)
    A(f"s_mov_b32 s{sT2}, {hex(LOG2E)}")
    A("s_waitcnt lgkmcnt(0)")
    for i in range(16):
        A(f"v_sub_f32 v{X+i}, v{X+i}, v{vM}")
    tfi()
    for i in range(16):
        A(f"v_mul_f32 v{X+i}, s{sT2}, v{X+i}")
    for i in range(16):
        A(f"v_exp_f32 v{X+i}, v{X+i}")
    A("s_nop 0")
    for i in range(16):
        A(f"v_cvt_pk_bf16_f32 v{X+16+i}, v{X+i}, v{X+i}")
    for i in range(8):
        A(f"ds_write2st64_b32 v{vL0}, v{X+16+2*i}, v{X+16+2*i+1} offset0:{2*i} offset1:{2*i+1}")
    A(f"v_mov_b32 v{vP1}, v{X+16}")
    tfi()
    for st in (8, 4, 2, 1):
        for i in range(st):
            A(f"v_add_f32 v{X+i}, v{X+i}, v{X+i+st}")
    allreduce("v_add_f32", X, vT)
    tfi()
    A(f"v_mov_b32 v{vT}, v{vM}")
    A(f"v_mov_b32 v{vT+1}, v{X}")
    A(f"s_lshl_b32 s{sT2}, s{sWAVE}, 3")
    A(f"s_add_u32 s{sT2}, s{sT2}, {L_ML}")
    A(f"v_mov_b32 v{vT+2}, s{sT2}")
    A(f"v_mov_b32 v{vT+3}, {L_CM}")
    A(f"v_mov_b32 v{vT+4}, 1")
    A("s_mov_b64 exec, 1")
    A(f"ds_write_b64 v{vT+2}, v[{vT}:{vT+1}]")
    A("s_waitcnt lgkmcnt(0)")
    A(f"ds_add_u32 v{vT+3}, v{vT+4}")
    A("s_mov_b64 exec, -1")
    A(f"v_mov_b32 v{vT+7}, 16")
    for i in range(4):
        A(f"v_mov_b32 v{vD0+i}, 0")
    A(f"v_add_u32 v{vL1}, 256, v{vL0}")
    A(f"v_lshlrev_b32 v{vT+5}, {4 if pt else 5}, v{vR}")
    A(f"v_lshlrev_b32 v{vT+6}, {3 if pt else 4}, v{vG}")
    A(f"s_mul_i32 s{sT2}, s{sWAVE}, {272 if pt else 512}")
    A(f"v_add3_u32 v{vL2}, v{vT+5}, v{vT+6}, s{sT2}")
    A(f"s_mov_b32 s{sIT}, 0")
    stamp(5)
    def vbody(waitf, issuef):
        A(f"v_mov_b32 v{vP0}, v{vP1}")
        A(f"ds_read_b32 v{vP1}, v{vL1}")
        A(f"v_add_u32 v{vL1}, 256, v{vL1}")
        diag(vA0, vP0, 0)
        for k in range(16):
            if k == 8: hook[0]()
            Acur = vA0 if (k & 1) == 0 else vA1
            Anxt = vA1 if (k & 1) == 0 else vA0
            if k < 15: diag(Anxt, vP0, k + 1)
            waitf(k)
            if ifirst and midctx[0]: issuef(k)
            A(f"v_mfma_f32_16x16x32_bf16 {q4(vD0)}, {q4(Acur)}, {slot(k)}, {q4(vD0)}")
            if not (ifirst and midctx[0]): issuef(k)
    if tfill:
        assert tf[0] == tfill
        A(f"s_add_u32 s{sNXT}, s{sCUR}, {hex(GSTR)}")
        A("s_waitcnt lgkmcnt(0)")
        vbody(lambda k: A(f"s_waitcnt vmcnt({d-1 if k >= tfill else LAG+tfill-1-k})"), lambda k: steady_issue(k) if k >= tfill else None)
        stamp_it(32)
        A(f"s_mov_b32 s{sCUR}, s{sNXT}")
        A(f"s_mov_b32 s{sIT}, 1")
    A.c("---- V loop: one body per window size ----"); A.lab("L_vloop")
    A(f"s_add_u32 s{sNXT}, s{sCUR}, {hex(GSTR)}")
    A(f"s_cmp_eq_u32 s{sIT}, {VLATE}")
    A("s_cbranch_scc0 L_vnl")
    A("s_mov_b64 exec, 1")
    A(f"ds_add_u32 v{vT+3}, v{vT+7}")
    A("s_mov_b64 exec, -1")
    A.lab("L_vnl")
    if VEV is not None:
        A(f"s_cmp_eq_u32 s{sIT}, {VEV}")
        A("s_cbranch_scc0 L_vne")
        A(f"v_mov_b32 v{vT+9}, 0x1000")
        A("s_mov_b64 exec, 1")
        A(f"ds_add_u32 v{vT+3}, v{vT+9}")
        A("s_mov_b64 exec, -1")
        A.lab("L_vne")
    A("s_waitcnt lgkmcnt(0)")
    dispatch("v", lambda dd: vbody(lambda k: A(f"s_waitcnt vmcnt({wv(dd,k)})"), steady_issue))
    stamp_it(32)
    A(f"s_mov_b32 s{sCUR}, s{sNXT}")
    A(f"s_add_u32 s{sIT}, s{sIT}, 1")
    A(f"s_cmp_lt_u32 s{sIT}, 15")
    A("s_cbranch_scc1 L_vloop")
    def lwait(k):
        if k + LAG < 16: A(f"s_waitcnt vmcnt({dlast-1})")
        else: A(f"s_waitcnt vmcnt({15-k})")
    A("s_waitcnt lgkmcnt(0)")
    vbody(lwait, lambda k: sload(k + LAG, SA, vOA, sCUR, koff(k + LAG)) if k + LAG < 16 else None)
    A("s_mov_b32 exec_hi, 0")
    A("s_nop 6")
    if pt:
        A(f"v_cvt_pk_bf16_f32 v{vD1}, v{vD0}, v{vD0+1}")
        A(f"v_cvt_pk_bf16_f32 v{vD1+1}, v{vD0+2}, v{vD0+3}")
        A(f"ds_write_b64 v{vL2}, {p2(vD1)} offset:{L_OP}")
    else:
        A(f"ds_write_b128 v{vL2}, {q4(vD0)} offset:{L_OP}")
    A("s_waitcnt lgkmcnt(0)")
    A("s_barrier")
    if stamps:
        A("s_mov_b64 exec, -1")
        stamp_it(32)
        stamp(6)
        stamp_flush()
    A("s_endpgm")

    XR = SL + 64
    XF = SL + 80
    XE = vBQ
    XD = SL + 128
    vTG = vBQ + 8
    A.c("---- helper waves ----"); A.lab("L_aux")
    if bare == 2:
        A("s_barrier"); A("s_barrier"); A("s_endpgm")
    A(f"s_sub_u32 s{sJ}, s{sWAVE}, 4")
    A(f"s_cmp_eq_u32 s{sJ}, 0")
    A("s_cbranch_scc1 L_qw")
    A(f"s_cmp_eq_u32 s{sJ}, 1")
    A("s_cbranch_scc1 L_fw")
    A(f"v_mov_b32 v{vT}, {L_CM}")
    A(f"v_mov_b32 v{vT+2}, 0")
    A(f"ds_write_b32 v{vT}, v{vT+2}")
    if pt:
        A(f"v_lshlrev_b32 v{vT+1}, 2, v{vLANE}")
        A(f"ds_write_b32 v{vT+1}, v{vT+2} offset:{L_ZR}")
    if fc:
        for i in range(3, 6): A(f"v_mov_b32 v{vT+i}, 0")
        for i in range(6, 10): A(f"v_mov_b32 v{vT+i}, {fc.get('nom', 1)}")
        A(f"ds_write_b128 v{vT}, {q4(vT+2)} offset:{L_PW-L_CM}")
        A(f"ds_write_b128 v{vT}, {q4(vT+6)} offset:{L_LV-L_CM}")
    A("s_waitcnt lgkmcnt(0)")
    srd(SC, sWS, W_SZ)
    if fc and fc.get("inl"):
        A(f"s_cmp_eq_u32 s{sJ}, 2")
        A("s_cbranch_scc0 L_nz0")
        A(f"s_and_b32 s{sCUR}, s2, 7")
        A(f"s_lshl_b32 s{sCUR}, s{sCUR}, 8")
        A(f"s_lshr_b32 s{sNXT}, s2, 3")
        A(f"s_lshl_b32 s{sNXT}, s{sNXT}, 2")
        A(f"s_add_u32 s{sNXT}, s{sNXT}, s{sCUR}")
        A(f"s_add_u32 s{sNXT}, s{sNXT}, {hex(W_PG)}")
        A("s_mov_b64 exec, 1")
        A(f"buffer_store_dword v{vT+2}, v{vOV}, {S4(SC)}, s{sNXT} offen")
        A("s_mov_b64 exec, -1")
        A.lab("L_nz0")
    if clr0:
        A(f"s_cmp_eq_u32 s{sJ}, 3")
        A("s_cbranch_scc0 L_bar1")
        for i in range(4):
            A(f"v_mov_b32 v{vBQ+i}, -1")
        A(f"s_lshl_b32 s{sT}, s2, 11")
        A(f"buffer_store_dwordx4 {q4(vBQ)}, v{vOV}, {S4(SC)}, s{sT} offen sc1")
        A(f"buffer_store_dwordx4 {q4(vBQ)}, v{vOV}, {S4(SC)}, s{sT} offen offset:1024 sc1")
        A(f"s_lshl_b32 s{sPO}, s{sB}, 5")
        A(f"s_add_u32 s{sPO}, s{sPO}, s{sH}")
        A(f"s_lshl_b32 s{sPO}, s{sPO}, 1")
        A(f"s_add_u32 s{sPO}, s{sPO}, s{sSP}")
        A(f"s_lshl_b32 s{sPO}, s{sPO}, 10")
        A(f"s_add_u32 s{sPO}, s{sPO}, {hex(W_Z)}")
        A(f"buffer_store_dwordx4 {q4(vBQ)}, v{vOV}, {S4(SC)}, s{sPO} offen sc1")
        A("s_waitcnt vmcnt(0)")
    A("s_branch L_bar1")
    A.c("---- wave 5: w1/w3 tile loads ----"); A.lab("L_fw")
    A(f"v_mul_u32_u24 v{vT}, {8*3584}, v{vG}")
    A(f"v_and_b32 v{vT+1}, 7, v{vR}")
    A(f"v_lshl_add_u32 v{vOA}, v{vT+1}, 4, v{vT}")
    A(f"s_mul_i32 s{sBASE}, s{sMU}, {64*3584}")
    A(f"s_lshl_b32 s{sT}, s{sH}, 7")
    A(f"s_add_u32 s{sBASE}, s{sBASE}, s{sT}")
    A(f"s_mov_b32 s{sM0}, 0x00ff00ff")
    A(f"s_mov_b32 s{sM0+1}, 0x00ff00ff")
    A("s_waitcnt lgkmcnt(0)")
    srd(SC, sWS, W_SZ)
    A(f"s_cmp_lt_u32 s{sH}, {NFFN}")
    A("s_cbranch_scc0 L_bar1")
    srd(SA, sW1, 512 * 1792 * 2)
    srd(SN, sW3, 512 * 1792 * 2)
    if fdelay: A(f"s_sleep {fdelay}")
    for half, sr in ((0, SA), (1, SN)):
        A(f"s_mov_b64 exec, s[{sM0}:{sM0+1}]" if half == 0 else f"s_not_b64 exec, s[{sM0}:{sM0+1}]")
        for k in range(16):
            A(f"s_add_u32 s{sT}, s{sBASE}, {hex(((k>>3)*32 + (k&7))*3584)}")
            A(f"buffer_load_dwordx4 {slot(k)}, v{vOA}, {S4(sr)}, s{sT} offen {polf}")
    A("s_mov_b64 exec, -1")
    A("s_branch L_bar1")
    A.c("---- wave 4: layernorm, q partials, exchange ----"); A.lab("L_qw")
    if qprio: A(f"s_setprio {qprio}")
    A(f"v_lshrrev_b32 v{vT}, 2, v{vR}")
    A(f"v_lshlrev_b32 v{vT}, 10, v{vT}")
    A(f"v_and_b32 v{vT+1}, 3, v{vR}")
    A(f"v_lshlrev_b32 v{vT+1}, 6, v{vT+1}")
    A(f"v_lshlrev_b32 v{vT+2}, 8, v{vG}")
    A(f"v_add3_u32 v{vON}, v{vT}, v{vT+1}, v{vT+2}")
    A(f"v_lshl_add_u32 v{vL1}, v{vG}, 4, v{vT}")
    A(f"v_lshlrev_b32 v{vT}, 16, v{vG}")
    A(f"v_lshl_add_u32 v{vOA}, v{vR}, 4, v{vT}")
    A(f"v_mov_b32 v{vL2}, 0")
    A(f"s_lshl_b32 s{sT2}, s{sMU}, 7")
    A(f"s_lshl_b32 s{sBASE}, s{sMU}, 19")
    A(f"s_lshl_b32 s{sT}, s{sH}, 8")
    A(f"s_add_u32 s{sBASE}, s{sBASE}, s{sT}")
    A(f"s_lshl_b32 s{sT3}, s{sH}, 7")
    A(f"s_add_u32 s{sT3}, s{sT3}, {hex(W_EH)}")
    A("s_waitcnt lgkmcnt(0)")
    srd(SA, sX, 4096)
    for i in range(4):
        A(f"buffer_load_dwordx4 {q4(XR+4*i)}, v{vON}, {S4(SA)}, 0 offen offset:{16*i}")
    for s_ in range(2):
        A(f"buffer_load_dwordx4 {q4(XE+4*s_)}, v{vL1}, {S4(SA)}, s{sT2} offen offset:{64*s_}")
    srd(SN, sWQ, 0x400000)
    for k in range(16):
        A(f"s_add_u32 s{sT}, s{sBASE}, {hex(((k>>3)*32 + (k&7))*8192)}")
        A(f"buffer_load_dwordx4 {slot(k)}, v{vOA}, {S4(SN)}, s{sT} offen {polq}")
    srd(SC, sWS, W_SZ)
    A(f"buffer_load_dwordx2 {p2(vTG)}, v{vL2}, {S4(SC)}, s{sT3} offen sc1")
    stamp(0)
    def red16(reg, tmp):
        for qp in ("[1,0,3,2]", "[2,3,0,1]"):
            A("s_nop 1")
            A(f"v_add_f32_dpp v{reg}, v{reg}, v{reg} quad_perm:{qp} row_mask:0xf bank_mask:0xf")
        swaps("v_add_f32", reg, tmp)
    A("s_waitcnt vmcnt(19)")
    for i in range(16):
        A(f"v_lshlrev_b32 v{XF+2*i}, 16, v{XR+i}")
        A(f"v_and_b32 v{XF+2*i+1}, 0xffff0000, v{XR+i}")
    for i in range(8):
        A(f"v_pk_add_f32 {p2(XR+2*i)}, {p2(XF+4*i)}, {p2(XF+4*i+2)}")
    for st in (4, 2, 1):
        for i in range(st):
            A(f"v_pk_add_f32 {p2(XR+2*i)}, {p2(XR+2*i)}, {p2(XR+2*(i+st))}")
    A(f"v_add_f32 v{vT}, v{XR}, v{XR+1}")
    red16(vT, vT + 1)
    A(f"v_mul_f32 v{vT}, 0x3b000000, v{vT}")
    A(f"v_mov_b32 v{vT+1}, v{vT}")
    for i in range(16):
        A(f"v_pk_add_f32 {p2(XF+2*i)}, {p2(XF+2*i)}, {p2(vT)} neg_lo:[0,1] neg_hi:[0,1]")
    for c_ in range(2):
        A(f"v_pk_mul_f32 {p2(XR+2*c_)}, {p2(XF+2*c_)}, {p2(XF+2*c_)}")
    for i in range(2, 16):
        c_ = i & 1
        A(f"v_pk_fma_f32 {p2(XR+2*c_)}, {p2(XF+2*i)}, {p2(XF+2*i)}, {p2(XR+2*c_)}")
    A(f"v_pk_add_f32 {p2(XR)}, {p2(XR)}, {p2(XR+2)}")
    A(f"v_add_f32 v{vT+2}, v{XR}, v{XR+1}")
    red16(vT + 2, vT + 1)
    A(f"v_mul_f32 v{vT+2}, 0x3b000000, v{vT+2}")
    rne(vT, vT + 1)
    rne(vT + 2, vT + 1)
    A(f"v_add_f32 v{vT+2}, 0x3727c5ac, v{vT+2}")
    rne(vT + 2, vT + 1)
    A(f"v_sqrt_f32 v{vT+2}, v{vT+2}")
    A("s_nop 0")
    rne(vT + 2, vT + 1)
    A(f"v_rcp_f32 v{vT+2}, v{vT+2}")
    A("s_waitcnt vmcnt(17)")
    for i in range(8):
        A(f"v_lshlrev_b32 v{XF+2*i}, 16, v{XE+i}")
        A(f"v_and_b32 v{XF+2*i+1}, 0xffff0000, v{XE+i}")
    for i in range(16):
        A(f"v_sub_f32 v{XF+i}, v{XF+i}, v{vT}")
    for i in range(8):
        A(f"v_cvt_pk_bf16_f32 v{XE+i}, v{XF+2*i}, v{XF+2*i+1}")
    for i in range(8):
        A(f"v_lshlrev_b32 v{XF+2*i}, 16, v{XE+i}")
        A(f"v_and_b32 v{XF+2*i+1}, 0xffff0000, v{XE+i}")
    for i in range(16):
        A(f"v_mul_f32 v{XF+i}, v{XF+i}, v{vT+2}")
    for i in range(8):
        A(f"v_cvt_pk_bf16_f32 v{XE+i}, v{XF+2*i}, v{XF+2*i+1}")
    stamp(1)
    def bperm(dst, s_, jj):
        for m in range(4):
            lo = SL + 4 * (8 * s_ + 2 * m) + (jj >> 1)
            hi = SL + 4 * (8 * s_ + 2 * m + 1) + (jj >> 1)
            A(f"v_perm_b32 v{dst+m}, v{hi}, v{lo}, s{sM0 + (jj & 1)}")
    def tile_mma(w0, w1):
        A(f"s_mov_b32 s{sM0}, 0x05040100")
        A(f"s_mov_b32 s{sM0+1}, 0x07060302")
        A(w0)
        bperm(vA0, 0, 0)
        for n in range(16):
            s_, jj = n >> 3, n & 7
            cur = vA0 if (n & 1) == 0 else vA1
            nxt = vA1 if (n & 1) == 0 else vA0
            if n == 7 and w1: A(w1)
            if n + 1 < 16: bperm(nxt, (n + 1) >> 3, (n + 1) & 7)
            else: A("s_nop 1")
            A(f"v_mfma_f32_16x16x32_bf16 {q4(XD+4*jj)}, {q4(XE+4*s_)}, {q4(cur)}, {'0' if s_==0 else q4(XD+4*jj)}")
    def msg_addr(wbase):
        A(f"v_lshlrev_b32 v{vON}, 13, v{vG}")
        A(f"v_lshl_add_u32 v{vON}, v{vR}, 4, v{vON}")
        A(f"s_lshl_b32 s{sCUR}, s{sH}, 15")
        A(f"s_add_u32 s{sCUR}, s{sCUR}, {hex(wbase)}")
        A(f"s_lshl_b32 s{sT}, s{sMU}, 10")
        A(f"s_add_u32 s{sT}, s{sT}, s{sCUR}")
    thi = [vTG + 1]
    def msg_pack_store(pol):
        for n in range(2 if halfmsg else 4):
            A(f"v_mov_b32 v{XD+8*n+1}, v{XD+8*n+4}")
            A(f"v_mov_b32 v{XD+8*n+2}, v{vTG}")
            A(f"v_mov_b32 v{XD+8*n+3}, v{thi[0]}")
            if pol is not None: A(f"buffer_store_dwordx4 {q4(XD+8*n)}, v{vON}, {S4(SC)}, s{sT} offen offset:{256*n} {pol}")
    def msg_round(sl0, pc=0, pol="sc1"):
        if halfmsg: A("s_mov_b32 exec_hi, 0")
        for n in range(8):
            if pc and n >= pc: A(f"s_waitcnt vmcnt({pc-1})")
            A(f"buffer_load_dwordx4 {slot(sl0+n)}, v{vOV}, {S4(SC)}, s{sCUR if n<4 else sNXT} offen offset:{1024*(n&3)} {pol}")
        A(f"s_add_u32 s{sSPIN}, s{sSPIN}, 1")
        A(f"v_mov_b32 v{vT}, 0")
        for n in range(8):
            A(f"s_waitcnt vmcnt({7-n})")
            A(f"v_xor_b32 v{vT+1}, v{SL+4*(sl0+n)+2}, v{vTG}")
            A(f"v_xor_b32 v{vT+2}, v{SL+4*(sl0+n)+3}, v{thi[0]}")
            A(f"v_or3_b32 v{vT}, v{vT}, v{vT+1}, v{vT+2}")
        A(f"v_cmp_ne_u32 vcc, 0, v{vT}")
        A("s_nop 1")
        if halfmsg: A("s_mov_b64 exec, -1")
        A("s_cmp_eq_u64 vcc, 0")
    def msg_sum(sl0):
        for st in (4, 2, 1):
            for n in range(st):
                A(f"v_pk_add_f32 {p2(SL+4*(sl0+n))}, {p2(SL+4*(sl0+n))}, {p2(SL+4*(sl0+n+st))}")
    tile_mma("s_waitcnt vmcnt(9)", "s_waitcnt vmcnt(1)")
    A("s_waitcnt vmcnt(0)")
    tag_from_epoch(vTG, vT)
    vCK = vTG + 2
    if colo:
        A(f"s_getreg_b32 s{sIT}, hwreg(HW_REG_XCC_ID)")
        A(f"s_and_b32 s{sIT}, s{sIT}, 15")
        A(f"s_add_u32 s{sIT}, s{sIT}, 1")
        A(f"s_lshl_b32 s{sIT}, s{sIT}, 20")
        A(f"v_xor_b32 v{vCK}, s{sIT}, v{vTG+1}")
        thi[0] = vCK
    msg_addr(W_QA)
    A(f"s_add_u32 s{sBASE}, s{sT}, {hex(W_QB-W_QA)}")
    A("s_nop 2")
    if noq == 1: A("s_branch L_qnl")
    msg_pack_store("sc1" if qonlyB else "")
    def storeB():
        for n in range(2 if halfmsg else 4):
            A(f"buffer_store_dwordx4 {q4(XD+8*n)}, v{vON}, {S4(SC)}, s{sBASE} offen offset:{256*n} sc1")
    stamp(2)
    A(f"ds_write_b128 v{vOV}, {q4(XE)} offset:{L_XE}")
    A(f"ds_write_b128 v{vOV}, {q4(XE+4)} offset:{L_XE+1024}")
    A(f"ds_write_b64 v{vL2}, {p2(vTG)} offset:{L_TG}")
    A(f"s_lshl_b32 s{sT}, s{sB}, 13")
    A(f"s_add_u32 s{sCUR}, s{sCUR}, s{sT}")
    A(f"s_add_u32 s{sNXT}, s{sCUR}, 4096")
    A(f"s_mov_b32 s{sSPIN}, 0")
    if qack: A("s_waitcnt vmcnt(0)")
    if qpre: A(f"s_sleep {qpre}")
    if qlite:
        A(f"v_lshlrev_b32 v{vT+3}, 10, v{vLANE}")
        A(f"v_add_u32 v{vT+3}, {496 if halfmsg else 1008}, v{vT+3}")
        A("s_mov_b64 exec, 0xff")
        A.lab("L_ql")
        A(f"buffer_load_dwordx4 {slot(0)}, v{vT+3}, {S4(SC)}, s{sCUR} offen sc1")
        A(f"s_add_u32 s{sSPIN}, s{sSPIN}, 1")
        A("s_waitcnt vmcnt(0)")
        A(f"v_xor_b32 v{vT+1}, v{SL+2}, v{vTG}")
        A(f"v_xor_b32 v{vT+2}, v{SL+3}, v{thi[0]}")
        A(f"v_or_b32 v{vT}, v{vT+1}, v{vT+2}")
        A(f"v_cmp_ne_u32 vcc, 0, v{vT}")
        A("s_nop 1")
        A("s_cmp_eq_u64 vcc, 0")
        A("s_cbranch_scc1 L_ql_ok")
        A(f"s_cmp_lt_u32 s{sSPIN}, {NA-1}")
        A("s_cbranch_scc1 L_ql")
        A.lab("L_ql_ok")
        A("s_mov_b64 exec, -1")
    A.lab("L_qp")
    msg_round(0)
    A("s_cbranch_scc1 L_qp_ok")
    if colo:
        A(f"s_cmp_lt_u32 s{sSPIN}, {NA}")
        A("s_cbranch_scc1 L_qp")
        A(f"s_cmp_eq_u32 s{sSPIN}, {NA}")
        A("s_cbranch_scc0 L_qp_c")
        for n in range(4):
            A(f"v_mov_b32 v{XD+8*n+3}, v{vTG+1}")
        storeB()
        A.lab("L_qp_c")
        A(f"s_xor_b32 s{sCUR}, s{sCUR}, {hex(W_QA ^ W_QB)}")
        A(f"s_xor_b32 s{sNXT}, s{sNXT}, {hex(W_QA ^ W_QB)}")
        A(f"v_xor_b32 v{vCK}, s{sIT}, v{vCK}")
    elif not qonlyB:
        A(f"s_cmp_eq_u32 s{sSPIN}, {NA}")
        A("s_cbranch_scc0 L_qp_c")
        storeB()
        A(f"s_add_u32 s{sCUR}, s{sCUR}, {hex(W_QB-W_QA)}")
        A(f"s_add_u32 s{sNXT}, s{sNXT}, {hex(W_QB-W_QA)}")
        A.lab("L_qp_c")
    A(f"s_cmp_lt_u32 s{sSPIN}, {SPINMAX}")
    A("s_cbranch_scc1 L_qp")
    A.lab("L_qp_ok")
    stamp(6)
    if stamps: A(f"v_writelane_b32 v{vST}, s{sSPIN}, 60")
    msg_sum(0)
    A(f"v_cvt_pk_bf16_f32 v{vT}, v{SL}, v{SL+1}")
    A(f"v_lshlrev_b32 v{vT+1}, 2, v{vG}")
    A(f"v_lshl_add_u32 v{vT+1}, v{vR}, 4, v{vT+1}")
    A(f"ds_write_b32 v{vT+1}, v{vT} offset:{L_Q}")
    if colo:
        thi[0] = vTG + 1
        A(f"s_bfe_u32 s{sT}, s{sCUR}, {(1<<16)|20}")
        A(f"v_mov_b32 v{vT+2}, s{sT}")
        A(f"ds_write_b32 v{vL2}, v{vT+2} offset:{L_TG+8}")
    if noq == 2: A("s_branch L_qnl")
    if mergeB:
        A("s_waitcnt lgkmcnt(0)")
        A("s_barrier")
    if not qonlyB and 'b' not in est and not colo: storeB()
    A(f"s_cmp_eq_u32 s{sMU}, 0")
    A("s_cbranch_scc0 L_qnl")
    A(f"v_lshlrev_b32 v{vT}, 3, v{vLANE}")
    A("s_mov_b64 exec, 0xffff")
    A(f"buffer_store_dwordx2 {p2(vTG)}, v{vT}, {S4(SC)}, s{sT3} offen {'' if eplain else 'sc1'}")
    A("s_mov_b64 exec, -1")
    A.lab("L_qnl")
    A("s_waitcnt lgkmcnt(0)")
    if qprio: A("s_setprio 0")
    if mergeB: A("s_branch L_ab1")
    A.lab("L_bar1")
    A("s_barrier")
    A.lab("L_ab1")
    stamp(3)
    cut(1)
    build_masks()
    A(f"v_mov_b32 v{vL2}, 0")
    A(f"v_lshlrev_b32 v{vT}, 5, v{vR}")
    A(f"v_lshl_add_u32 v{vL0}, v{vG}, 4, v{vT}")
    A(f"s_lshl_b32 s{sPO}, s{sB}, 5")
    A(f"s_add_u32 s{sPO}, s{sPO}, s{sH}")
    A(f"s_lshl_b32 s{sPO}, s{sPO}, 1")
    A(f"s_add_u32 s{sPO}, s{sPO}, s{sSP}")
    A(f"s_lshl_b32 s{sPO}, s{sPO}, 10")
    A(f"s_add_u32 s{sPO}, s{sPO}, {hex(W_Z)}")
    vTB = vBQ + 10
    vPO = SL + 128
    vGt = vPO + 8
    vXr = vPO + 12
    if fc and not fc.get('inl'):
        A(f"s_cmp_eq_u32 s{sJ}, 2")
        A("s_cbranch_scc0 L_nz")
        A(f"s_and_b32 s{sCUR}, s2, 7")
        A(f"s_lshl_b32 s{sCUR}, s{sCUR}, 8")
        A(f"s_add_u32 s{sCUR}, s{sCUR}, {hex(W_PG)}")
        A(f"s_lshr_b32 s{sNXT}, s2, 3")
        A(f"s_lshl_b32 s{sNXT}, s{sNXT}, 2")
        A(f"s_add_u32 s{sNXT}, s{sNXT}, s{sCUR}")
        A(f"v_mov_b32 v{vT}, 0x40000000")
        A("s_mov_b64 exec, 1")
        A(f"buffer_store_dword v{vT}, v{vL2}, {S4(SC)}, s{sNXT} offen")
        A(f"buffer_store_dword v{vT}, v{vL2}, {S4(SC)}, s{sCUR} offen offset:128")
        if fc.get("glob", True):
            A("s_cmp_lt_u32 s2, 8")
            A("s_cbranch_scc0 L_nz2")
            A(f"s_add_u32 s{sT}, s{sCUR}, 0x1000")
            A(f"buffer_store_dword v{vT}, v{vL2}, {S4(SC)}, s{sT} offen sc1")
            A.lab("L_nz2")
        A("s_mov_b64 exec, -1")
        A.lab("L_nz")
    A(f"s_cmp_eq_u32 s{sJ}, 1")
    A("s_cbranch_scc1 L_f1")
    A(f"s_cmp_eq_u32 s{sJ}, 3")
    A("s_cbranch_scc0 L_wo")
    if 'c' in skip: A("s_branch L_wo")
    if not clr0 and not kev:
        for i in range(4):
            A(f"v_mov_b32 v{vBQ+i}, -1")
        A(f"s_lshl_b32 s{sT}, s2, 11")
        A(f"buffer_store_dwordx4 {q4(vBQ)}, v{vOV}, {S4(SC)}, s{sT} offen sc1")
        A(f"buffer_store_dwordx4 {q4(vBQ)}, v{vOV}, {S4(SC)}, s{sT} offen offset:1024 sc1")
    A(f"s_lshl_b32 s{sT}, s{sB}, 7")
    A(f"s_add_u32 s{sT}, s{sT}, {hex(W_EB)}")
    A(f"buffer_load_dwordx2 {p2(vTB)}, v{vL2}, {S4(SC)}, s{sT} offen sc1")
    A("s_branch L_wo")
    A.c("---- wave 5: FFN stage 1 partials ----"); A.lab("L_f1")
    if 'f' in skip: A("s_branch L_f1x")
    A(f"s_cmp_lt_u32 s{sH}, {NFFN}")
    A("s_cbranch_scc0 L_f1x")
    A(f"ds_read_b128 {q4(XE)}, v{vOV} offset:{L_XE}")
    A(f"ds_read_b128 {q4(XE+4)}, v{vOV} offset:{L_XE+1024}")
    A(f"ds_read_b64 {p2(vTG)}, v{vL2} offset:{L_TG}")
    sCO = 35
    if colo: A(f"ds_read_b32 v{vCK}, v{vL2} offset:{L_TG+8}")
    zc = not (clr0 or kev)
    if zc:
        for i in range(4):
            A(f"v_mov_b32 v{vD0+i}, -1")
        A(f"buffer_store_dwordx4 {q4(vD0)}, v{vOV}, {S4(SC)}, s{sPO} offen sc1")
    tile_mma(f"s_waitcnt vmcnt({1 if zc else 0}) lgkmcnt(0)", None)
    msg_addr(W_FP)
    A("s_nop 4")
    if colo:
        A(f"v_readfirstlane_b32 s{sCO}, v{vCK}")
        msg_pack_store(None)
        A(f"s_cmp_eq_u32 s{sCO}, 1")
        A("s_cbranch_scc1 L_f1p")
        for n in range(4):
            A(f"buffer_store_dwordx4 {q4(XD+8*n)}, v{vON}, {S4(SC)}, s{sT} offen offset:{256*n} sc1")
        A("s_branch L_f1q")
        A.lab("L_f1p")
        for n in range(4):
            A(f"buffer_store_dwordx4 {q4(XD+8*n)}, v{vON}, {S4(SC)}, s{sT} offen offset:{256*n}")
        A.lab("L_f1q")
    elif fdual:
        A(f"s_add_u32 s{sBASE}, s{sT}, {hex(W_FB-W_FP)}")
        msg_pack_store("")
        storeB()
    else:
        msg_pack_store("" if 'f' in est else "sc1")
    A("s_waitcnt vmcnt(0)")
    def zdone():
        A(f"v_mov_b32 v{vT}, {L_CM}")
        A(f"v_mov_b32 v{vT+1}, 256")
        A("s_mov_b64 exec, 1")
        A(f"ds_add_u32 v{vT}, v{vT+1}")
        A("s_mov_b64 exec, -1")
    if kev: A("s_branch L_wo")
    A.lab("L_f1x")
    zdone()
    A.c("---- wo slice -> registers ----"); A.lab("L_wo")
    stamp(4)
    cut(3)
    wooff = (lambda k: ((k >> 3) * 32 + (k & 7)) * 1024) if pt else (lambda k: k * 4096)
    def wo_setup():
        srd(SN, sWO, 0x400000)
        A(f"v_lshlrev_b32 v{vT}, {13 if pt else 10}, v{vG}")
        A(f"v_lshl_add_u32 v{vOA}, v{vR}, 4, v{vT}")
        A(f"s_lshl_b32 s{sBASE}, s{sH}, 17")
        A(f"s_lshl_b32 s{sT}, s{sJ}, 8")
        A(f"s_add_u32 s{sBASE}, s{sBASE}, s{sT}")
    wo_setup()
    if 'w' in skip: A("s_branch L_woe")
    def wo_loads(dd, hook=False):
        for k in range(32):
            if hook and k == fearly:
                A(f"s_cmp_eq_u32 s{sJ}, 1")
                A("s_cbranch_scc0 L_woc")
                A(f"s_cmp_lt_u32 s{sH}, {NFFN}")
                A("s_cbranch_scc1 L_st2")
                A.lab("L_wor")
                wo_setup()
                A.lab("L_woc")
            if k >= dd: A(f"s_waitcnt vmcnt({dd-1})")
            A(f"s_add_u32 s{sT}, s{sBASE}, {hex(wooff(k))}")
            A(f"buffer_load_dwordx4 {slot(k)}, v{vOA}, {S4(SN)}, s{sT} offen {pola}")
    if fc and fc.get("inl"):
        A(f"s_cmp_eq_u32 s{sJ}, 2")
        A("s_cbranch_scc1 L_woe")
    elif fc and fc.get("d2"):
        A(f"s_lshr_b32 s{sT}, s2, 3")
        A(f"s_or_b32 s{sT}, s{sT}, s{sJ}")
        A(f"s_cselect_b32 s{sT}, s{sJ}, {2 if fc.get('glob', True) else 0}")
        A(f"s_cmp_eq_u32 s{sT}, 2")
        A("s_cbranch_scc0 L_wos")
        wo_loads(fc["d2"])
        A("s_branch L_woe")
        A.lab("L_wos")
    wo_loads(da, bool(fearly))
    A.lab("L_woe")
    A("s_waitcnt vmcnt(0)")
    stamp(5)
    cut(4)
    A(f"v_lshrrev_b32 v{vT}, 3, v{vLANE}")
    A(f"v_lshlrev_b32 v{vT}, 11, v{vT}")
    A(f"v_and_b32 v{vT+1}, 7, v{vLANE}")
    A(f"v_lshl_add_u32 v{vPO}, v{vT+1}, 4, v{vT}")
    for n in range(1, 8):
        A(f"v_add_u32 v{vPO+n}, {hex(n*16384)}, v{vPO}")
    A(f"v_lshlrev_b32 v{vL1}, 3, v{vT+1}")

    def gemv(n, ppf, waitf, issuef=None, slotf=lambda k: k):
        diag(vA0, *ppf(0))
        for k in range(n):
            Acur = vA0 if (k & 1) == 0 else vA1
            Anxt = vA1 if (k & 1) == 0 else vA0
            if k + 1 < n: diag(Anxt, *ppf(k + 1))
            else: A("s_nop 1")
            waitf(k)
            A(f"v_mfma_f32_16x16x32_bf16 {q4(vD0)}, {q4(Acur)}, {slot(slotf(k))}, {'0' if k==0 else q4(vD0)}")
            if issuef: issuef(k)
        A("s_nop 7")
    def lds_wait(mask, val):
        lab = A.uid("lw")
        A(f"v_mov_b32 v{vT}, {L_CM}")
        A(f"s_mov_b32 s{sSPIN}, 0")
        A.lab(lab)
        A(f"ds_read_b32 v{vT+1}, v{vT}")
        A("s_waitcnt lgkmcnt(0)")
        A(f"v_readfirstlane_b32 s{sT}, v{vT+1}")
        A(f"s_add_u32 s{sSPIN}, s{sSPIN}, 1")
        A(f"s_and_b32 s{sT}, s{sT}, {hex(mask)}")
        A(f"s_cmp_eq_u32 s{sT}, {hex(val)}")
        A(f"s_cbranch_scc1 {lab}_ok")
        A("s_sleep 16")
        A(f"s_cmp_lt_u32 s{sSPIN}, {SPINMAX}")
        A(f"s_cbranch_scc1 {lab}")
        A.lab(lab + "_ok")
    def poll(nload, regs, voffs, soff, sleep):
        lab = A.uid("pl")
        A(f"s_mov_b32 s{sSPIN}, 0")
        A.lab(lab)
        for n in range(nload):
            A(f"buffer_load_dwordx4 {q4(regs+4*n)}, v{voffs[n]}, {S4(SC)}, s{soff} offen sc1")
        A(f"s_add_u32 s{sSPIN}, s{sSPIN}, 1")
        for n in range(nload):
            A(f"s_waitcnt vmcnt({nload-1-n})")
            r = regs + 4 * n
            if n == 0:
                A(f"v_max3_u32 v{vT}, v{r}, v{r+1}, v{r+2}")
                A(f"v_max_u32 v{vT}, v{vT}, v{r+3}")
            else:
                A(f"v_max3_u32 v{vT}, v{vT}, v{r}, v{r+1}")
                A(f"v_max3_u32 v{vT}, v{vT}, v{r+2}, v{r+3}")
        A(f"v_cmp_eq_u32 vcc, -1, v{vT}")
        A("s_nop 1")
        A("s_cmp_eq_u64 vcc, 0")
        A(f"s_cbranch_scc1 {lab}_ok")
        if sleep: A(f"s_sleep {sleep}")
        A(f"s_cmp_lt_u32 s{sSPIN}, {SPINMAX}")
        A(f"s_cbranch_scc1 {lab}")
        A.lab(lab + "_ok")
    def reduce_rows(regs, nload):
        n = nload
        while n > 1:
            h = n // 2
            for a in range(h):
                for i in (0, 2):
                    A(f"v_pk_add_f32 {p2(regs+4*a+i)}, {p2(regs+4*a+i)}, {p2(regs+4*(a+h)+i)}")
            n = h
        A("s_nop 1")
        for i in range(4):
            A(f"v_add_f32_dpp v{regs+i}, v{regs+i}, v{regs+i} row_ror:8 row_mask:0xf bank_mask:0xf")
        for sw in ("v_permlane16_swap_b32", "v_permlane32_swap_b32"):
            for i in range(4):
                A(f"v_mov_b32 v{regs+4+i}, v{regs+i}")
            A("s_nop 1")
            for i in range(4):
                A(f"{sw} v{regs+i}, v{regs+4+i}")
            A("s_nop 1")
            for i in range(4):
                A(f"v_add_f32 v{regs+i}, v{regs+i}, v{regs+4+i}")

    A(f"s_cmp_eq_u32 s{sJ}, 3")
    A("s_cbranch_scc1 L_w3")
    if fc:
        U = fc.get("U", 8)
        PEND = int(4 * U * (16 - R // 16 + fc.get("vend", 13)))
        LIM = 2 * 4 * U * 3
        sPP, sGP, sP, sE = 72, 73, 74, 78
        A(f"s_cmp_eq_u32 s{sJ}, 2")
        A("s_cbranch_scc0 L_nctl")
        A(f"s_and_b32 s{sCUR}, s2, 7")
        A(f"s_lshl_b32 s{sCUR}, s{sCUR}, 8")
        A(f"s_add_u32 s{sCUR}, s{sCUR}, {hex(W_PG)}")
        A(f"s_lshr_b32 s{sNXT}, s2, 3")
        A(f"s_lshl_b32 s{sNXT}, s{sNXT}, 2")
        A(f"s_add_u32 s{sNXT}, s{sNXT}, s{sCUR}")
        A(f"v_lshlrev_b32 v{vON}, 2, v{vLANE}")
        A(f"v_mov_b32 v{vT7}, {L_PW}")
        A(f"v_and_b32 v{vPB}, 3, v{vLANE}")
        A(f"v_lshlrev_b32 v{vPB}, 2, v{vPB}")
        A(f"s_mov_b32 s{sPP}, -1")
        for th in fc["thr"]:
            if isinstance(th, tuple):
                A(f"s_getreg_b32 s{sT}, hwreg(HW_REG_XCC_ID)")
                A(f"s_mov_b32 s79, {int(th[0] * 64 * 4 * U / 2.2)}")
                A(f"s_bitcmp1_b32 s{sT}, 0")
                A(f"s_cselect_b32 s79, {int(th[1] * 64 * 4 * U / 2.2)}, s79")
        A(f"s_mov_b32 s{sGP}, 0")
        A(f"s_mov_b32 s{sSPIN}, 0")
        A.c("---- wave 6: stream balancing loop ----"); A.lab("L_ctl")
        if fc.get("inl"):
            npr = fc["inl"]; nst = 32 // npr
            A(f"s_cmp_ge_u32 s{sSPIN}, {nst}")
            A("s_cbranch_scc1 L_ctl_r")
            for r in range(1, nst):
                A(f"s_cmp_eq_u32 s{sSPIN}, {r}")
                A(f"s_cbranch_scc1 L_cw{r}")
            for r in range(nst):
                A.lab(f"L_cw{r}")
                for k in range(r * npr, (r + 1) * npr):
                    A(f"s_add_u32 s{sT}, s{sBASE}, {hex(wooff(k))}")
                    A(f"buffer_load_dwordx4 {slot(k)}, v{vOA}, {S4(SN)}, s{sT} offen {pola}")
                if r + 1 < nst: A("s_branch L_ctl_r")
            A.lab("L_ctl_r")
        A(f"ds_read_b128 {q4(vBQ)}, v{vT7}")
        A("s_waitcnt lgkmcnt(0)")
        A(f"v_add3_u32 v{vBQ}, v{vBQ}, v{vBQ+1}, v{vBQ+2}")
        A(f"v_add_u32 v{vBQ}, v{vBQ}, v{vBQ+3}")
        A("s_mov_b64 exec, 1")
        if not fc.get("lnost"): A(f"buffer_store_dword v{vBQ}, v{vL2}, {S4(SC)}, s{sNXT} offen {fc.get('spol','')}")
        A("s_mov_b64 exec, -1")
        if fc.get("half"): A("s_mov_b32 exec_hi, 0")
        if not fc.get("lnold"): A(f"buffer_load_dword v{vBQ+4}, v{vON}, {S4(SC)}, s{sCUR} offen {fc.get('pol','sc1')}")
        if fc.get("half"): A("s_mov_b64 exec, -1")
        A(f"v_readfirstlane_b32 s{sP}, v{vBQ}")
        A(f"s_add_u32 s{sSPIN}, s{sSPIN}, 1")
        A(f"s_cmp_eq_u32 s{sPP}, -1")
        A(f"s_cselect_b32 s{sPP}, s{sP}, s{sPP}")
        A(f"s_add_u32 s{sT}, s{sP}, s{sPP}")
        A(f"s_mov_b32 s{sPP}, s{sP}")
        A("s_waitcnt vmcnt(0)")
        A(f"v_lshlrev_b32 v{vBQ+5}, 1, v{vBQ+4}")
        A(f"v_subrev_u32 v{vBQ+5}, s{sT}, v{vBQ+5}")
        A(f"v_add_u32 v{vBQ+6}, {LIM}, v{vBQ+5}")
        A(f"v_cmp_gt_u32 vcc, {2*LIM}, v{vBQ+6}")
        A("s_nop 1")
        A("s_mov_b32 vcc_hi, 0")
        A("s_nop 1")
        A(f"v_cndmask_b32 v{vBQ+5}, 0, v{vBQ+5}, vcc")
        A(f"v_readlane_b32 s{sE}, v{vBQ+4}, 32")
        for n in (8, 4, 2, 1):
            A("s_nop 1")
            A(f"v_add_u32_dpp v{vBQ+5}, v{vBQ+5}, v{vBQ+5} row_ror:{n} row_mask:0xf bank_mask:0xf")
        A("s_nop 0")
        A(f"v_readlane_b32 s{sM0}, v{vBQ+5}, 0")
        A(f"v_readlane_b32 s{sM0+1}, v{vBQ+5}, 16")
        A(f"s_add_u32 s{sT2}, s{sE}, {32*LIM}")
        A(f"s_cmp_lt_u32 s{sT2}, {64*LIM}")
        A(f"s_cselect_b32 s{sE}, s{sE}, 0")
        if not fc.get("glob", True): A(f"s_mov_b32 s{sE}, 0")
        if fc.get("clamp"):
            cl = int(fc["clamp"] * 64 * 4 * U / 2.2)
            A(f"s_min_i32 s{sE}, s{sE}, {cl}")
            A(f"s_max_i32 s{sE}, s{sE}, {-cl if not fc.get('oneside') else 0}")
        A(f"s_add_u32 s{sM0}, s{sM0}, s{sM0+1}")
        A(f"s_sub_u32 s{sE}, s{sM0}, s{sE}")
        A(f"ds_read_b128 {q4(vBQ+8)}, v{vT7}")
        A(f"ds_read_b32 v{vBQ+6}, v{vPB} offset:{L_PW}")
        A("s_waitcnt lgkmcnt(0)")
        A(f"v_add3_u32 v{vBQ+8}, v{vBQ+8}, v{vBQ+9}, v{vBQ+10}")
        A(f"v_lshlrev_b32 v{vBQ+6}, 2, v{vBQ+6}")
        A(f"v_add_u32 v{vBQ+8}, v{vBQ+8}, v{vBQ+11}")
        A(f"v_sub_u32 v{vBQ+6}, v{vBQ+8}, v{vBQ+6}")
        A(f"v_mul_i32_i24 v{vBQ+6}, {fc.get('wgain', 64)}, v{vBQ+6}")
        A(f"v_add_u32 v{vBQ+6}, s{sE}, v{vBQ+6}")
        A(f"v_mov_b32 v{vBQ+7}, 0")
        for ti, th in enumerate(fc["thr"]):
            if isinstance(th, tuple): A(f"v_cmp_le_i32 vcc, s79, v{vBQ+6}")
            else: A(f"v_cmp_le_i32 vcc, {int(th * 64 * 4 * U / 2.2)}, v{vBQ+6}")
            A("s_nop 1")
            A(f"v_addc_co_u32 v{vBQ+7}, vcc, 0, v{vBQ+7}, vcc")
        A(f"ds_write_b32 v{vPB}, v{vBQ+7} offset:{L_LV}")
        if fc.get("sleep", 0): A(f"s_sleep {fc['sleep']}")
        A(f"s_cmp_ge_u32 s{sSPIN}, {SPINMAX}")
        A("s_cbranch_scc1 L_bar2")
        A(f"s_cmp_lt_u32 s{sP}, {PEND}")
        A("s_cbranch_scc1 L_ctl")
        if fc.get("inl"):
            A(f"s_cmp_lt_u32 s{sSPIN}, {32 // fc['inl']}")
            A("s_cbranch_scc1 L_ctl")
        if fc.get("fin") is not None:
            A(f"v_max_u32 v{vBQ+7}, {fc['fin']}, v{vBQ+7}")
            A(f"ds_write_b32 v{vPB}, v{vBQ+7} offset:{L_LV}")
        if stamps: A(f"v_writelane_b32 v{vST}, s{sSPIN}, 60")
        A("s_branch L_bar2")
        A.lab("L_nctl")
        if fc.get("glob", True):
            A(f"s_lshr_b32 s{sT}, s2, 3")
            A(f"s_or_b32 s{sT}, s{sT}, s{sJ}")
            A("s_cbranch_scc1 L_nrep")
            A(f"s_lshl_b32 s{sCUR}, s2, 8")
            A(f"s_add_u32 s{sCUR}, s{sCUR}, {hex(W_PG)}")
            A(f"v_lshlrev_b32 v{vON}, 2, v{vLANE}")
            A(f"s_mov_b32 s{sGP}, 0")
            A(f"s_mov_b32 s{sSPIN}, 0")
            A(f"s_mov_b32 s{sPP}, 0")
            A(f"v_lshlrev_b32 v{vOA}, 8, v{vLANE}")
            A(f"s_mov_b32 s{sNXT}, {hex(W_PG + 0x1000)}")
            A(f"s_add_u32 s{sBASE}, s{sCUR}, 0x1000")
            if stamps: A(f"v_mov_b32 v{vPG}, 0")
            A.lab("L_rep")
            A(f"s_add_u32 s{sPP}, s{sPP}, 1")
            A(f"s_cmp_ge_u32 s{sPP}, {SPINMAX}")
            A("s_cbranch_scc1 L_bar2")
            A(f"buffer_load_dword v{vBQ+4}, v{vON}, {S4(SC)}, s{sCUR} offen sc1")
            A("s_waitcnt vmcnt(0)")
            A(f"v_readlane_b32 s{sP}, v{vBQ+4}, 0")
            A("s_nop 1")
            A(f"s_cmp_ge_u32 s{sP}, 0x10000000")
            A("s_cbranch_scc1 L_rep")
            A(f"s_add_u32 s{sSPIN}, s{sSPIN}, 1")
            A(f"v_subrev_u32 v{vBQ+5}, s{sP}, v{vBQ+4}")
            A(f"v_add_u32 v{vBQ+6}, {LIM//2}, v{vBQ+5}")
            A(f"v_cmp_gt_u32 vcc, {LIM}, v{vBQ+6}")
            A("s_nop 1")
            A(f"v_cndmask_b32 v{vBQ+5}, 0, v{vBQ+5}, vcc")
            for n in (8, 4, 2, 1):
                A("s_nop 1")
                A(f"v_add_u32_dpp v{vBQ+5}, v{vBQ+5}, v{vBQ+5} row_ror:{n} row_mask:0xf bank_mask:0xf")
            A("s_nop 0")
            A(f"v_readlane_b32 s{sM0}, v{vBQ+5}, 0")
            A(f"v_readlane_b32 s{sM0+1}, v{vBQ+5}, 16")
            A(f"s_lshl_b32 s{sT}, s{sP}, 5")
            A(f"s_add_u32 s{sT}, s{sT}, s{sM0}")
            A(f"s_add_u32 s{sT}, s{sT}, s{sM0+1}")
            A(f"s_lshl_b32 s{sT}, s{sT}, 1")
            A(f"v_mov_b32 v{vBQ+6}, s{sT}")
            A("s_mov_b64 exec, 0xff")
            if not fc.get("gnold"): A(f"buffer_load_dword v{vBQ+8}, v{vOA}, {S4(SC)}, s{sNXT} offen sc1")
            A("s_mov_b32 exec_lo, -1")
            if not fc.get("gnost"): A(f"buffer_store_dword v{vBQ+6}, v{vON}, {S4(SC)}, s{sBASE} offen {fc.get('gpol','sc1')}")
            A("s_mov_b64 exec, -1")
            A(f"s_add_u32 s{sM1}, s{sT}, s{sGP}")
            A(f"s_lshr_b32 s{sM1}, s{sM1}, 1")
            A("s_waitcnt vmcnt(1)")
            A(f"v_sub_u32 v{vBQ+8}, s{sM1}, v{vBQ+8}")
            A(f"v_add_u32 v{vBQ+9}, {32*LIM}, v{vBQ+8}")
            A(f"v_cmp_gt_u32 vcc, {64*LIM}, v{vBQ+9}")
            A("s_nop 1")
            A(f"s_lshl_b32 s{sT2}, 1, s2")
            A(f"s_xor_b32 s{sT2}, s{sT2}, 0xff")
            A(f"s_and_b32 vcc_lo, vcc_lo, s{sT2}")
            A("s_nop 1")
            A(f"v_cndmask_b32 v{vBQ+8}, 0, v{vBQ+8}, vcc")
            for n in (4, 2, 1):
                A("s_nop 1")
                A(f"v_add_u32_dpp v{vBQ+8}, v{vBQ+8}, v{vBQ+8} row_ror:{n} row_mask:0xf bank_mask:0xf")
            A("s_nop 0")
            A(f"v_readlane_b32 s{sM1}, v{vBQ+8}, 7")
            A("s_nop 0")
            A(f"s_ashr_i32 s{sM1}, s{sM1}, 3")
            A(f"s_sub_i32 s{sM1}, s{sM1}, {int(fc.get('gbias', 0.0) * 64 * 4 * U / 2.2)}")
            A(f"s_cmp_le_u32 s{sSPIN}, 1")
            A(f"s_cselect_b32 s{sM1}, 0, s{sM1}")
            A(f"s_mov_b32 s{sGP}, s{sT}")
            A(f"v_mov_b32 v{vBQ+6}, s{sM1}")
            A("s_mov_b64 exec, 1")
            if not fc.get("nost"): A(f"buffer_store_dword v{vBQ+6}, v{vL2}, {S4(SC)}, s{sCUR} offen offset:128")
            A("s_mov_b64 exec, -1")
            if fc.get("gsleep"): A(f"s_sleep {fc['gsleep']}")
            if stamps:
                A(f"s_min_u32 m0, s{sSPIN}, 47")
                A(f"s_add_u32 m0, m0, 12")
                A("s_nop 0")
                A(f"v_writelane_b32 v{vPG}, s{sM1}, m0")
            A(f"s_cmp_ge_u32 s{sSPIN}, {SPINMAX}")
            A("s_cbranch_scc1 L_bar2")
            A(f"s_cmp_lt_u32 s{sP}, {PEND - 4*U}")
            A("s_cbranch_scc1 L_rep")
            if stamps:
                srd(SE, sWS, 0x700000)
                A(f"s_lshl_b32 s{sT}, s2, 8")
                A(f"s_add_u32 s{sT}, s{sT}, 0x600000")
                A(f"buffer_store_dword v{vPG}, v{vON}, {S4(SE)}, s{sT} offen")
            A("s_branch L_bar2")
            A.lab("L_nrep")
    A(f"s_cmp_eq_u32 s{sJ}, 1")
    A("s_cbranch_scc0 L_bar2")
    A(f"s_cmp_lt_u32 s{sH}, {NFFN}")
    A("s_cbranch_scc0 L_bar2")
    if fearly or 's' in skip: A("s_branch L_bar2")
    A.c("---- wave 5: FFN stage 2 ----"); A.lab("L_st2")
    A(f"s_lshl_b32 s{sCUR}, s{sH}, 15")
    A(f"s_lshl_b32 s{sT}, s{sB}, 13")
    A(f"s_add_u32 s{sCUR}, s{sCUR}, s{sT}")
    A(f"s_add_u32 s{sCUR}, s{sCUR}, {hex(W_FP)}")
    A(f"s_add_u32 s{sNXT}, s{sCUR}, 4096")
    A(f"s_mov_b32 s{sSPIN}, 0")
    if galign:
        lds_wait(0xf, 0x4)
        A(f"s_mov_b32 s{sSPIN}, 0")
    if fstag:
        U_ = fc.get("U", 8)
        A(f"s_lshr_b32 s{sT2}, s2, 3")
        A(f"s_mul_i32 s{sT2}, s{sT2}, {fstag[1]}")
        A(f"s_add_u32 s{sT2}, s{sT2}, {fstag[0]}")
        A(f"v_mov_b32 v{vT}, {L_PW}")
        A.lab("L_fs")
        A(f"ds_read_b32 v{vT+1}, v{vT}")
        A("s_waitcnt lgkmcnt(0)")
        A(f"v_readfirstlane_b32 s{sT}, v{vT+1}")
        A(f"s_add_u32 s{sSPIN}, s{sSPIN}, 1")
        A(f"s_cmp_ge_u32 s{sT}, s{sT2}")
        A("s_cbranch_scc1 L_fs_ok")
        A("s_sleep 8")
        A(f"s_cmp_lt_u32 s{sSPIN}, {SPINMAX}")
        A("s_cbranch_scc1 L_fs")
        A.lab("L_fs_ok")
        A(f"s_mov_b32 s{sSPIN}, 0")
    if 'g' in skip: A("s_branch L_fp_ok")
    if colo:
        A(f"s_cmp_eq_u32 s{sCO}, 1")
        A("s_cbranch_scc0 L_fp")
        msg_round(40, gpace, "nt")
        A("s_cbranch_scc1 L_fp_ok")
    if fdual:
        A.lab("L_fa")
        msg_round(40, gpace, polGA)
        A("s_cbranch_scc1 L_fp_ok")
        A("s_sleep 16")
        A(f"s_cmp_lt_u32 s{sSPIN}, 4")
        A("s_cbranch_scc1 L_fa")
        A(f"s_add_u32 s{sCUR}, s{sCUR}, {hex(W_FB-W_FP)}")
        A(f"s_add_u32 s{sNXT}, s{sNXT}, {hex(W_FB-W_FP)}")
    A.lab("L_fp")
    msg_round(40, gpace, "nt" if 'n' in est else "sc1")
    A("s_cbranch_scc1 L_fp_ok")
    A("s_sleep 16")
    A(f"s_cmp_lt_u32 s{sSPIN}, {SPINMAX}")
    A("s_cbranch_scc1 L_fp")
    A.lab("L_fp_ok")
    msg_sum(40)
    H = SL + 160
    for i in range(2):
        rne(H + i, vT)
    A("s_nop 1")
    for i in range(2):
        A(f"v_mov_b32_dpp v{vBQ+i}, v{H+i} row_ror:8 row_mask:0xf bank_mask:0xf")
    for i in range(2):
        silu(H + i, vT)
        rne(H + i, vT)
        A(f"v_mul_f32 v{H+i}, v{H+i}, v{vBQ+i}")
        A(f"v_cvt_pk_bf16_f32 v{vP0+i}, v{H+i}, v{H+i}")
    srd(SA, sW2, 0 if '2' in skip else 1792 * 512 * 2)
    A(f"v_lshlrev_b32 v{vT}, 11, v{vG}")
    A(f"v_lshl_add_u32 v{vOA}, v{vR}, 4, v{vT}")
    A(f"s_lshl_b32 s{sBASE}, s{sH}, 16")
    A(f"s_lshl_b32 s{sT}, s{sSP}, 9")
    A(f"s_add_u32 s{sBASE}, s{sBASE}, s{sT}")
    fsl = lambda k: 40 + (k & 7)
    def w2load(kk):
        cb, k = kk >> 4, kk & 15
        A(f"s_add_u32 s{sT}, s{sBASE}, {hex((8*(k&7) + (k>>3))*1024 + cb*256)}")
        A(f"buffer_load_dwordx4 {slot(fsl(kk))}, v{vOA}, {S4(SA)}, s{sT} offen {pola}")
    for cb in range(2):
        for k in range(df): w2load(16 * cb + k)
        gemv(16, lambda k: (vP0 + (k >> 3), k & 7),
             lambda k: A(f"s_waitcnt vmcnt({min(df-1, 15-k)})"),
             lambda k: w2load(16 * cb + k + df) if k + df < 16 else None, fsl)
        zr = vD1 if (mergeZ and cb == 0) else vD0
        for i in range(4):
            if not kev: A(f"v_min_u32 v{zr+i}, -2, v{vD0+i}")
            elif zr != vD0: A(f"v_mov_b32 v{zr+i}, v{vD0+i}")
        if mergeZ and cb == 0: continue
        if mergeZ == 2: lds_wait(*((0xf, 0x4) if VEV is None else (0xf000, 0x4000)))
        A("s_mov_b32 exec_hi, 0")
        if mergeZ and 'Z' not in est: A(f"buffer_store_dwordx4 {q4(vD1)}, v{vL0}, {S4(SC)}, s{sPO} offen sc1")
        if 'Z' not in est: A(f"buffer_store_dwordx4 {q4(vD0)}, v{vL0}, {S4(SC)}, s{sPO} offen offset:{512*cb} sc1")
        A("s_mov_b64 exec, -1")
    if kev:
        A("s_waitcnt vmcnt(0)")
        zdone()
    stamp(6)
    A("s_branch L_wor" if fearly else "s_branch L_bar2")
    A.c("---- wave 7: softmax merge factors, gate values ----"); A.lab("L_w3")
    if bare == 5 or 'm' in skip:
        A("s_branch L_bar2")
    tag_from_epoch(vTB, vT)
    if vwarm:
        srd(SA, sV, 0x10000000)
        A(f"s_lshl_b32 s{sT}, s{sB}, 26")
        A(f"s_lshl_b32 s{sT2}, s{sH}, 21")
        A(f"s_or_b32 s{sT}, s{sT}, s{sT2}")
        A(f"buffer_load_dword v{vT+9}, v{vL2}, {S4(SA)}, s{sT} offen nt")
    if kev:
        lds_wait(*((0xf, 0x4) if VEV is None else (0xf000, 0x4000)))
        for i in range(4):
            A(f"v_mov_b32 v{vD0+i}, -1")
        A(f"s_lshl_b32 s{sT}, s2, 11")
        if 'Y' not in est:
            A(f"buffer_store_dwordx4 {q4(vD0)}, v{vOV}, {S4(SC)}, s{sT} offen sc1")
            A(f"buffer_store_dwordx4 {q4(vD0)}, v{vOV}, {S4(SC)}, s{sT} offen offset:1024 sc1")
        A("s_waitcnt vmcnt(0)")
    lds_wait(0x10f, 0x104)
    A(f"v_mov_b32 v{vT}, {L_ML}")
    A(f"ds_read_b128 {q4(vBQ)}, v{vT}")
    A(f"ds_read_b128 {q4(vBQ+4)}, v{vT} offset:16")
    A("s_waitcnt lgkmcnt(0)")
    A(f"v_max_f32 v{vBQ+8}, v{vBQ}, v{vBQ+2}")
    A(f"v_max3_f32 v{vBQ+8}, v{vBQ+8}, v{vBQ+4}, v{vBQ+6}")
    A(f"v_mov_b32 v{vBQ+9}, 0")
    A(f"s_mov_b32 s{sT2}, {hex(LOG2E)}")
    for w in range(4):
        A(f"v_sub_f32 v{vT}, v{vBQ+2*w}, v{vBQ+8}")
        A(f"v_mul_f32 v{vT}, s{sT2}, v{vT}")
        A(f"v_exp_f32 v{vT}, v{vT}")
        A("s_nop 0")
        A(f"v_fmac_f32 v{vBQ+9}, v{vT}, v{vBQ+2*w+1}")
    A(f"s_lshl_b32 s{sT}, s2, {7 if fullml else 4}")
    A(f"s_add_u32 s{sT}, s{sT}, {hex(W_ML)}")
    A(f"s_mov_b64 exec, {0xff if fullml else 1}")
    A(f"buffer_store_dwordx4 {q4(vBQ+8)}, v{vOV}, {S4(SC)}, s{sT} offen {'' if 'M' in est else 'sc1'}")
    A("s_mov_b64 exec, -1")
    stamp(6)
    lds_wait(0xf0, 0x40)
    A(f"s_lshl_b32 s{sNXT}, s{sB}, {13 if fullml else 10}")
    A(f"s_add_u32 s{sNXT}, s{sNXT}, {hex(W_ML)}")
    A(f"s_mov_b32 s{sSPIN}, 0")
    A(f"v_lshlrev_b32 v{vON}, {7 if fullml else 4}, v{vLANE}")
    if fullml:
        A(f"s_cmp_ge_u32 s{sIDX}, {64 if 'M' in est else 48}")
        A("s_cbranch_scc1 L_ml")
        A(f"s_xor_b32 s{sT}, s{sIDX}, 8")
        A(f"s_lshl_b32 s{sT}, s{sT}, 7")
        A(f"v_mov_b32 v{vON}, s{sT}")
    A.lab("L_ml")
    A(f"buffer_load_dwordx4 {q4(vBQ+12)}, v{vON}, {S4(SC)}, s{sNXT} offen sc1")
    A(f"s_add_u32 s{sSPIN}, s{sSPIN}, 1")
    A("s_waitcnt vmcnt(0)")
    A(f"v_xor_b32 v{vT}, v{vBQ+14}, v{vTB}")
    A(f"v_xor_b32 v{vT+1}, v{vBQ+15}, v{vTB+1}")
    A(f"v_or_b32 v{vT}, v{vT}, v{vT+1}")
    A(f"v_cmp_ne_u32 vcc, 0, v{vT}")
    A("s_nop 1")
    A("s_cmp_eq_u64 vcc, 0")
    A("s_cbranch_scc1 L_ml_ok")
    A("s_sleep 16")
    A(f"s_cmp_lt_u32 s{sSPIN}, {SPINMAX}")
    A("s_cbranch_scc1 L_ml")
    A.lab("L_ml_ok")
    A(f"s_xor_b32 s{sT}, s{sIDX}, 8")
    A("s_nop 0")
    A(f"v_readlane_b32 s{sM0}, v{vBQ+12}, s{sT}")
    A(f"v_readlane_b32 s{sM0+1}, v{vBQ+13}, s{sT}")
    A("s_nop 1")
    A(f"v_max_f32 v{vBQ+14}, s{sM0}, v{vBQ+8}")
    A(f"v_sub_f32 v{vT}, v{vBQ+8}, v{vBQ+14}")
    A(f"v_sub_f32 v{vT+1}, s{sM0}, v{vBQ+14}")
    A(f"v_mul_f32 v{vT}, s{sT2}, v{vT}")
    A(f"v_mul_f32 v{vT+1}, s{sT2}, v{vT+1}")
    A(f"v_exp_f32 v{vT}, v{vT}")
    A(f"v_exp_f32 v{vT+1}, v{vT+1}")
    A("s_nop 0")
    A(f"v_mul_f32 v{vT}, v{vT}, v{vBQ+9}")
    A(f"v_fmac_f32 v{vT}, s{sM0+1}, v{vT+1}")
    A(f"v_rcp_f32 v{vT+1}, v{vT}")
    for w in range(4):
        A(f"v_sub_f32 v{vT+2+w}, v{vBQ+2*w}, v{vBQ+14}")
        A(f"v_mul_f32 v{vT+2+w}, s{sT2}, v{vT+2+w}")
        A(f"v_exp_f32 v{vT+2+w}, v{vT+2+w}")
        A("s_nop 0")
        A(f"v_mul_f32 v{vT+2+w}, v{vT+2+w}, v{vT+1}")
    A(f"v_mov_b32 v{vT}, {L_FW}")
    A("s_mov_b64 exec, 1")
    A(f"ds_write_b128 v{vT}, {q4(vT+2)}")
    A("s_mov_b64 exec, -1")
    A(f"s_cmp_ge_u32 s{sIDX}, 48")
    A("s_cbranch_scc0 L_w3x")
    A(f"s_cmp_eq_u32 s{sIDX}, 48")
    A("s_cbranch_scc0 L_neb")
    A(f"s_lshl_b32 s{sT}, s{sB}, 7")
    A(f"s_add_u32 s{sT}, s{sT}, {hex(W_EB)}")
    A(f"v_lshlrev_b32 v{vT+1}, 3, v{vLANE}")
    A("s_mov_b64 exec, 0xffff")
    A(f"buffer_store_dwordx2 {p2(vTB)}, v{vT+1}, {S4(SC)}, s{sT} offen {'' if eplain else 'sc1'}")
    A("s_mov_b64 exec, -1")
    A.lab("L_neb")
    srd(SA, sX, 4096)
    A(f"s_sub_u32 s{sT2}, s{sIDX}, 48")
    A(f"s_lshl_b32 s{sT3}, s{sT2}, 6")
    A(f"s_lshl_b32 s{sT}, s{sB}, 10")
    A(f"s_add_u32 s{sT3}, s{sT3}, s{sT}")
    A(f"buffer_load_dwordx2 {p2(vXr)}, v{vL1}, {S4(SA)}, s{sT3} offen")
    A(f"v_cmp_gt_u32 vcc, {(NFFN-24)*8}, v{vLANE}")
    A(f"v_mov_b32 v{vT+3}, 0x40000000")
    A("s_nop 0")
    A(f"v_cndmask_b32 v{vON}, v{vT+3}, v{vPO+3}, vcc")
    A(f"s_lshl_b32 s{sCUR}, s{sB}, 16")
    A(f"s_lshl_b32 s{sT}, s{sT2}, 7")
    A(f"s_add_u32 s{sCUR}, s{sCUR}, s{sT}")
    A(f"s_add_u32 s{sCUR}, s{sCUR}, {hex(W_Z)}")
    if kev:
        for n, vo in enumerate([vPO, vPO + 1, vPO + 2, vON]):
            A(f"buffer_load_dwordx4 {q4(vBQ+4*n)}, v{vo}, {S4(SC)}, s{sCUR} offen sc1")
        A("s_waitcnt vmcnt(0)")
    elif 's' not in skip: poll(4, vBQ, [vPO, vPO + 1, vPO + 2, vON], sCUR, 16)
    reduce_rows(vBQ, 4)
    for i in range(4):
        rne(vBQ + i, vT + 1)
        silu(vBQ + i, vT + 1)
        rne(vBQ + i, vT + 1)
        A(f"v_mov_b32 v{vGt+i}, v{vBQ+i}")
    A(f"v_and_b32 v{vXr+3}, 0xffff0000, v{vXr+1}")
    A(f"v_lshlrev_b32 v{vXr+2}, 16, v{vXr+1}")
    A(f"v_and_b32 v{vXr+1}, 0xffff0000, v{vXr}")
    A(f"v_lshlrev_b32 v{vXr}, 16, v{vXr}")
    A(f"s_lshl_b32 s{sCUR}, s{sB}, 17")
    A(f"s_lshl_b32 s{sT}, s{sT2}, 7")
    A(f"s_add_u32 s{sCUR}, s{sCUR}, s{sT}")
    A.lab("L_w3x")
    A("s_waitcnt lgkmcnt(0)")
    A.c("---- tail: output projection, final reduction ----"); A.lab("L_bar2")
    if pt:
        A("s_waitcnt vmcnt(0)")
        A(f"s_mov_b32 s{sM0}, 0x05040100")
        A(f"s_mov_b32 s{sM0+1}, 0x07060302")
        BB = lambda s_: SL + 160 if s_ == 0 else SL + 32 * (s_ - 1)
        for s_ in range(4):
            for jj in range(8):
                for m in range(4):
                    lo = SL + 4 * (8 * s_ + 2 * m) + (jj >> 1)
                    hi = SL + 4 * (8 * s_ + 2 * m + 1) + (jj >> 1)
                    A(f"v_perm_b32 v{BB(s_)+4*jj+m}, v{hi}, v{lo}, s{sM0 + (jj & 1)}")
        A(f"v_and_b32 v{vT}, 3, v{vR}")
        A(f"v_mul_u32_u24 v{vT}, 272, v{vT}")
        A(f"v_add_u32 v{vT}, {L_OP}, v{vT}")
        A(f"v_mov_b32 v{vT+1}, {L_ZR}")
        A(f"v_and_b32 v{vT+2}, 4, v{vR}")
        A(f"v_cmp_eq_u32 vcc, 0, v{vT+2}")
        A(f"v_lshlrev_b32 v{vT+3}, 4, v{vG}")
        A("s_nop 0")
        A(f"v_cndmask_b32 v{vP0}, v{vT+1}, v{vT}, vcc")
        A(f"v_cndmask_b32 v{vP1}, v{vT}, v{vT+1}, vcc")
        A(f"v_add_u32 v{vP0}, v{vP0}, v{vT+3}")
        A(f"v_add_u32 v{vP1}, v{vP1}, v{vT+3}")
    A(f"v_lshlrev_b32 v{vT}, 4, v{vR}")
    A(f"v_lshl_add_u32 v{vT}, v{vG}, 2, v{vT}")
    A(f"v_mov_b32 v{vT+1}, {L_FW}")
    A(f"s_lshl_b32 s{sNXT}, s2, 11")
    A(f"s_lshl_b32 s{sT}, s{sJ}, 9")
    A(f"s_add_u32 s{sNXT}, s{sNXT}, s{sT}")
    srd(SA, sOUT, 4096)
    A(f"s_cmp_ge_u32 s{sIDX}, 48")
    A(f"s_cselect_b32 s{sLV}, 1, 0")
    A(f"s_cmp_eq_u32 s{sJ}, 3")
    A(f"s_cselect_b32 s{sLV}, s{sLV}, 0")
    stamp(7)
    A("s_barrier")
    if bare in (5, 6) or 't' in skip: A("s_endpgm")
    if not pt:
        A(f"ds_read_b128 {q4(vBQ+8)}, v{vT+1}")
        for w in range(4):
            A(f"ds_read_b32 v{vBQ+w}, v{vT} offset:{L_OP + w*512}")
            A(f"ds_read_b32 v{vBQ+4+w}, v{vT} offset:{L_OP + w*512 + 256}")
        A("s_waitcnt lgkmcnt(0)")
        for u, p in ((0, vP0), (1, vP1)):
            A(f"v_mul_f32 v{p}, v{vBQ+4*u}, v{vBQ+8}")
        for w in range(1, 4):
            for u, p in ((0, vP0), (1, vP1)):
                A(f"v_fmac_f32 v{p}, v{vBQ+4*u+w}, v{vBQ+8+w}")
        A(f"v_cvt_pk_bf16_f32 v{vP0}, v{vP0}, v{vP0}")
        A(f"v_cvt_pk_bf16_f32 v{vP1}, v{vP1}, v{vP1}")
        A("s_nop 1")
    RA, RB = (SL + 96 if pt else SL + 160), SL
    def pissue(r0):
        for n in range(8):
            A(f"buffer_load_dwordx4 {q4(r0+4*n)}, v{vPO+n}, {S4(SC)}, s{sCUR} offen sc1")
    def early(k):
        if poll2 and k == poll2:
            A(f"s_cmp_eq_u32 s{sLV}, 1")
            A("s_cbranch_scc0 L_ne")
            pissue(RA)
            A.lab("L_ne")
    if pt:
        AF = [vBQ, vBQ + 4, vBQ + 8, vBQ + 12, SL + 144, SL + 148, SL + 152, SL + 156]
        ACC = [vD0, vD1, vA0, vA1]
        FWr = vT + 2
        YO = vBQ
        for s_ in range(4):
            A(f"ds_read_b128 {q4(AF[2*s_])}, v{vP0} offset:{64*s_}")
            A(f"ds_read_b128 {q4(AF[2*s_+1])}, v{vP1} offset:{64*s_}")
        A(f"ds_read_b128 {q4(FWr)}, v{vT+1}")
        n = 0
        for s_ in range(4):
            A(f"s_waitcnt lgkmcnt({7-2*s_})")
            for i in range(4):
                for hl in range(2):
                    A(f"v_mfma_f32_16x16x32_bf16 {q4(ACC[i])}, {q4(AF[2*s_+hl])}, {q4(BB(s_)+4*(4*hl+i))}, {'0' if (s_==0 and hl==0) else q4(ACC[i])}")
                    early(n); n += 1
        A("s_waitcnt lgkmcnt(0)")
        A("s_mov_b32 exec_hi, 0")
        for i in range(4):
            A(f"v_pk_mul_f32 {p2(vT+6)}, {p2(ACC[i])}, {p2(FWr)}")
            A(f"v_pk_fma_f32 {p2(vT+6)}, {p2(ACC[i]+2)}, {p2(FWr+2)}, {p2(vT+6)}")
            A(f"v_add_f32 v{YO+i}, v{vT+6}, v{vT+7}")
            A(f"v_min_u32 v{YO+i}, -2, v{YO+i}")
        A(f"buffer_store_dwordx4 {q4(YO)}, v{vL0}, {S4(SC)}, s{sNXT} offen sc1")
    else:
        gemv(32, lambda k: (vP0 + (k >> 4), k & 15), lambda k: None, early)
        for i in range(4):
            A(f"v_min_u32 v{vD0+i}, -2, v{vD0+i}")
        A("s_mov_b32 exec_hi, 0")
        A(f"buffer_store_dwordx4 {q4(vD0)}, v{vL0}, {S4(SC)}, s{sNXT} offen sc1")
    A("s_mov_b64 exec, -1")
    stamp(8)
    A(f"s_cmp_eq_u32 s{sLV}, 1")
    A("s_cbranch_scc0 L_auxend")
    if poll2:
        FR = SL + 64
        def pcheck(r0):
            for n in range(8):
                A(f"s_waitcnt vmcnt({15-n})")
                r = r0 + 4 * n
                if n == 0:
                    A(f"v_max3_u32 v{vT}, v{r}, v{r+1}, v{r+2}")
                    A(f"v_max_u32 v{vT}, v{vT}, v{r+3}")
                else:
                    A(f"v_max3_u32 v{vT}, v{vT}, v{r}, v{r+1}")
                    A(f"v_max3_u32 v{vT}, v{vT}, v{r+2}, v{r+3}")
                    for i in (0, 2):
                        A(f"v_pk_add_f32 {p2(FR+i)}, {p2((r0 if n == 1 else FR)+i)}, {p2(r+i)}")
            A(f"v_cmp_eq_u32 vcc, -1, v{vT}")
            A("s_nop 1")
            A("s_cmp_eq_u64 vcc, 0")
            A("s_cbranch_scc1 L_p2c")
        A(f"s_mov_b32 s{sSPIN}, 0")
        A.lab("L_p2")
        pissue(RB)
        pcheck(RA)
        pissue(RA)
        pcheck(RB)
        A(f"s_add_u32 s{sSPIN}, s{sSPIN}, 1")
        A(f"s_cmp_lt_u32 s{sSPIN}, {SPINMAX}")
        A("s_cbranch_scc1 L_p2")
        A.lab("L_p2c")
        reduce_rows(FR, 1)
    else:
        FR = SL
        poll(8, SL, [vPO + n for n in range(8)], sCUR, 1)
        reduce_rows(SL, 8)
    for i in range(4):
        rne(FR + i, vT + i)
    for i in range(4):
        A(f"v_mul_f32 v{FR+i}, v{FR+i}, v{vGt+i}")
    for i in range(4):
        rne(FR + i, vT + i)
    for i in range(4):
        A(f"v_add_f32 v{FR+i}, v{FR+i}, v{vXr+i}")
    A(f"v_cvt_pk_bf16_f32 v{FR+4}, v{FR}, v{FR+1}")
    A(f"v_cvt_pk_bf16_f32 v{FR+5}, v{FR+2}, v{FR+3}")
    A("s_mov_b64 exec, 0xff")
    A(f"buffer_store_dwordx2 v[{FR+4}:{FR+5}], v{vL1}, {S4(SA)}, s{sT3} offen {polo}")
    A("s_mov_b64 exec, -1")
    stamp(9)
    A.lab("L_auxend")
    stamp_flush()
    A.lab("L_end")
    A("s_endpgm")

    ref = open("recurrent_scan__mha_block_cached__glu_gated_swiglu__decode.s.ref").read()
    out = ref.split("; @launch")[0]
    out += f"; @launch grid=(256,1,1) block=(512,1,1) lds={LDS}\n"
    out += DOC
    out += '.amdgcn_target "amdgcn-amd-amdhsa--gfx950"\n.text\n'
    out += f".globl {NAME}\n.p2align 8\n.type {NAME},@function\n{NAME}:\n"
    out += "\n".join(A.L) + "\n"
    out += '.section .rodata,"a"\n.p2align 6\n'
    out += f".amdhsa_kernel {NAME}\n"
    out += f"  .amdhsa_next_free_vgpr {NV}\n  .amdhsa_next_free_sgpr 80\n  .amdhsa_accum_offset {NV}\n"
    out += "  .amdhsa_group_segment_fixed_size 0\n  .amdhsa_kernarg_size 96\n  .amdhsa_user_sgpr_count 2\n"
    out += "  .amdhsa_user_sgpr_kernarg_segment_ptr 1\n  .amdhsa_system_sgpr_workgroup_id_x 1\n.end_amdhsa_kernel\n"
    return out

if __name__ == "__main__":
    fn = sys.argv[1]
    kw = eval("dict(%s)" % (sys.argv[2] if len(sys.argv) > 2 else ""))
    open(fn, "w").write(gen(**kw))
```

```python
import sys

NAME = "recurrent_scan__mha_block_cached__glu_gated_swiglu__decode_kernel"


DOC = """;
;   wave 7: (max, sum) exchange of the two splits; 64 workgroups also reduce the final outputs.
"""

class G:
    def __init__(s):
        s.L = []
        s.n = 0
    def __call__(s, t):
        s.L.append("    " + t)
    def lab(s, t):
        s.L.append(t + ":")
    def c(s, t):
        s.L.append("    ; " + t)
    def uid(s, p):
        s.n += 1
        return f"L_{p}{s.n}"

def gen(d=5, dpro=8, da=2, sb=15, stamps=False, R=48, LAG=8, NA=8, VLATE=4,
        polq="", polf="", polp="", pola="nt", bare=0, qprio=3, fc=None, dlast=None,
        dpro2=None, n1=24, df=4, gpace=0, tfill=0, vwarm=False, poll2=False, polo='', vboost=None, fullml=True, fearly=0, noq=0, skip='', clr0=False, qlite=False, qpre=0, polGA='sc1', fstag=None, fdual=None, swap=False, colo=False, VEV=None, kev=False, eplain=False, est='', sameB=False, pt=False, xr=None, halfmsg=False, qonlyB=False, qack=False, ifirst=False, galign=False, order='oooo22', mergeB=False, mergeZ=0, hx=None, npos=None, d0=None, fdelay=0):
    dlast = dlast or d
    if fdual is None: fdual = bool(fearly)
    A = G()
    levels = [d] if fc is None else fc["levels"]
    assert max(levels) <= LAG
    sX, sK, sV, sWQ, sWO, sW1, sW3, sW2, sOUT, sDBG, sWS = 4, 6, 8, 10, 12, 16, 18, 20, 22, 24, 26
    sWAVE, sB, sH, sSP, sIDX, sJ, sMU = 28, 29, 30, 31, 32, 33, 34
    SA, SN, SC, SD_, SE = 36, 40, 44, 48, 52
    sCUR, sNXT, sT, sIT, sT2, sT3 = 56, 57, 58, 59, 60, 61
    sM0, sM1 = 62, 64
    sBASE, sSPIN, sLV, sPO = 66, 67, 68, 69
    sST = 70
    vLANE, vOA, vON, vOV, vG, vR, vT7 = 1, 2, 3, 4, 5, 6, 7
    vMK = 8
    vBQ = 12
    vD0, vD1 = 28, 32
    vS, vM = 36, 37
    vT = 38
    vA0, vA1 = 48, 52
    vP0, vP1 = 56, 57
    vL0, vL1, vL2 = 58, 59, 60
    vPG, vST, vPB = 61, 62, 63
    SL = 64
    NV = 256
    assert SL + 4 * R <= NV
    slot = lambda i: f"v[{SL+4*i}:{SL+4*i+3}]"
    q4 = lambda r: f"v[{r}:{r+3}]"
    p2 = lambda r: f"v[{r}:{r+1}]"
    S4 = lambda b: f"s[{b}:{b+3}]"
    L_Q = 0
    L_TG = 256
    L_ML = 272
    L_FW = 304
    L_CM = 320
    L_LV = 352
    L_PW = 336
    L_OP = 2048
    L_ZR = 512
    L_XE = 4096
    L_SC = 8192
    LDS = L_SC + 4 * 16 * 64 * 4 + 256
    W_Y, W_Z, W_ML, W_EH, W_EB, W_PG = 0, 0x80000, 0xC0000, 0xC8000, 0xC9000, 0xCA000
    W_QA, W_QB, W_FP, W_FB, W_SZ = 0x100000, 0x200000, 0x300000, 0x400000, 0x500000
    W_ST = 0x500000
    if sameB: W_QB = W_QA; W_FB = W_FP
    NFFN = 28
    LOG2E = 0x3FB8AA3B
    SCALE = 0x3DB504F3
    SPINMAX = 200000

    def srd(base, ptr, nbytes):
        A(f"s_mov_b32 s{base}, s{ptr}")
        A(f"s_mov_b32 s{base+1}, s{ptr+1}")
        A(f"s_mov_b32 s{base+2}, {hex(nbytes)}")
        A(f"s_mov_b32 s{base+3}, 0x00020000")
    def stamp(i):
        if not stamps: return
        A(f"s_memrealtime s[{sST}:{sST+1}]")
        A("s_waitcnt lgkmcnt(0)")
        A(f"v_writelane_b32 v{vST}, s{sST}, {i}")
    def stamp_it(base):
        if not stamps: return
        A(f"s_memrealtime s[{sST}:{sST+1}]")
        A(f"s_add_u32 m0, s{sIT}, {base}")
        A("s_waitcnt lgkmcnt(0)")
        A(f"v_writelane_b32 v{vST}, s{sST}, m0")
    def stamp_flush():
        if not stamps: return
        A(f"v_writelane_b32 v{vST}, s76, 10")
        A(f"v_writelane_b32 v{vST}, s75, 61")
        srd(SE, sWS, 0x600000)
        A(f"s_lshl_b32 s{sT}, s2, 3")
        A(f"s_add_u32 s{sT}, s{sT}, s{sWAVE}")
        A(f"s_lshl_b32 s{sT}, s{sT}, 8")
        A(f"s_add_u32 s{sT}, s{sT}, {hex(W_ST)}")
        A(f"v_lshlrev_b32 v{vT7}, 2, v{vLANE}")
        A(f"buffer_store_dword v{vST}, v{vT7}, {S4(SE)}, s{sT} offen")
    def cut(n):
        if bare == n:
            A("s_barrier"); A("s_endpgm")

    def swaps(op, reg, tmp):
        for sw in ("v_permlane16_swap_b32", "v_permlane32_swap_b32"):
            A("s_nop 0")
            A(f"v_mov_b32 v{tmp}, v{reg}")
            A("s_nop 1")
            A(f"{sw} v{reg}, v{tmp}")
            A("s_nop 0")
            A(f"{op} v{reg}, v{reg}, v{tmp}")
    def allreduce(op, reg, tmp):
        for n in (8, 4, 2, 1):
            A("s_nop 1")
            A(f"{op}_dpp v{reg}, v{reg}, v{reg} row_ror:{n} row_mask:0xf bank_mask:0xf")
        swaps(op, reg, tmp)
    def rne(reg, tmp):
        A(f"v_cvt_pk_bf16_f32 v{tmp}, v{reg}, v{reg}")
        A(f"v_and_b32 v{reg}, 0xffff0000, v{tmp}")
    def diag(dst, pp, j):
        for m in range(4):
            A(f"v_and_b32_dpp v{dst+m}, v{pp}, v{vMK+m} row_newbcast:{j} row_mask:0xf bank_mask:0xf")
    def silu(reg, t):
        A(f"v_mul_f32 v{t}, {hex(LOG2E | 0x80000000)}, v{reg}")
        A(f"v_exp_f32 v{t}, v{t}")
        A("s_nop 0")
        A(f"v_add_f32 v{t}, 1.0, v{t}")
        A(f"v_rcp_f32 v{t}, v{t}")
        A("s_nop 0")
        A(f"v_mul_f32 v{reg}, v{reg}, v{t}")
    def build_masks():
        A(f"v_and_b32 v{vT}, 1, v{vR}")
        A(f"v_lshlrev_b32 v{vT}, 4, v{vT}")
        A(f"v_mov_b32 v{vT+1}, 0xffff")
        A(f"v_lshlrev_b32 v{vT}, v{vT}, v{vT+1}")
        A(f"v_bfe_u32 v{vT+1}, v{vR}, 1, 2")
        for m in range(4):
            A(f"v_cmp_eq_u32 vcc, {m}, v{vT+1}")
            A("s_nop 1")
            A(f"v_cndmask_b32 v{vMK+m}, 0, v{vT}, vcc")
    def tag_from_epoch(reg, tmp):
        A(f"v_mov_b32 v{tmp}, 0x9e3779b9")
        A(f"v_add_co_u32 v{reg}, vcc, 0x7f4a7c15, v{reg}")
        A("s_nop 1")
        A(f"v_addc_co_u32 v{reg+1}, vcc, v{tmp}, v{reg+1}, vcc")

    if sb == 15:
        koff = lambda k: ((k & 7) << 12) | ((k >> 3) << 16); wsh = 10; GSTR = 1 << 17
    elif sb == 10:
        koff = lambda k: k << 13; wsh = 11; GSTR = 1 << 17
    elif sb == 16:
        koff = lambda k: k << 12; wsh = 10; GSTR = 1 << 17
    elif sb == 14:
        koff = lambda k: ((k & 3) << 12) | ((k >> 2) << 15); wsh = 10; GSTR = 1 << 17
    elif sb == 20:
        koff = lambda k: k << 12; wsh = 10; GSTR = 1 << 16

    if npos:
        wsh, kb, sb = npos
        wb = (wsh, wsh + 1) if isinstance(wsh, int) else wsh
        used = sorted(list(wb) + list(kb) + [sb])
        rest = [b_ for b_ in range(10, 21) if b_ not in used]
        assert len(rest) == 4 and rest == list(range(rest[0], rest[0] + 4)), rest
        koff = lambda k: sum(((k >> i) & 1) << kb[i] for i in range(4)); GSTR = 1 << rest[0]
    A("s_cmp_ge_u32 s2, 256")
    A("s_cbranch_scc1 L_end")
    if stamps: A("s_memrealtime s[76:77]")
    A("s_load_dwordx16 s[4:19], s[0:1], 0")
    A("s_load_dwordx8 s[20:27], s[0:1], 64")
    A(f"v_lshrrev_b32 v{vT7}, 6, v0")
    A(f"v_and_b32 v{vLANE}, 63, v0")
    A(f"v_readfirstlane_b32 s{sWAVE}, v{vT7}")
    A(f"v_lshrrev_b32 v{vG}, 4, v{vLANE}")
    A(f"v_and_b32 v{vR}, 15, v{vLANE}")
    A(f"v_lshlrev_b32 v{vOV}, 4, v{vLANE}")
    if stamps:
        A(f"v_mov_b32 v{vST}, 0")
        A("s_mov_b32 s75, 0")
    if swap: A(f"s_xor_b32 s{sWAVE}, s{sWAVE}, 4")
    A(f"s_lshr_b32 s{sB}, s2, 6")
    A(f"s_and_b32 s{sIDX}, s2, 63")
    A(f"s_bfe_u32 s{sSP}, s2, {(1<<16)|3}")
    if hx is None:
        A(f"s_bfe_u32 s{sT}, s2, {(2<<16)|4}")
        A(f"s_lshl_b32 s{sT}, s{sT}, 3")
        A(f"s_and_b32 s{sH}, s2, 7")
        A(f"s_or_b32 s{sH}, s{sH}, s{sT}")
    else:
        rest = [b_ for b_ in range(5) if b_ not in hx]
        A(f"s_mov_b32 s{sH}, 0")
        for src, dst in zip((0, 1, 2, 4, 5), list(hx) + rest):
            A(f"s_bfe_u32 s{sT}, s2, {(1<<16)|src}")
            A(f"s_lshl_b32 s{sT}, s{sT}, {dst}")
            A(f"s_or_b32 s{sH}, s{sH}, s{sT}")
    A(f"s_lshl_b32 s{sMU}, s{sB}, 1")
    A(f"s_or_b32 s{sMU}, s{sMU}, s{sSP}")
    A(f"s_cmp_ge_u32 s{sWAVE}, 4")
    A("s_cbranch_scc1 L_aux")

    A.c("---- stream waves ----")
    A(f"s_lshl_b32 s{sT3}, s{sH}, 16")
    A(f"s_lshl_b32 s{sT}, s{sMU}, 13")
    A(f"s_add_u32 s{sT3}, s{sT3}, s{sT}")
    A(f"s_lshl_b32 s{sT}, s{sWAVE}, 11")
    A(f"s_add_u32 s{sT3}, s{sT3}, s{sT}")
    A(f"s_lshl_b32 s{sT2}, s{sT3}, 1")
    A(f"v_lshrrev_b32 v{vT}, 2, v{vR}")
    A(f"v_lshlrev_b32 v{vT}, 8, v{vT}")
    A(f"v_and_b32 v{vT+1}, 3, v{vR}")
    A(f"v_lshlrev_b32 v{vT+1}, 4, v{vT+1}")
    A(f"v_lshlrev_b32 v{vT+2}, 6, v{vG}")
    A(f"v_add3_u32 v{vOA}, v{vT}, v{vT+1}, v{vT+2}")
    A(f"v_mov_b32 v{vON}, v{vOA}")
    A(f"s_lshl_b32 s{sBASE}, s{sB}, 26")
    A(f"s_lshl_b32 s{sT}, s{sH}, 21")
    A(f"s_or_b32 s{sBASE}, s{sBASE}, s{sT}")
    A(f"s_lshl_b32 s{sT}, s{sSP}, {sb}")
    A(f"s_or_b32 s{sBASE}, s{sBASE}, s{sT}")
    if isinstance(wsh, int):
        A(f"s_lshl_b32 s{sT}, s{sWAVE}, {wsh}")
        A(f"s_or_b32 s{sBASE}, s{sBASE}, s{sT}")
    else:
        for i_ in range(2):
            A(f"s_bfe_u32 s{sT}, s{sWAVE}, {(1<<16)|i_}")
            A(f"s_lshl_b32 s{sT}, s{sT}, {wsh[i_]}")
            A(f"s_or_b32 s{sBASE}, s{sBASE}, s{sT}")
    A("s_waitcnt lgkmcnt(0)")
    nis = [0]
    def pace():
        if d0 and nis[0] == d0: A(f"s_waitcnt vmcnt({d0-1})")
        if nis[0] >= dpro: A(f"s_waitcnt vmcnt({(dpro2 if dpro2 and nis[0] >= n1 else dpro)-1})")
        nis[0] += 1
    if xr:
        A(f"s_bfe_u32 s35, s2, {(xr[1]<<16)|xr[0]}")
        A(f"s_lshl_b32 s35, s35, {xr[2]}")
    def sload(sl, srdb, voff, sbase, off):
        A(f"s_add_u32 s{sT}, s{sbase}, {hex(off)}")
        if xr: A(f"s_xor_b32 s{sT}, s{sT}, s35")
        A(f"buffer_load_dwordx4 {slot(sl)}, v{voff}, {S4(srdb)}, s{sT} offen nt")
    gk = lambda i: (i >> 4) * GSTR + koff(i & 15)
    cnt = {'o': 0, '2': 0, 'k': 0}
    for ch in (order if bare != 2 else ""):
        if cnt[ch] == 0:
            if ch == 'o': srd(SC, sWO, 0x400000)
            elif ch == '2': srd(SD_, sW2, 1792 * 512 * 2)
            else: srd(SA, sK, 0x10000000)
        pace()
        k = cnt[ch]; cnt[ch] += 1
        if ch == 'o': A(f"buffer_load_dwordx4 {q4(vA0)}, v{vOV}, {S4(SC)}, s{sT2} offen offset:{k*1024} {polp}")
        elif ch == '2': A(f"buffer_load_dwordx4 {q4(vA0)}, v{vOV}, {S4(SD_)}, s{sT3} offen offset:{k*1024} {polp}")
        else: sload(k, SA, vOA, sBASE, gk(k))
    if cnt['k'] == 0: srd(SA, sK, 0x10000000)
    setup_done = False
    for i in range(cnt['k'], R):
        if nis[0] >= dpro and not setup_done:
            setup_done = True
            stamp(0)
            srd(SN, sK, 0x10000000)
            build_masks()
            A(f"v_lshlrev_b32 v{vL0}, 2, v{vLANE}")
            A(f"s_lshl_b32 s{sT2}, s{sWAVE}, 12")
            A(f"s_add_u32 s{sT2}, s{sT2}, {L_SC}")
            A(f"v_add_u32 v{vL0}, s{sT2}, v{vL0}")
            A(f"v_mov_b32 v{vL1}, v{vL0}")
            A(f"v_lshrrev_b32 v{vT}, 2, v{vR}")
            A(f"v_lshlrev_b32 v{vT}, 4, v{vT}")
            A(f"v_lshlrev_b32 v{vL2}, 6, v{vG}")
            A(f"v_add_u32 v{vL2}, v{vL2}, v{vT}")
            A(f"v_mov_b32 v{vM}, 0xff800000")
        pace()
        sload(i, SA, vOA, sBASE, gk(i))
        if i in (15, 31): stamp(7 + (i >> 4))
    stamp(1)
    A("s_barrier")
    stamp(2)
    A(f"ds_read_b128 {q4(vT+2)}, v{vL2} offset:{L_Q}")
    A(f"v_and_b32 v{vT}, 3, v{vR}")
    A("s_waitcnt lgkmcnt(0)")
    for t in range(4):
        A(f"v_cmp_eq_u32 vcc, {t}, v{vT}")
        A("s_nop 1")
        for m in range(4):
            A(f"v_cndmask_b32 v{vBQ+4*t+m}, 0, v{vT+2+m}, vcc")
    A("s_nop 1")

    def dpp_gather(u, i):
        D = vD0 if (u & 1) == 0 else vD1
        n = (4 * (u - i)) % 16
        ctrl = "quad_perm:[0,1,2,3]" if n == 0 else f"row_ror:{n}"
        if i == 0:
            A(f"v_mov_b32_dpp v{vS}, v{D} {ctrl} row_mask:0xf bank_mask:{hex(1<<u)}")
        else:
            A(f"v_add_f32_dpp v{vS}, v{D+i}, v{vS} {ctrl} row_mask:0xf bank_mask:{hex(1<<u)}")
    midctx = [None]
    hook = [lambda: None]
    def kgroup(slot0, waitf, issuef):
        for k in range(16):
            if k == 8: hook[0]()
            u, t = k >> 2, k & 3
            D = vD0 if (u & 1) == 0 else vD1
            waitf(k)
            if ifirst and midctx[0]: issuef(k)
            A(f"v_mfma_f32_16x16x32_bf16 {q4(D)}, {slot(slot0+k)}, {q4(vBQ+4*t)}, {'0' if t==0 else q4(D)}")
            if not (ifirst and midctx[0]): issuef(k)
            if u > 0:
                A("s_nop 6" if t == 0 else "s_nop 0")
                dpp_gather(u - 1, t)
        A("s_nop 7")
        for i in range(4):
            dpp_gather(3, i)
            A("s_nop 1")
        rne(vS, vT)
        A(f"v_mul_f32 v{vT+1}, {hex(SCALE)}, v{vS}")
        rne(vT + 1, vT)
        A(f"v_max_f32 v{vM}, v{vM}, v{vT+1}")
        A(f"ds_write_b32 v{vL1}, v{vT+1}")
        A(f"v_add_u32 v{vL1}, 256, v{vL1}")

    issued = [0]
    for G0 in range(R // 16):
        def waitf(k, G0=G0):
            i = G0 * 16 + k
            A(f"s_waitcnt vmcnt({min(63, R-1-i + issued[0])})")
        def issuef(k, G0=G0):
            i = G0 * 16 + k
            if i < d:
                sload(i, SA, vOA, sBASE, gk(R + i)); issued[0] += 1
        kgroup(G0 * 16, waitf, issuef)
    for i in range(d, LAG):
        A(f"s_waitcnt vmcnt({d-1})")
        sload(i, SA, vOA, sBASE, gk(R + i))
    stamp(3)
    A(f"s_add_u32 s{sCUR}, s{sBASE}, {hex((R//16)*GSTR)}")
    A(f"s_mov_b32 s{sIT}, {R//16}")
    if fc:
        U = fc.get("U", 8)
        A(f"s_lshl_b32 s{sT}, s{sWAVE}, 2")
        A(f"s_add_u32 s{sT}, s{sT}, {L_PW}")
        A(f"v_mov_b32 v{vPB}, s{sT}")
        A(f"v_mov_b32 v{vPG}, 0")
        A(f"v_mov_b32 v{vT+8}, {fc.get('nom', 1)}")
    def steady_issue(k):
        kk = k + LAG
        if kk < 16:
            sload(kk, SA, vOA, sCUR, koff(kk))
        else:
            sload(kk - 16, SN, vON, sNXT, koff(kk - 16))
        if fc:
            if k % (16 // U) == 0:
                A(f"v_add_u32 v{vPG}, 1, v{vPG}")
                A(f"ds_write_b32 v{vPB}, v{vPG}")
            if k == 14 or (k == 6 and fc.get("mid")):
                A(f"ds_read_b32 v{vT+8}, v{vPB} offset:{L_LV-L_PW}")
    def midswitch():
        if not (fc and fc.get("mid") and midctx[0]): return
        tag, li = midctx[0]
        A("s_waitcnt lgkmcnt(0)")
        A(f"v_readfirstlane_b32 s{sLV}, v{vT+8}")
        for lj in range(len(levels)):
            if lj == li: continue
            A(f"s_cmp_eq_u32 s{sLV}, {lj}")
            A(f"s_cbranch_scc1 L_{tag}_h{lj}")
        A.lab(f"L_{tag}_h{li}")
    hook[0] = midswitch
    def wv(dd, k):
        lo = int(dd); fr = dd - lo
        up = int((k + 1) * fr + 1e-9) > int(k * fr + 1e-9)
        return (lo + (1 if up else 0)) - 1
    def dispatch(tag, body):
        if not fc:
            body(d); return
        A(f"v_readfirstlane_b32 s{sLV}, v{vT+8}")
        if tag == "v" and vboost:
            A(f"s_cmp_ge_u32 s{sIT}, {vboost[0]}")
            A(f"s_cselect_b32 s{sT}, {vboost[1]}, 0")
            A(f"s_add_u32 s{sLV}, s{sLV}, s{sT}")
            A(f"s_min_u32 s{sLV}, s{sLV}, {len(levels)-1}")
        if stamps: A(f"s_add_u32 s75, s75, s{sLV}")
        for li in range(1, len(levels)):
            A(f"s_cmp_eq_u32 s{sLV}, {li}")
            A(f"s_cbranch_scc1 L_{tag}_b{li}")
        for li, dd in enumerate(levels):
            A.lab(f"L_{tag}_b{li}")
            midctx[0] = (tag, li)
            body(dd)
            midctx[0] = None
            if li + 1 < len(levels): A(f"s_branch L_{tag}_e")
        A.lab(f"L_{tag}_e")
    A.c("---- K loop: one body per window size ----"); A.lab("L_kloop")
    A(f"s_add_u32 s{sNXT}, s{sCUR}, {hex(GSTR)}")
    A(f"s_cmp_eq_u32 s{sIT}, 15")
    A("s_cbranch_scc0 L_knl")
    A(f"s_mov_b32 s{sNXT}, s{sBASE}")
    A(f"s_mov_b32 s{SN}, s{sV}")
    A(f"s_mov_b32 s{SN+1}, s{sV+1}")
    A(f"v_mov_b32 v{vON}, v{vOV}")
    A.lab("L_knl")
    if fc: A("s_waitcnt lgkmcnt(0)")
    dispatch("k", lambda dd: kgroup(0, lambda k: A(f"s_waitcnt vmcnt({wv(dd,k)})"), steady_issue))
    stamp_it(16)
    A(f"s_mov_b32 s{sCUR}, s{sNXT}")
    A(f"s_add_u32 s{sIT}, s{sIT}, 1")
    A(f"s_cmp_lt_u32 s{sIT}, 16")
    A("s_cbranch_scc1 L_kloop")
    stamp(4)
    A(f"s_mov_b32 s{SA}, s{sV}")
    A(f"s_mov_b32 s{SA+1}, s{sV+1}")
    A(f"v_mov_b32 v{vOA}, v{vOV}")
    X = SL + 64
    tf = [0]
    def tfi():
        if tf[0] < tfill:
            A(f"s_waitcnt vmcnt({d-1})")
            steady_issue(tf[0]); tf[0] += 1
    tfi()
    A("s_waitcnt lgkmcnt(0)")
    for i in range(8):
        A(f"ds_read2st64_b32 v[{X+2*i}:{X+2*i+1}], v{vL0} offset0:{2*i} offset1:{2*i+1}")
    allreduce("v_max_f32", vM, vT)
    A(f"s_mov_b32 s{sT2}, {hex(LOG2E)}")
    A("s_waitcnt lgkmcnt(0)")
    for i in range(16):
        A(f"v_sub_f32 v{X+i}, v{X+i}, v{vM}")
    tfi()
    for i in range(16):
        A(f"v_mul_f32 v{X+i}, s{sT2}, v{X+i}")
    for i in range(16):
        A(f"v_exp_f32 v{X+i}, v{X+i}")
    A("s_nop 0")
    for i in range(16):
        A(f"v_cvt_pk_bf16_f32 v{X+16+i}, v{X+i}, v{X+i}")
    for i in range(8):
        A(f"ds_write2st64_b32 v{vL0}, v{X+16+2*i}, v{X+16+2*i+1} offset0:{2*i} offset1:{2*i+1}")
    A(f"v_mov_b32 v{vP1}, v{X+16}")
    tfi()
    for st in (8, 4, 2, 1):
        for i in range(st):
            A(f"v_add_f32 v{X+i}, v{X+i}, v{X+i+st}")
    allreduce("v_add_f32", X, vT)
    tfi()
    A(f"v_mov_b32 v{vT}, v{vM}")
    A(f"v_mov_b32 v{vT+1}, v{X}")
    A(f"s_lshl_b32 s{sT2}, s{sWAVE}, 3")
    A(f"s_add_u32 s{sT2}, s{sT2}, {L_ML}")
    A(f"v_mov_b32 v{vT+2}, s{sT2}")
    A(f"v_mov_b32 v{vT+3}, {L_CM}")
    A(f"v_mov_b32 v{vT+4}, 1")
    A("s_mov_b64 exec, 1")
    A(f"ds_write_b64 v{vT+2}, v[{vT}:{vT+1}]")
    A("s_waitcnt lgkmcnt(0)")
    A(f"ds_add_u32 v{vT+3}, v{vT+4}")
    A("s_mov_b64 exec, -1")
    A(f"v_mov_b32 v{vT+7}, 16")
    for i in range(4):
        A(f"v_mov_b32 v{vD0+i}, 0")
    A(f"v_add_u32 v{vL1}, 256, v{vL0}")
    A(f"v_lshlrev_b32 v{vT+5}, {4 if pt else 5}, v{vR}")
    A(f"v_lshlrev_b32 v{vT+6}, {3 if pt else 4}, v{vG}")
    A(f"s_mul_i32 s{sT2}, s{sWAVE}, {320 if pt else 512}")
    A(f"v_add3_u32 v{vL2}, v{vT+5}, v{vT+6}, s{sT2}")
    A(f"s_mov_b32 s{sIT}, 0")
    stamp(5)
    def vbody(waitf, issuef):
        A(f"v_mov_b32 v{vP0}, v{vP1}")
        A(f"ds_read_b32 v{vP1}, v{vL1}")
        A(f"v_add_u32 v{vL1}, 256, v{vL1}")
        diag(vA0, vP0, 0)
        for k in range(16):
            if k == 8: hook[0]()
            Acur = vA0 if (k & 1) == 0 else vA1
            Anxt = vA1 if (k & 1) == 0 else vA0
            if k < 15: diag(Anxt, vP0, k + 1)
            waitf(k)
            if ifirst and midctx[0]: issuef(k)
            A(f"v_mfma_f32_16x16x32_bf16 {q4(vD0)}, {q4(Acur)}, {slot(k)}, {q4(vD0)}")
            if not (ifirst and midctx[0]): issuef(k)
    if tfill:
        assert tf[0] == tfill
        A(f"s_add_u32 s{sNXT}, s{sCUR}, {hex(GSTR)}")
        A("s_waitcnt lgkmcnt(0)")
        vbody(lambda k: A(f"s_waitcnt vmcnt({d-1 if k >= tfill else LAG+tfill-1-k})"), lambda k: steady_issue(k) if k >= tfill else None)
        stamp_it(32)
        A(f"s_mov_b32 s{sCUR}, s{sNXT}")
        A(f"s_mov_b32 s{sIT}, 1")
    A.c("---- V loop: one body per window size ----"); A.lab("L_vloop")
    A(f"s_add_u32 s{sNXT}, s{sCUR}, {hex(GSTR)}")
    A(f"s_cmp_eq_u32 s{sIT}, {VLATE}")
    A("s_cbranch_scc0 L_vnl")
    A("s_mov_b64 exec, 1")
    A(f"ds_add_u32 v{vT+3}, v{vT+7}")
    A("s_mov_b64 exec, -1")
    A.lab("L_vnl")
    if VEV is not None:
        A(f"s_cmp_eq_u32 s{sIT}, {VEV}")
        A("s_cbranch_scc0 L_vne")
        A(f"v_mov_b32 v{vT+9}, 0x1000")
        A("s_mov_b64 exec, 1")
        A(f"ds_add_u32 v{vT+3}, v{vT+9}")
        A("s_mov_b64 exec, -1")
        A.lab("L_vne")
    A("s_waitcnt lgkmcnt(0)")
    dispatch("v", lambda dd: vbody(lambda k: A(f"s_waitcnt vmcnt({wv(dd,k)})"), steady_issue))
    stamp_it(32)
    A(f"s_mov_b32 s{sCUR}, s{sNXT}")
    A(f"s_add_u32 s{sIT}, s{sIT}, 1")
    A(f"s_cmp_lt_u32 s{sIT}, 15")
    A("s_cbranch_scc1 L_vloop")
    def lwait(k):
        if k + LAG < 16: A(f"s_waitcnt vmcnt({dlast-1})")
        else: A(f"s_waitcnt vmcnt({15-k})")
    A("s_waitcnt lgkmcnt(0)")
    vbody(lwait, lambda k: sload(k + LAG, SA, vOA, sCUR, koff(k + LAG)) if k + LAG < 16 else None)
    A("s_mov_b32 exec_hi, 0")
    A("s_nop 6")
    if pt:
        A(f"v_cvt_pk_bf16_f32 v{vD1}, v{vD0}, v{vD0+1}")
        A(f"v_cvt_pk_bf16_f32 v{vD1+1}, v{vD0+2}, v{vD0+3}")
        A(f"ds_write_b64 v{vL2}, {p2(vD1)} offset:{L_OP}")
    else:
        A(f"ds_write_b128 v{vL2}, {q4(vD0)} offset:{L_OP}")
    A("s_waitcnt lgkmcnt(0)")
    A("s_barrier")
    if stamps:
        A("s_mov_b64 exec, -1")
        stamp_it(32)
        stamp(6)
        stamp_flush()
    A("s_endpgm")

    XR = SL + 64
    XF = SL + 80
    XE = vBQ
    XD = SL + 128
    vTG = vBQ + 8
    A.c("---- helper waves ----"); A.lab("L_aux")
    if bare == 2:
        A("s_barrier"); A("s_barrier"); A("s_endpgm")
    A(f"s_sub_u32 s{sJ}, s{sWAVE}, 4")
    A(f"s_cmp_eq_u32 s{sJ}, 0")
    A("s_cbranch_scc1 L_qw")
    A(f"s_cmp_eq_u32 s{sJ}, 1")
    A("s_cbranch_scc1 L_fw")
    A(f"v_mov_b32 v{vT}, {L_CM}")
    A(f"v_mov_b32 v{vT+2}, 0")
    A(f"ds_write_b32 v{vT}, v{vT+2}")
    if pt:
        A(f"v_lshlrev_b32 v{vT+1}, 2, v{vLANE}")
        A(f"ds_write_b32 v{vT+1}, v{vT+2} offset:{L_ZR}")
    if fc:
        for i in range(3, 6): A(f"v_mov_b32 v{vT+i}, 0")
        for i in range(6, 10): A(f"v_mov_b32 v{vT+i}, {fc.get('nom', 1)}")
        A(f"ds_write_b128 v{vT}, {q4(vT+2)} offset:{L_PW-L_CM}")
        A(f"ds_write_b128 v{vT}, {q4(vT+6)} offset:{L_LV-L_CM}")
    A("s_waitcnt lgkmcnt(0)")
    srd(SC, sWS, W_SZ)
    if fc and fc.get("inl"):
        A(f"s_cmp_eq_u32 s{sJ}, 2")
        A("s_cbranch_scc0 L_nz0")
        A(f"s_and_b32 s{sCUR}, s2, 7")
        A(f"s_lshl_b32 s{sCUR}, s{sCUR}, 8")
        A(f"s_lshr_b32 s{sNXT}, s2, 3")
        A(f"s_lshl_b32 s{sNXT}, s{sNXT}, 2")
        A(f"s_add_u32 s{sNXT}, s{sNXT}, s{sCUR}")
        A(f"s_add_u32 s{sNXT}, s{sNXT}, {hex(W_PG)}")
        A("s_mov_b64 exec, 1")
        A(f"buffer_store_dword v{vT+2}, v{vOV}, {S4(SC)}, s{sNXT} offen")
        A("s_mov_b64 exec, -1")
        A.lab("L_nz0")
    if clr0:
        A(f"s_cmp_eq_u32 s{sJ}, 3")
        A("s_cbranch_scc0 L_bar1")
        for i in range(4):
            A(f"v_mov_b32 v{vBQ+i}, -1")
        A(f"s_lshl_b32 s{sT}, s2, 11")
        A(f"buffer_store_dwordx4 {q4(vBQ)}, v{vOV}, {S4(SC)}, s{sT} offen sc1")
        A(f"buffer_store_dwordx4 {q4(vBQ)}, v{vOV}, {S4(SC)}, s{sT} offen offset:1024 sc1")
        A(f"s_lshl_b32 s{sPO}, s{sB}, 5")
        A(f"s_add_u32 s{sPO}, s{sPO}, s{sH}")
        A(f"s_lshl_b32 s{sPO}, s{sPO}, 1")
        A(f"s_add_u32 s{sPO}, s{sPO}, s{sSP}")
        A(f"s_lshl_b32 s{sPO}, s{sPO}, 10")
        A(f"s_add_u32 s{sPO}, s{sPO}, {hex(W_Z)}")
        A(f"buffer_store_dwordx4 {q4(vBQ)}, v{vOV}, {S4(SC)}, s{sPO} offen sc1")
        A("s_waitcnt vmcnt(0)")
    A("s_branch L_bar1")
    A.c("---- wave 5: w1/w3 tile loads ----"); A.lab("L_fw")
    A(f"v_mul_u32_u24 v{vT}, {8*3584}, v{vG}")
    A(f"v_and_b32 v{vT+1}, 7, v{vR}")
    A(f"v_lshl_add_u32 v{vOA}, v{vT+1}, 4, v{vT}")
    A(f"s_mul_i32 s{sBASE}, s{sMU}, {64*3584}")
    A(f"s_lshl_b32 s{sT}, s{sH}, 7")
    A(f"s_add_u32 s{sBASE}, s{sBASE}, s{sT}")
    A(f"s_mov_b32 s{sM0}, 0x00ff00ff")
    A(f"s_mov_b32 s{sM0+1}, 0x00ff00ff")
    A("s_waitcnt lgkmcnt(0)")
    srd(SC, sWS, W_SZ)
    A(f"s_cmp_lt_u32 s{sH}, {NFFN}")
    A("s_cbranch_scc0 L_bar1")
    srd(SA, sW1, 512 * 1792 * 2)
    srd(SN, sW3, 512 * 1792 * 2)
    if fdelay: A(f"s_sleep {fdelay}")
    for half, sr in ((0, SA), (1, SN)):
        A(f"s_mov_b64 exec, s[{sM0}:{sM0+1}]" if half == 0 else f"s_not_b64 exec, s[{sM0}:{sM0+1}]")
        for k in range(16):
            A(f"s_add_u32 s{sT}, s{sBASE}, {hex(((k>>3)*32 + (k&7))*3584)}")
            A(f"buffer_load_dwordx4 {slot(k)}, v{vOA}, {S4(sr)}, s{sT} offen {polf}")
    A("s_mov_b64 exec, -1")
    A("s_branch L_bar1")
    A.c("---- wave 4: layernorm, q partials, exchange ----"); A.lab("L_qw")
    if qprio: A(f"s_setprio {qprio}")
    A(f"v_lshrrev_b32 v{vT}, 2, v{vR}")
    A(f"v_lshlrev_b32 v{vT}, 10, v{vT}")
    A(f"v_and_b32 v{vT+1}, 3, v{vR}")
    A(f"v_lshlrev_b32 v{vT+1}, 6, v{vT+1}")
    A(f"v_lshlrev_b32 v{vT+2}, 8, v{vG}")
    A(f"v_add3_u32 v{vON}, v{vT}, v{vT+1}, v{vT+2}")
    A(f"v_lshl_add_u32 v{vL1}, v{vG}, 4, v{vT}")
    A(f"v_lshlrev_b32 v{vT}, 16, v{vG}")
    A(f"v_lshl_add_u32 v{vOA}, v{vR}, 4, v{vT}")
    A(f"v_mov_b32 v{vL2}, 0")
    A(f"s_lshl_b32 s{sT2}, s{sMU}, 7")
    A(f"s_lshl_b32 s{sBASE}, s{sMU}, 19")
    A(f"s_lshl_b32 s{sT}, s{sH}, 8")
    A(f"s_add_u32 s{sBASE}, s{sBASE}, s{sT}")
    A(f"s_lshl_b32 s{sT3}, s{sH}, 7")
    A(f"s_add_u32 s{sT3}, s{sT3}, {hex(W_EH)}")
    A("s_waitcnt lgkmcnt(0)")
    srd(SA, sX, 4096)
    for i in range(4):
        A(f"buffer_load_dwordx4 {q4(XR+4*i)}, v{vON}, {S4(SA)}, 0 offen offset:{16*i}")
    for s_ in range(2):
        A(f"buffer_load_dwordx4 {q4(XE+4*s_)}, v{vL1}, {S4(SA)}, s{sT2} offen offset:{64*s_}")
    srd(SN, sWQ, 0x400000)
    for k in range(16):
        A(f"s_add_u32 s{sT}, s{sBASE}, {hex(((k>>3)*32 + (k&7))*8192)}")
        A(f"buffer_load_dwordx4 {slot(k)}, v{vOA}, {S4(SN)}, s{sT} offen {polq}")
    srd(SC, sWS, W_SZ)
    A(f"buffer_load_dwordx2 {p2(vTG)}, v{vL2}, {S4(SC)}, s{sT3} offen sc1")
    stamp(0)
    def red16(reg, tmp):
        for qp in ("[1,0,3,2]", "[2,3,0,1]"):
            A("s_nop 1")
            A(f"v_add_f32_dpp v{reg}, v{reg}, v{reg} quad_perm:{qp} row_mask:0xf bank_mask:0xf")
        swaps("v_add_f32", reg, tmp)
    A("s_waitcnt vmcnt(19)")
    for i in range(16):
        A(f"v_lshlrev_b32 v{XF+2*i}, 16, v{XR+i}")
        A(f"v_and_b32 v{XF+2*i+1}, 0xffff0000, v{XR+i}")
    for i in range(8):
        A(f"v_pk_add_f32 {p2(XR+2*i)}, {p2(XF+4*i)}, {p2(XF+4*i+2)}")
    for st in (4, 2, 1):
        for i in range(st):
            A(f"v_pk_add_f32 {p2(XR+2*i)}, {p2(XR+2*i)}, {p2(XR+2*(i+st))}")
    A(f"v_add_f32 v{vT}, v{XR}, v{XR+1}")
    red16(vT, vT + 1)
    A(f"v_mul_f32 v{vT}, 0x3b000000, v{vT}")
    A(f"v_mov_b32 v{vT+1}, v{vT}")
    for i in range(16):
        A(f"v_pk_add_f32 {p2(XF+2*i)}, {p2(XF+2*i)}, {p2(vT)} neg_lo:[0,1] neg_hi:[0,1]")
    for c_ in range(2):
        A(f"v_pk_mul_f32 {p2(XR+2*c_)}, {p2(XF+2*c_)}, {p2(XF+2*c_)}")
    for i in range(2, 16):
        c_ = i & 1
        A(f"v_pk_fma_f32 {p2(XR+2*c_)}, {p2(XF+2*i)}, {p2(XF+2*i)}, {p2(XR+2*c_)}")
    A(f"v_pk_add_f32 {p2(XR)}, {p2(XR)}, {p2(XR+2)}")
    A(f"v_add_f32 v{vT+2}, v{XR}, v{XR+1}")
    red16(vT + 2, vT + 1)
    A(f"v_mul_f32 v{vT+2}, 0x3b000000, v{vT+2}")
    rne(vT, vT + 1)
    rne(vT + 2, vT + 1)
    A(f"v_add_f32 v{vT+2}, 0x3727c5ac, v{vT+2}")
    rne(vT + 2, vT + 1)
    A(f"v_sqrt_f32 v{vT+2}, v{vT+2}")
    A("s_nop 0")
    rne(vT + 2, vT + 1)
    A(f"v_rcp_f32 v{vT+2}, v{vT+2}")
    A("s_waitcnt vmcnt(17)")
    for i in range(8):
        A(f"v_lshlrev_b32 v{XF+2*i}, 16, v{XE+i}")
        A(f"v_and_b32 v{XF+2*i+1}, 0xffff0000, v{XE+i}")
    for i in range(16):
        A(f"v_sub_f32 v{XF+i}, v{XF+i}, v{vT}")
    for i in range(8):
        A(f"v_cvt_pk_bf16_f32 v{XE+i}, v{XF+2*i}, v{XF+2*i+1}")
    for i in range(8):
        A(f"v_lshlrev_b32 v{XF+2*i}, 16, v{XE+i}")
        A(f"v_and_b32 v{XF+2*i+1}, 0xffff0000, v{XE+i}")
    for i in range(16):
        A(f"v_mul_f32 v{XF+i}, v{XF+i}, v{vT+2}")
    for i in range(8):
        A(f"v_cvt_pk_bf16_f32 v{XE+i}, v{XF+2*i}, v{XF+2*i+1}")
    stamp(1)
    def bperm(dst, s_, jj):
        for m in range(4):
            lo = SL + 4 * (8 * s_ + 2 * m) + (jj >> 1)
            hi = SL + 4 * (8 * s_ + 2 * m + 1) + (jj >> 1)
            A(f"v_perm_b32 v{dst+m}, v{hi}, v{lo}, s{sM0 + (jj & 1)}")
    def tile_mma(w0, w1):
        A(f"s_mov_b32 s{sM0}, 0x05040100")
        A(f"s_mov_b32 s{sM0+1}, 0x07060302")
        A(w0)
        bperm(vA0, 0, 0)
        for n in range(16):
            s_, jj = n >> 3, n & 7
            cur = vA0 if (n & 1) == 0 else vA1
            nxt = vA1 if (n & 1) == 0 else vA0
            if n == 7 and w1: A(w1)
            if n + 1 < 16: bperm(nxt, (n + 1) >> 3, (n + 1) & 7)
            else: A("s_nop 1")
            A(f"v_mfma_f32_16x16x32_bf16 {q4(XD+4*jj)}, {q4(XE+4*s_)}, {q4(cur)}, {'0' if s_==0 else q4(XD+4*jj)}")
    def msg_addr(wbase):
        A(f"v_lshlrev_b32 v{vON}, 13, v{vG}")
        A(f"v_lshl_add_u32 v{vON}, v{vR}, 4, v{vON}")
        A(f"s_lshl_b32 s{sCUR}, s{sH}, 15")
        A(f"s_add_u32 s{sCUR}, s{sCUR}, {hex(wbase)}")
        A(f"s_lshl_b32 s{sT}, s{sMU}, 10")
        A(f"s_add_u32 s{sT}, s{sT}, s{sCUR}")
    thi = [vTG + 1]
    def msg_pack_store(pol):
        for n in range(2 if halfmsg else 4):
            A(f"v_mov_b32 v{XD+8*n+1}, v{XD+8*n+4}")
            A(f"v_mov_b32 v{XD+8*n+2}, v{vTG}")
            A(f"v_mov_b32 v{XD+8*n+3}, v{thi[0]}")
            if pol is not None: A(f"buffer_store_dwordx4 {q4(XD+8*n)}, v{vON}, {S4(SC)}, s{sT} offen offset:{256*n} {pol}")
    def msg_round(sl0, pc=0, pol="sc1"):
        if halfmsg: A("s_mov_b32 exec_hi, 0")
        for n in range(8):
            if pc and n >= pc: A(f"s_waitcnt vmcnt({pc-1})")
            A(f"buffer_load_dwordx4 {slot(sl0+n)}, v{vOV}, {S4(SC)}, s{sCUR if n<4 else sNXT} offen offset:{1024*(n&3)} {pol}")
        A(f"s_add_u32 s{sSPIN}, s{sSPIN}, 1")
        A(f"v_mov_b32 v{vT}, 0")
        for n in range(8):
            A(f"s_waitcnt vmcnt({7-n})")
            A(f"v_xor_b32 v{vT+1}, v{SL+4*(sl0+n)+2}, v{vTG}")
            A(f"v_xor_b32 v{vT+2}, v{SL+4*(sl0+n)+3}, v{thi[0]}")
            A(f"v_or3_b32 v{vT}, v{vT}, v{vT+1}, v{vT+2}")
        A(f"v_cmp_ne_u32 vcc, 0, v{vT}")
        A("s_nop 1")
        if halfmsg: A("s_mov_b64 exec, -1")
        A("s_cmp_eq_u64 vcc, 0")
    def msg_sum(sl0):
        for st in (4, 2, 1):
            for n in range(st):
                A(f"v_pk_add_f32 {p2(SL+4*(sl0+n))}, {p2(SL+4*(sl0+n))}, {p2(SL+4*(sl0+n+st))}")
    tile_mma("s_waitcnt vmcnt(9)", "s_waitcnt vmcnt(1)")
    A("s_waitcnt vmcnt(0)")
    tag_from_epoch(vTG, vT)
    vCK = vTG + 2
    if colo:
        A(f"s_getreg_b32 s{sIT}, hwreg(HW_REG_XCC_ID)")
        A(f"s_and_b32 s{sIT}, s{sIT}, 15")
        A(f"s_add_u32 s{sIT}, s{sIT}, 1")
        A(f"s_lshl_b32 s{sIT}, s{sIT}, 20")
        A(f"v_xor_b32 v{vCK}, s{sIT}, v{vTG+1}")
        thi[0] = vCK
    msg_addr(W_QA)
    A(f"s_add_u32 s{sBASE}, s{sT}, {hex(W_QB-W_QA)}")
    A("s_nop 2")
    if noq == 1: A("s_branch L_qnl")
    msg_pack_store("sc1" if qonlyB else "")
    def storeB():
        for n in range(2 if halfmsg else 4):
            A(f"buffer_store_dwordx4 {q4(XD+8*n)}, v{vON}, {S4(SC)}, s{sBASE} offen offset:{256*n} sc1")
    stamp(2)
    A(f"ds_write_b128 v{vOV}, {q4(XE)} offset:{L_XE}")
    A(f"ds_write_b128 v{vOV}, {q4(XE+4)} offset:{L_XE+1024}")
    A(f"ds_write_b64 v{vL2}, {p2(vTG)} offset:{L_TG}")
    A(f"s_lshl_b32 s{sT}, s{sB}, 13")
    A(f"s_add_u32 s{sCUR}, s{sCUR}, s{sT}")
    A(f"s_add_u32 s{sNXT}, s{sCUR}, 4096")
    A(f"s_mov_b32 s{sSPIN}, 0")
    if qack: A("s_waitcnt vmcnt(0)")
    if qpre: A(f"s_sleep {qpre}")
    if qlite:
        A(f"v_lshlrev_b32 v{vT+3}, 10, v{vLANE}")
        A(f"v_add_u32 v{vT+3}, {496 if halfmsg else 1008}, v{vT+3}")
        A("s_mov_b64 exec, 0xff")
        A.lab("L_ql")
        A(f"buffer_load_dwordx4 {slot(0)}, v{vT+3}, {S4(SC)}, s{sCUR} offen sc1")
        A(f"s_add_u32 s{sSPIN}, s{sSPIN}, 1")
        A("s_waitcnt vmcnt(0)")
        A(f"v_xor_b32 v{vT+1}, v{SL+2}, v{vTG}")
        A(f"v_xor_b32 v{vT+2}, v{SL+3}, v{thi[0]}")
        A(f"v_or_b32 v{vT}, v{vT+1}, v{vT+2}")
        A(f"v_cmp_ne_u32 vcc, 0, v{vT}")
        A("s_nop 1")
        A("s_cmp_eq_u64 vcc, 0")
        A("s_cbranch_scc1 L_ql_ok")
        A(f"s_cmp_lt_u32 s{sSPIN}, {NA-1}")
        A("s_cbranch_scc1 L_ql")
        A.lab("L_ql_ok")
        A("s_mov_b64 exec, -1")
    A.lab("L_qp")
    msg_round(0)
    A("s_cbranch_scc1 L_qp_ok")
    if colo:
        A(f"s_cmp_lt_u32 s{sSPIN}, {NA}")
        A("s_cbranch_scc1 L_qp")
        A(f"s_cmp_eq_u32 s{sSPIN}, {NA}")
        A("s_cbranch_scc0 L_qp_c")
        for n in range(4):
            A(f"v_mov_b32 v{XD+8*n+3}, v{vTG+1}")
        storeB()
        A.lab("L_qp_c")
        A(f"s_xor_b32 s{sCUR}, s{sCUR}, {hex(W_QA ^ W_QB)}")
        A(f"s_xor_b32 s{sNXT}, s{sNXT}, {hex(W_QA ^ W_QB)}")
        A(f"v_xor_b32 v{vCK}, s{sIT}, v{vCK}")
    elif not qonlyB:
        A(f"s_cmp_eq_u32 s{sSPIN}, {NA}")
        A("s_cbranch_scc0 L_qp_c")
        storeB()
        A(f"s_add_u32 s{sCUR}, s{sCUR}, {hex(W_QB-W_QA)}")
        A(f"s_add_u32 s{sNXT}, s{sNXT}, {hex(W_QB-W_QA)}")
        A.lab("L_qp_c")
    A(f"s_cmp_lt_u32 s{sSPIN}, {SPINMAX}")
    A("s_cbranch_scc1 L_qp")
    A.lab("L_qp_ok")
    stamp(6)
    if stamps: A(f"v_writelane_b32 v{vST}, s{sSPIN}, 60")
    msg_sum(0)
    A(f"v_cvt_pk_bf16_f32 v{vT}, v{SL}, v{SL+1}")
    A(f"v_lshlrev_b32 v{vT+1}, 2, v{vG}")
    A(f"v_lshl_add_u32 v{vT+1}, v{vR}, 4, v{vT+1}")
    A(f"ds_write_b32 v{vT+1}, v{vT} offset:{L_Q}")
    if colo:
        thi[0] = vTG + 1
        A(f"s_bfe_u32 s{sT}, s{sCUR}, {(1<<16)|20}")
        A(f"v_mov_b32 v{vT+2}, s{sT}")
        A(f"ds_write_b32 v{vL2}, v{vT+2} offset:{L_TG+8}")
    if noq == 2: A("s_branch L_qnl")
    if mergeB:
        A("s_waitcnt lgkmcnt(0)")
        A("s_barrier")
    if not qonlyB and 'b' not in est and not colo: storeB()
    A(f"s_cmp_eq_u32 s{sMU}, 0")
    A("s_cbranch_scc0 L_qnl")
    A(f"v_lshlrev_b32 v{vT}, 3, v{vLANE}")
    A("s_mov_b64 exec, 0xffff")
    A(f"buffer_store_dwordx2 {p2(vTG)}, v{vT}, {S4(SC)}, s{sT3} offen {'' if eplain else 'sc1'}")
    A("s_mov_b64 exec, -1")
    A.lab("L_qnl")
    A("s_waitcnt lgkmcnt(0)")
    if qprio: A("s_setprio 0")
    if mergeB: A("s_branch L_ab1")
    A.lab("L_bar1")
    A("s_barrier")
    A.lab("L_ab1")
    stamp(3)
    cut(1)
    build_masks()
    A(f"v_mov_b32 v{vL2}, 0")
    A(f"v_lshlrev_b32 v{vT}, 5, v{vR}")
    A(f"v_lshl_add_u32 v{vL0}, v{vG}, 4, v{vT}")
    A(f"s_lshl_b32 s{sPO}, s{sB}, 5")
    A(f"s_add_u32 s{sPO}, s{sPO}, s{sH}")
    A(f"s_lshl_b32 s{sPO}, s{sPO}, 1")
    A(f"s_add_u32 s{sPO}, s{sPO}, s{sSP}")
    A(f"s_lshl_b32 s{sPO}, s{sPO}, 10")
    A(f"s_add_u32 s{sPO}, s{sPO}, {hex(W_Z)}")
    vTB = vBQ + 10
    vPO = SL + 128
    vGt = vPO + 8
    vXr = vPO + 12
    if fc and not fc.get('inl'):
        A(f"s_cmp_eq_u32 s{sJ}, 2")
        A("s_cbranch_scc0 L_nz")
        A(f"s_and_b32 s{sCUR}, s2, 7")
        A(f"s_lshl_b32 s{sCUR}, s{sCUR}, 8")
        A(f"s_add_u32 s{sCUR}, s{sCUR}, {hex(W_PG)}")
        A(f"s_lshr_b32 s{sNXT}, s2, 3")
        A(f"s_lshl_b32 s{sNXT}, s{sNXT}, 2")
        A(f"s_add_u32 s{sNXT}, s{sNXT}, s{sCUR}")
        A(f"v_mov_b32 v{vT}, 0x40000000")
        A("s_mov_b64 exec, 1")
        A(f"buffer_store_dword v{vT}, v{vL2}, {S4(SC)}, s{sNXT} offen")
        A(f"buffer_store_dword v{vT}, v{vL2}, {S4(SC)}, s{sCUR} offen offset:128")
        if fc.get("glob", True):
            A("s_cmp_lt_u32 s2, 8")
            A("s_cbranch_scc0 L_nz2")
            A(f"s_add_u32 s{sT}, s{sCUR}, 0x1000")
            A(f"buffer_store_dword v{vT}, v{vL2}, {S4(SC)}, s{sT} offen sc1")
            A.lab("L_nz2")
        A("s_mov_b64 exec, -1")
        A.lab("L_nz")
    A(f"s_cmp_eq_u32 s{sJ}, 1")
    A("s_cbranch_scc1 L_f1")
    A(f"s_cmp_eq_u32 s{sJ}, 3")
    A("s_cbranch_scc0 L_wo")
    if 'c' in skip: A("s_branch L_wo")
    if not clr0 and not kev:
        for i in range(4):
            A(f"v_mov_b32 v{vBQ+i}, -1")
        A(f"s_lshl_b32 s{sT}, s2, 11")
        A(f"buffer_store_dwordx4 {q4(vBQ)}, v{vOV}, {S4(SC)}, s{sT} offen sc1")
        A(f"buffer_store_dwordx4 {q4(vBQ)}, v{vOV}, {S4(SC)}, s{sT} offen offset:1024 sc1")
    A(f"s_lshl_b32 s{sT}, s{sB}, 7")
    A(f"s_add_u32 s{sT}, s{sT}, {hex(W_EB)}")
    A(f"buffer_load_dwordx2 {p2(vTB)}, v{vL2}, {S4(SC)}, s{sT} offen sc1")
    A("s_branch L_wo")
    A.c("---- wave 5: FFN stage 1 partials ----"); A.lab("L_f1")
    if 'f' in skip: A("s_branch L_f1x")
    A(f"s_cmp_lt_u32 s{sH}, {NFFN}")
    A("s_cbranch_scc0 L_f1x")
    A(f"ds_read_b128 {q4(XE)}, v{vOV} offset:{L_XE}")
    A(f"ds_read_b128 {q4(XE+4)}, v{vOV} offset:{L_XE+1024}")
    A(f"ds_read_b64 {p2(vTG)}, v{vL2} offset:{L_TG}")
    sCO = 35
    if colo: A(f"ds_read_b32 v{vCK}, v{vL2} offset:{L_TG+8}")
    zc = not (clr0 or kev)
    if zc:
        for i in range(4):
            A(f"v_mov_b32 v{vD0+i}, -1")
        A(f"buffer_store_dwordx4 {q4(vD0)}, v{vOV}, {S4(SC)}, s{sPO} offen sc1")
    tile_mma(f"s_waitcnt vmcnt({1 if zc else 0}) lgkmcnt(0)", None)
    msg_addr(W_FP)
    A("s_nop 4")
    if colo:
        A(f"v_readfirstlane_b32 s{sCO}, v{vCK}")
        msg_pack_store(None)
        A(f"s_cmp_eq_u32 s{sCO}, 1")
        A("s_cbranch_scc1 L_f1p")
        for n in range(4):
            A(f"buffer_store_dwordx4 {q4(XD+8*n)}, v{vON}, {S4(SC)}, s{sT} offen offset:{256*n} sc1")
        A("s_branch L_f1q")
        A.lab("L_f1p")
        for n in range(4):
            A(f"buffer_store_dwordx4 {q4(XD+8*n)}, v{vON}, {S4(SC)}, s{sT} offen offset:{256*n}")
        A.lab("L_f1q")
    elif fdual:
        A(f"s_add_u32 s{sBASE}, s{sT}, {hex(W_FB-W_FP)}")
        msg_pack_store("")
        storeB()
    else:
        msg_pack_store("" if 'f' in est else "sc1")
    A("s_waitcnt vmcnt(0)")
    def zdone():
        A(f"v_mov_b32 v{vT}, {L_CM}")
        A(f"v_mov_b32 v{vT+1}, 256")
        A("s_mov_b64 exec, 1")
        A(f"ds_add_u32 v{vT}, v{vT+1}")
        A("s_mov_b64 exec, -1")
    if kev: A("s_branch L_wo")
    A.lab("L_f1x")
    zdone()
    A.c("---- wo slice -> registers ----"); A.lab("L_wo")
    stamp(4)
    cut(3)
    wooff = (lambda k: ((k >> 3) * 32 + (k & 7)) * 1024) if pt else (lambda k: k * 4096)
    def wo_setup():
        srd(SN, sWO, 0x400000)
        A(f"v_lshlrev_b32 v{vT}, {13 if pt else 10}, v{vG}")
        A(f"v_lshl_add_u32 v{vOA}, v{vR}, 4, v{vT}")
        A(f"s_lshl_b32 s{sBASE}, s{sH}, 17")
        A(f"s_lshl_b32 s{sT}, s{sJ}, 8")
        A(f"s_add_u32 s{sBASE}, s{sBASE}, s{sT}")
    wo_setup()
    if 'w' in skip: A("s_branch L_woe")
    def wo_loads(dd, hook=False):
        for k in range(32):
            if hook and k == fearly:
                A(f"s_cmp_eq_u32 s{sJ}, 1")
                A("s_cbranch_scc0 L_woc")
                A(f"s_cmp_lt_u32 s{sH}, {NFFN}")
                A("s_cbranch_scc1 L_st2")
                A.lab("L_wor")
                wo_setup()
                A.lab("L_woc")
            if k >= dd: A(f"s_waitcnt vmcnt({dd-1})")
            A(f"s_add_u32 s{sT}, s{sBASE}, {hex(wooff(k))}")
            A(f"buffer_load_dwordx4 {slot(k)}, v{vOA}, {S4(SN)}, s{sT} offen {pola}")
    if fc and fc.get("inl"):
        A(f"s_cmp_eq_u32 s{sJ}, 2")
        A("s_cbranch_scc1 L_woe")
    elif fc and fc.get("d2"):
        A(f"s_lshr_b32 s{sT}, s2, 3")
        A(f"s_or_b32 s{sT}, s{sT}, s{sJ}")
        A(f"s_cselect_b32 s{sT}, s{sJ}, {2 if fc.get('glob', True) else 0}")
        A(f"s_cmp_eq_u32 s{sT}, 2")
        A("s_cbranch_scc0 L_wos")
        wo_loads(fc["d2"])
        A("s_branch L_woe")
        A.lab("L_wos")
    wo_loads(da, bool(fearly))
    A.lab("L_woe")
    A("s_waitcnt vmcnt(0)")
    stamp(5)
    cut(4)
    A(f"v_lshrrev_b32 v{vT}, 3, v{vLANE}")
    A(f"v_lshlrev_b32 v{vT}, 11, v{vT}")
    A(f"v_and_b32 v{vT+1}, 7, v{vLANE}")
    A(f"v_lshl_add_u32 v{vPO}, v{vT+1}, 4, v{vT}")
    for n in range(1, 8):
        A(f"v_add_u32 v{vPO+n}, {hex(n*16384)}, v{vPO}")
    A(f"v_lshlrev_b32 v{vL1}, 3, v{vT+1}")

    def gemv(n, ppf, waitf, issuef=None, slotf=lambda k: k):
        diag(vA0, *ppf(0))
        for k in range(n):
            Acur = vA0 if (k & 1) == 0 else vA1
            Anxt = vA1 if (k & 1) == 0 else vA0
            if k + 1 < n: diag(Anxt, *ppf(k + 1))
            else: A("s_nop 1")
            waitf(k)
            A(f"v_mfma_f32_16x16x32_bf16 {q4(vD0)}, {q4(Acur)}, {slot(slotf(k))}, {'0' if k==0 else q4(vD0)}")
            if issuef: issuef(k)
        A("s_nop 7")
    def lds_wait(mask, val):
        lab = A.uid("lw")
        A(f"v_mov_b32 v{vT}, {L_CM}")
        A(f"s_mov_b32 s{sSPIN}, 0")
        A.lab(lab)
        A(f"ds_read_b32 v{vT+1}, v{vT}")
        A("s_waitcnt lgkmcnt(0)")
        A(f"v_readfirstlane_b32 s{sT}, v{vT+1}")
        A(f"s_add_u32 s{sSPIN}, s{sSPIN}, 1")
        A(f"s_and_b32 s{sT}, s{sT}, {hex(mask)}")
        A(f"s_cmp_eq_u32 s{sT}, {hex(val)}")
        A(f"s_cbranch_scc1 {lab}_ok")
        A("s_sleep 16")
        A(f"s_cmp_lt_u32 s{sSPIN}, {SPINMAX}")
        A(f"s_cbranch_scc1 {lab}")
        A.lab(lab + "_ok")
    def poll(nload, regs, voffs, soff, sleep):
        lab = A.uid("pl")
        A(f"s_mov_b32 s{sSPIN}, 0")
        A.lab(lab)
        for n in range(nload):
            A(f"buffer_load_dwordx4 {q4(regs+4*n)}, v{voffs[n]}, {S4(SC)}, s{soff} offen sc1")
        A(f"s_add_u32 s{sSPIN}, s{sSPIN}, 1")
        for n in range(nload):
            A(f"s_waitcnt vmcnt({nload-1-n})")
            r = regs + 4 * n
            if n == 0:
                A(f"v_max3_u32 v{vT}, v{r}, v{r+1}, v{r+2}")
                A(f"v_max_u32 v{vT}, v{vT}, v{r+3}")
            else:
                A(f"v_max3_u32 v{vT}, v{vT}, v{r}, v{r+1}")
                A(f"v_max3_u32 v{vT}, v{vT}, v{r+2}, v{r+3}")
        A(f"v_cmp_eq_u32 vcc, -1, v{vT}")
        A("s_nop 1")
        A("s_cmp_eq_u64 vcc, 0")
        A(f"s_cbranch_scc1 {lab}_ok")
        if sleep: A(f"s_sleep {sleep}")
        A(f"s_cmp_lt_u32 s{sSPIN}, {SPINMAX}")
        A(f"s_cbranch_scc1 {lab}")
        A.lab(lab + "_ok")
    def reduce_rows(regs, nload):
        n = nload
        while n > 1:
            h = n // 2
            for a in range(h):
                for i in (0, 2):
                    A(f"v_pk_add_f32 {p2(regs+4*a+i)}, {p2(regs+4*a+i)}, {p2(regs+4*(a+h)+i)}")
            n = h
        A("s_nop 1")
        for i in range(4):
            A(f"v_add_f32_dpp v{regs+i}, v{regs+i}, v{regs+i} row_ror:8 row_mask:0xf bank_mask:0xf")
        for sw in ("v_permlane16_swap_b32", "v_permlane32_swap_b32"):
            for i in range(4):
                A(f"v_mov_b32 v{regs+4+i}, v{regs+i}")
            A("s_nop 1")
            for i in range(4):
                A(f"{sw} v{regs+i}, v{regs+4+i}")
            A("s_nop 1")
            for i in range(4):
                A(f"v_add_f32 v{regs+i}, v{regs+i}, v{regs+4+i}")

    A(f"s_cmp_eq_u32 s{sJ}, 3")
    A("s_cbranch_scc1 L_w3")
    if fc:
        U = fc.get("U", 8)
        PEND = int(4 * U * (16 - R // 16 + fc.get("vend", 13)))
        LIM = 2 * 4 * U * 3
        sPP, sGP, sP, sE = 72, 73, 74, 78
        A(f"s_cmp_eq_u32 s{sJ}, 2")
        A("s_cbranch_scc0 L_nctl")
        A(f"s_and_b32 s{sCUR}, s2, 7")
        A(f"s_lshl_b32 s{sCUR}, s{sCUR}, 8")
        A(f"s_add_u32 s{sCUR}, s{sCUR}, {hex(W_PG)}")
        A(f"s_lshr_b32 s{sNXT}, s2, 3")
        A(f"s_lshl_b32 s{sNXT}, s{sNXT}, 2")
        A(f"s_add_u32 s{sNXT}, s{sNXT}, s{sCUR}")
        A(f"v_lshlrev_b32 v{vON}, 2, v{vLANE}")
        A(f"v_mov_b32 v{vT7}, {L_PW}")
        A(f"v_and_b32 v{vPB}, 3, v{vLANE}")
        A(f"v_lshlrev_b32 v{vPB}, 2, v{vPB}")
        A(f"s_mov_b32 s{sPP}, -1")
        for th in fc["thr"]:
            if isinstance(th, tuple):
                A(f"s_getreg_b32 s{sT}, hwreg(HW_REG_XCC_ID)")
                A(f"s_mov_b32 s79, {int(th[0] * 64 * 4 * U / 2.2)}")
                A(f"s_bitcmp1_b32 s{sT}, 0")
                A(f"s_cselect_b32 s79, {int(th[1] * 64 * 4 * U / 2.2)}, s79")
        A(f"s_mov_b32 s{sGP}, 0")
        A(f"s_mov_b32 s{sSPIN}, 0")
        A.c("---- wave 6: stream balancing loop ----"); A.lab("L_ctl")
        if fc.get("inl"):
            npr = fc["inl"]; nst = 32 // npr
            A(f"s_cmp_ge_u32 s{sSPIN}, {nst}")
            A("s_cbranch_scc1 L_ctl_r")
            for r in range(1, nst):
                A(f"s_cmp_eq_u32 s{sSPIN}, {r}")
                A(f"s_cbranch_scc1 L_cw{r}")
            for r in range(nst):
                A.lab(f"L_cw{r}")
                for k in range(r * npr, (r + 1) * npr):
                    A(f"s_add_u32 s{sT}, s{sBASE}, {hex(wooff(k))}")
                    A(f"buffer_load_dwordx4 {slot(k)}, v{vOA}, {S4(SN)}, s{sT} offen {pola}")
                if r + 1 < nst: A("s_branch L_ctl_r")
            A.lab("L_ctl_r")
        A(f"ds_read_b128 {q4(vBQ)}, v{vT7}")
        A("s_waitcnt lgkmcnt(0)")
        A(f"v_add3_u32 v{vBQ}, v{vBQ}, v{vBQ+1}, v{vBQ+2}")
        A(f"v_add_u32 v{vBQ}, v{vBQ}, v{vBQ+3}")
        A("s_mov_b64 exec, 1")
        if not fc.get("lnost"): A(f"buffer_store_dword v{vBQ}, v{vL2}, {S4(SC)}, s{sNXT} offen {fc.get('spol','')}")
        A("s_mov_b64 exec, -1")
        if fc.get("half"): A("s_mov_b32 exec_hi, 0")
        if not fc.get("lnold"): A(f"buffer_load_dword v{vBQ+4}, v{vON}, {S4(SC)}, s{sCUR} offen {fc.get('pol','sc1')}")
        if fc.get("half"): A("s_mov_b64 exec, -1")
        A(f"v_readfirstlane_b32 s{sP}, v{vBQ}")
        A(f"s_add_u32 s{sSPIN}, s{sSPIN}, 1")
        A(f"s_cmp_eq_u32 s{sPP}, -1")
        A(f"s_cselect_b32 s{sPP}, s{sP}, s{sPP}")
        A(f"s_add_u32 s{sT}, s{sP}, s{sPP}")
        A(f"s_mov_b32 s{sPP}, s{sP}")
        A("s_waitcnt vmcnt(0)")
        A(f"v_lshlrev_b32 v{vBQ+5}, 1, v{vBQ+4}")
        A(f"v_subrev_u32 v{vBQ+5}, s{sT}, v{vBQ+5}")
        A(f"v_add_u32 v{vBQ+6}, {LIM}, v{vBQ+5}")
        A(f"v_cmp_gt_u32 vcc, {2*LIM}, v{vBQ+6}")
        A("s_nop 1")
        A("s_mov_b32 vcc_hi, 0")
        A("s_nop 1")
        A(f"v_cndmask_b32 v{vBQ+5}, 0, v{vBQ+5}, vcc")
        A(f"v_readlane_b32 s{sE}, v{vBQ+4}, 32")
        for n in (8, 4, 2, 1):
            A("s_nop 1")
            A(f"v_add_u32_dpp v{vBQ+5}, v{vBQ+5}, v{vBQ+5} row_ror:{n} row_mask:0xf bank_mask:0xf")
        A("s_nop 0")
        A(f"v_readlane_b32 s{sM0}, v{vBQ+5}, 0")
        A(f"v_readlane_b32 s{sM0+1}, v{vBQ+5}, 16")
        A(f"s_add_u32 s{sT2}, s{sE}, {32*LIM}")
        A(f"s_cmp_lt_u32 s{sT2}, {64*LIM}")
        A(f"s_cselect_b32 s{sE}, s{sE}, 0")
        if not fc.get("glob", True): A(f"s_mov_b32 s{sE}, 0")
        if fc.get("clamp"):
            cl = int(fc["clamp"] * 64 * 4 * U / 2.2)
            A(f"s_min_i32 s{sE}, s{sE}, {cl}")
            A(f"s_max_i32 s{sE}, s{sE}, {-cl if not fc.get('oneside') else 0}")
        A(f"s_add_u32 s{sM0}, s{sM0}, s{sM0+1}")
        A(f"s_sub_u32 s{sE}, s{sM0}, s{sE}")
        A(f"ds_read_b128 {q4(vBQ+8)}, v{vT7}")
        A(f"ds_read_b32 v{vBQ+6}, v{vPB} offset:{L_PW}")
        A("s_waitcnt lgkmcnt(0)")
        A(f"v_add3_u32 v{vBQ+8}, v{vBQ+8}, v{vBQ+9}, v{vBQ+10}")
        A(f"v_lshlrev_b32 v{vBQ+6}, 2, v{vBQ+6}")
        A(f"v_add_u32 v{vBQ+8}, v{vBQ+8}, v{vBQ+11}")
        A(f"v_sub_u32 v{vBQ+6}, v{vBQ+8}, v{vBQ+6}")
        A(f"v_mul_i32_i24 v{vBQ+6}, {fc.get('wgain', 64)}, v{vBQ+6}")
        A(f"v_add_u32 v{vBQ+6}, s{sE}, v{vBQ+6}")
        A(f"v_mov_b32 v{vBQ+7}, 0")
        for ti, th in enumerate(fc["thr"]):
            if isinstance(th, tuple): A(f"v_cmp_le_i32 vcc, s79, v{vBQ+6}")
            else: A(f"v_cmp_le_i32 vcc, {int(th * 64 * 4 * U / 2.2)}, v{vBQ+6}")
            A("s_nop 1")
            A(f"v_addc_co_u32 v{vBQ+7}, vcc, 0, v{vBQ+7}, vcc")
        A(f"ds_write_b32 v{vPB}, v{vBQ+7} offset:{L_LV}")
        if fc.get("sleep", 0): A(f"s_sleep {fc['sleep']}")
        A(f"s_cmp_ge_u32 s{sSPIN}, {SPINMAX}")
        A("s_cbranch_scc1 L_bar2")
        A(f"s_cmp_lt_u32 s{sP}, {PEND}")
        A("s_cbranch_scc1 L_ctl")
        if fc.get("inl"):
            A(f"s_cmp_lt_u32 s{sSPIN}, {32 // fc['inl']}")
            A("s_cbranch_scc1 L_ctl")
        if fc.get("fin") is not None:
            A(f"v_max_u32 v{vBQ+7}, {fc['fin']}, v{vBQ+7}")
            A(f"ds_write_b32 v{vPB}, v{vBQ+7} offset:{L_LV}")
        if stamps: A(f"v_writelane_b32 v{vST}, s{sSPIN}, 60")
        A("s_branch L_bar2")
        A.lab("L_nctl")
        if fc.get("glob", True):
            A(f"s_lshr_b32 s{sT}, s2, 3")
            A(f"s_or_b32 s{sT}, s{sT}, s{sJ}")
            A("s_cbranch_scc1 L_nrep")
            A(f"s_lshl_b32 s{sCUR}, s2, 8")
            A(f"s_add_u32 s{sCUR}, s{sCUR}, {hex(W_PG)}")
            A(f"v_lshlrev_b32 v{vON}, 2, v{vLANE}")
            A(f"s_mov_b32 s{sGP}, 0")
            A(f"s_mov_b32 s{sSPIN}, 0")
            A(f"s_mov_b32 s{sPP}, 0")
            A(f"v_lshlrev_b32 v{vOA}, 8, v{vLANE}")
            A(f"s_mov_b32 s{sNXT}, {hex(W_PG + 0x1000)}")
            A(f"s_add_u32 s{sBASE}, s{sCUR}, 0x1000")
            if stamps: A(f"v_mov_b32 v{vPG}, 0")
            A.lab("L_rep")
            A(f"s_add_u32 s{sPP}, s{sPP}, 1")
            A(f"s_cmp_ge_u32 s{sPP}, {SPINMAX}")
            A("s_cbranch_scc1 L_bar2")
            A(f"buffer_load_dword v{vBQ+4}, v{vON}, {S4(SC)}, s{sCUR} offen sc1")
            A("s_waitcnt vmcnt(0)")
            A(f"v_readlane_b32 s{sP}, v{vBQ+4}, 0")
            A("s_nop 1")
            A(f"s_cmp_ge_u32 s{sP}, 0x10000000")
            A("s_cbranch_scc1 L_rep")
            A(f"s_add_u32 s{sSPIN}, s{sSPIN}, 1")
            A(f"v_subrev_u32 v{vBQ+5}, s{sP}, v{vBQ+4}")
            A(f"v_add_u32 v{vBQ+6}, {LIM//2}, v{vBQ+5}")
            A(f"v_cmp_gt_u32 vcc, {LIM}, v{vBQ+6}")
            A("s_nop 1")
            A(f"v_cndmask_b32 v{vBQ+5}, 0, v{vBQ+5}, vcc")
            for n in (8, 4, 2, 1):
                A("s_nop 1")
                A(f"v_add_u32_dpp v{vBQ+5}, v{vBQ+5}, v{vBQ+5} row_ror:{n} row_mask:0xf bank_mask:0xf")
            A("s_nop 0")
            A(f"v_readlane_b32 s{sM0}, v{vBQ+5}, 0")
            A(f"v_readlane_b32 s{sM0+1}, v{vBQ+5}, 16")
            A(f"s_lshl_b32 s{sT}, s{sP}, 5")
            A(f"s_add_u32 s{sT}, s{sT}, s{sM0}")
            A(f"s_add_u32 s{sT}, s{sT}, s{sM0+1}")
            A(f"s_lshl_b32 s{sT}, s{sT}, 1")
            A(f"v_mov_b32 v{vBQ+6}, s{sT}")
            A("s_mov_b64 exec, 0xff")
            if not fc.get("gnold"): A(f"buffer_load_dword v{vBQ+8}, v{vOA}, {S4(SC)}, s{sNXT} offen sc1")
            A("s_mov_b32 exec_lo, -1")
            if not fc.get("gnost"): A(f"buffer_store_dword v{vBQ+6}, v{vON}, {S4(SC)}, s{sBASE} offen {fc.get('gpol','sc1')}")
            A("s_mov_b64 exec, -1")
            A(f"s_add_u32 s{sM1}, s{sT}, s{sGP}")
            A(f"s_lshr_b32 s{sM1}, s{sM1}, 1")
            A("s_waitcnt vmcnt(1)")
            A(f"v_sub_u32 v{vBQ+8}, s{sM1}, v{vBQ+8}")
            A(f"v_add_u32 v{vBQ+9}, {32*LIM}, v{vBQ+8}")
            A(f"v_cmp_gt_u32 vcc, {64*LIM}, v{vBQ+9}")
            A("s_nop 1")
            A(f"s_lshl_b32 s{sT2}, 1, s2")
            A(f"s_xor_b32 s{sT2}, s{sT2}, 0xff")
            A(f"s_and_b32 vcc_lo, vcc_lo, s{sT2}")
            A("s_nop 1")
            A(f"v_cndmask_b32 v{vBQ+8}, 0, v{vBQ+8}, vcc")
            for n in (4, 2, 1):
                A("s_nop 1")
                A(f"v_add_u32_dpp v{vBQ+8}, v{vBQ+8}, v{vBQ+8} row_ror:{n} row_mask:0xf bank_mask:0xf")
            A("s_nop 0")
            A(f"v_readlane_b32 s{sM1}, v{vBQ+8}, 7")
            A("s_nop 0")
            A(f"s_ashr_i32 s{sM1}, s{sM1}, 3")
            A(f"s_sub_i32 s{sM1}, s{sM1}, {int(fc.get('gbias', 0.0) * 64 * 4 * U / 2.2)}")
            A(f"s_cmp_le_u32 s{sSPIN}, 1")
            A(f"s_cselect_b32 s{sM1}, 0, s{sM1}")
            A(f"s_mov_b32 s{sGP}, s{sT}")
            A(f"v_mov_b32 v{vBQ+6}, s{sM1}")
            A("s_mov_b64 exec, 1")
            if not fc.get("nost"): A(f"buffer_store_dword v{vBQ+6}, v{vL2}, {S4(SC)}, s{sCUR} offen offset:128")
            A("s_mov_b64 exec, -1")
            if fc.get("gsleep"): A(f"s_sleep {fc['gsleep']}")
            if stamps:
                A(f"s_min_u32 m0, s{sSPIN}, 47")
                A(f"s_add_u32 m0, m0, 12")
                A("s_nop 0")
                A(f"v_writelane_b32 v{vPG}, s{sM1}, m0")
            A(f"s_cmp_ge_u32 s{sSPIN}, {SPINMAX}")
            A("s_cbranch_scc1 L_bar2")
            A(f"s_cmp_lt_u32 s{sP}, {PEND - 4*U}")
            A("s_cbranch_scc1 L_rep")
            if stamps:
                srd(SE, sWS, 0x700000)
                A(f"s_lshl_b32 s{sT}, s2, 8")
                A(f"s_add_u32 s{sT}, s{sT}, 0x600000")
                A(f"buffer_store_dword v{vPG}, v{vON}, {S4(SE)}, s{sT} offen")
            A("s_branch L_bar2")
            A.lab("L_nrep")
    A(f"s_cmp_eq_u32 s{sJ}, 1")
    A("s_cbranch_scc0 L_bar2")
    A(f"s_cmp_lt_u32 s{sH}, {NFFN}")
    A("s_cbranch_scc0 L_bar2")
    if fearly or 's' in skip: A("s_branch L_bar2")
    A.c("---- wave 5: FFN stage 2 ----"); A.lab("L_st2")
    A(f"s_lshl_b32 s{sCUR}, s{sH}, 15")
    A(f"s_lshl_b32 s{sT}, s{sB}, 13")
    A(f"s_add_u32 s{sCUR}, s{sCUR}, s{sT}")
    A(f"s_add_u32 s{sCUR}, s{sCUR}, {hex(W_FP)}")
    A(f"s_add_u32 s{sNXT}, s{sCUR}, 4096")
    A(f"s_mov_b32 s{sSPIN}, 0")
    if galign:
        lds_wait(0xf, 0x4)
        A(f"s_mov_b32 s{sSPIN}, 0")
    if fstag:
        U_ = fc.get("U", 8)
        A(f"s_lshr_b32 s{sT2}, s2, 3")
        A(f"s_mul_i32 s{sT2}, s{sT2}, {fstag[1]}")
        A(f"s_add_u32 s{sT2}, s{sT2}, {fstag[0]}")
        A(f"v_mov_b32 v{vT}, {L_PW}")
        A.lab("L_fs")
        A(f"ds_read_b32 v{vT+1}, v{vT}")
        A("s_waitcnt lgkmcnt(0)")
        A(f"v_readfirstlane_b32 s{sT}, v{vT+1}")
        A(f"s_add_u32 s{sSPIN}, s{sSPIN}, 1")
        A(f"s_cmp_ge_u32 s{sT}, s{sT2}")
        A("s_cbranch_scc1 L_fs_ok")
        A("s_sleep 8")
        A(f"s_cmp_lt_u32 s{sSPIN}, {SPINMAX}")
        A("s_cbranch_scc1 L_fs")
        A.lab("L_fs_ok")
        A(f"s_mov_b32 s{sSPIN}, 0")
    if 'g' in skip: A("s_branch L_fp_ok")
    if colo:
        A(f"s_cmp_eq_u32 s{sCO}, 1")
        A("s_cbranch_scc0 L_fp")
        msg_round(40, gpace, "nt")
        A("s_cbranch_scc1 L_fp_ok")
    if fdual:
        A.lab("L_fa")
        msg_round(40, gpace, polGA)
        A("s_cbranch_scc1 L_fp_ok")
        A("s_sleep 16")
        A(f"s_cmp_lt_u32 s{sSPIN}, 4")
        A("s_cbranch_scc1 L_fa")
        A(f"s_add_u32 s{sCUR}, s{sCUR}, {hex(W_FB-W_FP)}")
        A(f"s_add_u32 s{sNXT}, s{sNXT}, {hex(W_FB-W_FP)}")
    A.lab("L_fp")
    msg_round(40, gpace, "nt" if 'n' in est else "sc1")
    A("s_cbranch_scc1 L_fp_ok")
    A("s_sleep 16")
    A(f"s_cmp_lt_u32 s{sSPIN}, {SPINMAX}")
    A("s_cbranch_scc1 L_fp")
    A.lab("L_fp_ok")
    msg_sum(40)
    H = SL + 160
    for i in range(2):
        rne(H + i, vT)
    A("s_nop 1")
    for i in range(2):
        A(f"v_mov_b32_dpp v{vBQ+i}, v{H+i} row_ror:8 row_mask:0xf bank_mask:0xf")
    for i in range(2):
        silu(H + i, vT)
        rne(H + i, vT)
        A(f"v_mul_f32 v{H+i}, v{H+i}, v{vBQ+i}")
        A(f"v_cvt_pk_bf16_f32 v{vP0+i}, v{H+i}, v{H+i}")
    srd(SA, sW2, 0 if '2' in skip else 1792 * 512 * 2)
    A(f"v_lshlrev_b32 v{vT}, 11, v{vG}")
    A(f"v_lshl_add_u32 v{vOA}, v{vR}, 4, v{vT}")
    A(f"s_lshl_b32 s{sBASE}, s{sH}, 16")
    A(f"s_lshl_b32 s{sT}, s{sSP}, 9")
    A(f"s_add_u32 s{sBASE}, s{sBASE}, s{sT}")
    fsl = lambda k: 40 + (k & 7)
    def w2load(kk):
        cb, k = kk >> 4, kk & 15
        A(f"s_add_u32 s{sT}, s{sBASE}, {hex((8*(k&7) + (k>>3))*1024 + cb*256)}")
        A(f"buffer_load_dwordx4 {slot(fsl(kk))}, v{vOA}, {S4(SA)}, s{sT} offen {pola}")
    for cb in range(2):
        for k in range(df): w2load(16 * cb + k)
        gemv(16, lambda k: (vP0 + (k >> 3), k & 7),
             lambda k: A(f"s_waitcnt vmcnt({min(df-1, 15-k)})"),
             lambda k: w2load(16 * cb + k + df) if k + df < 16 else None, fsl)
        zr = vD1 if (mergeZ and cb == 0) else vD0
        for i in range(4):
            if not kev: A(f"v_min_u32 v{zr+i}, -2, v{vD0+i}")
            elif zr != vD0: A(f"v_mov_b32 v{zr+i}, v{vD0+i}")
        if mergeZ and cb == 0: continue
        if mergeZ == 2: lds_wait(*((0xf, 0x4) if VEV is None else (0xf000, 0x4000)))
        A("s_mov_b32 exec_hi, 0")
        if mergeZ and 'Z' not in est: A(f"buffer_store_dwordx4 {q4(vD1)}, v{vL0}, {S4(SC)}, s{sPO} offen sc1")
        if 'Z' not in est: A(f"buffer_store_dwordx4 {q4(vD0)}, v{vL0}, {S4(SC)}, s{sPO} offen offset:{512*cb} sc1")
        A("s_mov_b64 exec, -1")
    if kev:
        A("s_waitcnt vmcnt(0)")
        zdone()
    stamp(6)
    A("s_branch L_wor" if fearly else "s_branch L_bar2")
    A.c("---- wave 7: softmax merge factors, gate values ----"); A.lab("L_w3")
    if bare == 5 or 'm' in skip:
        A("s_branch L_bar2")
    tag_from_epoch(vTB, vT)
    if vwarm:
        srd(SA, sV, 0x10000000)
        A(f"s_lshl_b32 s{sT}, s{sB}, 26")
        A(f"s_lshl_b32 s{sT2}, s{sH}, 21")
        A(f"s_or_b32 s{sT}, s{sT}, s{sT2}")
        A(f"buffer_load_dword v{vT+9}, v{vL2}, {S4(SA)}, s{sT} offen nt")
    if kev:
        lds_wait(*((0xf, 0x4) if VEV is None else (0xf000, 0x4000)))
        for i in range(4):
            A(f"v_mov_b32 v{vD0+i}, -1")
        A(f"s_lshl_b32 s{sT}, s2, 11")
        if 'Y' not in est:
            A(f"buffer_store_dwordx4 {q4(vD0)}, v{vOV}, {S4(SC)}, s{sT} offen sc1")
            A(f"buffer_store_dwordx4 {q4(vD0)}, v{vOV}, {S4(SC)}, s{sT} offen offset:1024 sc1")
        A("s_waitcnt vmcnt(0)")
    lds_wait(0x10f, 0x104)
    A(f"v_mov_b32 v{vT}, {L_ML}")
    A(f"ds_read_b128 {q4(vBQ)}, v{vT}")
    A(f"ds_read_b128 {q4(vBQ+4)}, v{vT} offset:16")
    A("s_waitcnt lgkmcnt(0)")
    A(f"v_max_f32 v{vBQ+8}, v{vBQ}, v{vBQ+2}")
    A(f"v_max3_f32 v{vBQ+8}, v{vBQ+8}, v{vBQ+4}, v{vBQ+6}")
    A(f"v_mov_b32 v{vBQ+9}, 0")
    A(f"s_mov_b32 s{sT2}, {hex(LOG2E)}")
    for w in range(4):
        A(f"v_sub_f32 v{vT}, v{vBQ+2*w}, v{vBQ+8}")
        A(f"v_mul_f32 v{vT}, s{sT2}, v{vT}")
        A(f"v_exp_f32 v{vT}, v{vT}")
        A("s_nop 0")
        A(f"v_fmac_f32 v{vBQ+9}, v{vT}, v{vBQ+2*w+1}")
    A(f"s_lshl_b32 s{sT}, s2, {7 if fullml else 4}")
    A(f"s_add_u32 s{sT}, s{sT}, {hex(W_ML)}")
    A(f"s_mov_b64 exec, {0xff if fullml else 1}")
    A(f"buffer_store_dwordx4 {q4(vBQ+8)}, v{vOV}, {S4(SC)}, s{sT} offen {'' if 'M' in est else 'sc1'}")
    A("s_mov_b64 exec, -1")
    stamp(6)
    lds_wait(0xf0, 0x40)
    A(f"s_lshl_b32 s{sNXT}, s{sB}, {13 if fullml else 10}")
    A(f"s_add_u32 s{sNXT}, s{sNXT}, {hex(W_ML)}")
    A(f"s_mov_b32 s{sSPIN}, 0")
    A(f"v_lshlrev_b32 v{vON}, {7 if fullml else 4}, v{vLANE}")
    if fullml:
        A(f"s_cmp_ge_u32 s{sIDX}, {64 if 'M' in est else 48}")
        A("s_cbranch_scc1 L_ml")
        A(f"s_xor_b32 s{sT}, s{sIDX}, 8")
        A(f"s_lshl_b32 s{sT}, s{sT}, 7")
        A(f"v_mov_b32 v{vON}, s{sT}")
    A.lab("L_ml")
    A(f"buffer_load_dwordx4 {q4(vBQ+12)}, v{vON}, {S4(SC)}, s{sNXT} offen sc1")
    A(f"s_add_u32 s{sSPIN}, s{sSPIN}, 1")
    A("s_waitcnt vmcnt(0)")
    A(f"v_xor_b32 v{vT}, v{vBQ+14}, v{vTB}")
    A(f"v_xor_b32 v{vT+1}, v{vBQ+15}, v{vTB+1}")
    A(f"v_or_b32 v{vT}, v{vT}, v{vT+1}")
    A(f"v_cmp_ne_u32 vcc, 0, v{vT}")
    A("s_nop 1")
    A("s_cmp_eq_u64 vcc, 0")
    A("s_cbranch_scc1 L_ml_ok")
    A("s_sleep 16")
    A(f"s_cmp_lt_u32 s{sSPIN}, {SPINMAX}")
    A("s_cbranch_scc1 L_ml")
    A.lab("L_ml_ok")
    A(f"s_xor_b32 s{sT}, s{sIDX}, 8")
    A("s_nop 0")
    A(f"v_readlane_b32 s{sM0}, v{vBQ+12}, s{sT}")
    A(f"v_readlane_b32 s{sM0+1}, v{vBQ+13}, s{sT}")
    A("s_nop 1")
    A(f"v_max_f32 v{vBQ+14}, s{sM0}, v{vBQ+8}")
    A(f"v_sub_f32 v{vT}, v{vBQ+8}, v{vBQ+14}")
    A(f"v_sub_f32 v{vT+1}, s{sM0}, v{vBQ+14}")
    A(f"v_mul_f32 v{vT}, s{sT2}, v{vT}")
    A(f"v_mul_f32 v{vT+1}, s{sT2}, v{vT+1}")
    A(f"v_exp_f32 v{vT}, v{vT}")
    A(f"v_exp_f32 v{vT+1}, v{vT+1}")
    A("s_nop 0")
    A(f"v_mul_f32 v{vT}, v{vT}, v{vBQ+9}")
    A(f"v_fmac_f32 v{vT}, s{sM0+1}, v{vT+1}")
    A(f"v_rcp_f32 v{vT+1}, v{vT}")
    for w in range(4):
        A(f"v_sub_f32 v{vT+2+w}, v{vBQ+2*w}, v{vBQ+14}")
        A(f"v_mul_f32 v{vT+2+w}, s{sT2}, v{vT+2+w}")
        A(f"v_exp_f32 v{vT+2+w}, v{vT+2+w}")
        A("s_nop 0")
        A(f"v_mul_f32 v{vT+2+w}, v{vT+2+w}, v{vT+1}")
    A(f"v_mov_b32 v{vT}, {L_FW}")
    A("s_mov_b64 exec, 1")
    A(f"ds_write_b128 v{vT}, {q4(vT+2)}")
    A("s_mov_b64 exec, -1")
    A(f"s_cmp_ge_u32 s{sIDX}, 48")
    A("s_cbranch_scc0 L_w3x")
    A(f"s_cmp_eq_u32 s{sIDX}, 48")
    A("s_cbranch_scc0 L_neb")
    A(f"s_lshl_b32 s{sT}, s{sB}, 7")
    A(f"s_add_u32 s{sT}, s{sT}, {hex(W_EB)}")
    A(f"v_lshlrev_b32 v{vT+1}, 3, v{vLANE}")
    A("s_mov_b64 exec, 0xffff")
    A(f"buffer_store_dwordx2 {p2(vTB)}, v{vT+1}, {S4(SC)}, s{sT} offen {'' if eplain else 'sc1'}")
    A("s_mov_b64 exec, -1")
    A.lab("L_neb")
    srd(SA, sX, 4096)
    A(f"s_sub_u32 s{sT2}, s{sIDX}, 48")
    A(f"s_lshl_b32 s{sT3}, s{sT2}, 6")
    A(f"s_lshl_b32 s{sT}, s{sB}, 10")
    A(f"s_add_u32 s{sT3}, s{sT3}, s{sT}")
    A(f"buffer_load_dwordx2 {p2(vXr)}, v{vL1}, {S4(SA)}, s{sT3} offen")
    A(f"v_cmp_gt_u32 vcc, {(NFFN-24)*8}, v{vLANE}")
    A(f"v_mov_b32 v{vT+3}, 0x40000000")
    A("s_nop 0")
    A(f"v_cndmask_b32 v{vON}, v{vT+3}, v{vPO+3}, vcc")
    A(f"s_lshl_b32 s{sCUR}, s{sB}, 16")
    A(f"s_lshl_b32 s{sT}, s{sT2}, 7")
    A(f"s_add_u32 s{sCUR}, s{sCUR}, s{sT}")
    A(f"s_add_u32 s{sCUR}, s{sCUR}, {hex(W_Z)}")
    if kev:
        for n, vo in enumerate([vPO, vPO + 1, vPO + 2, vON]):
            A(f"buffer_load_dwordx4 {q4(vBQ+4*n)}, v{vo}, {S4(SC)}, s{sCUR} offen sc1")
        A("s_waitcnt vmcnt(0)")
    elif 's' not in skip: poll(4, vBQ, [vPO, vPO + 1, vPO + 2, vON], sCUR, 16)
    reduce_rows(vBQ, 4)
    for i in range(4):
        rne(vBQ + i, vT + 1)
        silu(vBQ + i, vT + 1)
        rne(vBQ + i, vT + 1)
        A(f"v_mov_b32 v{vGt+i}, v{vBQ+i}")
    A(f"v_and_b32 v{vXr+3}, 0xffff0000, v{vXr+1}")
    A(f"v_lshlrev_b32 v{vXr+2}, 16, v{vXr+1}")
    A(f"v_and_b32 v{vXr+1}, 0xffff0000, v{vXr}")
    A(f"v_lshlrev_b32 v{vXr}, 16, v{vXr}")
    A(f"s_lshl_b32 s{sCUR}, s{sB}, 17")
    A(f"s_lshl_b32 s{sT}, s{sT2}, 7")
    A(f"s_add_u32 s{sCUR}, s{sCUR}, s{sT}")
    A.lab("L_w3x")
    A("s_waitcnt lgkmcnt(0)")
    A.c("---- tail: output projection, final reduction ----"); A.lab("L_bar2")
    if pt:
        A("s_waitcnt vmcnt(0)")
        A(f"s_mov_b32 s{sM0}, 0x05040100")
        A(f"s_mov_b32 s{sM0+1}, 0x07060302")
        BB = lambda s_: SL + 160 if s_ == 0 else SL + 32 * (s_ - 1)
        for s_ in range(4):
            for jj in range(8):
                for m in range(4):
                    lo = SL + 4 * (8 * s_ + 2 * m) + (jj >> 1)
                    hi = SL + 4 * (8 * s_ + 2 * m + 1) + (jj >> 1)
                    A(f"v_perm_b32 v{BB(s_)+4*jj+m}, v{hi}, v{lo}, s{sM0 + (jj & 1)}")
        A(f"v_and_b32 v{vT}, 3, v{vR}")
        A(f"v_mul_u32_u24 v{vT}, 320, v{vT}")
        A(f"v_lshlrev_b32 v{vT+3}, 4, v{vG}")
        A(f"v_add_u32 v{vT}, {L_OP}, v{vT}")
        A(f"v_add_u32 v{vT}, v{vT}, v{vT+3}")
        A(f"v_xor_b32 v{vT+1}, {L_ZR + 32}, v{vT+3}")
        A(f"v_and_b32 v{vT+2}, 4, v{vR}")
        A(f"v_cmp_eq_u32 vcc, 0, v{vT+2}")
        A("s_nop 1")
        A(f"v_cndmask_b32 v{vP0}, v{vT+1}, v{vT}, vcc")
        A(f"v_cndmask_b32 v{vP1}, v{vT}, v{vT+1}, vcc")
    A(f"v_lshlrev_b32 v{vT}, 4, v{vR}")
    A(f"v_lshl_add_u32 v{vT}, v{vG}, 2, v{vT}")
    A(f"v_mov_b32 v{vT+1}, {L_FW}")
    A(f"s_lshl_b32 s{sNXT}, s2, 11")
    A(f"s_lshl_b32 s{sT}, s{sJ}, 9")
    A(f"s_add_u32 s{sNXT}, s{sNXT}, s{sT}")
    srd(SA, sOUT, 4096)
    A(f"s_cmp_ge_u32 s{sIDX}, 48")
    A(f"s_cselect_b32 s{sLV}, 1, 0")
    A(f"s_cmp_eq_u32 s{sJ}, 3")
    A(f"s_cselect_b32 s{sLV}, s{sLV}, 0")
    stamp(7)
    A("s_barrier")
    if bare in (5, 6) or 't' in skip: A("s_endpgm")
    if not pt:
        A(f"ds_read_b128 {q4(vBQ+8)}, v{vT+1}")
        for w in range(4):
            A(f"ds_read_b32 v{vBQ+w}, v{vT} offset:{L_OP + w*512}")
            A(f"ds_read_b32 v{vBQ+4+w}, v{vT} offset:{L_OP + w*512 + 256}")
        A("s_waitcnt lgkmcnt(0)")
        for u, p in ((0, vP0), (1, vP1)):
            A(f"v_mul_f32 v{p}, v{vBQ+4*u}, v{vBQ+8}")
        for w in range(1, 4):
            for u, p in ((0, vP0), (1, vP1)):
                A(f"v_fmac_f32 v{p}, v{vBQ+4*u+w}, v{vBQ+8+w}")
        A(f"v_cvt_pk_bf16_f32 v{vP0}, v{vP0}, v{vP0}")
        A(f"v_cvt_pk_bf16_f32 v{vP1}, v{vP1}, v{vP1}")
        A("s_nop 1")
    RA, RB = (SL + 96 if pt else SL + 160), SL
    def pissue(r0):
        for n in range(8):
            A(f"buffer_load_dwordx4 {q4(r0+4*n)}, v{vPO+n}, {S4(SC)}, s{sCUR} offen sc1")
    def early(k):
        if poll2 and k == poll2:
            A(f"s_cmp_eq_u32 s{sLV}, 1")
            A("s_cbranch_scc0 L_ne")
            pissue(RA)
            A.lab("L_ne")
    if pt:
        AF = [vBQ, vBQ + 4, vBQ + 8, vBQ + 12, SL + 144, SL + 148, SL + 152, SL + 156]
        ACC = [vD0, vD1, vA0, vA1]
        FWr = vT + 2
        YO = vBQ
        for s_ in range(4):
            A(f"ds_read_b128 {q4(AF[2*s_])}, v{vP0} offset:{64*s_}")
            A(f"ds_read_b128 {q4(AF[2*s_+1])}, v{vP1} offset:{64*s_}")
        A(f"ds_read_b128 {q4(FWr)}, v{vT+1}")
        n = 0
        for s_ in range(4):
            A(f"s_waitcnt lgkmcnt({7-2*s_})")
            for i in range(4):
                for hl in range(2):
                    A(f"v_mfma_f32_16x16x32_bf16 {q4(ACC[i])}, {q4(AF[2*s_+hl])}, {q4(BB(s_)+4*(4*hl+i))}, {'0' if (s_==0 and hl==0) else q4(ACC[i])}")
                    early(n); n += 1
        A("s_waitcnt lgkmcnt(0)")
        A("s_mov_b32 exec_hi, 0")
        for i in range(4):
            A(f"v_pk_mul_f32 {p2(vT+6)}, {p2(ACC[i])}, {p2(FWr)}")
            A(f"v_pk_fma_f32 {p2(vT+6)}, {p2(ACC[i]+2)}, {p2(FWr+2)}, {p2(vT+6)}")
            A(f"v_add_f32 v{YO+i}, v{vT+6}, v{vT+7}")
            A(f"v_min_u32 v{YO+i}, -2, v{YO+i}")
        A(f"buffer_store_dwordx4 {q4(YO)}, v{vL0}, {S4(SC)}, s{sNXT} offen sc1")
    else:
        gemv(32, lambda k: (vP0 + (k >> 4), k & 15), lambda k: None, early)
        for i in range(4):
            A(f"v_min_u32 v{vD0+i}, -2, v{vD0+i}")
        A("s_mov_b32 exec_hi, 0")
        A(f"buffer_store_dwordx4 {q4(vD0)}, v{vL0}, {S4(SC)}, s{sNXT} offen sc1")
    A("s_mov_b64 exec, -1")
    stamp(8)
    A(f"s_cmp_eq_u32 s{sLV}, 1")
    A("s_cbranch_scc0 L_auxend")
    if poll2:
        FR = SL + 64
        def pcheck(r0):
            for n in range(8):
                A(f"s_waitcnt vmcnt({15-n})")
                r = r0 + 4 * n
                if n == 0:
                    A(f"v_max3_u32 v{vT}, v{r}, v{r+1}, v{r+2}")
                    A(f"v_max_u32 v{vT}, v{vT}, v{r+3}")
                else:
                    A(f"v_max3_u32 v{vT}, v{vT}, v{r}, v{r+1}")
                    A(f"v_max3_u32 v{vT}, v{vT}, v{r+2}, v{r+3}")
                    for i in (0, 2):
                        A(f"v_pk_add_f32 {p2(FR+i)}, {p2((r0 if n == 1 else FR)+i)}, {p2(r+i)}")
            A(f"v_cmp_eq_u32 vcc, -1, v{vT}")
            A("s_nop 1")
            A("s_cmp_eq_u64 vcc, 0")
            A("s_cbranch_scc1 L_p2c")
        A(f"s_mov_b32 s{sSPIN}, 0")
        A.lab("L_p2")
        pissue(RB)
        pcheck(RA)
        pissue(RA)
        pcheck(RB)
        A(f"s_add_u32 s{sSPIN}, s{sSPIN}, 1")
        A(f"s_cmp_lt_u32 s{sSPIN}, {SPINMAX}")
        A("s_cbranch_scc1 L_p2")
        A.lab("L_p2c")
        reduce_rows(FR, 1)
    else:
        FR = SL
        poll(8, SL, [vPO + n for n in range(8)], sCUR, 1)
        reduce_rows(SL, 8)
    for i in range(4):
        rne(FR + i, vT + i)
    for i in range(4):
        A(f"v_mul_f32 v{FR+i}, v{FR+i}, v{vGt+i}")
    for i in range(4):
        rne(FR + i, vT + i)
    for i in range(4):
        A(f"v_add_f32 v{FR+i}, v{FR+i}, v{vXr+i}")
    A(f"v_cvt_pk_bf16_f32 v{FR+4}, v{FR}, v{FR+1}")
    A(f"v_cvt_pk_bf16_f32 v{FR+5}, v{FR+2}, v{FR+3}")
    A("s_mov_b64 exec, 0xff")
    A(f"buffer_store_dwordx2 v[{FR+4}:{FR+5}], v{vL1}, {S4(SA)}, s{sT3} offen {polo}")
    A("s_mov_b64 exec, -1")
    stamp(9)
    A.lab("L_auxend")
    stamp_flush()
    A.lab("L_end")
    A("s_endpgm")

    ref = open("recurrent_scan__mha_block_cached__glu_gated_swiglu__decode.s.ref").read()
    out = ref.split("; @launch")[0]
    out += f"; @launch grid=(256,1,1) block=(512,1,1) lds={LDS}\n"
    out += DOC
    out += '.amdgcn_target "amdgcn-amd-amdhsa--gfx950"\n.text\n'
    out += f".globl {NAME}\n.p2align 8\n.type {NAME},@function\n{NAME}:\n"
    out += "\n".join(A.L) + "\n"
    out += '.section .rodata,"a"\n.p2align 6\n'
    out += f".amdhsa_kernel {NAME}\n"
    out += f"  .amdhsa_next_free_vgpr {NV}\n  .amdhsa_next_free_sgpr 80\n  .amdhsa_accum_offset {NV}\n"
    out += "  .amdhsa_group_segment_fixed_size 0\n  .amdhsa_kernarg_size 96\n  .amdhsa_user_sgpr_count 2\n"
    out += "  .amdhsa_user_sgpr_kernarg_segment_ptr 1\n  .amdhsa_system_sgpr_workgroup_id_x 1\n.end_amdhsa_kernel\n"
    return out

if __name__ == "__main__":
    fn = sys.argv[1]
    kw = eval("dict(%s)" % (sys.argv[2] if len(sys.argv) > 2 else ""))
    open(fn, "w").write(gen(**kw))
```

```python
import sys

NAME = "recurrent_scan__mha_block_cached__glu_gated_swiglu__decode_kernel"


DOC = """;
;   wave 7: (max, sum) exchange of the two splits; 64 workgroups also reduce the final outputs.
"""

class G:
    def __init__(s):
        s.L = []
        s.n = 0
    def __call__(s, t):
        s.L.append("    " + t)
    def lab(s, t):
        s.L.append(t + ":")
    def c(s, t):
        s.L.append("    ; " + t)
    def uid(s, p):
        s.n += 1
        return f"L_{p}{s.n}"

def gen(d=5, dpro=8, da=2, sb=15, stamps=False, R=48, LAG=8, NA=8, VLATE=4,
        polq="", polf="", polp="", pola="nt", bare=0, qprio=3, fc=None, dlast=None,
        dpro2=None, n1=24, df=4, gpace=0, tfill=0, vwarm=False, poll2=False, polo='', vboost=None, fullml=True, fearly=0, noq=0, skip='', clr0=False, qlite=False, qpre=0, polGA='sc1', fstag=None, fdual=None, swap=False, colo=False, rs=False, mpoll=0, VEV=None, kev=False, eplain=False, est='', sameB=False, pt=False, xr=None, halfmsg=False, qonlyB=False, qack=False, ifirst=False, galign=False, order='oooo22', mergeB=False, mergeZ=0, hx=None, npos=None, d0=None, fdelay=0):
    dlast = dlast or d
    if fdual is None: fdual = bool(fearly)
    A = G()
    levels = [d] if fc is None else fc["levels"]
    assert max(levels) <= LAG
    sX, sK, sV, sWQ, sWO, sW1, sW3, sW2, sOUT, sDBG, sWS = 4, 6, 8, 10, 12, 16, 18, 20, 22, 24, 26
    sWAVE, sB, sH, sSP, sIDX, sJ, sMU = 28, 29, 30, 31, 32, 33, 34
    SA, SN, SC, SD_, SE = 36, 40, 44, 48, 52
    sCUR, sNXT, sT, sIT, sT2, sT3 = 56, 57, 58, 59, 60, 61
    sM0, sM1 = 62, 64
    sBASE, sSPIN, sLV, sPO = 66, 67, 68, 69
    sST = 70
    vLANE, vOA, vON, vOV, vG, vR, vT7 = 1, 2, 3, 4, 5, 6, 7
    vMK = 8
    vBQ = 12
    vD0, vD1 = 28, 32
    vS, vM = 36, 37
    vT = 38
    vA0, vA1 = 48, 52
    vP0, vP1 = 56, 57
    vL0, vL1, vL2 = 58, 59, 60
    vPG, vST, vPB = 61, 62, 63
    SL = 64
    NV = 256
    assert SL + 4 * R <= NV
    slot = lambda i: f"v[{SL+4*i}:{SL+4*i+3}]"
    q4 = lambda r: f"v[{r}:{r+3}]"
    p2 = lambda r: f"v[{r}:{r+1}]"
    S4 = lambda b: f"s[{b}:{b+3}]"
    L_Q = 0
    L_TG = 256
    L_ML = 272
    L_FW = 304
    L_CM = 320
    L_LV = 352
    L_PW = 336
    L_OP = 2048
    L_ZR = 512
    L_XE = 4096
    L_SC = 8192
    LDS = L_SC + 4 * 16 * 64 * 4 + 256
    W_Y, W_Z, W_ML, W_EH, W_EB, W_PG = 0, 0x80000, 0xC0000, 0xC8000, 0xC9000, 0xCA000
    W_QA, W_QB, W_FP, W_FB, W_SZ = 0x100000, 0x200000, 0x300000, 0x400000, 0x500000
    W_ST = 0x500000
    if sameB: W_QB = W_QA; W_FB = W_FP
    NFFN = 28
    LOG2E = 0x3FB8AA3B
    SCALE = 0x3DB504F3
    SPINMAX = 200000

    def srd(base, ptr, nbytes):
        A(f"s_mov_b32 s{base}, s{ptr}")
        A(f"s_mov_b32 s{base+1}, s{ptr+1}")
        A(f"s_mov_b32 s{base+2}, {hex(nbytes)}")
        A(f"s_mov_b32 s{base+3}, 0x00020000")
    def stamp(i):
        if not stamps: return
        A(f"s_memrealtime s[{sST}:{sST+1}]")
        A("s_waitcnt lgkmcnt(0)")
        A(f"v_writelane_b32 v{vST}, s{sST}, {i}")
    def stamp_it(base):
        if not stamps: return
        A(f"s_memrealtime s[{sST}:{sST+1}]")
        A(f"s_add_u32 m0, s{sIT}, {base}")
        A("s_waitcnt lgkmcnt(0)")
        A(f"v_writelane_b32 v{vST}, s{sST}, m0")
    def stamp_flush():
        if not stamps: return
        A(f"v_writelane_b32 v{vST}, s76, 10")
        A(f"v_writelane_b32 v{vST}, s75, 61")
        srd(SE, sWS, 0x600000)
        A(f"s_lshl_b32 s{sT}, s2, 3")
        A(f"s_add_u32 s{sT}, s{sT}, s{sWAVE}")
        A(f"s_lshl_b32 s{sT}, s{sT}, 8")
        A(f"s_add_u32 s{sT}, s{sT}, {hex(W_ST)}")
        A(f"v_lshlrev_b32 v{vT7}, 2, v{vLANE}")
        A(f"buffer_store_dword v{vST}, v{vT7}, {S4(SE)}, s{sT} offen")
    def cut(n):
        if bare == n:
            A("s_barrier"); A("s_endpgm")

    def swaps(op, reg, tmp):
        for sw in ("v_permlane16_swap_b32", "v_permlane32_swap_b32"):
            A("s_nop 0")
            A(f"v_mov_b32 v{tmp}, v{reg}")
            A("s_nop 1")
            A(f"{sw} v{reg}, v{tmp}")
            A("s_nop 0")
            A(f"{op} v{reg}, v{reg}, v{tmp}")
    def allreduce(op, reg, tmp):
        for n in (8, 4, 2, 1):
            A("s_nop 1")
            A(f"{op}_dpp v{reg}, v{reg}, v{reg} row_ror:{n} row_mask:0xf bank_mask:0xf")
        swaps(op, reg, tmp)
    def rne(reg, tmp):
        A(f"v_cvt_pk_bf16_f32 v{tmp}, v{reg}, v{reg}")
        A(f"v_and_b32 v{reg}, 0xffff0000, v{tmp}")
    def diag(dst, pp, j):
        for m in range(4):
            A(f"v_and_b32_dpp v{dst+m}, v{pp}, v{vMK+m} row_newbcast:{j} row_mask:0xf bank_mask:0xf")
    def silu(reg, t):
        A(f"v_mul_f32 v{t}, {hex(LOG2E | 0x80000000)}, v{reg}")
        A(f"v_exp_f32 v{t}, v{t}")
        A("s_nop 0")
        A(f"v_add_f32 v{t}, 1.0, v{t}")
        A(f"v_rcp_f32 v{t}, v{t}")
        A("s_nop 0")
        A(f"v_mul_f32 v{reg}, v{reg}, v{t}")
    def build_masks():
        A(f"v_and_b32 v{vT}, 1, v{vR}")
        A(f"v_lshlrev_b32 v{vT}, 4, v{vT}")
        A(f"v_mov_b32 v{vT+1}, 0xffff")
        A(f"v_lshlrev_b32 v{vT}, v{vT}, v{vT+1}")
        A(f"v_bfe_u32 v{vT+1}, v{vR}, 1, 2")
        for m in range(4):
            A(f"v_cmp_eq_u32 vcc, {m}, v{vT+1}")
            A("s_nop 1")
            A(f"v_cndmask_b32 v{vMK+m}, 0, v{vT}, vcc")
    def tag_from_epoch(reg, tmp):
        A(f"v_mov_b32 v{tmp}, 0x9e3779b9")
        A(f"v_add_co_u32 v{reg}, vcc, 0x7f4a7c15, v{reg}")
        A("s_nop 1")
        A(f"v_addc_co_u32 v{reg+1}, vcc, v{tmp}, v{reg+1}, vcc")

    if sb == 15:
        koff = lambda k: ((k & 7) << 12) | ((k >> 3) << 16); wsh = 10; GSTR = 1 << 17
    elif sb == 10:
        koff = lambda k: k << 13; wsh = 11; GSTR = 1 << 17
    elif sb == 16:
        koff = lambda k: k << 12; wsh = 10; GSTR = 1 << 17
    elif sb == 14:
        koff = lambda k: ((k & 3) << 12) | ((k >> 2) << 15); wsh = 10; GSTR = 1 << 17
    elif sb == 20:
        koff = lambda k: k << 12; wsh = 10; GSTR = 1 << 16

    if npos:
        wsh, kb, sb = npos
        wb = (wsh, wsh + 1) if isinstance(wsh, int) else wsh
        used = sorted(list(wb) + list(kb) + [sb])
        rest = [b_ for b_ in range(10, 21) if b_ not in used]
        assert len(rest) == 4 and rest == list(range(rest[0], rest[0] + 4)), rest
        koff = lambda k: sum(((k >> i) & 1) << kb[i] for i in range(4)); GSTR = 1 << rest[0]
    A("s_cmp_ge_u32 s2, 256")
    A("s_cbranch_scc1 L_end")
    if stamps: A("s_memrealtime s[76:77]")
    A("s_load_dwordx16 s[4:19], s[0:1], 0")
    A("s_load_dwordx8 s[20:27], s[0:1], 64")
    A(f"v_lshrrev_b32 v{vT7}, 6, v0")
    A(f"v_and_b32 v{vLANE}, 63, v0")
    A(f"v_readfirstlane_b32 s{sWAVE}, v{vT7}")
    A(f"v_lshrrev_b32 v{vG}, 4, v{vLANE}")
    A(f"v_and_b32 v{vR}, 15, v{vLANE}")
    A(f"v_lshlrev_b32 v{vOV}, 4, v{vLANE}")
    if stamps:
        A(f"v_mov_b32 v{vST}, 0")
        A("s_mov_b32 s75, 0")
    if swap: A(f"s_xor_b32 s{sWAVE}, s{sWAVE}, 4")
    A(f"s_lshr_b32 s{sB}, s2, 6")
    A(f"s_and_b32 s{sIDX}, s2, 63")
    A(f"s_bfe_u32 s{sSP}, s2, {(1<<16)|3}")
    if hx is None:
        A(f"s_bfe_u32 s{sT}, s2, {(2<<16)|4}")
        A(f"s_lshl_b32 s{sT}, s{sT}, 3")
        A(f"s_and_b32 s{sH}, s2, 7")
        A(f"s_or_b32 s{sH}, s{sH}, s{sT}")
    else:
        rest = [b_ for b_ in range(5) if b_ not in hx]
        A(f"s_mov_b32 s{sH}, 0")
        for src, dst in zip((0, 1, 2, 4, 5), list(hx) + rest):
            A(f"s_bfe_u32 s{sT}, s2, {(1<<16)|src}")
            A(f"s_lshl_b32 s{sT}, s{sT}, {dst}")
            A(f"s_or_b32 s{sH}, s{sH}, s{sT}")
    A(f"s_lshl_b32 s{sMU}, s{sB}, 1")
    A(f"s_or_b32 s{sMU}, s{sMU}, s{sSP}")
    A(f"s_cmp_ge_u32 s{sWAVE}, 4")
    A("s_cbranch_scc1 L_aux")

    A.c("---- stream waves ----")
    A(f"s_lshl_b32 s{sT3}, s{sH}, 16")
    A(f"s_lshl_b32 s{sT}, s{sMU}, 13")
    A(f"s_add_u32 s{sT3}, s{sT3}, s{sT}")
    A(f"s_lshl_b32 s{sT}, s{sWAVE}, 11")
    A(f"s_add_u32 s{sT3}, s{sT3}, s{sT}")
    A(f"s_lshl_b32 s{sT2}, s{sT3}, 1")
    A(f"v_lshrrev_b32 v{vT}, 2, v{vR}")
    A(f"v_lshlrev_b32 v{vT}, 8, v{vT}")
    A(f"v_and_b32 v{vT+1}, 3, v{vR}")
    A(f"v_lshlrev_b32 v{vT+1}, 4, v{vT+1}")
    A(f"v_lshlrev_b32 v{vT+2}, 6, v{vG}")
    A(f"v_add3_u32 v{vOA}, v{vT}, v{vT+1}, v{vT+2}")
    A(f"v_mov_b32 v{vON}, v{vOA}")
    A(f"s_lshl_b32 s{sBASE}, s{sB}, 26")
    A(f"s_lshl_b32 s{sT}, s{sH}, 21")
    A(f"s_or_b32 s{sBASE}, s{sBASE}, s{sT}")
    A(f"s_lshl_b32 s{sT}, s{sSP}, {sb}")
    A(f"s_or_b32 s{sBASE}, s{sBASE}, s{sT}")
    if isinstance(wsh, int):
        A(f"s_lshl_b32 s{sT}, s{sWAVE}, {wsh}")
        A(f"s_or_b32 s{sBASE}, s{sBASE}, s{sT}")
    else:
        for i_ in range(2):
            A(f"s_bfe_u32 s{sT}, s{sWAVE}, {(1<<16)|i_}")
            A(f"s_lshl_b32 s{sT}, s{sT}, {wsh[i_]}")
            A(f"s_or_b32 s{sBASE}, s{sBASE}, s{sT}")
    A("s_waitcnt lgkmcnt(0)")
    nis = [0]
    def pace():
        if d0 and nis[0] == d0: A(f"s_waitcnt vmcnt({d0-1})")
        if nis[0] >= dpro: A(f"s_waitcnt vmcnt({(dpro2 if dpro2 and nis[0] >= n1 else dpro)-1})")
        nis[0] += 1
    if xr:
        A(f"s_bfe_u32 s35, s2, {(xr[1]<<16)|xr[0]}")
        A(f"s_lshl_b32 s35, s35, {xr[2]}")
    def sload(sl, srdb, voff, sbase, off):
        A(f"s_add_u32 s{sT}, s{sbase}, {hex(off)}")
        if xr: A(f"s_xor_b32 s{sT}, s{sT}, s35")
        A(f"buffer_load_dwordx4 {slot(sl)}, v{voff}, {S4(srdb)}, s{sT} offen nt")
    gk = lambda i: (i >> 4) * GSTR + koff(i & 15)
    cnt = {'o': 0, '2': 0, 'k': 0}
    for ch in (order if bare != 2 else ""):
        if cnt[ch] == 0:
            if ch == 'o': srd(SC, sWO, 0x400000)
            elif ch == '2': srd(SD_, sW2, 1792 * 512 * 2)
            else: srd(SA, sK, 0x10000000)
        pace()
        k = cnt[ch]; cnt[ch] += 1
        if ch == 'o': A(f"buffer_load_dwordx4 {q4(vA0)}, v{vOV}, {S4(SC)}, s{sT2} offen offset:{k*1024} {polp}")
        elif ch == '2': A(f"buffer_load_dwordx4 {q4(vA0)}, v{vOV}, {S4(SD_)}, s{sT3} offen offset:{k*1024} {polp}")
        else: sload(k, SA, vOA, sBASE, gk(k))
    if cnt['k'] == 0: srd(SA, sK, 0x10000000)
    setup_done = False
    for i in range(cnt['k'], R):
        if nis[0] >= dpro and not setup_done:
            setup_done = True
            stamp(0)
            srd(SN, sK, 0x10000000)
            build_masks()
            A(f"v_lshlrev_b32 v{vL0}, 2, v{vLANE}")
            A(f"s_lshl_b32 s{sT2}, s{sWAVE}, 12")
            A(f"s_add_u32 s{sT2}, s{sT2}, {L_SC}")
            A(f"v_add_u32 v{vL0}, s{sT2}, v{vL0}")
            A(f"v_mov_b32 v{vL1}, v{vL0}")
            A(f"v_lshrrev_b32 v{vT}, 2, v{vR}")
            A(f"v_lshlrev_b32 v{vT}, 4, v{vT}")
            A(f"v_lshlrev_b32 v{vL2}, 6, v{vG}")
            A(f"v_add_u32 v{vL2}, v{vL2}, v{vT}")
            A(f"v_mov_b32 v{vM}, 0xff800000")
        pace()
        sload(i, SA, vOA, sBASE, gk(i))
        if i in (15, 31): stamp(7 + (i >> 4))
    stamp(1)
    A("s_barrier")
    stamp(2)
    A(f"ds_read_b128 {q4(vT+2)}, v{vL2} offset:{L_Q}")
    A(f"v_and_b32 v{vT}, 3, v{vR}")
    A("s_waitcnt lgkmcnt(0)")
    for t in range(4):
        A(f"v_cmp_eq_u32 vcc, {t}, v{vT}")
        A("s_nop 1")
        for m in range(4):
            A(f"v_cndmask_b32 v{vBQ+4*t+m}, 0, v{vT+2+m}, vcc")
    A("s_nop 1")

    def dpp_gather(u, i):
        D = vD0 if (u & 1) == 0 else vD1
        n = (4 * (u - i)) % 16
        ctrl = "quad_perm:[0,1,2,3]" if n == 0 else f"row_ror:{n}"
        if i == 0:
            A(f"v_mov_b32_dpp v{vS}, v{D} {ctrl} row_mask:0xf bank_mask:{hex(1<<u)}")
        else:
            A(f"v_add_f32_dpp v{vS}, v{D+i}, v{vS} {ctrl} row_mask:0xf bank_mask:{hex(1<<u)}")
    midctx = [None]
    hook = [lambda: None]
    def kgroup(slot0, waitf, issuef):
        for k in range(16):
            if k == 8: hook[0]()
            u, t = k >> 2, k & 3
            D = vD0 if (u & 1) == 0 else vD1
            waitf(k)
            if ifirst and midctx[0]: issuef(k)
            A(f"v_mfma_f32_16x16x32_bf16 {q4(D)}, {slot(slot0+k)}, {q4(vBQ+4*t)}, {'0' if t==0 else q4(D)}")
            if not (ifirst and midctx[0]): issuef(k)
            if u > 0:
                A("s_nop 6" if t == 0 else "s_nop 0")
                dpp_gather(u - 1, t)
        A("s_nop 7")
        for i in range(4):
            dpp_gather(3, i)
            A("s_nop 1")
        rne(vS, vT)
        A(f"v_mul_f32 v{vT+1}, {hex(SCALE)}, v{vS}")
        rne(vT + 1, vT)
        A(f"v_max_f32 v{vM}, v{vM}, v{vT+1}")
        A(f"ds_write_b32 v{vL1}, v{vT+1}")
        A(f"v_add_u32 v{vL1}, 256, v{vL1}")

    issued = [0]
    for G0 in range(R // 16):
        def waitf(k, G0=G0):
            i = G0 * 16 + k
            A(f"s_waitcnt vmcnt({min(63, R-1-i + issued[0])})")
        def issuef(k, G0=G0):
            i = G0 * 16 + k
            if i < d:
                sload(i, SA, vOA, sBASE, gk(R + i)); issued[0] += 1
        kgroup(G0 * 16, waitf, issuef)
    for i in range(d, LAG):
        A(f"s_waitcnt vmcnt({d-1})")
        sload(i, SA, vOA, sBASE, gk(R + i))
    stamp(3)
    A(f"s_add_u32 s{sCUR}, s{sBASE}, {hex((R//16)*GSTR)}")
    A(f"s_mov_b32 s{sIT}, {R//16}")
    if fc:
        U = fc.get("U", 8)
        A(f"s_lshl_b32 s{sT}, s{sWAVE}, 2")
        A(f"s_add_u32 s{sT}, s{sT}, {L_PW}")
        A(f"v_mov_b32 v{vPB}, s{sT}")
        A(f"v_mov_b32 v{vPG}, 0")
        A(f"v_mov_b32 v{vT+8}, {fc.get('nom', 1)}")
    def steady_issue(k):
        kk = k + LAG
        if kk < 16:
            sload(kk, SA, vOA, sCUR, koff(kk))
        else:
            sload(kk - 16, SN, vON, sNXT, koff(kk - 16))
        if fc:
            if k % (16 // U) == 0:
                A(f"v_add_u32 v{vPG}, 1, v{vPG}")
                A(f"ds_write_b32 v{vPB}, v{vPG}")
            if k == 14 or (k == 6 and fc.get("mid")):
                A(f"ds_read_b32 v{vT+8}, v{vPB} offset:{L_LV-L_PW}")
    def midswitch():
        if not (fc and fc.get("mid") and midctx[0]): return
        tag, li = midctx[0]
        A("s_waitcnt lgkmcnt(0)")
        A(f"v_readfirstlane_b32 s{sLV}, v{vT+8}")
        for lj in range(len(levels)):
            if lj == li: continue
            A(f"s_cmp_eq_u32 s{sLV}, {lj}")
            A(f"s_cbranch_scc1 L_{tag}_h{lj}")
        A.lab(f"L_{tag}_h{li}")
    hook[0] = midswitch
    def wv(dd, k):
        lo = int(dd); fr = dd - lo
        up = int((k + 1) * fr + 1e-9) > int(k * fr + 1e-9)
        return (lo + (1 if up else 0)) - 1
    def dispatch(tag, body):
        if not fc:
            body(d); return
        A(f"v_readfirstlane_b32 s{sLV}, v{vT+8}")
        if tag == "v" and vboost:
            A(f"s_cmp_ge_u32 s{sIT}, {vboost[0]}")
            A(f"s_cselect_b32 s{sT}, {vboost[1]}, 0")
            A(f"s_add_u32 s{sLV}, s{sLV}, s{sT}")
            A(f"s_min_u32 s{sLV}, s{sLV}, {len(levels)-1}")
        if stamps: A(f"s_add_u32 s75, s75, s{sLV}")
        for li in range(1, len(levels)):
            A(f"s_cmp_eq_u32 s{sLV}, {li}")
            A(f"s_cbranch_scc1 L_{tag}_b{li}")
        for li, dd in enumerate(levels):
            A.lab(f"L_{tag}_b{li}")
            midctx[0] = (tag, li)
            body(dd)
            midctx[0] = None
            if li + 1 < len(levels): A(f"s_branch L_{tag}_e")
        A.lab(f"L_{tag}_e")
    A.c("---- K loop: one body per window size ----"); A.lab("L_kloop")
    A(f"s_add_u32 s{sNXT}, s{sCUR}, {hex(GSTR)}")
    A(f"s_cmp_eq_u32 s{sIT}, 15")
    A("s_cbranch_scc0 L_knl")
    A(f"s_mov_b32 s{sNXT}, s{sBASE}")
    A(f"s_mov_b32 s{SN}, s{sV}")
    A(f"s_mov_b32 s{SN+1}, s{sV+1}")
    A(f"v_mov_b32 v{vON}, v{vOV}")
    A.lab("L_knl")
    if fc: A("s_waitcnt lgkmcnt(0)")
    dispatch("k", lambda dd: kgroup(0, lambda k: A(f"s_waitcnt vmcnt({wv(dd,k)})"), steady_issue))
    stamp_it(16)
    A(f"s_mov_b32 s{sCUR}, s{sNXT}")
    A(f"s_add_u32 s{sIT}, s{sIT}, 1")
    A(f"s_cmp_lt_u32 s{sIT}, 16")
    A("s_cbranch_scc1 L_kloop")
    stamp(4)
    A(f"s_mov_b32 s{SA}, s{sV}")
    A(f"s_mov_b32 s{SA+1}, s{sV+1}")
    A(f"v_mov_b32 v{vOA}, v{vOV}")
    X = SL + 64
    tf = [0]
    def tfi():
        if tf[0] < tfill:
            A(f"s_waitcnt vmcnt({d-1})")
            steady_issue(tf[0]); tf[0] += 1
    tfi()
    A("s_waitcnt lgkmcnt(0)")
    for i in range(8):
        A(f"ds_read2st64_b32 v[{X+2*i}:{X+2*i+1}], v{vL0} offset0:{2*i} offset1:{2*i+1}")
    allreduce("v_max_f32", vM, vT)
    A(f"s_mov_b32 s{sT2}, {hex(LOG2E)}")
    A("s_waitcnt lgkmcnt(0)")
    for i in range(16):
        A(f"v_sub_f32 v{X+i}, v{X+i}, v{vM}")
    tfi()
    for i in range(16):
        A(f"v_mul_f32 v{X+i}, s{sT2}, v{X+i}")
    for i in range(16):
        A(f"v_exp_f32 v{X+i}, v{X+i}")
    A("s_nop 0")
    for i in range(16):
        A(f"v_cvt_pk_bf16_f32 v{X+16+i}, v{X+i}, v{X+i}")
    for i in range(8):
        A(f"ds_write2st64_b32 v{vL0}, v{X+16+2*i}, v{X+16+2*i+1} offset0:{2*i} offset1:{2*i+1}")
    A(f"v_mov_b32 v{vP1}, v{X+16}")
    tfi()
    for st in (8, 4, 2, 1):
        for i in range(st):
            A(f"v_add_f32 v{X+i}, v{X+i}, v{X+i+st}")
    allreduce("v_add_f32", X, vT)
    tfi()
    A(f"v_mov_b32 v{vT}, v{vM}")
    A(f"v_mov_b32 v{vT+1}, v{X}")
    A(f"s_lshl_b32 s{sT2}, s{sWAVE}, 3")
    A(f"s_add_u32 s{sT2}, s{sT2}, {L_ML}")
    A(f"v_mov_b32 v{vT+2}, s{sT2}")
    A(f"v_mov_b32 v{vT+3}, {L_CM}")
    A(f"v_mov_b32 v{vT+4}, 1")
    A("s_mov_b64 exec, 1")
    A(f"ds_write_b64 v{vT+2}, v[{vT}:{vT+1}]")
    A("s_waitcnt lgkmcnt(0)")
    A(f"ds_add_u32 v{vT+3}, v{vT+4}")
    A("s_mov_b64 exec, -1")
    A(f"v_mov_b32 v{vT+7}, 16")
    for i in range(4):
        A(f"v_mov_b32 v{vD0+i}, 0")
    A(f"v_add_u32 v{vL1}, 256, v{vL0}")
    A(f"v_lshlrev_b32 v{vT+5}, {4 if pt else 5}, v{vR}")
    A(f"v_lshlrev_b32 v{vT+6}, {3 if pt else 4}, v{vG}")
    A(f"s_mul_i32 s{sT2}, s{sWAVE}, {320 if pt else 512}")
    A(f"v_add3_u32 v{vL2}, v{vT+5}, v{vT+6}, s{sT2}")
    A(f"s_mov_b32 s{sIT}, 0")
    stamp(5)
    def vbody(waitf, issuef):
        A(f"v_mov_b32 v{vP0}, v{vP1}")
        A(f"ds_read_b32 v{vP1}, v{vL1}")
        A(f"v_add_u32 v{vL1}, 256, v{vL1}")
        diag(vA0, vP0, 0)
        for k in range(16):
            if k == 8: hook[0]()
            Acur = vA0 if (k & 1) == 0 else vA1
            Anxt = vA1 if (k & 1) == 0 else vA0
            if k < 15: diag(Anxt, vP0, k + 1)
            waitf(k)
            if ifirst and midctx[0]: issuef(k)
            A(f"v_mfma_f32_16x16x32_bf16 {q4(vD0)}, {q4(Acur)}, {slot(k)}, {q4(vD0)}")
            if not (ifirst and midctx[0]): issuef(k)
    if tfill:
        assert tf[0] == tfill
        A(f"s_add_u32 s{sNXT}, s{sCUR}, {hex(GSTR)}")
        A("s_waitcnt lgkmcnt(0)")
        vbody(lambda k: A(f"s_waitcnt vmcnt({d-1 if k >= tfill else LAG+tfill-1-k})"), lambda k: steady_issue(k) if k >= tfill else None)
        stamp_it(32)
        A(f"s_mov_b32 s{sCUR}, s{sNXT}")
        A(f"s_mov_b32 s{sIT}, 1")
    A.c("---- V loop: one body per window size ----"); A.lab("L_vloop")
    A(f"s_add_u32 s{sNXT}, s{sCUR}, {hex(GSTR)}")
    A(f"s_cmp_eq_u32 s{sIT}, {VLATE}")
    A("s_cbranch_scc0 L_vnl")
    A("s_mov_b64 exec, 1")
    A(f"ds_add_u32 v{vT+3}, v{vT+7}")
    A("s_mov_b64 exec, -1")
    A.lab("L_vnl")
    if VEV is not None:
        A(f"s_cmp_eq_u32 s{sIT}, {VEV}")
        A("s_cbranch_scc0 L_vne")
        A(f"v_mov_b32 v{vT+9}, 0x1000")
        A("s_mov_b64 exec, 1")
        A(f"ds_add_u32 v{vT+3}, v{vT+9}")
        A("s_mov_b64 exec, -1")
        A.lab("L_vne")
    A("s_waitcnt lgkmcnt(0)")
    dispatch("v", lambda dd: vbody(lambda k: A(f"s_waitcnt vmcnt({wv(dd,k)})"), steady_issue))
    stamp_it(32)
    A(f"s_mov_b32 s{sCUR}, s{sNXT}")
    A(f"s_add_u32 s{sIT}, s{sIT}, 1")
    A(f"s_cmp_lt_u32 s{sIT}, 15")
    A("s_cbranch_scc1 L_vloop")
    def lwait(k):
        if k + LAG < 16: A(f"s_waitcnt vmcnt({dlast-1})")
        else: A(f"s_waitcnt vmcnt({15-k})")
    A("s_waitcnt lgkmcnt(0)")
    vbody(lwait, lambda k: sload(k + LAG, SA, vOA, sCUR, koff(k + LAG)) if k + LAG < 16 else None)
    A("s_mov_b32 exec_hi, 0")
    A("s_nop 6")
    if pt:
        A(f"v_cvt_pk_bf16_f32 v{vD1}, v{vD0}, v{vD0+1}")
        A(f"v_cvt_pk_bf16_f32 v{vD1+1}, v{vD0+2}, v{vD0+3}")
        A(f"ds_write_b64 v{vL2}, {p2(vD1)} offset:{L_OP}")
    else:
        A(f"ds_write_b128 v{vL2}, {q4(vD0)} offset:{L_OP}")
    A("s_waitcnt lgkmcnt(0)")
    A("s_barrier")
    if stamps:
        A("s_mov_b64 exec, -1")
        stamp_it(32)
        stamp(6)
        stamp_flush()
    A("s_endpgm")

    XR = SL + 64
    XF = SL + 80
    XE = vBQ
    XD = SL + 128
    vTG = vBQ + 8
    A.c("---- helper waves ----"); A.lab("L_aux")
    if bare == 2:
        A("s_barrier"); A("s_barrier"); A("s_endpgm")
    A(f"s_sub_u32 s{sJ}, s{sWAVE}, 4")
    A(f"s_cmp_eq_u32 s{sJ}, 0")
    A("s_cbranch_scc1 L_qw")
    A(f"s_cmp_eq_u32 s{sJ}, 1")
    A("s_cbranch_scc1 L_fw")
    A(f"v_mov_b32 v{vT}, {L_CM}")
    A(f"v_mov_b32 v{vT+2}, 0")
    A(f"ds_write_b32 v{vT}, v{vT+2}")
    if pt:
        A(f"v_lshlrev_b32 v{vT+1}, 2, v{vLANE}")
        A(f"ds_write_b32 v{vT+1}, v{vT+2} offset:{L_ZR}")
    if fc:
        for i in range(3, 6): A(f"v_mov_b32 v{vT+i}, 0")
        for i in range(6, 10): A(f"v_mov_b32 v{vT+i}, {fc.get('nom', 1)}")
        A(f"ds_write_b128 v{vT}, {q4(vT+2)} offset:{L_PW-L_CM}")
        A(f"ds_write_b128 v{vT}, {q4(vT+6)} offset:{L_LV-L_CM}")
    A("s_waitcnt lgkmcnt(0)")
    srd(SC, sWS, W_SZ)
    if fc and fc.get("inl"):
        A(f"s_cmp_eq_u32 s{sJ}, 2")
        A("s_cbranch_scc0 L_nz0")
        A(f"s_and_b32 s{sCUR}, s2, 7")
        A(f"s_lshl_b32 s{sCUR}, s{sCUR}, 8")
        A(f"s_lshr_b32 s{sNXT}, s2, 3")
        A(f"s_lshl_b32 s{sNXT}, s{sNXT}, 2")
        A(f"s_add_u32 s{sNXT}, s{sNXT}, s{sCUR}")
        A(f"s_add_u32 s{sNXT}, s{sNXT}, {hex(W_PG)}")
        A("s_mov_b64 exec, 1")
        A(f"buffer_store_dword v{vT+2}, v{vOV}, {S4(SC)}, s{sNXT} offen")
        A("s_mov_b64 exec, -1")
        A.lab("L_nz0")
    if clr0:
        A(f"s_cmp_eq_u32 s{sJ}, 3")
        A("s_cbranch_scc0 L_bar1")
        for i in range(4):
            A(f"v_mov_b32 v{vBQ+i}, -1")
        A(f"s_lshl_b32 s{sT}, s2, 11")
        A(f"buffer_store_dwordx4 {q4(vBQ)}, v{vOV}, {S4(SC)}, s{sT} offen sc1")
        A(f"buffer_store_dwordx4 {q4(vBQ)}, v{vOV}, {S4(SC)}, s{sT} offen offset:1024 sc1")
        A(f"s_lshl_b32 s{sPO}, s{sB}, 5")
        A(f"s_add_u32 s{sPO}, s{sPO}, s{sH}")
        A(f"s_lshl_b32 s{sPO}, s{sPO}, 1")
        A(f"s_add_u32 s{sPO}, s{sPO}, s{sSP}")
        A(f"s_lshl_b32 s{sPO}, s{sPO}, 10")
        A(f"s_add_u32 s{sPO}, s{sPO}, {hex(W_Z)}")
        A(f"buffer_store_dwordx4 {q4(vBQ)}, v{vOV}, {S4(SC)}, s{sPO} offen sc1")
        A("s_waitcnt vmcnt(0)")
    A("s_branch L_bar1")
    A.c("---- wave 5: w1/w3 tile loads ----"); A.lab("L_fw")
    A(f"v_mul_u32_u24 v{vT}, {8*3584}, v{vG}")
    A(f"v_and_b32 v{vT+1}, 7, v{vR}")
    A(f"v_lshl_add_u32 v{vOA}, v{vT+1}, 4, v{vT}")
    A(f"s_mul_i32 s{sBASE}, s{sMU}, {64*3584}")
    A(f"s_lshl_b32 s{sT}, s{sH}, 7")
    A(f"s_add_u32 s{sBASE}, s{sBASE}, s{sT}")
    A(f"s_mov_b32 s{sM0}, 0x00ff00ff")
    A(f"s_mov_b32 s{sM0+1}, 0x00ff00ff")
    A("s_waitcnt lgkmcnt(0)")
    srd(SC, sWS, W_SZ)
    A(f"s_cmp_lt_u32 s{sH}, {NFFN}")
    A("s_cbranch_scc0 L_bar1")
    srd(SA, sW1, 512 * 1792 * 2)
    srd(SN, sW3, 512 * 1792 * 2)
    if fdelay: A(f"s_sleep {fdelay}")
    for half, sr in ((0, SA), (1, SN)):
        A(f"s_mov_b64 exec, s[{sM0}:{sM0+1}]" if half == 0 else f"s_not_b64 exec, s[{sM0}:{sM0+1}]")
        for k in range(16):
            A(f"s_add_u32 s{sT}, s{sBASE}, {hex(((k>>3)*32 + (k&7))*3584)}")
            A(f"buffer_load_dwordx4 {slot(k)}, v{vOA}, {S4(sr)}, s{sT} offen {polf}")
    A("s_mov_b64 exec, -1")
    A("s_branch L_bar1")
    A.c("---- wave 4: layernorm, q partials, exchange ----"); A.lab("L_qw")
    if qprio: A(f"s_setprio {qprio}")
    A(f"v_lshrrev_b32 v{vT}, 2, v{vR}")
    A(f"v_lshlrev_b32 v{vT}, 10, v{vT}")
    A(f"v_and_b32 v{vT+1}, 3, v{vR}")
    A(f"v_lshlrev_b32 v{vT+1}, 6, v{vT+1}")
    A(f"v_lshlrev_b32 v{vT+2}, 8, v{vG}")
    A(f"v_add3_u32 v{vON}, v{vT}, v{vT+1}, v{vT+2}")
    A(f"v_lshl_add_u32 v{vL1}, v{vG}, 4, v{vT}")
    A(f"v_lshlrev_b32 v{vT}, 16, v{vG}")
    A(f"v_lshl_add_u32 v{vOA}, v{vR}, 4, v{vT}")
    A(f"v_mov_b32 v{vL2}, 0")
    A(f"s_lshl_b32 s{sT2}, s{sMU}, 7")
    A(f"s_lshl_b32 s{sBASE}, s{sMU}, 19")
    A(f"s_lshl_b32 s{sT}, s{sH}, 8")
    A(f"s_add_u32 s{sBASE}, s{sBASE}, s{sT}")
    A(f"s_lshl_b32 s{sT3}, s{sH}, 7")
    A(f"s_add_u32 s{sT3}, s{sT3}, {hex(W_EH)}")
    A("s_waitcnt lgkmcnt(0)")
    srd(SA, sX, 4096)
    for i in range(4):
        A(f"buffer_load_dwordx4 {q4(XR+4*i)}, v{vON}, {S4(SA)}, 0 offen offset:{16*i}")
    for s_ in range(2):
        A(f"buffer_load_dwordx4 {q4(XE+4*s_)}, v{vL1}, {S4(SA)}, s{sT2} offen offset:{64*s_}")
    srd(SN, sWQ, 0x400000)
    for k in range(16):
        A(f"s_add_u32 s{sT}, s{sBASE}, {hex(((k>>3)*32 + (k&7))*8192)}")
        A(f"buffer_load_dwordx4 {slot(k)}, v{vOA}, {S4(SN)}, s{sT} offen {polq}")
    srd(SC, sWS, W_SZ)
    A(f"buffer_load_dwordx2 {p2(vTG)}, v{vL2}, {S4(SC)}, s{sT3} offen sc1")
    stamp(0)
    def red16(reg, tmp):
        for qp in ("[1,0,3,2]", "[2,3,0,1]"):
            A("s_nop 1")
            A(f"v_add_f32_dpp v{reg}, v{reg}, v{reg} quad_perm:{qp} row_mask:0xf bank_mask:0xf")
        swaps("v_add_f32", reg, tmp)
    A("s_waitcnt vmcnt(19)")
    for i in range(16):
        A(f"v_lshlrev_b32 v{XF+2*i}, 16, v{XR+i}")
        A(f"v_and_b32 v{XF+2*i+1}, 0xffff0000, v{XR+i}")
    for i in range(8):
        A(f"v_pk_add_f32 {p2(XR+2*i)}, {p2(XF+4*i)}, {p2(XF+4*i+2)}")
    for st in (4, 2, 1):
        for i in range(st):
            A(f"v_pk_add_f32 {p2(XR+2*i)}, {p2(XR+2*i)}, {p2(XR+2*(i+st))}")
    A(f"v_add_f32 v{vT}, v{XR}, v{XR+1}")
    red16(vT, vT + 1)
    A(f"v_mul_f32 v{vT}, 0x3b000000, v{vT}")
    A(f"v_mov_b32 v{vT+1}, v{vT}")
    for i in range(16):
        A(f"v_pk_add_f32 {p2(XF+2*i)}, {p2(XF+2*i)}, {p2(vT)} neg_lo:[0,1] neg_hi:[0,1]")
    for c_ in range(2):
        A(f"v_pk_mul_f32 {p2(XR+2*c_)}, {p2(XF+2*c_)}, {p2(XF+2*c_)}")
    for i in range(2, 16):
        c_ = i & 1
        A(f"v_pk_fma_f32 {p2(XR+2*c_)}, {p2(XF+2*i)}, {p2(XF+2*i)}, {p2(XR+2*c_)}")
    A(f"v_pk_add_f32 {p2(XR)}, {p2(XR)}, {p2(XR+2)}")
    A(f"v_add_f32 v{vT+2}, v{XR}, v{XR+1}")
    red16(vT + 2, vT + 1)
    A(f"v_mul_f32 v{vT+2}, 0x3b000000, v{vT+2}")
    rne(vT, vT + 1)
    rne(vT + 2, vT + 1)
    A(f"v_add_f32 v{vT+2}, 0x3727c5ac, v{vT+2}")
    rne(vT + 2, vT + 1)
    A(f"v_sqrt_f32 v{vT+2}, v{vT+2}")
    A("s_nop 0")
    rne(vT + 2, vT + 1)
    A(f"v_rcp_f32 v{vT+2}, v{vT+2}")
    A("s_waitcnt vmcnt(17)")
    for i in range(8):
        A(f"v_lshlrev_b32 v{XF+2*i}, 16, v{XE+i}")
        A(f"v_and_b32 v{XF+2*i+1}, 0xffff0000, v{XE+i}")
    for i in range(16):
        A(f"v_sub_f32 v{XF+i}, v{XF+i}, v{vT}")
    for i in range(8):
        A(f"v_cvt_pk_bf16_f32 v{XE+i}, v{XF+2*i}, v{XF+2*i+1}")
    for i in range(8):
        A(f"v_lshlrev_b32 v{XF+2*i}, 16, v{XE+i}")
        A(f"v_and_b32 v{XF+2*i+1}, 0xffff0000, v{XE+i}")
    for i in range(16):
        A(f"v_mul_f32 v{XF+i}, v{XF+i}, v{vT+2}")
    for i in range(8):
        A(f"v_cvt_pk_bf16_f32 v{XE+i}, v{XF+2*i}, v{XF+2*i+1}")
    stamp(1)
    def bperm(dst, s_, jj):
        for m in range(4):
            lo = SL + 4 * (8 * s_ + 2 * m) + (jj >> 1)
            hi = SL + 4 * (8 * s_ + 2 * m + 1) + (jj >> 1)
            A(f"v_perm_b32 v{dst+m}, v{hi}, v{lo}, s{sM0 + (jj & 1)}")
    def tile_mma(w0, w1):
        A(f"s_mov_b32 s{sM0}, 0x05040100")
        A(f"s_mov_b32 s{sM0+1}, 0x07060302")
        A(w0)
        bperm(vA0, 0, 0)
        for n in range(16):
            s_, jj = n >> 3, n & 7
            cur = vA0 if (n & 1) == 0 else vA1
            nxt = vA1 if (n & 1) == 0 else vA0
            if n == 7 and w1: A(w1)
            if n + 1 < 16: bperm(nxt, (n + 1) >> 3, (n + 1) & 7)
            else: A("s_nop 1")
            A(f"v_mfma_f32_16x16x32_bf16 {q4(XD+4*jj)}, {q4(XE+4*s_)}, {q4(cur)}, {'0' if s_==0 else q4(XD+4*jj)}")
    def msg_addr(wbase):
        A(f"v_lshlrev_b32 v{vON}, 13, v{vG}")
        A(f"v_lshl_add_u32 v{vON}, v{vR}, 4, v{vON}")
        A(f"s_lshl_b32 s{sCUR}, s{sH}, 15")
        A(f"s_add_u32 s{sCUR}, s{sCUR}, {hex(wbase)}")
        A(f"s_lshl_b32 s{sT}, s{sMU}, 10")
        A(f"s_add_u32 s{sT}, s{sT}, s{sCUR}")
    thi = [vTG + 1]
    def msg_pack_store(pol):
        for n in range(2 if halfmsg else 4):
            A(f"v_mov_b32 v{XD+8*n+1}, v{XD+8*n+4}")
            A(f"v_mov_b32 v{XD+8*n+2}, v{vTG}")
            A(f"v_mov_b32 v{XD+8*n+3}, v{thi[0]}")
            if pol is not None: A(f"buffer_store_dwordx4 {q4(XD+8*n)}, v{vON}, {S4(SC)}, s{sT} offen offset:{256*n} {pol}")
    def msg_round(sl0, pc=0, pol="sc1"):
        if halfmsg: A("s_mov_b32 exec_hi, 0")
        for n in range(8):
            if pc and n >= pc: A(f"s_waitcnt vmcnt({pc-1})")
            A(f"buffer_load_dwordx4 {slot(sl0+n)}, v{vOV}, {S4(SC)}, s{sCUR if n<4 else sNXT} offen offset:{1024*(n&3)} {pol}")
        A(f"s_add_u32 s{sSPIN}, s{sSPIN}, 1")
        A(f"v_mov_b32 v{vT}, 0")
        for n in range(8):
            A(f"s_waitcnt vmcnt({7-n})")
            A(f"v_xor_b32 v{vT+1}, v{SL+4*(sl0+n)+2}, v{vTG}")
            A(f"v_xor_b32 v{vT+2}, v{SL+4*(sl0+n)+3}, v{thi[0]}")
            A(f"v_or3_b32 v{vT}, v{vT}, v{vT+1}, v{vT+2}")
        A(f"v_cmp_ne_u32 vcc, 0, v{vT}")
        A("s_nop 1")
        if halfmsg: A("s_mov_b64 exec, -1")
        A("s_cmp_eq_u64 vcc, 0")
    def msg_sum(sl0):
        for st in (4, 2, 1):
            for n in range(st):
                A(f"v_pk_add_f32 {p2(SL+4*(sl0+n))}, {p2(SL+4*(sl0+n))}, {p2(SL+4*(sl0+n+st))}")
    tile_mma("s_waitcnt vmcnt(9)", "s_waitcnt vmcnt(1)")
    A("s_waitcnt vmcnt(0)")
    tag_from_epoch(vTG, vT)
    vCK = vTG + 2
    if colo:
        A(f"s_getreg_b32 s{sIT}, hwreg(HW_REG_XCC_ID)")
        A(f"s_and_b32 s{sIT}, s{sIT}, 15")
        A(f"s_add_u32 s{sIT}, s{sIT}, 1")
        A(f"s_lshl_b32 s{sIT}, s{sIT}, 20")
        A(f"v_xor_b32 v{vCK}, s{sIT}, v{vTG+1}")
        thi[0] = vCK
    msg_addr(W_QA)
    A(f"s_add_u32 s{sBASE}, s{sT}, {hex(W_QB-W_QA)}")
    A("s_nop 2")
    if noq == 1: A("s_branch L_qnl")
    msg_pack_store("sc1" if qonlyB else "")
    def storeB():
        for n in range(2 if halfmsg else 4):
            A(f"buffer_store_dwordx4 {q4(XD+8*n)}, v{vON}, {S4(SC)}, s{sBASE} offen offset:{256*n} sc1")
    stamp(2)
    A(f"ds_write_b128 v{vOV}, {q4(XE)} offset:{L_XE}")
    A(f"ds_write_b128 v{vOV}, {q4(XE+4)} offset:{L_XE+1024}")
    A(f"ds_write_b64 v{vL2}, {p2(vTG)} offset:{L_TG}")
    A(f"s_lshl_b32 s{sT}, s{sB}, 13")
    A(f"s_add_u32 s{sCUR}, s{sCUR}, s{sT}")
    A(f"s_add_u32 s{sNXT}, s{sCUR}, 4096")
    A(f"s_mov_b32 s{sSPIN}, 0")
    if qack: A("s_waitcnt vmcnt(0)")
    if qpre: A(f"s_sleep {qpre}")
    if qlite:
        A(f"v_lshlrev_b32 v{vT+3}, 10, v{vLANE}")
        A(f"v_add_u32 v{vT+3}, {496 if halfmsg else 1008}, v{vT+3}")
        A("s_mov_b64 exec, 0xff")
        A.lab("L_ql")
        A(f"buffer_load_dwordx4 {slot(0)}, v{vT+3}, {S4(SC)}, s{sCUR} offen sc1")
        A(f"s_add_u32 s{sSPIN}, s{sSPIN}, 1")
        A("s_waitcnt vmcnt(0)")
        A(f"v_xor_b32 v{vT+1}, v{SL+2}, v{vTG}")
        A(f"v_xor_b32 v{vT+2}, v{SL+3}, v{thi[0]}")
        A(f"v_or_b32 v{vT}, v{vT+1}, v{vT+2}")
        A(f"v_cmp_ne_u32 vcc, 0, v{vT}")
        A("s_nop 1")
        A("s_cmp_eq_u64 vcc, 0")
        A("s_cbranch_scc1 L_ql_ok")
        A(f"s_cmp_lt_u32 s{sSPIN}, {NA-1}")
        A("s_cbranch_scc1 L_ql")
        A.lab("L_ql_ok")
        A("s_mov_b64 exec, -1")
    A.lab("L_qp")
    msg_round(0)
    A("s_cbranch_scc1 L_qp_ok")
    if colo:
        A(f"s_cmp_lt_u32 s{sSPIN}, {NA}")
        A("s_cbranch_scc1 L_qp")
        A(f"s_cmp_eq_u32 s{sSPIN}, {NA}")
        A("s_cbranch_scc0 L_qp_c")
        for n in range(4):
            A(f"v_mov_b32 v{XD+8*n+3}, v{vTG+1}")
        storeB()
        A.lab("L_qp_c")
        A(f"s_xor_b32 s{sCUR}, s{sCUR}, {hex(W_QA ^ W_QB)}")
        A(f"s_xor_b32 s{sNXT}, s{sNXT}, {hex(W_QA ^ W_QB)}")
        A(f"v_xor_b32 v{vCK}, s{sIT}, v{vCK}")
    elif not qonlyB:
        A(f"s_cmp_eq_u32 s{sSPIN}, {NA}")
        A("s_cbranch_scc0 L_qp_c")
        storeB()
        A(f"s_add_u32 s{sCUR}, s{sCUR}, {hex(W_QB-W_QA)}")
        A(f"s_add_u32 s{sNXT}, s{sNXT}, {hex(W_QB-W_QA)}")
        A.lab("L_qp_c")
    A(f"s_cmp_lt_u32 s{sSPIN}, {SPINMAX}")
    A("s_cbranch_scc1 L_qp")
    A.lab("L_qp_ok")
    stamp(6)
    if stamps: A(f"v_writelane_b32 v{vST}, s{sSPIN}, 60")
    msg_sum(0)
    A(f"v_cvt_pk_bf16_f32 v{vT}, v{SL}, v{SL+1}")
    A(f"v_lshlrev_b32 v{vT+1}, 2, v{vG}")
    A(f"v_lshl_add_u32 v{vT+1}, v{vR}, 4, v{vT+1}")
    A(f"ds_write_b32 v{vT+1}, v{vT} offset:{L_Q}")
    if colo:
        thi[0] = vTG + 1
        A(f"s_bfe_u32 s{sT}, s{sCUR}, {(1<<16)|20}")
        A(f"v_mov_b32 v{vT+2}, s{sT}")
        A(f"ds_write_b32 v{vL2}, v{vT+2} offset:{L_TG+8}")
    if noq == 2: A("s_branch L_qnl")
    if mergeB:
        A("s_waitcnt lgkmcnt(0)")
        A("s_barrier")
    if not qonlyB and 'b' not in est and not colo: storeB()
    A(f"s_cmp_eq_u32 s{sMU}, 0")
    A("s_cbranch_scc0 L_qnl")
    A(f"v_lshlrev_b32 v{vT}, 3, v{vLANE}")
    A("s_mov_b64 exec, 0xffff")
    A(f"buffer_store_dwordx2 {p2(vTG)}, v{vT}, {S4(SC)}, s{sT3} offen {'' if eplain else 'sc1'}")
    A("s_mov_b64 exec, -1")
    A.lab("L_qnl")
    A("s_waitcnt lgkmcnt(0)")
    if qprio: A("s_setprio 0")
    if mergeB: A("s_branch L_ab1")
    A.lab("L_bar1")
    A("s_barrier")
    A.lab("L_ab1")
    stamp(3)
    cut(1)
    build_masks()
    A(f"v_mov_b32 v{vL2}, 0")
    A(f"v_lshlrev_b32 v{vT}, 5, v{vR}")
    A(f"v_lshl_add_u32 v{vL0}, v{vG}, 4, v{vT}")
    A(f"s_lshl_b32 s{sPO}, s{sB}, 5")
    A(f"s_add_u32 s{sPO}, s{sPO}, s{sH}")
    A(f"s_lshl_b32 s{sPO}, s{sPO}, 1")
    A(f"s_add_u32 s{sPO}, s{sPO}, s{sSP}")
    A(f"s_lshl_b32 s{sPO}, s{sPO}, 10")
    A(f"s_add_u32 s{sPO}, s{sPO}, {hex(W_Z)}")
    vTB = vBQ + 10
    vPO = SL + 128
    vGt = vPO + 8
    vXr = vPO + 12
    if fc and not fc.get('inl'):
        A(f"s_cmp_eq_u32 s{sJ}, 2")
        A("s_cbranch_scc0 L_nz")
        A(f"s_and_b32 s{sCUR}, s2, 7")
        A(f"s_lshl_b32 s{sCUR}, s{sCUR}, 8")
        A(f"s_add_u32 s{sCUR}, s{sCUR}, {hex(W_PG)}")
        A(f"s_lshr_b32 s{sNXT}, s2, 3")
        A(f"s_lshl_b32 s{sNXT}, s{sNXT}, 2")
        A(f"s_add_u32 s{sNXT}, s{sNXT}, s{sCUR}")
        A(f"v_mov_b32 v{vT}, 0x40000000")
        A("s_mov_b64 exec, 1")
        A(f"buffer_store_dword v{vT}, v{vL2}, {S4(SC)}, s{sNXT} offen")
        A(f"buffer_store_dword v{vT}, v{vL2}, {S4(SC)}, s{sCUR} offen offset:128")
        if fc.get("glob", True):
            A("s_cmp_lt_u32 s2, 8")
            A("s_cbranch_scc0 L_nz2")
            A(f"s_add_u32 s{sT}, s{sCUR}, 0x1000")
            A(f"buffer_store_dword v{vT}, v{vL2}, {S4(SC)}, s{sT} offen sc1")
            A.lab("L_nz2")
        A("s_mov_b64 exec, -1")
        A.lab("L_nz")
    A(f"s_cmp_eq_u32 s{sJ}, 1")
    A("s_cbranch_scc1 L_f1")
    A(f"s_cmp_eq_u32 s{sJ}, 3")
    A("s_cbranch_scc0 L_wo")
    if 'c' in skip: A("s_branch L_wo")
    if not clr0 and not kev:
        for i in range(4):
            A(f"v_mov_b32 v{vBQ+i}, -1")
        A(f"s_lshl_b32 s{sT}, s2, 11")
        A(f"buffer_store_dwordx4 {q4(vBQ)}, v{vOV}, {S4(SC)}, s{sT} offen sc1")
        A(f"buffer_store_dwordx4 {q4(vBQ)}, v{vOV}, {S4(SC)}, s{sT} offen offset:1024 sc1")
    A(f"s_lshl_b32 s{sT}, s{sB}, 7")
    A(f"s_add_u32 s{sT}, s{sT}, {hex(W_EB)}")
    A(f"buffer_load_dwordx2 {p2(vTB)}, v{vL2}, {S4(SC)}, s{sT} offen sc1")
    A("s_branch L_wo")
    A.c("---- wave 5: FFN stage 1 partials ----"); A.lab("L_f1")
    if 'f' in skip: A("s_branch L_f1x")
    A(f"s_cmp_lt_u32 s{sH}, {NFFN}")
    A("s_cbranch_scc0 L_f1x")
    A(f"ds_read_b128 {q4(XE)}, v{vOV} offset:{L_XE}")
    A(f"ds_read_b128 {q4(XE+4)}, v{vOV} offset:{L_XE+1024}")
    A(f"ds_read_b64 {p2(vTG)}, v{vL2} offset:{L_TG}")
    sCO = 35
    if colo: A(f"ds_read_b32 v{vCK}, v{vL2} offset:{L_TG+8}")
    zc = not (clr0 or kev)
    if zc:
        for i in range(4):
            A(f"v_mov_b32 v{vD0+i}, -1")
        A(f"buffer_store_dwordx4 {q4(vD0)}, v{vOV}, {S4(SC)}, s{sPO} offen sc1")
    tile_mma(f"s_waitcnt vmcnt({1 if zc else 0}) lgkmcnt(0)", None)
    msg_addr(W_FP)
    A("s_nop 4")
    if colo:
        A(f"v_readfirstlane_b32 s{sCO}, v{vCK}")
        msg_pack_store(None)
        A(f"s_cmp_eq_u32 s{sCO}, 1")
        A("s_cbranch_scc1 L_f1p")
        for n in range(4):
            A(f"buffer_store_dwordx4 {q4(XD+8*n)}, v{vON}, {S4(SC)}, s{sT} offen offset:{256*n} sc1")
        A("s_branch L_f1q")
        A.lab("L_f1p")
        for n in range(4):
            A(f"buffer_store_dwordx4 {q4(XD+8*n)}, v{vON}, {S4(SC)}, s{sT} offen offset:{256*n}")
        A.lab("L_f1q")
    elif fdual:
        A(f"s_add_u32 s{sBASE}, s{sT}, {hex(W_FB-W_FP)}")
        msg_pack_store("")
        storeB()
    else:
        msg_pack_store("" if 'f' in est else "sc1")
    A("s_waitcnt vmcnt(0)")
    def zdone():
        A(f"v_mov_b32 v{vT}, {L_CM}")
        A(f"v_mov_b32 v{vT+1}, 256")
        A("s_mov_b64 exec, 1")
        A(f"ds_add_u32 v{vT}, v{vT+1}")
        A("s_mov_b64 exec, -1")
    if kev: A("s_branch L_wo")
    A.lab("L_f1x")
    zdone()
    A.c("---- wo slice -> registers ----"); A.lab("L_wo")
    stamp(4)
    cut(3)
    wooff = (lambda k: ((k >> 3) * 32 + (k & 7)) * 1024) if pt else (lambda k: k * 4096)
    def wo_setup():
        srd(SN, sWO, 0x400000)
        A(f"v_lshlrev_b32 v{vT}, {13 if pt else 10}, v{vG}")
        A(f"v_lshl_add_u32 v{vOA}, v{vR}, 4, v{vT}")
        A(f"s_lshl_b32 s{sBASE}, s{sH}, 17")
        A(f"s_lshl_b32 s{sT}, s{sJ}, 8")
        A(f"s_add_u32 s{sBASE}, s{sBASE}, s{sT}")
    wo_setup()
    if 'w' in skip: A("s_branch L_woe")
    def wo_loads(dd, hook=False):
        for k in range(32):
            if hook and k == fearly:
                A(f"s_cmp_eq_u32 s{sJ}, 1")
                A("s_cbranch_scc0 L_woc")
                A(f"s_cmp_lt_u32 s{sH}, {NFFN}")
                A("s_cbranch_scc1 L_st2")
                A.lab("L_wor")
                wo_setup()
                A.lab("L_woc")
            if k >= dd: A(f"s_waitcnt vmcnt({dd-1})")
            A(f"s_add_u32 s{sT}, s{sBASE}, {hex(wooff(k))}")
            A(f"buffer_load_dwordx4 {slot(k)}, v{vOA}, {S4(SN)}, s{sT} offen {pola}")
    if fc and fc.get("inl"):
        A(f"s_cmp_eq_u32 s{sJ}, 2")
        A("s_cbranch_scc1 L_woe")
    elif fc and fc.get("d2"):
        A(f"s_lshr_b32 s{sT}, s2, 3")
        A(f"s_or_b32 s{sT}, s{sT}, s{sJ}")
        A(f"s_cselect_b32 s{sT}, s{sJ}, {2 if fc.get('glob', True) else 0}")
        A(f"s_cmp_eq_u32 s{sT}, 2")
        A("s_cbranch_scc0 L_wos")
        wo_loads(fc["d2"])
        A("s_branch L_woe")
        A.lab("L_wos")
    wo_loads(da, bool(fearly))
    A.lab("L_woe")
    A("s_waitcnt vmcnt(0)")
    stamp(5)
    cut(4)
    A(f"v_lshrrev_b32 v{vT}, 3, v{vLANE}")
    A(f"v_lshlrev_b32 v{vT}, 11, v{vT}")
    A(f"v_and_b32 v{vT+1}, 7, v{vLANE}")
    A(f"v_lshl_add_u32 v{vPO}, v{vT+1}, 4, v{vT}")
    for n in range(1, 8):
        A(f"v_add_u32 v{vPO+n}, {hex(n*16384)}, v{vPO}")
    A(f"v_lshlrev_b32 v{vL1}, 3, v{vT+1}")
    if rs:
        A(f"v_and_b32 v{vT}, 1, v{vG}")
        A(f"v_lshl_add_u32 v{vL1}, v{vT}, 2, v{vL1}")
        A(f"v_and_b32 v{vT}, 2, v{vG}")
        A(f"v_add_u32 v{vL1}, v{vL1}, v{vT}")

    def gemv(n, ppf, waitf, issuef=None, slotf=lambda k: k):
        diag(vA0, *ppf(0))
        for k in range(n):
            Acur = vA0 if (k & 1) == 0 else vA1
            Anxt = vA1 if (k & 1) == 0 else vA0
            if k + 1 < n: diag(Anxt, *ppf(k + 1))
            else: A("s_nop 1")
            waitf(k)
            A(f"v_mfma_f32_16x16x32_bf16 {q4(vD0)}, {q4(Acur)}, {slot(slotf(k))}, {'0' if k==0 else q4(vD0)}")
            if issuef: issuef(k)
        A("s_nop 7")
    def lds_wait(mask, val):
        lab = A.uid("lw")
        A(f"v_mov_b32 v{vT}, {L_CM}")
        A(f"s_mov_b32 s{sSPIN}, 0")
        A.lab(lab)
        A(f"ds_read_b32 v{vT+1}, v{vT}")
        A("s_waitcnt lgkmcnt(0)")
        A(f"v_readfirstlane_b32 s{sT}, v{vT+1}")
        A(f"s_add_u32 s{sSPIN}, s{sSPIN}, 1")
        A(f"s_and_b32 s{sT}, s{sT}, {hex(mask)}")
        A(f"s_cmp_eq_u32 s{sT}, {hex(val)}")
        A(f"s_cbranch_scc1 {lab}_ok")
        A("s_sleep 16")
        A(f"s_cmp_lt_u32 s{sSPIN}, {SPINMAX}")
        A(f"s_cbranch_scc1 {lab}")
        A.lab(lab + "_ok")
    def poll(nload, regs, voffs, soff, sleep):
        lab = A.uid("pl")
        A(f"s_mov_b32 s{sSPIN}, 0")
        A.lab(lab)
        for n in range(nload):
            A(f"buffer_load_dwordx4 {q4(regs+4*n)}, v{voffs[n]}, {S4(SC)}, s{soff} offen sc1")
        A(f"s_add_u32 s{sSPIN}, s{sSPIN}, 1")
        for n in range(nload):
            A(f"s_waitcnt vmcnt({nload-1-n})")
            r = regs + 4 * n
            if n == 0:
                A(f"v_max3_u32 v{vT}, v{r}, v{r+1}, v{r+2}")
                A(f"v_max_u32 v{vT}, v{vT}, v{r+3}")
            else:
                A(f"v_max3_u32 v{vT}, v{vT}, v{r}, v{r+1}")
                A(f"v_max3_u32 v{vT}, v{vT}, v{r+2}, v{r+3}")
        A(f"v_cmp_eq_u32 vcc, -1, v{vT}")
        A("s_nop 1")
        A("s_cmp_eq_u64 vcc, 0")
        A(f"s_cbranch_scc1 {lab}_ok")
        if sleep: A(f"s_sleep {sleep}")
        A(f"s_cmp_lt_u32 s{sSPIN}, {SPINMAX}")
        A(f"s_cbranch_scc1 {lab}")
        A.lab(lab + "_ok")
    def reduce_rows(regs, nload):
        n = nload
        while n > 1:
            h = n // 2
            for a in range(h):
                for i in (0, 2):
                    A(f"v_pk_add_f32 {p2(regs+4*a+i)}, {p2(regs+4*a+i)}, {p2(regs+4*(a+h)+i)}")
            n = h
        if rs:
            if nload > 1: A("s_nop 1")
            A(f"v_permlane32_swap_b32 v{regs}, v{regs+1}")
            A(f"v_permlane32_swap_b32 v{regs+2}, v{regs+3}")
            A(f"v_add_f32 v{regs}, v{regs}, v{regs+1}")
            A(f"v_add_f32 v{regs+2}, v{regs+2}, v{regs+3}")
            A("s_nop 1")
            A(f"v_permlane16_swap_b32 v{regs}, v{regs+2}")
            A(f"v_add_f32 v{regs}, v{regs}, v{regs+2}")
            A("s_nop 1")
            A(f"v_add_f32_dpp v{regs}, v{regs}, v{regs} row_ror:8 row_mask:0xf bank_mask:0xf")
            return
        A("s_nop 1")
        for i in range(4):
            A(f"v_add_f32_dpp v{regs+i}, v{regs+i}, v{regs+i} row_ror:8 row_mask:0xf bank_mask:0xf")
        for sw in ("v_permlane16_swap_b32", "v_permlane32_swap_b32"):
            for i in range(4):
                A(f"v_mov_b32 v{regs+4+i}, v{regs+i}")
            A("s_nop 1")
            for i in range(4):
                A(f"{sw} v{regs+i}, v{regs+4+i}")
            A("s_nop 1")
            for i in range(4):
                A(f"v_add_f32 v{regs+i}, v{regs+i}, v{regs+4+i}")

    A(f"s_cmp_eq_u32 s{sJ}, 3")
    A("s_cbranch_scc1 L_w3")
    if fc:
        U = fc.get("U", 8)
        PEND = int(4 * U * (16 - R // 16 + fc.get("vend", 13)))
        LIM = 2 * 4 * U * 3
        sPP, sGP, sP, sE = 72, 73, 74, 78
        A(f"s_cmp_eq_u32 s{sJ}, 2")
        A("s_cbranch_scc0 L_nctl")
        A(f"s_and_b32 s{sCUR}, s2, 7")
        A(f"s_lshl_b32 s{sCUR}, s{sCUR}, 8")
        A(f"s_add_u32 s{sCUR}, s{sCUR}, {hex(W_PG)}")
        A(f"s_lshr_b32 s{sNXT}, s2, 3")
        A(f"s_lshl_b32 s{sNXT}, s{sNXT}, 2")
        A(f"s_add_u32 s{sNXT}, s{sNXT}, s{sCUR}")
        A(f"v_lshlrev_b32 v{vON}, 2, v{vLANE}")
        A(f"v_mov_b32 v{vT7}, {L_PW}")
        A(f"v_and_b32 v{vPB}, 3, v{vLANE}")
        A(f"v_lshlrev_b32 v{vPB}, 2, v{vPB}")
        A(f"s_mov_b32 s{sPP}, -1")
        for th in fc["thr"]:
            if isinstance(th, tuple):
                A(f"s_getreg_b32 s{sT}, hwreg(HW_REG_XCC_ID)")
                A(f"s_mov_b32 s79, {int(th[0] * 64 * 4 * U / 2.2)}")
                A(f"s_bitcmp1_b32 s{sT}, 0")
                A(f"s_cselect_b32 s79, {int(th[1] * 64 * 4 * U / 2.2)}, s79")
        A(f"s_mov_b32 s{sGP}, 0")
        A(f"s_mov_b32 s{sSPIN}, 0")
        A.c("---- wave 6: stream balancing loop ----"); A.lab("L_ctl")
        if fc.get("inl"):
            npr = fc["inl"]; nst = 32 // npr
            A(f"s_cmp_ge_u32 s{sSPIN}, {nst}")
            A("s_cbranch_scc1 L_ctl_r")
            for r in range(1, nst):
                A(f"s_cmp_eq_u32 s{sSPIN}, {r}")
                A(f"s_cbranch_scc1 L_cw{r}")
            for r in range(nst):
                A.lab(f"L_cw{r}")
                for k in range(r * npr, (r + 1) * npr):
                    A(f"s_add_u32 s{sT}, s{sBASE}, {hex(wooff(k))}")
                    A(f"buffer_load_dwordx4 {slot(k)}, v{vOA}, {S4(SN)}, s{sT} offen {pola}")
                if r + 1 < nst: A("s_branch L_ctl_r")
            A.lab("L_ctl_r")
        A(f"ds_read_b128 {q4(vBQ)}, v{vT7}")
        A("s_waitcnt lgkmcnt(0)")
        A(f"v_add3_u32 v{vBQ}, v{vBQ}, v{vBQ+1}, v{vBQ+2}")
        A(f"v_add_u32 v{vBQ}, v{vBQ}, v{vBQ+3}")
        A("s_mov_b64 exec, 1")
        if not fc.get("lnost"): A(f"buffer_store_dword v{vBQ}, v{vL2}, {S4(SC)}, s{sNXT} offen {fc.get('spol','')}")
        A("s_mov_b64 exec, -1")
        if fc.get("half"): A("s_mov_b32 exec_hi, 0")
        if not fc.get("lnold"): A(f"buffer_load_dword v{vBQ+4}, v{vON}, {S4(SC)}, s{sCUR} offen {fc.get('pol','sc1')}")
        if fc.get("half"): A("s_mov_b64 exec, -1")
        A(f"v_readfirstlane_b32 s{sP}, v{vBQ}")
        A(f"s_add_u32 s{sSPIN}, s{sSPIN}, 1")
        A(f"s_cmp_eq_u32 s{sPP}, -1")
        A(f"s_cselect_b32 s{sPP}, s{sP}, s{sPP}")
        A(f"s_add_u32 s{sT}, s{sP}, s{sPP}")
        A(f"s_mov_b32 s{sPP}, s{sP}")
        A("s_waitcnt vmcnt(0)")
        A(f"v_lshlrev_b32 v{vBQ+5}, 1, v{vBQ+4}")
        A(f"v_subrev_u32 v{vBQ+5}, s{sT}, v{vBQ+5}")
        A(f"v_add_u32 v{vBQ+6}, {LIM}, v{vBQ+5}")
        A(f"v_cmp_gt_u32 vcc, {2*LIM}, v{vBQ+6}")
        A("s_nop 1")
        A("s_mov_b32 vcc_hi, 0")
        A("s_nop 1")
        A(f"v_cndmask_b32 v{vBQ+5}, 0, v{vBQ+5}, vcc")
        A(f"v_readlane_b32 s{sE}, v{vBQ+4}, 32")
        for n in (8, 4, 2, 1):
            A("s_nop 1")
            A(f"v_add_u32_dpp v{vBQ+5}, v{vBQ+5}, v{vBQ+5} row_ror:{n} row_mask:0xf bank_mask:0xf")
        A("s_nop 0")
        A(f"v_readlane_b32 s{sM0}, v{vBQ+5}, 0")
        A(f"v_readlane_b32 s{sM0+1}, v{vBQ+5}, 16")
        A(f"s_add_u32 s{sT2}, s{sE}, {32*LIM}")
        A(f"s_cmp_lt_u32 s{sT2}, {64*LIM}")
        A(f"s_cselect_b32 s{sE}, s{sE}, 0")
        if not fc.get("glob", True): A(f"s_mov_b32 s{sE}, 0")
        if fc.get("clamp"):
            cl = int(fc["clamp"] * 64 * 4 * U / 2.2)
            A(f"s_min_i32 s{sE}, s{sE}, {cl}")
            A(f"s_max_i32 s{sE}, s{sE}, {-cl if not fc.get('oneside') else 0}")
        A(f"s_add_u32 s{sM0}, s{sM0}, s{sM0+1}")
        A(f"s_sub_u32 s{sE}, s{sM0}, s{sE}")
        A(f"ds_read_b128 {q4(vBQ+8)}, v{vT7}")
        A(f"ds_read_b32 v{vBQ+6}, v{vPB} offset:{L_PW}")
        A("s_waitcnt lgkmcnt(0)")
        A(f"v_add3_u32 v{vBQ+8}, v{vBQ+8}, v{vBQ+9}, v{vBQ+10}")
        A(f"v_lshlrev_b32 v{vBQ+6}, 2, v{vBQ+6}")
        A(f"v_add_u32 v{vBQ+8}, v{vBQ+8}, v{vBQ+11}")
        A(f"v_sub_u32 v{vBQ+6}, v{vBQ+8}, v{vBQ+6}")
        A(f"v_mul_i32_i24 v{vBQ+6}, {fc.get('wgain', 64)}, v{vBQ+6}")
        A(f"v_add_u32 v{vBQ+6}, s{sE}, v{vBQ+6}")
        A(f"v_mov_b32 v{vBQ+7}, 0")
        for ti, th in enumerate(fc["thr"]):
            if isinstance(th, tuple): A(f"v_cmp_le_i32 vcc, s79, v{vBQ+6}")
            else: A(f"v_cmp_le_i32 vcc, {int(th * 64 * 4 * U / 2.2)}, v{vBQ+6}")
            A("s_nop 1")
            A(f"v_addc_co_u32 v{vBQ+7}, vcc, 0, v{vBQ+7}, vcc")
        A(f"ds_write_b32 v{vPB}, v{vBQ+7} offset:{L_LV}")
        if fc.get("sleep", 0): A(f"s_sleep {fc['sleep']}")
        A(f"s_cmp_ge_u32 s{sSPIN}, {SPINMAX}")
        A("s_cbranch_scc1 L_bar2")
        A(f"s_cmp_lt_u32 s{sP}, {PEND}")
        A("s_cbranch_scc1 L_ctl")
        if fc.get("inl"):
            A(f"s_cmp_lt_u32 s{sSPIN}, {32 // fc['inl']}")
            A("s_cbranch_scc1 L_ctl")
        if fc.get("fin") is not None:
            A(f"v_max_u32 v{vBQ+7}, {fc['fin']}, v{vBQ+7}")
            A(f"ds_write_b32 v{vPB}, v{vBQ+7} offset:{L_LV}")
        if stamps: A(f"v_writelane_b32 v{vST}, s{sSPIN}, 60")
        A("s_branch L_bar2")
        A.lab("L_nctl")
        if fc.get("glob", True):
            A(f"s_lshr_b32 s{sT}, s2, 3")
            A(f"s_or_b32 s{sT}, s{sT}, s{sJ}")
            A("s_cbranch_scc1 L_nrep")
            A(f"s_lshl_b32 s{sCUR}, s2, 8")
            A(f"s_add_u32 s{sCUR}, s{sCUR}, {hex(W_PG)}")
            A(f"v_lshlrev_b32 v{vON}, 2, v{vLANE}")
            A(f"s_mov_b32 s{sGP}, 0")
            A(f"s_mov_b32 s{sSPIN}, 0")
            A(f"s_mov_b32 s{sPP}, 0")
            A(f"v_lshlrev_b32 v{vOA}, 8, v{vLANE}")
            A(f"s_mov_b32 s{sNXT}, {hex(W_PG + 0x1000)}")
            A(f"s_add_u32 s{sBASE}, s{sCUR}, 0x1000")
            if stamps: A(f"v_mov_b32 v{vPG}, 0")
            A.lab("L_rep")
            A(f"s_add_u32 s{sPP}, s{sPP}, 1")
            A(f"s_cmp_ge_u32 s{sPP}, {SPINMAX}")
            A("s_cbranch_scc1 L_bar2")
            A(f"buffer_load_dword v{vBQ+4}, v{vON}, {S4(SC)}, s{sCUR} offen sc1")
            A("s_waitcnt vmcnt(0)")
            A(f"v_readlane_b32 s{sP}, v{vBQ+4}, 0")
            A("s_nop 1")
            A(f"s_cmp_ge_u32 s{sP}, 0x10000000")
            A("s_cbranch_scc1 L_rep")
            A(f"s_add_u32 s{sSPIN}, s{sSPIN}, 1")
            A(f"v_subrev_u32 v{vBQ+5}, s{sP}, v{vBQ+4}")
            A(f"v_add_u32 v{vBQ+6}, {LIM//2}, v{vBQ+5}")
            A(f"v_cmp_gt_u32 vcc, {LIM}, v{vBQ+6}")
            A("s_nop 1")
            A(f"v_cndmask_b32 v{vBQ+5}, 0, v{vBQ+5}, vcc")
            for n in (8, 4, 2, 1):
                A("s_nop 1")
                A(f"v_add_u32_dpp v{vBQ+5}, v{vBQ+5}, v{vBQ+5} row_ror:{n} row_mask:0xf bank_mask:0xf")
            A("s_nop 0")
            A(f"v_readlane_b32 s{sM0}, v{vBQ+5}, 0")
            A(f"v_readlane_b32 s{sM0+1}, v{vBQ+5}, 16")
            A(f"s_lshl_b32 s{sT}, s{sP}, 5")
            A(f"s_add_u32 s{sT}, s{sT}, s{sM0}")
            A(f"s_add_u32 s{sT}, s{sT}, s{sM0+1}")
            A(f"s_lshl_b32 s{sT}, s{sT}, 1")
            A(f"v_mov_b32 v{vBQ+6}, s{sT}")
            A("s_mov_b64 exec, 0xff")
            if not fc.get("gnold"): A(f"buffer_load_dword v{vBQ+8}, v{vOA}, {S4(SC)}, s{sNXT} offen sc1")
            A("s_mov_b32 exec_lo, -1")
            if not fc.get("gnost"): A(f"buffer_store_dword v{vBQ+6}, v{vON}, {S4(SC)}, s{sBASE} offen {fc.get('gpol','sc1')}")
            A("s_mov_b64 exec, -1")
            A(f"s_add_u32 s{sM1}, s{sT}, s{sGP}")
            A(f"s_lshr_b32 s{sM1}, s{sM1}, 1")
            A("s_waitcnt vmcnt(1)")
            A(f"v_sub_u32 v{vBQ+8}, s{sM1}, v{vBQ+8}")
            A(f"v_add_u32 v{vBQ+9}, {32*LIM}, v{vBQ+8}")
            A(f"v_cmp_gt_u32 vcc, {64*LIM}, v{vBQ+9}")
            A("s_nop 1")
            A(f"s_lshl_b32 s{sT2}, 1, s2")
            A(f"s_xor_b32 s{sT2}, s{sT2}, 0xff")
            A(f"s_and_b32 vcc_lo, vcc_lo, s{sT2}")
            A("s_nop 1")
            A(f"v_cndmask_b32 v{vBQ+8}, 0, v{vBQ+8}, vcc")
            for n in (4, 2, 1):
                A("s_nop 1")
                A(f"v_add_u32_dpp v{vBQ+8}, v{vBQ+8}, v{vBQ+8} row_ror:{n} row_mask:0xf bank_mask:0xf")
            A("s_nop 0")
            A(f"v_readlane_b32 s{sM1}, v{vBQ+8}, 7")
            A("s_nop 0")
            A(f"s_ashr_i32 s{sM1}, s{sM1}, 3")
            A(f"s_sub_i32 s{sM1}, s{sM1}, {int(fc.get('gbias', 0.0) * 64 * 4 * U / 2.2)}")
            A(f"s_cmp_le_u32 s{sSPIN}, 1")
            A(f"s_cselect_b32 s{sM1}, 0, s{sM1}")
            A(f"s_mov_b32 s{sGP}, s{sT}")
            A(f"v_mov_b32 v{vBQ+6}, s{sM1}")
            A("s_mov_b64 exec, 1")
            if not fc.get("nost"): A(f"buffer_store_dword v{vBQ+6}, v{vL2}, {S4(SC)}, s{sCUR} offen offset:128")
            A("s_mov_b64 exec, -1")
            if fc.get("gsleep"): A(f"s_sleep {fc['gsleep']}")
            if stamps:
                A(f"s_min_u32 m0, s{sSPIN}, 47")
                A(f"s_add_u32 m0, m0, 12")
                A("s_nop 0")
                A(f"v_writelane_b32 v{vPG}, s{sM1}, m0")
            A(f"s_cmp_ge_u32 s{sSPIN}, {SPINMAX}")
            A("s_cbranch_scc1 L_bar2")
            A(f"s_cmp_lt_u32 s{sP}, {PEND - 4*U}")
            A("s_cbranch_scc1 L_rep")
            if stamps:
                srd(SE, sWS, 0x700000)
                A(f"s_lshl_b32 s{sT}, s2, 8")
                A(f"s_add_u32 s{sT}, s{sT}, 0x600000")
                A(f"buffer_store_dword v{vPG}, v{vON}, {S4(SE)}, s{sT} offen")
            A("s_branch L_bar2")
            A.lab("L_nrep")
    A(f"s_cmp_eq_u32 s{sJ}, 1")
    A("s_cbranch_scc0 L_bar2")
    A(f"s_cmp_lt_u32 s{sH}, {NFFN}")
    A("s_cbranch_scc0 L_bar2")
    if fearly or 's' in skip: A("s_branch L_bar2")
    A.c("---- wave 5: FFN stage 2 ----"); A.lab("L_st2")
    A(f"s_lshl_b32 s{sCUR}, s{sH}, 15")
    A(f"s_lshl_b32 s{sT}, s{sB}, 13")
    A(f"s_add_u32 s{sCUR}, s{sCUR}, s{sT}")
    A(f"s_add_u32 s{sCUR}, s{sCUR}, {hex(W_FP)}")
    A(f"s_add_u32 s{sNXT}, s{sCUR}, 4096")
    A(f"s_mov_b32 s{sSPIN}, 0")
    if galign:
        lds_wait(0xf, 0x4)
        A(f"s_mov_b32 s{sSPIN}, 0")
    if fstag:
        U_ = fc.get("U", 8)
        A(f"s_lshr_b32 s{sT2}, s2, 3")
        A(f"s_mul_i32 s{sT2}, s{sT2}, {fstag[1]}")
        A(f"s_add_u32 s{sT2}, s{sT2}, {fstag[0]}")
        A(f"v_mov_b32 v{vT}, {L_PW}")
        A.lab("L_fs")
        A(f"ds_read_b32 v{vT+1}, v{vT}")
        A("s_waitcnt lgkmcnt(0)")
        A(f"v_readfirstlane_b32 s{sT}, v{vT+1}")
        A(f"s_add_u32 s{sSPIN}, s{sSPIN}, 1")
        A(f"s_cmp_ge_u32 s{sT}, s{sT2}")
        A("s_cbranch_scc1 L_fs_ok")
        A("s_sleep 8")
        A(f"s_cmp_lt_u32 s{sSPIN}, {SPINMAX}")
        A("s_cbranch_scc1 L_fs")
        A.lab("L_fs_ok")
        A(f"s_mov_b32 s{sSPIN}, 0")
    if 'g' in skip: A("s_branch L_fp_ok")
    if colo:
        A(f"s_cmp_eq_u32 s{sCO}, 1")
        A("s_cbranch_scc0 L_fp")
        msg_round(40, gpace, "nt")
        A("s_cbranch_scc1 L_fp_ok")
    if fdual:
        A.lab("L_fa")
        msg_round(40, gpace, polGA)
        A("s_cbranch_scc1 L_fp_ok")
        A("s_sleep 16")
        A(f"s_cmp_lt_u32 s{sSPIN}, 4")
        A("s_cbranch_scc1 L_fa")
        A(f"s_add_u32 s{sCUR}, s{sCUR}, {hex(W_FB-W_FP)}")
        A(f"s_add_u32 s{sNXT}, s{sNXT}, {hex(W_FB-W_FP)}")
    A.lab("L_fp")
    msg_round(40, gpace, "nt" if 'n' in est else "sc1")
    A("s_cbranch_scc1 L_fp_ok")
    A("s_sleep 16")
    A(f"s_cmp_lt_u32 s{sSPIN}, {SPINMAX}")
    A("s_cbranch_scc1 L_fp")
    A.lab("L_fp_ok")
    msg_sum(40)
    H = SL + 160
    for i in range(2):
        rne(H + i, vT)
    A("s_nop 1")
    for i in range(2):
        A(f"v_mov_b32_dpp v{vBQ+i}, v{H+i} row_ror:8 row_mask:0xf bank_mask:0xf")
    for i in range(2):
        silu(H + i, vT)
        rne(H + i, vT)
        A(f"v_mul_f32 v{H+i}, v{H+i}, v{vBQ+i}")
        A(f"v_cvt_pk_bf16_f32 v{vP0+i}, v{H+i}, v{H+i}")
    srd(SA, sW2, 0 if '2' in skip else 1792 * 512 * 2)
    A(f"v_lshlrev_b32 v{vT}, 11, v{vG}")
    A(f"v_lshl_add_u32 v{vOA}, v{vR}, 4, v{vT}")
    A(f"s_lshl_b32 s{sBASE}, s{sH}, 16")
    A(f"s_lshl_b32 s{sT}, s{sSP}, 9")
    A(f"s_add_u32 s{sBASE}, s{sBASE}, s{sT}")
    fsl = lambda k: 40 + (k & 7)
    def w2load(kk):
        cb, k = kk >> 4, kk & 15
        A(f"s_add_u32 s{sT}, s{sBASE}, {hex((8*(k&7) + (k>>3))*1024 + cb*256)}")
        A(f"buffer_load_dwordx4 {slot(fsl(kk))}, v{vOA}, {S4(SA)}, s{sT} offen {pola}")
    for cb in range(2):
        for k in range(df): w2load(16 * cb + k)
        gemv(16, lambda k: (vP0 + (k >> 3), k & 7),
             lambda k: A(f"s_waitcnt vmcnt({min(df-1, 15-k)})"),
             lambda k: w2load(16 * cb + k + df) if k + df < 16 else None, fsl)
        zr = vD1 if (mergeZ and cb == 0) else vD0
        for i in range(4):
            if not kev: A(f"v_min_u32 v{zr+i}, -2, v{vD0+i}")
            elif zr != vD0: A(f"v_mov_b32 v{zr+i}, v{vD0+i}")
        if mergeZ and cb == 0: continue
        if mergeZ == 2: lds_wait(*((0xf, 0x4) if VEV is None else (0xf000, 0x4000)))
        A("s_mov_b32 exec_hi, 0")
        if mergeZ and 'Z' not in est: A(f"buffer_store_dwordx4 {q4(vD1)}, v{vL0}, {S4(SC)}, s{sPO} offen sc1")
        if 'Z' not in est: A(f"buffer_store_dwordx4 {q4(vD0)}, v{vL0}, {S4(SC)}, s{sPO} offen offset:{512*cb} sc1")
        A("s_mov_b64 exec, -1")
    if kev:
        A("s_waitcnt vmcnt(0)")
        zdone()
    stamp(6)
    A("s_branch L_wor" if fearly else "s_branch L_bar2")
    A.c("---- wave 7: softmax merge factors, gate values ----"); A.lab("L_w3")
    if bare == 5 or 'm' in skip:
        A("s_branch L_bar2")
    tag_from_epoch(vTB, vT)
    if vwarm:
        srd(SA, sV, 0x10000000)
        A(f"s_lshl_b32 s{sT}, s{sB}, 26")
        A(f"s_lshl_b32 s{sT2}, s{sH}, 21")
        A(f"s_or_b32 s{sT}, s{sT}, s{sT2}")
        A(f"buffer_load_dword v{vT+9}, v{vL2}, {S4(SA)}, s{sT} offen nt")
    if kev:
        lds_wait(*((0xf, 0x4) if VEV is None else (0xf000, 0x4000)))
        for i in range(4):
            A(f"v_mov_b32 v{vD0+i}, -1")
        A(f"s_lshl_b32 s{sT}, s2, 11")
        if 'Y' not in est:
            A(f"buffer_store_dwordx4 {q4(vD0)}, v{vOV}, {S4(SC)}, s{sT} offen sc1")
            A(f"buffer_store_dwordx4 {q4(vD0)}, v{vOV}, {S4(SC)}, s{sT} offen offset:1024 sc1")
        A("s_waitcnt vmcnt(0)")
    lds_wait(0x10f, 0x104)
    A(f"v_mov_b32 v{vT}, {L_ML}")
    A(f"ds_read_b128 {q4(vBQ)}, v{vT}")
    A(f"ds_read_b128 {q4(vBQ+4)}, v{vT} offset:16")
    A("s_waitcnt lgkmcnt(0)")
    A(f"v_max_f32 v{vBQ+8}, v{vBQ}, v{vBQ+2}")
    A(f"v_max3_f32 v{vBQ+8}, v{vBQ+8}, v{vBQ+4}, v{vBQ+6}")
    A(f"v_mov_b32 v{vBQ+9}, 0")
    A(f"s_mov_b32 s{sT2}, {hex(LOG2E)}")
    for w in range(4):
        A(f"v_sub_f32 v{vT}, v{vBQ+2*w}, v{vBQ+8}")
        A(f"v_mul_f32 v{vT}, s{sT2}, v{vT}")
        A(f"v_exp_f32 v{vT}, v{vT}")
        A("s_nop 0")
        A(f"v_fmac_f32 v{vBQ+9}, v{vT}, v{vBQ+2*w+1}")
    A(f"s_lshl_b32 s{sT}, s2, {7 if fullml else 4}")
    A(f"s_add_u32 s{sT}, s{sT}, {hex(W_ML)}")
    A(f"s_mov_b64 exec, {0xff if fullml else 1}")
    A(f"buffer_store_dwordx4 {q4(vBQ+8)}, v{vOV}, {S4(SC)}, s{sT} offen {'' if 'M' in est else 'sc1'}")
    A("s_mov_b64 exec, -1")
    stamp(6)
    lds_wait(0xf0, 0x40)
    A(f"s_lshl_b32 s{sNXT}, s{sB}, {13 if fullml else 10}")
    A(f"s_add_u32 s{sNXT}, s{sNXT}, {hex(W_ML)}")
    A(f"s_mov_b32 s{sSPIN}, 0")
    A(f"v_lshlrev_b32 v{vON}, {7 if fullml else 4}, v{vLANE}")
    if fullml:
        A(f"s_cmp_ge_u32 s{sIDX}, {64 if 'M' in est else 48}")
        A("s_cbranch_scc1 L_ml")
        A(f"s_xor_b32 s{sT}, s{sIDX}, 8")
        A(f"s_lshl_b32 s{sT}, s{sT}, 7")
        A(f"v_mov_b32 v{vON}, s{sT}")
    A.lab("L_ml")
    A(f"buffer_load_dwordx4 {q4(vBQ+12)}, v{vON}, {S4(SC)}, s{sNXT} offen sc1")
    A(f"s_add_u32 s{sSPIN}, s{sSPIN}, 1")
    A("s_waitcnt vmcnt(0)")
    A(f"v_xor_b32 v{vT}, v{vBQ+14}, v{vTB}")
    A(f"v_xor_b32 v{vT+1}, v{vBQ+15}, v{vTB+1}")
    A(f"v_or_b32 v{vT}, v{vT}, v{vT+1}")
    A(f"v_cmp_ne_u32 vcc, 0, v{vT}")
    A("s_nop 1")
    A("s_cmp_eq_u64 vcc, 0")
    A("s_cbranch_scc1 L_ml_ok")
    A("s_sleep 16")
    A(f"s_cmp_lt_u32 s{sSPIN}, {SPINMAX}")
    A("s_cbranch_scc1 L_ml")
    A.lab("L_ml_ok")
    A(f"s_xor_b32 s{sT}, s{sIDX}, 8")
    A("s_nop 0")
    A(f"v_readlane_b32 s{sM0}, v{vBQ+12}, s{sT}")
    A(f"v_readlane_b32 s{sM0+1}, v{vBQ+13}, s{sT}")
    A("s_nop 1")
    A(f"v_max_f32 v{vBQ+14}, s{sM0}, v{vBQ+8}")
    A(f"v_sub_f32 v{vT}, v{vBQ+8}, v{vBQ+14}")
    A(f"v_sub_f32 v{vT+1}, s{sM0}, v{vBQ+14}")
    A(f"v_mul_f32 v{vT}, s{sT2}, v{vT}")
    A(f"v_mul_f32 v{vT+1}, s{sT2}, v{vT+1}")
    A(f"v_exp_f32 v{vT}, v{vT}")
    A(f"v_exp_f32 v{vT+1}, v{vT+1}")
    A("s_nop 0")
    A(f"v_mul_f32 v{vT}, v{vT}, v{vBQ+9}")
    A(f"v_fmac_f32 v{vT}, s{sM0+1}, v{vT+1}")
    A(f"v_rcp_f32 v{vT+1}, v{vT}")
    for w in range(4):
        A(f"v_sub_f32 v{vT+2+w}, v{vBQ+2*w}, v{vBQ+14}")
        A(f"v_mul_f32 v{vT+2+w}, s{sT2}, v{vT+2+w}")
        A(f"v_exp_f32 v{vT+2+w}, v{vT+2+w}")
        A("s_nop 0")
        A(f"v_mul_f32 v{vT+2+w}, v{vT+2+w}, v{vT+1}")
    A(f"v_mov_b32 v{vT}, {L_FW}")
    A("s_mov_b64 exec, 1")
    A(f"ds_write_b128 v{vT}, {q4(vT+2)}")
    A("s_mov_b64 exec, -1")
    A(f"s_cmp_ge_u32 s{sIDX}, 48")
    A("s_cbranch_scc0 L_w3x")
    A(f"s_cmp_eq_u32 s{sIDX}, 48")
    A("s_cbranch_scc0 L_neb")
    A(f"s_lshl_b32 s{sT}, s{sB}, 7")
    A(f"s_add_u32 s{sT}, s{sT}, {hex(W_EB)}")
    A(f"v_lshlrev_b32 v{vT+1}, 3, v{vLANE}")
    A("s_mov_b64 exec, 0xffff")
    A(f"buffer_store_dwordx2 {p2(vTB)}, v{vT+1}, {S4(SC)}, s{sT} offen {'' if eplain else 'sc1'}")
    A("s_mov_b64 exec, -1")
    A.lab("L_neb")
    srd(SA, sX, 4096)
    A(f"s_sub_u32 s{sT2}, s{sIDX}, 48")
    A(f"s_lshl_b32 s{sT3}, s{sT2}, 6")
    A(f"s_lshl_b32 s{sT}, s{sB}, 10")
    A(f"s_add_u32 s{sT3}, s{sT3}, s{sT}")
    if rs: A(f"buffer_load_ushort v{vXr}, v{vL1}, {S4(SA)}, s{sT3} offen")
    else: A(f"buffer_load_dwordx2 {p2(vXr)}, v{vL1}, {S4(SA)}, s{sT3} offen")
    A(f"v_cmp_gt_u32 vcc, {(NFFN-24)*8}, v{vLANE}")
    A(f"v_mov_b32 v{vT+3}, 0x40000000")
    A("s_nop 0")
    A(f"v_cndmask_b32 v{vON}, v{vT+3}, v{vPO+3}, vcc")
    A(f"s_lshl_b32 s{sCUR}, s{sB}, 16")
    A(f"s_lshl_b32 s{sT}, s{sT2}, 7")
    A(f"s_add_u32 s{sCUR}, s{sCUR}, s{sT}")
    A(f"s_add_u32 s{sCUR}, s{sCUR}, {hex(W_Z)}")
    if kev:
        for n, vo in enumerate([vPO, vPO + 1, vPO + 2, vON]):
            A(f"buffer_load_dwordx4 {q4(vBQ+4*n)}, v{vo}, {S4(SC)}, s{sCUR} offen sc1")
        A("s_waitcnt vmcnt(0)")
    elif 's' not in skip: poll(4, vBQ, [vPO, vPO + 1, vPO + 2, vON], sCUR, 16)
    reduce_rows(vBQ, 4)
    for i in range(1 if rs else 4):
        rne(vBQ + i, vT + 1)
        silu(vBQ + i, vT + 1)
        rne(vBQ + i, vT + 1)
        A(f"v_mov_b32 v{vGt+i}, v{vBQ+i}")
    if not rs:
        A(f"v_and_b32 v{vXr+3}, 0xffff0000, v{vXr+1}")
        A(f"v_lshlrev_b32 v{vXr+2}, 16, v{vXr+1}")
        A(f"v_and_b32 v{vXr+1}, 0xffff0000, v{vXr}")
    A(f"v_lshlrev_b32 v{vXr}, 16, v{vXr}")
    A(f"s_lshl_b32 s{sCUR}, s{sB}, 17")
    A(f"s_lshl_b32 s{sT}, s{sT2}, 7")
    A(f"s_add_u32 s{sCUR}, s{sCUR}, s{sT}")
    A.lab("L_w3x")
    A("s_waitcnt lgkmcnt(0)")
    A.c("---- tail: output projection, final reduction ----"); A.lab("L_bar2")
    if pt:
        A("s_waitcnt vmcnt(0)")
        A(f"s_mov_b32 s{sM0}, 0x05040100")
        A(f"s_mov_b32 s{sM0+1}, 0x07060302")
        BB = lambda s_: SL + 160 if s_ == 0 else SL + 32 * (s_ - 1)
        for s_ in range(4):
            for jj in range(8):
                for m in range(4):
                    lo = SL + 4 * (8 * s_ + 2 * m) + (jj >> 1)
                    hi = SL + 4 * (8 * s_ + 2 * m + 1) + (jj >> 1)
                    A(f"v_perm_b32 v{BB(s_)+4*jj+m}, v{hi}, v{lo}, s{sM0 + (jj & 1)}")
        A(f"v_and_b32 v{vT}, 3, v{vR}")
        A(f"v_mul_u32_u24 v{vT}, 320, v{vT}")
        A(f"v_lshlrev_b32 v{vT+3}, 4, v{vG}")
        A(f"v_add_u32 v{vT}, {L_OP}, v{vT}")
        A(f"v_add_u32 v{vT}, v{vT}, v{vT+3}")
        A(f"v_xor_b32 v{vT+1}, {L_ZR + 32}, v{vT+3}")
        A(f"v_and_b32 v{vT+2}, 4, v{vR}")
        A(f"v_cmp_eq_u32 vcc, 0, v{vT+2}")
        A("s_nop 1")
        A(f"v_cndmask_b32 v{vP0}, v{vT+1}, v{vT}, vcc")
        A(f"v_cndmask_b32 v{vP1}, v{vT}, v{vT+1}, vcc")
    A(f"v_lshlrev_b32 v{vT}, 4, v{vR}")
    A(f"v_lshl_add_u32 v{vT}, v{vG}, 2, v{vT}")
    A(f"v_mov_b32 v{vT+1}, {L_FW}")
    A(f"s_lshl_b32 s{sNXT}, s2, 11")
    A(f"s_lshl_b32 s{sT}, s{sJ}, 9")
    A(f"s_add_u32 s{sNXT}, s{sNXT}, s{sT}")
    srd(SA, sOUT, 4096)
    A(f"s_cmp_ge_u32 s{sIDX}, 48")
    A(f"s_cselect_b32 s{sLV}, 1, 0")
    if 'P' in est:
        A(f"s_sub_u32 s{sT2}, s{sIDX}, 48")
        A(f"s_lshl_b32 s{sCUR}, s{sB}, 17")
        A(f"s_lshl_b32 s{sT}, s{sT2}, 7")
        A(f"s_add_u32 s{sCUR}, s{sCUR}, s{sT}")
        A(f"s_cmp_eq_u32 s{sJ}, 3")
        A(f"s_cselect_b32 s{SA+2}, 4096, 0")
    else:
        A(f"s_cmp_eq_u32 s{sJ}, 3")
        A(f"s_cselect_b32 s{sLV}, s{sLV}, 0")
    if mpoll:
        A(f"v_lshrrev_b32 v{vT+2}, 3, v{vLANE}")
        A(f"v_lshlrev_b32 v{vT+2}, 14, v{vT+2}")
        A(f"v_and_b32 v{vT+3}, 7, v{vLANE}")
        A(f"v_lshl_add_u32 v{vPO}, v{vT+3}, 4, v{vT+2}")
        for n in range(1, 8):
            A(f"v_add_u32 v{vPO+n}, {hex(n*2048)}, v{vPO}")
        for n in range(8):
            A(f"s_mov_b64 s[{80+2*n}:{81+2*n}], -1")
    stamp(7)
    A("s_barrier")
    if bare in (5, 6) or 't' in skip: A("s_endpgm")
    if not pt:
        A(f"ds_read_b128 {q4(vBQ+8)}, v{vT+1}")
        for w in range(4):
            A(f"ds_read_b32 v{vBQ+w}, v{vT} offset:{L_OP + w*512}")
            A(f"ds_read_b32 v{vBQ+4+w}, v{vT} offset:{L_OP + w*512 + 256}")
        A("s_waitcnt lgkmcnt(0)")
        for u, p in ((0, vP0), (1, vP1)):
            A(f"v_mul_f32 v{p}, v{vBQ+4*u}, v{vBQ+8}")
        for w in range(1, 4):
            for u, p in ((0, vP0), (1, vP1)):
                A(f"v_fmac_f32 v{p}, v{vBQ+4*u+w}, v{vBQ+8+w}")
        A(f"v_cvt_pk_bf16_f32 v{vP0}, v{vP0}, v{vP0}")
        A(f"v_cvt_pk_bf16_f32 v{vP1}, v{vP1}, v{vP1}")
        A("s_nop 1")
    RA, RB = (SL + 96 if pt else SL + 160), SL
    def pissue(r0):
        for n in range(8):
            A(f"buffer_load_dwordx4 {q4(r0+4*n)}, v{vPO+n}, {S4(SC)}, s{sCUR} offen sc1")
    def early(k):
        ks = poll2 if isinstance(poll2, tuple) else (poll2,)
        if poll2 and k in ks:
            A(f"s_cmp_eq_u32 s{sLV}, 1")
            A(f"s_cbranch_scc0 L_ne{k}")
            pissue(RA)
            A.lab(f"L_ne{k}")
    if pt:
        AF = [vBQ, vBQ + 4, vBQ + 8, vBQ + 12, SL + 144, SL + 148, SL + 152, SL + 156]
        ACC = [vD0, vD1, vA0, vA1]
        FWr = vT + 2
        YO = vBQ
        for s_ in range(4):
            A(f"ds_read_b128 {q4(AF[2*s_])}, v{vP0} offset:{64*s_}")
            A(f"ds_read_b128 {q4(AF[2*s_+1])}, v{vP1} offset:{64*s_}")
        A(f"ds_read_b128 {q4(FWr)}, v{vT+1}")
        n = 0
        for s_ in range(4):
            A(f"s_waitcnt lgkmcnt({7-2*s_})")
            for i in range(4):
                for hl in range(2):
                    A(f"v_mfma_f32_16x16x32_bf16 {q4(ACC[i])}, {q4(AF[2*s_+hl])}, {q4(BB(s_)+4*(4*hl+i))}, {'0' if (s_==0 and hl==0) else q4(ACC[i])}")
                    early(n); n += 1
        A("s_waitcnt lgkmcnt(0)")
        A("s_mov_b32 exec_hi, 0")
        for i in range(4):
            A(f"v_pk_mul_f32 {p2(vT+6)}, {p2(ACC[i])}, {p2(FWr)}")
            A(f"v_pk_fma_f32 {p2(vT+6)}, {p2(ACC[i]+2)}, {p2(FWr+2)}, {p2(vT+6)}")
            A(f"v_add_f32 v{YO+i}, v{vT+6}, v{vT+7}")
            A(f"v_min_u32 v{YO+i}, -2, v{YO+i}")
        A(f"buffer_store_dwordx4 {q4(YO)}, v{vL0}, {S4(SC)}, s{sNXT} offen sc1")
    else:
        gemv(32, lambda k: (vP0 + (k >> 4), k & 15), lambda k: None, early)
        for i in range(4):
            A(f"v_min_u32 v{vD0+i}, -2, v{vD0+i}")
        A("s_mov_b32 exec_hi, 0")
        A(f"buffer_store_dwordx4 {q4(vD0)}, v{vL0}, {S4(SC)}, s{sNXT} offen sc1")
    A("s_mov_b64 exec, -1")
    stamp(8)
    A(f"s_cmp_eq_u32 s{sLV}, 1")
    A("s_cbranch_scc0 L_auxend")
    if mpoll:
        FR = SL + 64
        PM = lambda n: f"s[{80+2*n}:{81+2*n}]"
        A(f"s_mov_b32 s{sSPIN}, 0")
        A.lab("L_mp")
        for n in range(8):
            A(f"s_mov_b64 exec, {PM(n)}")
            A(f"buffer_load_dwordx4 {q4(RA+4*n)}, v{vPO+n}, {S4(SC)}, s{sCUR} offen sc1")
        A("s_mov_b64 exec, -1")
        A(f"s_add_u32 s{sSPIN}, s{sSPIN}, 1")
        A(f"s_waitcnt vmcnt({8*(mpoll-1)})")
        for n in range(8):
            r = RA + 4 * n
            A(f"s_cmp_eq_u64 {PM(n)}, 0")
            A(f"s_cbranch_scc1 L_ms{n}")
            A(f"v_max3_u32 v{vT}, v{r}, v{r+1}, v{r+2}")
            A(f"v_max_u32 v{vT}, v{vT}, v{r+3}")
            A(f"v_cmp_eq_u32 {PM(n)}, -1, v{vT}")
            A.lab(f"L_ms{n}")
        A("s_nop 1")
        A(f"s_or_b64 s[{sM0}:{sM0+1}], {PM(0)}, {PM(1)}")
        for n in range(2, 8):
            A(f"s_or_b64 s[{sM0}:{sM0+1}], s[{sM0}:{sM0+1}], {PM(n)}")
        A("s_cbranch_scc0 L_mpd")
        A(f"s_cmp_lt_u32 s{sSPIN}, {SPINMAX}")
        A("s_cbranch_scc1 L_mp")
        A.lab("L_mpd")
        for a in range(4):
            for i in (0, 2):
                A(f"v_pk_add_f32 {p2(FR+4*a+i)}, {p2(RA+4*a+i)}, {p2(RA+4*(a+4)+i)}")
        reduce_rows(FR, 4)
    elif poll2:
        FR = SL + 64
        def pcheck(r0):
            for n in range(8):
                A(f"s_waitcnt vmcnt({15-n})")
                r = r0 + 4 * n
                if n == 0:
                    A(f"v_max3_u32 v{vT}, v{r}, v{r+1}, v{r+2}")
                    A(f"v_max_u32 v{vT}, v{vT}, v{r+3}")
                else:
                    A(f"v_max3_u32 v{vT}, v{vT}, v{r}, v{r+1}")
                    A(f"v_max3_u32 v{vT}, v{vT}, v{r+2}, v{r+3}")
                    for i in (0, 2):
                        A(f"v_pk_add_f32 {p2(FR+i)}, {p2((r0 if n == 1 else FR)+i)}, {p2(r+i)}")
            A(f"v_cmp_eq_u32 vcc, -1, v{vT}")
            A("s_nop 1")
            A("s_cmp_eq_u64 vcc, 0")
            A("s_cbranch_scc1 L_p2c")
        A(f"s_mov_b32 s{sSPIN}, 0")
        A.lab("L_p2")
        pissue(RB)
        pcheck(RA)
        pissue(RA)
        pcheck(RB)
        A(f"s_add_u32 s{sSPIN}, s{sSPIN}, 1")
        A(f"s_cmp_lt_u32 s{sSPIN}, {SPINMAX}")
        A("s_cbranch_scc1 L_p2")
        A.lab("L_p2c")
        reduce_rows(FR, 1)
    else:
        FR = SL
        poll(8, SL, [vPO + n for n in range(8)], sCUR, 1)
        reduce_rows(SL, 8)
    if rs:
        A(f"s_mov_b32 exec_lo, 0x00ff00ff")
        A(f"s_mov_b32 exec_hi, 0x00ff00ff")
        rne(FR, vT)
        A(f"v_mul_f32 v{FR}, v{FR}, v{vGt}")
        rne(FR, vT)
        A(f"v_add_f32 v{FR}, v{FR}, v{vXr}")
        A(f"v_cvt_pk_bf16_f32 v{FR}, v{FR}, v{FR}")
        A(f"buffer_store_short v{FR}, v{vL1}, {S4(SA)}, s{sT3} offen {polo}")
    else:
        for i in range(4):
            rne(FR + i, vT + i)
        for i in range(4):
            A(f"v_mul_f32 v{FR+i}, v{FR+i}, v{vGt+i}")
        for i in range(4):
            rne(FR + i, vT + i)
        for i in range(4):
            A(f"v_add_f32 v{FR+i}, v{FR+i}, v{vXr+i}")
        A(f"v_cvt_pk_bf16_f32 v{FR+4}, v{FR}, v{FR+1}")
        A(f"v_cvt_pk_bf16_f32 v{FR+5}, v{FR+2}, v{FR+3}")
        A("s_mov_b64 exec, 0xff")
        A(f"buffer_store_dwordx2 v[{FR+4}:{FR+5}], v{vL1}, {S4(SA)}, s{sT3} offen {polo}")
    A("s_mov_b64 exec, -1")
    stamp(9)
    A.lab("L_auxend")
    stamp_flush()
    A.lab("L_end")
    A("s_endpgm")

    ref = open("recurrent_scan__mha_block_cached__glu_gated_swiglu__decode.s.ref").read()
    out = ref.split("; @launch")[0]
    out += f"; @launch grid=(256,1,1) block=(512,1,1) lds={LDS}\n"
    out += DOC
    out += '.amdgcn_target "amdgcn-amd-amdhsa--gfx950"\n.text\n'
    out += f".globl {NAME}\n.p2align 8\n.type {NAME},@function\n{NAME}:\n"
    out += "\n".join(A.L) + "\n"
    out += '.section .rodata,"a"\n.p2align 6\n'
    out += f".amdhsa_kernel {NAME}\n"
    out += f"  .amdhsa_next_free_vgpr {NV}\n  .amdhsa_next_free_sgpr {96 if mpoll else 80}\n  .amdhsa_accum_offset {NV}\n"
    out += "  .amdhsa_group_segment_fixed_size 0\n  .amdhsa_kernarg_size 96\n  .amdhsa_user_sgpr_count 2\n"
    out += "  .amdhsa_user_sgpr_kernarg_segment_ptr 1\n  .amdhsa_system_sgpr_workgroup_id_x 1\n.end_amdhsa_kernel\n"
    return out

if __name__ == "__main__":
    fn = sys.argv[1]
    kw = eval("dict(%s)" % (sys.argv[2] if len(sys.argv) > 2 else ""))
    open(fn, "w").write(gen(**kw))
```
